```python
import torch

def _softmax(x, axis=-1):
    return torch.softmax(x, dim=axis)
def _gelu(x):
    return torch.nn.functional.gelu(x, approximate="tanh")
def _silu(x):
    return torch.nn.functional.silu(x)
def _sigmoid(x):
    return torch.sigmoid(x)
def _layernorm(x, axis=-1, eps=1e-5):
    m = x.mean(dim=axis, keepdim=True)
    v = x.var(dim=axis, keepdim=True, unbiased=False)
    return (x - m) / torch.sqrt(v + eps)
def _scatter_add(tgt, idx, src, axis=0):
    return tgt.clone().index_add_(axis, idx, src)
def _segment_sum(src, seg, n):
    out = torch.zeros((n,) + src.shape[1:], dtype=src.dtype)
    return out.index_add_(0, seg, src)
def _pad(x, pw):
    flat = tuple(v for pair in reversed(pw) for v in pair)
    return torch.nn.functional.pad(x, flat)

kernel_name = 'parallel_sum__ssm_conv_s4__moe_arch_mod__prompt'

def setup_inputs():

    _w = (lambda a: (lambda t: t.to(torch.bfloat16) if t.is_floating_point() else t)(torch.as_tensor(a)))
    def _A_setup():
        B, L, D, N = 1, 2048, 512, 128
        A_re = -(lambda _x: torch.exp(torch.as_tensor(_x)))((lambda *s: torch.randn(*s, dtype=torch.bfloat16) * 3.2)(D, N))
        A_im = torch.pi * (lambda *s: torch.randn(*s, dtype=torch.bfloat16) * 0.1)(D, N)
        B_re = (lambda *s: torch.randn(*s, dtype=torch.bfloat16) * 0.4)(D, N)
        B_im = (lambda *s: torch.randn(*s, dtype=torch.bfloat16) * 0.4)(D, N)
        C_re = (lambda *s: torch.randn(*s, dtype=torch.bfloat16) * 0.4)(D, N)
        C_im = (lambda *s: torch.randn(*s, dtype=torch.bfloat16) * 0.4)(D, N)
        log_dt = (lambda *s: torch.randn(*s, dtype=torch.bfloat16) * 0.1)(D) * 0.5 - 4.0
        Dskip = (lambda *s: torch.randn(*s, dtype=torch.bfloat16) * 0.1)(D)
        return {
            "u": _w((lambda *s: torch.randn(*s, dtype=torch.bfloat16) * 0.05)(B, L, D)),
            "A_re": _w(A_re),
            "A_im": _w(A_im),
            "B_re": _w(B_re),
            "B_im": _w(B_im),
            "C_re": _w(C_re),
            "C_im": _w(C_im),
            "log_dt": _w(log_dt),
            "Dskip": _w(Dskip),
        }
    _A_in = _A_setup()

    def _B_setup():
        B, S, D, F, C = 1, 2048, 512, 1792, 2
        return {
            "x": _w((lambda *s: torch.randn(*s, dtype=torch.bfloat16) * 0.05)(B, S, D)),
            "w_r": _w((lambda *s: torch.randn(*s, dtype=torch.bfloat16) * 0.05)(D)),
            "w_gate": _w((lambda *s: torch.randn(*s, dtype=torch.bfloat16) * 0.05)(D, F)),
            "w_up": _w((lambda *s: torch.randn(*s, dtype=torch.bfloat16) * 0.05)(D, F)),
            "w_down": _w((lambda *s: torch.randn(*s, dtype=torch.bfloat16) * 0.05)(F, D)),
        }
    _B_in = _B_setup()

    return {
        "A_u": _A_in["u"],
        "A_A_re": _A_in["A_re"],
        "A_A_im": _A_in["A_im"],
        "A_B_re": _A_in["B_re"],
        "A_B_im": _A_in["B_im"],
        "A_C_re": _A_in["C_re"],
        "A_C_im": _A_in["C_im"],
        "A_log_dt": _A_in["log_dt"],
        "A_Dskip": _A_in["Dskip"],
        "B_x": _B_in["x"],
        "B_w_r": _B_in["w_r"],
        "B_w_gate": _B_in["w_gate"],
        "B_w_up": _B_in["w_up"],
        "B_w_down": _B_in["w_down"],
    }

def reference(A_u, A_A_re, A_A_im, A_B_re, A_B_im, A_C_re, A_C_im, A_log_dt, A_Dskip, B_x, B_w_r, B_w_gate, B_w_up, B_w_down):
    def _A_ref(u, A_re, A_im, B_re, B_im, C_re, C_im, log_dt, Dskip):
        Bsz, L, D = u.shape
        dt = torch.exp(log_dt)[:, None]
        A = A_re + 1j * A_im
        Bc = B_re + 1j * B_im
        Cc = C_re + 1j * C_im
        logdA = dt * A
        dB = dt * Bc
        l = (lambda x, dt: x.to(dt))(torch.arange(L), A_re.dtype)
        P = torch.exp(logdA[:, :, None] * l[None, None, :])
        K = torch.einsum("dn,dnl,dn->dl", Cc, P, dB).real
        L2 = 2 * L
        Kp = _pad(K, ((0, 0), (0, L)))
        up = (lambda x, *d: x.permute(*d))(u, 0, 2, 1)
        up = _pad(up, ((0, 0), (0, 0), (0, L)))
        Kf = (lambda x, axes=(-2,-1): torch.fft.rfft2(x.float(), dim=axes))(Kp[:, None, :], axes=(-2, -1))
        Uf = (lambda x, axes=(-2,-1): torch.fft.rfft2(x.float(), dim=axes))(up[:, :, None, :], axes=(-2, -1))
        Yf = Uf * Kf[None, :, :, :]
        y = (lambda x, s, axes=(-2,-1): torch.fft.irfft2(x, s=s, dim=axes).to(torch.bfloat16))(Yf, (1, L2), axes=(-2, -1))[:, :, 0, :L]
        y = (lambda x, *d: x.permute(*d))(y, 0, 2, 1) + u * Dskip[None, None, :]
        return y

    def _B_ref(x, w_r, w_gate, w_up, w_down):
        B, S, D = x.shape
        C = 2
        r = x @ w_r
        idx = torch.argsort(-r, axis=-1)[:, :C]
        idx_e = (lambda x, n, axis: torch.repeat_interleave(x, n, dim=axis))(idx.reshape(B, C, 1), D, axis=2)
        x_sel = (lambda x, i, axis: torch.take_along_dim(x, i, dim=axis))(x, idx_e, axis=1)
        g = _silu(x_sel @ w_gate)
        u = x_sel @ w_up
        y = (g * u) @ w_down
        r_sel = _sigmoid((lambda x, i, axis: torch.take_along_dim(x, i, dim=axis))(r, idx, axis=1))
        y = y * r_sel.reshape(B, C, 1)
        b_off = (torch.arange(B) * S).reshape(B, 1)
        flat_idx = (idx + b_off).reshape(B * C)
        zero = (x * 0.0).reshape(B * S, D)
        upd = _scatter_add(zero, flat_idx, y.reshape(B * C, D), axis=0)
        return x + upd.reshape(B, S, D)

    x = A_u
    xn = _layernorm(x, axis=-1)
    return x + _A_ref(xn, A_A_re, A_A_im, A_B_re, A_B_im, A_C_re, A_C_im, A_log_dt, A_Dskip) + _B_ref(xn, B_w_r, B_w_gate, B_w_up, B_w_down)
```

```python
import sys, struct, math

KNAME = "parallel_sum__ssm_conv_s4__moe_arch_mod__prompt_kernel"
NCONV = 256
G = 56
NWG = NCONV + G
STAMP = "--stamp" in sys.argv

WS_STATS = 0
WS_PART = 65536
WS_STAMP = 1 << 20

L_MISC = 0
L_KC = 256
KC_S = 4160
KC_D = 4 * KC_S
L_U = L_KC + 2 * KC_D
U_D = 4608
L_RED = L_U + 2 * U_D
L_KTAB = L_RED
KTAB_D = 3072
L_PAR = L_RED + 2 * KTAB_D
L_O1 = L_KC
LDS_BYTES = L_RED + 32768
ZIDX = 760
F_XS = 256
F_H = F_XS + 2048
F_W = F_H + 256
assert F_W + 65536 <= LDS_BYTES
assert LDS_BYTES <= 81920

POLL_LIMIT = 40000

out = []
def I(s): out.append("    " + s)
def L(s): out.append(s + ":")
def C(s): out.append("    ; " + s)
def f2u(x): return struct.unpack("<I", struct.pack("<f", x))[0]
def v(a, n=1): return f"v{a}" if n == 1 else f"v[{a}:{a+n-1}]"
def s(a, n=1): return f"s{a}" if n == 1 else f"s[{a}:{a+n-1}]"

P_U, P_ARE, P_AIM, P_BRE, P_BIM, P_CRE, P_CIM, P_LDT = 8, 10, 12, 14, 16, 18, 20, 22
P_DSK, P_BX, P_WR, P_WG, P_WU, P_WD, P_OUT, P_DBG = 24, 26, 28, 30, 32, 34, 36, 38
P_WS = 40
S_WAVE, S_DP, S_NONCE, S_LDT, S_DSK = 42, 43, 44, 45, 46
S_T0, S_T1, S_T2, S_T3 = 48, 49, 50, 51
S_X0 = 52
S_R = 56
S_CNT = 64
S_EXEC = 66
S_STATS = 68
S_PART = 70
S_K1, S_K2 = 72, 73
S_MASK = 74
S_ST = 76
S_STB = 100

nstamp = [0]
def stamp():
    if not STAMP: return
    k = nstamp[0]; nstamp[0] += 1
    assert S_ST + 2 * k + 1 < S_STB
    I(f"s_memtime {s(S_ST + 2*k, 2)}")

def dpp_reduce_add(regs):
    for mode in ("quad_perm:[1,0,3,2] row_mask:0xf bank_mask:0xf",
                 "quad_perm:[2,3,0,1] row_mask:0xf bank_mask:0xf",
                 "row_half_mirror row_mask:0xf bank_mask:0xf",
                 "row_mirror row_mask:0xf bank_mask:0xf",
                 "row_bcast:15 row_mask:0xa bank_mask:0xf",
                 "row_bcast:31 row_mask:0xc bank_mask:0xf"):
        pad = max(0, 3 - len(regs))
        if pad: I(f"s_nop {pad-1}")
        for r in regs:
            I(f"v_add_f32_dpp {v(r)}, {v(r)}, {v(r)} {mode}")

def nonce_start(vz, vt):
    I(f"s_and_b32 {s(S_T0)}, s2, 15")
    I(f"s_cmp_lg_u32 {s(S_T0)}, 0")
    lab = f"L_nocas_{len(out)}"
    I(f"s_cbranch_scc1 {lab}")
    I(f"s_memrealtime {s(S_T2,2)}")
    I("s_waitcnt lgkmcnt(0)")
    I(f"s_or_b32 {s(S_T2)}, {s(S_T2)}, 1")
    I(f"v_mov_b32 {v(vt)}, {s(S_T2)}")
    I(f"v_mov_b32 {v(vt+1)}, 0")
    I(f"s_mov_b64 {s(S_EXEC,2)}, exec")
    I("s_mov_b64 exec, 1")
    I(f"global_atomic_cmpswap {v(vz)}, {v(vt,2)}, {s(P_DBG,2)} sc1")
    I(f"s_mov_b64 exec, {s(S_EXEC,2)}")
    L(lab)

def nonce_poll(vz, vt):
    lab = f"L_npoll_{len(out)}"
    done = lab + "_done"
    I(f"s_mov_b32 {s(S_CNT)}, 0")
    L(lab)
    I(f"global_load_dword {v(vt)}, {v(vz)}, {s(P_DBG,2)} sc1")
    I("s_waitcnt vmcnt(0)")
    I(f"v_readfirstlane_b32 {s(S_NONCE)}, {v(vt)}")
    I(f"s_add_u32 {s(S_CNT)}, {s(S_CNT)}, 1")
    I(f"s_cmp_lg_u32 {s(S_NONCE)}, 0")
    I(f"s_cbranch_scc1 {done}")
    I(f"s_cmp_lt_u32 {s(S_CNT)}, {POLL_LIMIT}")
    I(f"s_cbranch_scc1 {lab}")
    L(done)
    I(f"ds_write_b32 {v(vz)}, {v(vt)} offset:{L_MISC}")

def sweep(vaddr, GR, vtmp):
    lab = f"L_sweep_{len(out)}"
    done = lab + "_done"
    I(f"s_mov_b32 {s(S_CNT)}, 0")
    L(lab)
    for k in range(8):
        off = (k & 3) * 16
        I(f"global_load_dwordx4 {v(GR+4*k,4)}, {v(vaddr + (k>>2))}, {s(S_STATS,2)} offset:{off} sc1")
    for k in range(8):
        I(f"s_waitcnt vmcnt({7-k})")
        if k == 0:
            I(f"v_xor_b32 {v(vtmp)}, {s(S_NONCE)}, {v(GR+1)}")
            I(f"v_xor_b32 {v(vtmp+1)}, {s(S_NONCE)}, {v(GR+3)}")
        else:
            I(f"v_xor_b32 {v(vtmp+2)}, {s(S_NONCE)}, {v(GR+4*k+1)}")
            I(f"v_xor_b32 {v(vtmp+3)}, {s(S_NONCE)}, {v(GR+4*k+3)}")
            I(f"v_or3_b32 {v(vtmp)}, {v(vtmp)}, {v(vtmp+2)}, {v(vtmp+3)}")
    I(f"v_or_b32 {v(vtmp)}, {v(vtmp)}, {v(vtmp+1)}")
    I(f"v_cmp_ne_u32 vcc, 0, {v(vtmp)}")
    I(f"s_add_u32 {s(S_CNT)}, {s(S_CNT)}, 1")
    I(f"s_cmp_eq_u64 vcc, 0")
    I(f"s_cbranch_scc1 {done}")
    I("s_sleep 1")
    I(f"s_cmp_lt_u32 {s(S_CNT)}, {POLL_LIMIT}")
    I(f"s_cbranch_scc1 {lab}")
    L(done)

def top2_wave(GR, vt0, m1, m2, t1, t2, t3):
    for k in range(8):
        dec = (k & 3) + 256 * (k >> 2)
        I(f"v_subrev_u32 {v(t1)}, {dec}, {v(vt0)}")
        I(f"v_lshl_or_b32 {v(t2 if k else m1)}, {v(GR+4*k)}, 16, {v(t1)}")
        if k == 0:
            I(f"v_mov_b32 {v(m2)}, 0")
        else:
            I(f"v_med3_u32 {v(m2)}, {v(m1)}, {v(m2)}, {v(t2)}")
            I(f"v_max_u32 {v(m1)}, {v(m1)}, {v(t2)}")
    for mode in ("quad_perm:[1,0,3,2] row_mask:0xf bank_mask:0xf",
                 "quad_perm:[2,3,0,1] row_mask:0xf bank_mask:0xf",
                 "row_half_mirror row_mask:0xf bank_mask:0xf",
                 "row_mirror row_mask:0xf bank_mask:0xf"):
        I("s_nop 1")
        I(f"v_mov_b32_dpp {v(t1)}, {v(m1)} {mode}")
        I(f"v_max_u32_dpp {v(t2)}, {v(m2)}, {v(m2)} {mode}")
        I(f"v_med3_u32 {v(m2)}, {v(m1)}, {v(t1)}, {v(t2)}")
        I(f"v_max_u32 {v(m1)}, {v(m1)}, {v(t1)}")
    for swp in ("v_permlane16_swap_b32", "v_permlane32_swap_b32"):
        I(f"v_mov_b32 {v(t1)}, {v(m1)}")
        I(f"v_mov_b32 {v(t2)}, {v(m2)}")
        I("s_nop 1")
        I(f"{swp} {v(m1)}, {v(t1)}")
        I(f"{swp} {v(m2)}, {v(t2)}")
        I("s_nop 0")
        I(f"v_max_u32 {v(t2)}, {v(m2)}, {v(t2)}")
        I(f"v_med3_u32 {v(m2)}, {v(m1)}, {v(t1)}, {v(t2)}")
        I(f"v_max_u32 {v(m1)}, {v(m1)}, {v(t1)}")

def top2_combine(a, t1):
    for k in (1, 2, 3):
        I(f"v_max_u32 {v(t1)}, {v(a+1)}, {v(a+2*k+1)}")
        I(f"v_med3_u32 {v(a+1)}, {v(a)}, {v(a+2*k)}, {v(t1)}")
        I(f"v_max_u32 {v(a)}, {v(a)}, {v(a+2*k)}")

hdr = open("parallel_sum__ssm_conv_s4__moe_arch_mod__prompt.s.ref").read().split("; Override")[0]
out.append(hdr.rstrip())
out.append(f"; @launch grid=({NWG},1,1) block=(256,1,1) lds={LDS_BYTES}")
out.append('.amdgcn_target "amdgcn-amd-amdhsa--gfx950"')
out.append(".text")
out.append(f".globl {KNAME}")
out.append(".p2align 8")
out.append(f".type {KNAME},@function")
L(KNAME)
I(f"s_cmp_ge_u32 s2, {NWG}")
I("s_cbranch_scc1 L_end")
stamp()
I(f"s_load_dwordx16 s[8:23], s[0:1], 0")
I(f"s_load_dwordx16 s[24:39], s[0:1], 64")
I(f"s_load_dwordx2 {s(P_WS,2)}, s[0:1], 128")
VL = 1
VZ = 2
I(f"v_and_b32 {v(VL)}, 63, v0")
I(f"v_lshrrev_b32 v3, 6, v0")
I(f"v_mov_b32 {v(VZ)}, 0")
I(f"v_readfirstlane_b32 {s(S_WAVE)}, v3")
I(f"s_mov_b32 {s(S_MASK)}, 0xffff0000")
VT0 = 4
VJ = 5
VKG = 6
VGA = 8
I(f"v_and_b32 {v(VJ)}, 15, {v(VL)}")
I(f"v_lshrrev_b32 {v(VKG)}, 4, {v(VL)}")
I(f"v_lshlrev_b32 {v(VT0)}, 9, v3")
I(f"v_lshl_add_u32 {v(VT0)}, {v(VJ)}, 4, {v(VT0)}")
I(f"v_lshl_add_u32 {v(VT0)}, {v(VKG)}, 2, {v(VT0)}")
I(f"v_lshlrev_b32 {v(VGA)}, 4, {v(VT0)}")
I(f"v_add_u32 {v(VGA+1)}, 4096, {v(VGA)}")
I(f"s_cmp_ge_u32 s2, {NCONV}")
I("s_cbranch_scc1 L_ffn")

C("---- conv role")
I(f"s_and_b32 {s(S_T0)}, s2, 7")
I(f"s_lshl_b32 {s(S_T0)}, {s(S_T0)}, 5")
I(f"s_lshr_b32 {s(S_T1)}, s2, 3")
I(f"s_add_u32 {s(S_DP)}, {s(S_T0)}, {s(S_T1)}")
S_ROW0 = 47
I(f"s_lshl_b32 {s(S_ROW0)}, s2, 3")
I(f"s_lshl_b32 {s(S_T0)}, {s(S_WAVE)}, 1")
I(f"s_add_u32 {s(S_ROW0)}, {s(S_ROW0)}, {s(S_T0)}")
XA, XB, WR = 12, 16, 20
PRM = 24
VO = 10; VO2 = 11
I(f"s_lshl_b32 {s(S_T0)}, {s(S_ROW0)}, 10")
I(f"v_lshlrev_b32 {v(VO2)}, 4, {v(VL)}")
I(f"v_add_u32 {v(VO)}, {s(S_T0)}, {v(VO2)}")
I(f"s_lshl_b32 {s(S_T0)}, {s(S_DP)}, 9")
I(f"s_lshl_b32 {s(S_T1)}, {s(S_WAVE)}, 7")
I(f"s_add_u32 {s(S_T0)}, {s(S_T0)}, {s(S_T1)}")
VPO = 30
I(f"v_lshl_add_u32 {v(VPO)}, {v(VL)}, 1, {s(S_T0)}")
for k in range(6): I(f"v_mov_b32 {v(PRM+k)}, 0")
I(f"s_lshl_b32 {s(S_T1)}, {s(S_DP)}, 2")
I("s_waitcnt lgkmcnt(0)")
I(f"global_load_dwordx4 {v(XA,4)}, {v(VO)}, {s(P_U,2)}")
I(f"global_load_dwordx4 {v(XB,4)}, {v(VO)}, {s(P_U,2)} offset:1024")
I(f"global_load_dwordx4 {v(WR,4)}, {v(VO2)}, {s(P_WR,2)}")
for k, p in enumerate((P_ARE, P_AIM, P_BRE, P_BIM, P_CRE, P_CIM)):
    I(f"global_load_short_d16_hi {v(PRM+k)}, {v(VPO)}, {s(p,2)}")
I(f"s_load_dword {s(S_LDT)}, {s(P_LDT,2)}, {s(S_T1)}")
I(f"s_load_dword {s(S_DSK)}, {s(P_DSK,2)}, {s(S_T1)}")
I(f"s_add_u32 {s(S_STATS)}, {s(P_WS)}, {WS_STATS}")
I(f"s_addc_u32 {s(S_STATS+1)}, {s(P_WS+1)}, 0")
I(f"s_add_u32 {s(S_PART)}, {s(P_WS)}, {WS_PART}")
I(f"s_addc_u32 {s(S_PART+1)}, {s(P_WS+1)}, 0")
I(f"s_cmp_lg_u32 {s(S_WAVE)}, 0")
I("s_cbranch_scc1 L_c_nononce")
nonce_start(VZ, 32)
L("L_c_nononce")

C("---- constants (while loads are in flight)")
AL = 200
VBETA = 206
SC0, SC1A, SC1B, SC2 = 208, 209, 210, 211
GA = 212
XG = 224
VA_, VB_ = 232, 233
VRW, VRR = 234, 235
VUW = 236
VOUT = 238
VPAR = 240
VKCW = 241
t1, t2, t3, t4 = 32, 33, 34, 35
I(f"v_and_b32 {v(t1)}, 7, {v(VJ)}")
I(f"v_lshrrev_b32 {v(t2)}, 3, {v(VJ)}")
I(f"v_lshl_add_u32 {v(t1)}, {v(t2)}, 7, {v(t1)}")
I(f"v_cvt_f32_u32 {v(AL)}, {v(t1)}")
I(f"v_lshrrev_b32 {v(t1)}, 2, {v(VJ)}")
I(f"v_lshlrev_b32 {v(t1)}, 7, {v(t1)}")
I(f"v_and_b32 {v(t2)}, 3, {v(VJ)}")
I(f"v_lshl_add_u32 {v(t1)}, {v(t2)}, 1, {v(t1)}")
I(f"v_add_u32 {v(t1)}, 256, {v(t1)}")
I(f"v_lshrrev_b32 {v(t2)}, 1, {v(VJ)}")
I(f"v_lshlrev_b32 {v(t2)}, 7, {v(t2)}")
I(f"v_and_b32 {v(t3)}, 1, {v(VJ)}")
I(f"v_lshl_add_u32 {v(t2)}, {v(t3)}, 2, {v(t2)}")
I(f"v_cmp_gt_u32 vcc, 8, {v(VJ)}")
I("s_nop 1")
I(f"v_cndmask_b32 {v(t1)}, {v(t2)}, {v(t1)}, vcc")
I(f"v_cvt_f32_u32 {v(AL+2)}, {v(t1)}")
I(f"v_lshlrev_b32 {v(t1)}, 7, {v(VJ)}")
I(f"v_add_u32 {v(t1)}, 1024, {v(t1)}")
I(f"v_cmp_gt_u32 vcc, 9, {v(VJ)}")
I("s_nop 1")
I(f"v_cndmask_b32 {v(t1)}, 0, {v(t1)}, vcc")
I(f"v_cvt_f32_u32 {v(AL+4)}, {v(t1)}")
I(f"v_lshlrev_b32 {v(t1)}, 3, {v(VJ)}")
I(f"v_cvt_f32_u32 {v(VBETA)}, {v(t1)}")
I(f"s_lshr_b32 {s(S_T0)}, {s(S_WAVE)}, 1")
I(f"s_mul_i32 {s(S_T0)}, {s(S_T0)}, {KTAB_D}")
I(f"s_add_u32 {s(S_T0)}, {s(S_T0)}, {L_KTAB}")
I(f"v_and_b32 {v(t1)}, 1, {v(VKG)}")
I(f"v_lshlrev_b32 {v(t1)}, 2, {v(t1)}")
I(f"v_lshrrev_b32 {v(t2)}, 1, {v(VKG)}")
I(f"v_lshl_add_u32 {v(t1)}, {v(t2)}, 7, {v(t1)}")
I(f"v_lshl_add_u32 {v(t1)}, {v(VJ)}, 3, {v(t1)}")
I(f"v_lshl_add_u32 {v(SC0)}, {v(t1)}, 2, {s(S_T0)}")
I(f"v_lshlrev_b32 {v(t1)}, 6, {v(VKG)}")
I(f"v_add_u32 {v(t1)}, 256, {v(t1)}")
I(f"v_lshl_add_u32 {v(t2)}, {v(VJ)}, 2, {v(t1)}")
I(f"v_lshl_add_u32 {v(t3)}, {v(VJ)}, 1, {v(t1)}")
I(f"v_cmp_gt_u32 vcc, 2, {v(VKG)}")
I(f"v_mov_b32 {v(t4)}, 32")
I("s_nop 0")
I(f"v_cndmask_b32 {v(t1)}, {v(t3)}, {v(t2)}, vcc")
I(f"v_cndmask_b32 {v(t4)}, {v(t4)}, 2, vcc")
I(f"v_lshl_add_u32 {v(SC1A)}, {v(t1)}, 2, {s(S_T0)}")
I(f"v_lshl_add_u32 {v(SC1B)}, {v(t4)}, 2, {v(SC1A)}")
I(f"v_lshlrev_b32 {v(t1)}, 6, {v(VKG)}")
I(f"v_add3_u32 {v(t1)}, {v(t1)}, {v(VJ)}, {v(VZ)}")
I(f"v_add_u32 {v(t1)}, 512, {v(t1)}")
I(f"v_add_u32 {v(t2)}, 648, {v(VJ)}")
I(f"v_cmp_gt_u32 vcc, 33, {v(VL)}")
I("s_nop 1")
I(f"v_cndmask_b32 {v(t1)}, {v(t2)}, {v(t1)}, vcc")
I(f"v_lshl_add_u32 {v(SC2)}, {v(t1)}, 2, {s(S_T0)}")
I(f"v_lshlrev_b32 {v(t1)}, 3, v0")
I(f"v_sub_u32 {v(t1)}, 2047, {v(t1)}")
I(f"s_movk_i32 {s(S_T1)}, 128")
for k in range(11):
    I(f"v_subrev_u32 {v(t2)}, {k}, {v(t1)}")
    I(f"v_cvt_f32_i32 {v(t3)}, {v(t2)}")
    I(f"v_cvt_pk_bf16_f32 {v(t3)}, {v(t3)}, {v(VZ)}")
    I(f"v_subrev_u32 {v(t3)}, 0x4280, {v(t3)}")
    I(f"v_cmp_gt_i32 vcc, {s(S_T1)}, {v(t2)}")
    I("s_nop 1")
    I(f"v_cndmask_b32 {v(t3)}, {v(t3)}, {v(t2)}, vcc")
    if k >= 8:
        I(f"v_cmp_gt_i32 vcc, 0, {v(t2)}")
        I(f"v_mov_b32 {v(t4)}, {ZIDX}")
        I("s_nop 0")
        I(f"v_cndmask_b32 {v(t3)}, {v(t3)}, {v(t4)}, vcc")
    I(f"v_lshlrev_b32 {v(GA+k)}, 2, {v(t3)}")
I(f"s_lshr_b32 {s(S_T0)}, {s(S_WAVE)}, 1")
I(f"s_and_b32 {s(S_T1)}, {s(S_WAVE)}, 1")
I(f"s_mul_i32 {s(S_T2)}, {s(S_T0)}, {KC_D}")
I(f"s_lshl_b32 {s(S_T3)}, {s(S_T1)}, 8")
I(f"s_sub_u32 {s(S_T2)}, {s(S_T2)}, {s(S_T3)}")
I(f"s_add_u32 {s(S_T2)}, {s(S_T2)}, {L_KC + 3*KC_S + 72}")
I(f"v_and_b32 {v(t1)}, 3, {v(VJ)}")
I(f"v_mul_u32_u24 {v(t1)}, {KC_S}, {v(t1)}")
I(f"v_lshrrev_b32 {v(t2)}, 2, {v(VJ)}")
I(f"v_lshl_add_u32 {v(t1)}, {v(t2)}, 3, {v(t1)}")
I(f"v_lshl_add_u32 {v(t1)}, {v(VKG)}, 4, {v(t1)}")
I(f"v_sub_u32 {v(VA_)}, {s(S_T2)}, {v(t1)}")
I(f"s_mul_i32 {s(S_T2)}, {s(S_T0)}, {U_D}")
I(f"s_sub_u32 {s(S_T2)}, {s(S_T2)}, {s(S_T3)}")
I(f"s_add_u32 {s(S_T2)}, {s(S_T2)}, {L_U + 336}")
I(f"v_lshlrev_b32 {v(t1)}, 5, {v(VJ)}")
I(f"v_lshlrev_b32 {v(t2)}, 4, {v(VKG)}")
I(f"v_sub_u32 {v(t1)}, {v(t1)}, {v(t2)}")
I(f"v_add_u32 {v(VB_)}, {s(S_T2)}, {v(t1)}")
I(f"s_lshl_b32 {s(S_T2)}, {s(S_WAVE)}, 13")
I(f"s_add_u32 {s(S_T2)}, {s(S_T2)}, {L_RED}")
I(f"v_add_u32 {v(VRW)}, {s(S_T2)}, {v(VO2)}")
I(f"s_lshl_b32 {s(S_T2)}, {s(S_WAVE)}, 11")
I(f"s_add_u32 {s(S_T2)}, {s(S_T2)}, {L_RED}")
I(f"v_add_u32 {v(VRR)}, {s(S_T2)}, {v(VO2)}")
I(f"v_lshlrev_b32 {v(VUW)}, 1, {v(VT0)}")
I(f"v_add_u32 {v(VUW)}, {L_U + 512}, {v(VUW)}")
I(f"s_lshl_b32 {s(S_T2)}, {s(S_DP)}, 2")
I(f"v_lshl_add_u32 {v(VOUT)}, {v(VT0)}, 10, {s(S_T2)}")
I(f"v_add_u32 {v(VOUT+1)}, 0x40000, {v(VOUT)}")
I(f"s_lshl_b32 {s(S_T2)}, {s(S_WAVE)}, 10")
I(f"s_add_u32 {s(S_T2)}, {s(S_T2)}, {L_PAR}")
I(f"v_lshl_add_u32 {v(VPAR)}, {v(VKG)}, 4, {s(S_T2)}")
VPW = 31
I(f"v_add_u32 {v(VPW)}, {s(S_T2)}, {v(VO2)}")
I(f"v_lshlrev_b32 {v(VKCW)}, 4, v0")
Z4 = 36
for k in range(4): I(f"v_mov_b32 {v(Z4+k)}, 0")
I(f"ds_write_b128 {v(VKCW)}, {v(Z4,4)} offset:{L_KTAB}")
I(f"v_lshlrev_b32 {v(t1)}, 3, v0")
I(f"ds_write_b64 {v(t1)}, {v(Z4,2)} offset:{L_KTAB + 4096}")
I(f"v_lshlrev_b32 {v(t2)}, 1, v0")
I(f"ds_write_b16 {v(t2)}, {v(Z4)} offset:{L_U}")
I(f"ds_write_b16 {v(t2)}, {v(Z4)} offset:{L_U + U_D}")
I(f"v_lshrrev_b32 {v(t3)}, 5, v0")
I(f"v_mul_u32_u24 {v(t3)}, {KC_S}, {v(t3)}")
I(f"v_and_b32 {v(t4)}, 31, v0")
I(f"v_lshl_add_u32 {v(t3)}, {v(t4)}, 1, {v(t3)}")
I(f"ds_write_b16 {v(t3)}, {v(Z4)} offset:{L_KC + 4096}")

C("---- LayerNorm stats for 2 rows")
FA, FB = 40, 48
DA, DB = 56, 64
S1A, S2A, S1B, S2B = 72, 73, 74, 75
TA = 76
I("s_waitcnt vmcnt(7)")
stamp()
for X, F in ((XA, FA), (XB, FB)):
    for k in range(4):
        I(f"v_lshlrev_b32 {v(F+2*k)}, 16, {v(X+k)}")
        I(f"v_and_b32 {v(F+2*k+1)}, {s(S_MASK)}, {v(X+k)}")
I(f"v_readfirstlane_b32 {s(S_X0)}, {v(FA)}")
I(f"v_readfirstlane_b32 {s(S_X0+2)}, {v(FB)}")
I("s_nop 0")
for F, D, sx in ((FA, DA, S_X0), (FB, DB, S_X0+2)):
    for k in range(4):
        I(f"v_pk_add_f32 {v(D+2*k,2)}, {v(F+2*k,2)}, {s(sx,2)} op_sel_hi:[1,0] neg_lo:[0,1] neg_hi:[0,1]")
for D, T, S1, S2 in ((DA, TA, S1A, S2A), (DB, TA+8, S1B, S2B)):
    I(f"v_pk_add_f32 {v(T,2)}, {v(D,2)}, {v(D+2,2)}")
    I(f"v_pk_add_f32 {v(T+2,2)}, {v(D+4,2)}, {v(D+6,2)}")
    I(f"v_pk_mul_f32 {v(T+4,2)}, {v(D,2)}, {v(D,2)}")
    I(f"v_pk_add_f32 {v(T,2)}, {v(T,2)}, {v(T+2,2)}")
    I(f"v_pk_fma_f32 {v(T+4,2)}, {v(D+2,2)}, {v(D+2,2)}, {v(T+4,2)}")
    I(f"v_add_f32 {v(S1)}, {v(T)}, {v(T+1)}")
    I(f"v_pk_fma_f32 {v(T+4,2)}, {v(D+4,2)}, {v(D+4,2)}, {v(T+4,2)}")
    I(f"v_pk_fma_f32 {v(T+4,2)}, {v(D+6,2)}, {v(D+6,2)}, {v(T+4,2)}")
    I(f"v_add_f32 {v(S2)}, {v(T+4)}, {v(T+5)}")
I("s_nop 0")
dpp_reduce_add([S1A, S2A, S1B, S2B])
I("s_nop 0")
for k, r in enumerate((S1A, S2A, S1B, S2B)):
    I(f"v_readlane_b32 {s(S_R+k)}, {v(r)}, 63")
inv512 = f2u(1.0/512)
I(f"v_mov_b32 {v(TA)}, {inv512:#x}")
MD_A, MD_B, VA2, VB2, MA, MB = TA+1, TA+2, TA+3, TA+4, TA+5, TA+6
I(f"v_mul_f32 {v(MD_A)}, {s(S_R)}, {v(TA)}")
I(f"v_mul_f32 {v(MD_B)}, {s(S_R+2)}, {v(TA)}")
I(f"v_mul_f32 {v(VA2)}, {s(S_R+1)}, {v(TA)}")
I(f"v_mul_f32 {v(VB2)}, {s(S_R+3)}, {v(TA)}")
I(f"v_add_f32 {v(MA)}, {s(S_X0)}, {v(MD_A)}")
I(f"v_add_f32 {v(MB)}, {s(S_X0+2)}, {v(MD_B)}")
I(f"v_fma_f32 {v(VA2)}, -{v(MD_A)}, {v(MD_A)}, {v(VA2)}")
I(f"v_fma_f32 {v(VB2)}, -{v(MD_B)}, {v(MD_B)}, {v(VB2)}")
I(f"v_max_f32 {v(VA2)}, 0, {v(VA2)}")
I(f"v_max_f32 {v(VB2)}, 0, {v(VB2)}")
MPK, VPK = TA+7, TA+8
I(f"v_cvt_pk_bf16_f32 {v(MPK)}, {v(MA)}, {v(MB)}")
I(f"v_cvt_pk_bf16_f32 {v(VPK)}, {v(VA2)}, {v(VB2)}")
MA2, MB2 = TA+10, TA+12
RA2, RB2 = TA+14, TA+16
I(f"v_lshlrev_b32 {v(MA2)}, 16, {v(MPK)}")
I(f"v_and_b32 {v(MB2)}, {s(S_MASK)}, {v(MPK)}")
I(f"v_lshlrev_b32 {v(VA2)}, 16, {v(VPK)}")
I(f"v_and_b32 {v(VB2)}, {s(S_MASK)}, {v(VPK)}")
eps = f2u(1e-5)
I(f"v_add_f32 {v(VA2)}, {eps:#x}, {v(VA2)}")
I(f"v_add_f32 {v(VB2)}, {eps:#x}, {v(VB2)}")
I(f"v_cvt_pk_bf16_f32 {v(VPK)}, {v(VA2)}, {v(VB2)}")
I(f"v_lshlrev_b32 {v(VA2)}, 16, {v(VPK)}")
I(f"v_and_b32 {v(VB2)}, {s(S_MASK)}, {v(VPK)}")
I(f"v_sqrt_f32 {v(VA2)}, {v(VA2)}")
I(f"v_sqrt_f32 {v(VB2)}, {v(VB2)}")
I("s_nop 0")
I(f"v_cvt_pk_bf16_f32 {v(VPK)}, {v(VA2)}, {v(VB2)}")
I(f"v_lshlrev_b32 {v(VA2)}, 16, {v(VPK)}")
I(f"v_and_b32 {v(VB2)}, {s(S_MASK)}, {v(VPK)}")
I(f"v_rcp_f32 {v(RA2)}, {v(VA2)}")
I(f"v_rcp_f32 {v(RB2)}, {v(VB2)}")
for F, D, M2 in ((FA, DA, MA2), (FB, DB, MB2)):
    for k in range(4):
        I(f"v_pk_add_f32 {v(D+2*k,2)}, {v(F+2*k,2)}, {v(M2,2)} op_sel_hi:[1,0] neg_lo:[0,1] neg_hi:[0,1]")
for F, D in ((FA, DA), (FB, DB)):
    for k in range(4):
        I(f"v_cvt_pk_bf16_f32 {v(F+k)}, {v(D+2*k)}, {v(D+2*k+1)}")
for F, D in ((FA, DA), (FB, DB)):
    for k in range(4):
        I(f"v_lshlrev_b32 {v(D+2*k)}, 16, {v(F+k)}")
        I(f"v_and_b32 {v(D+2*k+1)}, {s(S_MASK)}, {v(F+k)}")
for D, R2 in ((DA, RA2), (DB, RB2)):
    for k in range(4):
        I(f"v_pk_mul_f32 {v(D+2*k,2)}, {v(D+2*k,2)}, {v(R2,2)} op_sel_hi:[1,0]")
for F, D in ((FA, DA), (FB, DB)):
    for k in range(4):
        I(f"v_cvt_pk_bf16_f32 {v(F+k)}, {v(D+2*k)}, {v(D+2*k+1)}")
I("s_waitcnt vmcnt(6)")
I(f"v_mov_b32 {v(S1A)}, 0")
I(f"v_mov_b32 {v(S1B)}, 0")
for k in range(4):
    I(f"v_dot2c_f32_bf16 {v(S1A)}, {v(FA+k)}, {v(WR+k)}")
    I(f"v_dot2c_f32_bf16 {v(S1B)}, {v(FB+k)}, {v(WR+k)}")
I("s_nop 2")
dpp_reduce_add([S1A, S1B])
I("s_nop 0")
RPK = TA+1
I(f"v_cvt_pk_bf16_f32 {v(RPK)}, {v(S1A)}, {v(S1B)}")
I("s_nop 0")
I(f"v_readlane_b32 {s(S_R)}, {v(RPK)}, 63")
I("s_nop 3")
I(f"s_and_b32 {s(S_T0)}, {s(S_R)}, 0x80008000")
I(f"s_lshr_b32 {s(S_T1)}, {s(S_T0)}, 15")
I(f"s_mul_i32 {s(S_T1)}, {s(S_T1)}, 0x7fff")
I(f"s_or_b32 {s(S_T1)}, {s(S_T1)}, 0x80008000")
I(f"s_xor_b32 {s(S_R)}, {s(S_R)}, {s(S_T1)}")
I(f"s_and_b32 {s(S_T0)}, {s(S_R)}, 0xffff")
I(f"s_lshr_b32 {s(S_T1)}, {s(S_R)}, 16")
GP = 96
I(f"v_or_b32 {v(MA2)}, {s(S_T0)}, {v(MA2)}")
I(f"v_or_b32 {v(MB2)}, {s(S_T1)}, {v(MB2)}")
I(f"v_cmp_eq_u32 vcc, 0, {v(VL)}")
I("s_nop 1")
I(f"v_cndmask_b32 {v(GP)}, {v(MB2)}, {v(MA2)}, vcc")
I(f"v_cndmask_b32 {v(GP+2)}, {v(RB2)}, {v(RA2)}, vcc")
I(f"s_lshl_b32 {s(S_T0)}, {s(S_ROW0)}, 4")
I(f"v_add_u32 {v(VO)}, {s(S_T0)}, {v(VO2)}")
stamp()
I(f"s_cmp_lg_u32 {s(S_WAVE)}, 0")
I("s_cbranch_scc1 L_c_nopoll")
nonce_poll(VZ, 32)
L("L_c_nopoll")
I("s_waitcnt lgkmcnt(0)")
I("s_barrier")
I(f"ds_read_b32 {v(GP+1)}, {v(VZ)} offset:{L_MISC}")
I("s_waitcnt lgkmcnt(0)")
I(f"v_mov_b32 {v(GP+3)}, {v(GP+1)}")
I(f"v_readfirstlane_b32 {s(S_NONCE)}, {v(GP+1)}")
I("s_mov_b64 exec, 3")
I(f"global_store_dwordx4 {v(VO)}, {v(GP,4)}, {s(S_STATS,2)} sc1")
I("s_mov_b64 exec, -1")
stamp()
C("---- x column gathers")
for k in range(8):
    I(f"global_load_dword {v(XG+k)}, {v(VOUT + (k>>2))}, {s(P_U,2)} offset:{(k&3)*1024}")

C("---- K-gen parameters")
I(f"s_lshr_b32 {s(S_T0)}, {s(S_WAVE)}, 1")
I(f"s_lshl_b32 {s(S_T0)}, {s(S_T0)}, 4")
I(f"s_lshr_b32 {s(S_T1)}, {s(S_LDT)}, {s(S_T0)}")
I(f"s_lshl_b32 {s(S_T1)}, {s(S_T1)}, 16")
LOG2E = math.log2(math.e)
l2e_hi = struct.unpack("<f", struct.pack("<f", LOG2E))[0]
l2e_lo = LOG2E - l2e_hi
T0_, T1_, T2_, T3_, DT = 40, 41, 42, 43, 44
I(f"v_mov_b32 {v(T0_)}, {f2u(l2e_hi):#x}")
I(f"v_mov_b32 {v(T3_)}, {f2u(l2e_lo):#x}")
I(f"v_mul_f32 {v(T1_)}, {s(S_T1)}, {v(T0_)}")
I(f"v_fma_f32 {v(T2_)}, {s(S_T1)}, {v(T0_)}, -{v(T1_)}")
I(f"v_fma_f32 {v(T2_)}, {s(S_T1)}, {v(T3_)}, {v(T2_)}")
I(f"v_exp_f32 {v(T1_)}, {v(T1_)}")
I(f"v_mul_f32 {v(T2_)}, {f2u(math.log(2.0)):#x}, {v(T2_)}")
I("s_nop 0")
I(f"v_fma_f32 {v(T1_)}, {v(T1_)}, {v(T2_)}, {v(T1_)}")
I(f"v_cvt_pk_bf16_f32 {v(T1_)}, {v(T1_)}, {v(T1_)}")
I(f"v_lshlrev_b32 {v(DT)}, 16, {v(T1_)}")
I("s_waitcnt vmcnt(9)")
PW = 48
I(f"v_mul_f32 {v(PW)}, {v(DT)}, {v(PRM+0)}")
I(f"v_mul_f32 {v(PW+1)}, {v(DT)}, {v(PRM+1)}")
I(f"v_mul_f32 {v(T1_)}, {v(DT)}, {v(PRM+2)}")
I(f"v_mul_f32 {v(T2_)}, {v(DT)}, {v(PRM+3)}")
I(f"v_mul_f32 {v(PW)}, {v(T0_)}, {v(PW)}")
I(f"v_mul_f32 {v(PW+1)}, 0.15915494, {v(PW+1)}")
I(f"v_mul_f32 {v(PW+2)}, {v(PRM+4)}, {v(T1_)}")
I(f"v_mul_f32 {v(PW+3)}, {v(PRM+4)}, {v(T2_)}")
I(f"v_fma_f32 {v(PW+2)}, -{v(PRM+5)}, {v(T2_)}, {v(PW+2)}")
I(f"v_fma_f32 {v(PW+3)}, {v(PRM+5)}, {v(T1_)}, {v(PW+3)}")
I(f"ds_write_b128 {v(VPW)}, {v(PW,4)}")
C("---- K-gen main loop: 16 groups of 4 n")
ACC = 100
PP = [56, 60]
BB = [64, 66]
EE = [68, 70, 72]
W0, W1, W2, W3 = 76, 78, 80, 82
for k in range(12): I(f"v_mov_b32 {v(ACC+k)}, 0")
I(f"v_mov_b32 {v(EE[2])}, 0")
I(f"v_mov_b32 {v(EE[2]+1)}, 0")
I(f"v_mov_b32 {v(BB[1])}, 0")
I(f"v_mov_b32 {v(BB[1]+1)}, 0")
I("s_waitcnt lgkmcnt(0)")
I(f"ds_read_b128 {v(PP[0],4)}, {v(VPAR)}")
I(f"s_mov_b32 {s(S_CNT)}, 0")
L("L_kgen")
def ev(P, alpha, dst, tmp, m1=None, m2=None):
    I(f"v_pk_mul_f32 {v(tmp,2)}, {v(P,2)}, {v(alpha,2)} op_sel_hi:[1,0]")
    I(f"v_exp_f32 {v(tmp)}, {v(tmp)}")
    if m1: I(m1)
    I(f"v_fract_f32 {v(tmp+1)}, {v(tmp+1)}")
    I(f"v_cos_f32 {v(tmp+2)}, {v(tmp+1)}")
    I(f"v_sin_f32 {v(tmp+3)}, {v(tmp+1)}")
    if m2: I(m2)
    else: I("s_nop 0")
    I(f"v_pk_mul_f32 {v(dst,2)}, {v(tmp+2,2)}, {v(tmp,2)} op_sel_hi:[1,0]")
def mf(tile, e, b): return f"v_mfma_f32_16x16x4_f32 {v(ACC+4*tile,4)}, {v(e)}, {v(b)}, {v(ACC+4*tile,4)}"
for u in range(2):
    P = PP[u]; B = BB[u]; Bp = BB[1-u]
    I("s_waitcnt lgkmcnt(0)")
    I(f"ds_read_b128 {v(PP[1-u],4)}, {v(VPAR)} offset:{64*(u+1)}")
    ev(P, VBETA, W2, W0, mf(2, EE[2], Bp), mf(2, EE[2]+1, Bp+1))
    I(f"v_pk_mul_f32 {v(W3,2)}, {v(W2,2)}, {v(P+2,2)} op_sel_hi:[0,1]")
    I(f"v_pk_fma_f32 {v(B,2)}, {v(W2,2)}, {v(P+2,2)}, {v(W3,2)} op_sel:[1,1,0] op_sel_hi:[1,0,1] neg_lo:[0,1,0] neg_hi:[0,1,1]")
    ev(P, AL, EE[0], W0)
    ev(P, AL+2, EE[1], W0, mf(0, EE[0], B), mf(0, EE[0]+1, B+1))
    ev(P, AL+4, EE[2], W0, mf(1, EE[1], B), mf(1, EE[1]+1, B+1))
I(f"v_add_u32 {v(VPAR)}, 128, {v(VPAR)}")
I(f"s_add_u32 {s(S_CNT)}, {s(S_CNT)}, 1")
I(f"s_cmp_lt_u32 {s(S_CNT)}, 8")
I("s_cbranch_scc1 L_kgen")
I("s_nop 0")
I(mf(2, EE[2], BB[1]))
I(mf(2, EE[2]+1, BB[1]+1))
I("s_waitcnt lgkmcnt(0)")
I("s_nop 7")
I("s_nop 3")
for r in range(4): I(f"ds_add_f32 {v(SC0)}, {v(ACC+r)} offset:{4*r}")
for r in range(2): I(f"ds_add_f32 {v(SC1A)}, {v(ACC+4+r)} offset:{4*r}")
for r in range(2): I(f"ds_add_f32 {v(SC1B)}, {v(ACC+6+r)} offset:{4*r}")
for r in range(4): I(f"ds_add_f32 {v(SC2)}, {v(ACC+8+r)} offset:{64*r}")
I("s_waitcnt lgkmcnt(0)")
I("s_barrier")
stamp()
C("---- expand K into 4 shifted bf16 copies")
E0 = 40
CP = 64
for d in range(2):
    Eb = E0 + 12*d
    for k in range(11):
        I(f"ds_read_b32 {v(Eb+k)}, {v(GA+k)} offset:{L_KTAB + d*KTAB_D}")
for d in range(2):
    Eb = E0 + 12*d
    I(f"s_waitcnt lgkmcnt({11 if d == 0 else 4})")
    for sg in range(4):
        Cb = CP + 16*d + 4*sg
        for m in range(4):
            I(f"v_cvt_pk_bf16_f32 {v(Cb+m)}, {v(Eb+sg+2*m)}, {v(Eb+sg+2*m+1)}")
        I(f"ds_write_b128 {v(VKCW)}, {v(Cb,4)} offset:{L_KC + d*KC_D + sg*KC_S}")
stamp()
C("---- wait for all LN stats")
GR = 112
sweep(VGA, GR, 40)
stamp()
C("---- xn for this lane's 8 rows x 2 channels")
XNP = 192
XF = 40
for k in range(8):
    b = XF + 8*(k & 3)
    g = GR + 4*k
    I(f"v_and_b32 {v(b)}, {s(S_MASK)}, {v(g)}")
    I(f"v_lshlrev_b32 {v(b+2)}, 16, {v(XG+k)}")
    I(f"v_and_b32 {v(b+3)}, {s(S_MASK)}, {v(XG+k)}")
    I(f"v_pk_add_f32 {v(b+2,2)}, {v(b+2,2)}, {v(b,2)} op_sel_hi:[1,0] neg_lo:[0,1] neg_hi:[0,1]")
    I(f"v_cvt_pk_bf16_f32 {v(b+4)}, {v(b+2)}, {v(b+3)}")
    I(f"v_lshlrev_b32 {v(b+2)}, 16, {v(b+4)}")
    I(f"v_and_b32 {v(b+3)}, {s(S_MASK)}, {v(b+4)}")
    I(f"v_pk_mul_f32 {v(b+2,2)}, {v(b+2,2)}, {v(g+2,2)} op_sel_hi:[1,0]")
    if (k & 3) == 3:
        tile = k >> 2
        for d in range(2):
            for h in range(2):
                I(f"v_cvt_pk_bf16_f32 {v(XNP+4*tile+2*d+h)}, {v(XF+8*(2*h)+2+d)}, {v(XF+8*(2*h+1)+2+d)}")
            I(f"ds_write_b64 {v(VUW)}, {v(XNP+4*tile+2*d,2)} offset:{d*U_D + tile*512}")
M1, M2 = 242, 243
I(f"v_sub_u32 {v(72)}, 0xffff, {v(VT0)}")
top2_wave(GR, 72, M1, M2, 73, 74, 75)
I(f"s_lshl_b32 {s(S_T0)}, {s(S_WAVE)}, 3")
I(f"v_mov_b32 {v(72)}, {s(S_T0)}")
I(f"ds_write_b64 {v(72)}, {v(M1,2)} offset:{L_MISC + 16}")
I("s_waitcnt lgkmcnt(0)")
I("s_barrier")
stamp()
C("---- convolution")
CA = [32, 96]
CB = [64, 128]
YA = 160
def conv_loads(rl, buf):
    ls = []
    order = []
    for k in range(8):
        order.append(("A", k)); order.append(("B", k))
    for kind, k in order:
        if kind == "A":
            off = 64 * (63 - 8*k - rl)
            ls.append(f"ds_read_b64 {v(CA[buf]+4*k,2)}, {v(VA_)} offset:{off}")
            ls.append(f"ds_read_b64 {v(CA[buf]+4*k+2,2)}, {v(VA_)} offset:{off+8}")
        else:
            off = 512*k + 64*(3 - rl)
            ls.append(f"ds_read_b128 {v(CB[buf]+4*k,4)}, {v(VB_)} offset:{off}")
    return ls
for l in conv_loads(0, 0): I(l)
for rl in range(4):
    buf = rl & 1
    nxt = conv_loads(rl+1, 1-buf) if rl < 3 else []
    pairs = []
    for T in range(8):
        for ch in range(T+1):
            pairs.append((ch, T-ch))
    pairs.sort(key=lambda p: (max(p), p[0]+p[1]))
    I("s_waitcnt lgkmcnt(0)")
    first = set()
    for n_, (ch, dl) in enumerate(pairs):
        T = ch + dl
        src = "0" if (rl == 0 and T not in first) else v(YA+4*T,4)
        first.add(T)
        I(f"v_mfma_f32_16x16x32_bf16 {v(YA+4*T,4)}, {v(CA[buf]+4*ch,4)}, {v(CB[buf]+4*dl,4)}, {src}")
        if n_ < len(nxt): I(nxt[n_])
stamp()
I("s_nop 7")
for T in range(8):
    I(f"ds_write_b128 {v(VRW)}, {v(YA+4*T,4)} offset:{1024*T}")
I("s_waitcnt lgkmcnt(0)")
I("s_barrier")
RD = 32
for w in range(4):
    for tt in range(2):
        I(f"ds_read_b128 {v(RD+8*w+4*tt,4)}, {v(VRR)} offset:{8192*w + 1024*tt}")
I(f"ds_read_b128 {v(64,4)}, {v(VZ)} offset:{L_MISC+16}")
I(f"ds_read_b128 {v(68,4)}, {v(VZ)} offset:{L_MISC+32}")
I(f"s_lshl_b32 {s(S_T0)}, {s(S_DSK)}, 16")
I(f"s_and_b32 {s(S_T1)}, {s(S_DSK)}, 0xffff0000")
C("---- epilogue")
XN = 96
SK = 112
O1P = 128
OUTP = 136
TT_ = 144
for k in range(8):
    tile, r = k >> 2, k & 3
    for d in range(2):
        src = XNP + 4*tile + 2*d + (r >> 1)
        if r & 1: I(f"v_and_b32 {v(XN+2*k+d)}, {s(S_MASK)}, {v(src)}")
        else:     I(f"v_lshlrev_b32 {v(XN+2*k+d)}, 16, {v(src)}")
    I(f"v_pk_mul_f32 {v(SK+2*k,2)}, {v(XN+2*k,2)}, {s(S_T0,2)}")
    I(f"v_cvt_pk_bf16_f32 {v(TT_)}, {v(SK+2*k)}, {v(SK+2*k+1)}")
    I(f"v_lshlrev_b32 {v(SK+2*k)}, 16, {v(TT_)}")
    I(f"v_and_b32 {v(SK+2*k+1)}, {s(S_MASK)}, {v(TT_)}")
I("s_waitcnt lgkmcnt(0)")
for tt in range(2):
    for d in range(2):
        a = RD + 16*d + 4*tt
        I(f"v_pk_add_f32 {v(a,2)}, {v(a,2)}, {v(a+8,2)}")
        I(f"v_pk_add_f32 {v(a+2,2)}, {v(a+2,2)}, {v(a+10,2)}")
for k in range(8):
    tile, r = k >> 2, k & 3
    y0 = RD + 4*tile + r; y1 = RD + 16 + 4*tile + r
    a = TT_ + 4*(k & 1)
    I(f"v_cvt_pk_bf16_f32 {v(a)}, {v(y0)}, {v(y1)}")
    I(f"v_lshlrev_b32 {v(a+2)}, 16, {v(a)}")
    I(f"v_and_b32 {v(a+3)}, {s(S_MASK)}, {v(a)}")
    I(f"v_pk_add_f32 {v(a+2,2)}, {v(a+2,2)}, {v(SK+2*k,2)}")
    I(f"v_cvt_pk_bf16_f32 {v(a)}, {v(a+2)}, {v(a+3)}")
    I(f"v_lshlrev_b32 {v(a+2)}, 16, {v(a)}")
    I(f"v_and_b32 {v(a+3)}, {s(S_MASK)}, {v(a)}")
    I(f"v_lshlrev_b32 {v(SK+2*k)}, 16, {v(XG+k)}")
    I(f"v_and_b32 {v(SK+2*k+1)}, {s(S_MASK)}, {v(XG+k)}")
    I(f"v_pk_add_f32 {v(a+2,2)}, {v(a+2,2)}, {v(SK+2*k,2)}")
    I(f"v_cvt_pk_bf16_f32 {v(O1P+k)}, {v(a+2)}, {v(a+3)}")
    I(f"v_lshlrev_b32 {v(a+2)}, 16, {v(O1P+k)}")
    I(f"v_and_b32 {v(a+3)}, {s(S_MASK)}, {v(O1P+k)}")
    I(f"v_pk_add_f32 {v(a+2,2)}, {v(a+2,2)}, {v(XN+2*k,2)}")
    I(f"v_cvt_pk_bf16_f32 {v(OUTP+k)}, {v(a+2)}, {v(a+3)}")
    I(f"global_store_dword {v(VOUT + tile)}, {v(OUTP+k)}, {s(P_OUT,2)} offset:{r*1024}")
stamp()
C("---- routed rows fix-up")
I(f"v_lshlrev_b32 {v(72)}, 2, {v(VT0)}")
I(f"ds_write_b128 {v(72)}, {v(O1P,4)} offset:{L_O1}")
I(f"ds_write_b128 {v(72)}, {v(O1P+4,4)} offset:{L_O1 + 1024}")
top2_combine(64, 73)
I("s_nop 0")
I(f"v_readfirstlane_b32 {s(S_K1)}, {v(64)}")
I(f"v_readfirstlane_b32 {s(S_K2)}, {v(65)}")
I("s_waitcnt lgkmcnt(0)")
for tok, SK_ in ((0, S_K1), (1, S_K2)):
    skip = f"L_fix_skip{tok}"
    I(f"s_and_b32 {s(S_T0)}, {s(SK_)}, 0xffff")
    I(f"s_sub_u32 {s(S_T0)}, 0xffff, {s(S_T0)}")
    I(f"s_lshr_b32 {s(S_T1)}, {s(S_T0)}, 9")
    I(f"s_cmp_lg_u32 {s(S_T1)}, {s(S_WAVE)}")
    I(f"s_cbranch_scc1 {skip}")
    I(f"s_lshl_b32 {s(S_T1)}, {s(S_DP)}, 10")
    I(f"s_add_u32 {s(S_T1)}, {s(S_T1)}, {tok*262144}")
    I(f"v_lshl_add_u32 {v(76)}, {v(VL)}, 4, {s(S_T1)}")
    I(f"s_lshl_b32 {s(S_T2)}, {s(S_T0)}, 2")
    I(f"v_mov_b32 {v(77)}, {s(S_T2)}")
    I(f"s_lshl_b32 {s(S_T2)}, {s(S_T0)}, 1")
    I(f"v_mov_b32 {v(78)}, {s(S_T2)}")
    I(f"v_mov_b32 {v(86)}, 0")
    I(f"v_mov_b32 {v(87)}, 0")
    I(f"ds_read_b32 {v(79)}, {v(77)} offset:{L_O1}")
    I(f"ds_read_u16_d16_hi {v(86)}, {v(78)} offset:{L_U + 512}")
    I(f"ds_read_u16_d16_hi {v(87)}, {v(78)} offset:{L_U + 512 + U_D}")
    I(f"s_lshr_b32 {s(S_T2)}, {s(SK_)}, 16")
    I(f"s_lshr_b32 {s(S_T3)}, {s(S_T2)}, 15")
    I(f"s_cmp_eq_u32 {s(S_T3)}, 1")
    I(f"s_mov_b32 {s(S_T3)}, 0xffff")
    I(f"s_cselect_b32 {s(S_T3)}, 0x8000, {s(S_T3)}")
    I(f"s_xor_b32 {s(S_T2)}, {s(S_T2)}, {s(S_T3)}")
    I(f"s_lshl_b32 {s(S_T2)}, {s(S_T2)}, 16")
    I(f"v_mov_b32 {v(88)}, {f2u(-LOG2E):#x}")
    I(f"v_mul_f32 {v(88)}, {s(S_T2)}, {v(88)}")
    I(f"v_exp_f32 {v(88)}, {v(88)}")
    I("s_nop 0")
    I(f"v_add_f32 {v(88)}, 1.0, {v(88)}")
    I(f"v_rcp_f32 {v(88)}, {v(88)}")
    I("s_nop 0")
    I(f"v_cvt_pk_bf16_f32 {v(88)}, {v(88)}, {v(88)}")
    I(f"v_lshlrev_b32 {v(88)}, 16, {v(88)}")
    lab = f"L_fixpoll{tok}"
    I(f"s_mov_b32 {s(S_CNT)}, 0")
    I(f"s_bfm_b64 exec, {G}, 0")
    L(lab)
    I(f"global_load_dwordx4 {v(80,4)}, {v(76)}, {s(S_PART,2)} sc1")
    I("s_waitcnt vmcnt(0)")
    I(f"v_xor_b32 {v(84)}, {s(S_NONCE)}, {v(81)}")
    I(f"v_xor_b32 {v(85)}, {s(S_NONCE)}, {v(83)}")
    I(f"v_or_b32 {v(84)}, {v(84)}, {v(85)}")
    I(f"v_cmp_ne_u32 vcc, 0, {v(84)}")
    I(f"s_add_u32 {s(S_CNT)}, {s(S_CNT)}, 1")
    I(f"s_cmp_eq_u64 vcc, 0")
    I(f"s_cbranch_scc1 {lab}_done")
    I("s_sleep 1")
    I(f"s_cmp_lt_u32 {s(S_CNT)}, {POLL_LIMIT}")
    I(f"s_cbranch_scc1 {lab}")
    L(lab + "_done")
    I(f"s_not_b64 exec, exec")
    I(f"v_mov_b32 {v(80)}, 0")
    I(f"v_mov_b32 {v(82)}, 0")
    I("s_mov_b64 exec, -1")
    I("s_nop 1")
    dpp_reduce_add([80, 82])
    I("s_nop 0")
    I(f"v_cvt_pk_bf16_f32 {v(84)}, {v(80)}, {v(82)}")
    I(f"v_lshlrev_b32 {v(80)}, 16, {v(84)}")
    I(f"v_and_b32 {v(81)}, {s(S_MASK)}, {v(84)}")
    I(f"v_pk_mul_f32 {v(80,2)}, {v(80,2)}, {v(88,2)} op_sel_hi:[1,0]")
    I(f"v_cvt_pk_bf16_f32 {v(84)}, {v(80)}, {v(81)}")
    I(f"v_lshlrev_b32 {v(80)}, 16, {v(84)}")
    I(f"v_and_b32 {v(81)}, {s(S_MASK)}, {v(84)}")
    I("s_waitcnt lgkmcnt(0)")
    I(f"v_pk_add_f32 {v(80,2)}, {v(80,2)}, {v(86,2)}")
    I(f"v_cvt_pk_bf16_f32 {v(84)}, {v(80)}, {v(81)}")
    I(f"v_lshlrev_b32 {v(80)}, 16, {v(84)}")
    I(f"v_and_b32 {v(81)}, {s(S_MASK)}, {v(84)}")
    I(f"v_lshlrev_b32 {v(82)}, 16, {v(79)}")
    I(f"v_and_b32 {v(83)}, {s(S_MASK)}, {v(79)}")
    I(f"v_pk_add_f32 {v(80,2)}, {v(80,2)}, {v(82,2)}")
    I(f"v_cvt_pk_bf16_f32 {v(84)}, {v(80)}, {v(81)}")
    I(f"s_lshl_b32 {s(S_T1)}, {s(S_T0)}, 10")
    I(f"s_lshl_b32 {s(S_T2)}, {s(S_DP)}, 2")
    I(f"s_add_u32 {s(S_T1)}, {s(S_T1)}, {s(S_T2)}")
    I(f"v_mov_b32 {v(85)}, {s(S_T1)}")
    I("s_lshl_b64 exec, 1, 63")
    I(f"global_store_dword {v(85)}, {v(84)}, {s(P_OUT,2)}")
    I("s_mov_b64 exec, -1")
    L(skip)
stamp()
I("s_branch L_fin")

L("L_ffn")
nstamp[0] = 1
C("---- FFN role")
S_G = 47
I(f"s_sub_u32 {s(S_G)}, s2, {NCONV}")
WL = 32
t1, t2, t3, t4 = 12, 13, 14, 15
I(f"v_lshrrev_b32 {v(t1)}, 3, v0")
I(f"v_mul_u32_u24 {v(t1)}, 3584, {v(t1)}")
I(f"v_and_b32 {v(t2)}, 3, v0")
I(f"v_lshl_add_u32 {v(t1)}, {v(t2)}, 4, {v(t1)}")
I(f"s_lshl_b32 {s(S_T0)}, {s(S_G)}, 6")
I(f"v_add_u32 {v(t1)}, {s(S_T0)}, {v(t1)}")
I(f"v_and_b32 {v(t2)}, 4, v0")
I(f"v_cmp_eq_u32 vcc, 0, {v(t2)}")
I("s_waitcnt lgkmcnt(0)")
I(f"v_mov_b32 {v(16)}, {s(P_WU)}")
I(f"v_mov_b32 {v(17)}, {s(P_WU+1)}")
I(f"v_mov_b32 {v(18)}, {s(P_WG)}")
I(f"v_mov_b32 {v(19)}, {s(P_WG+1)}")
I(f"v_cndmask_b32 {v(16)}, {v(16)}, {v(18)}, vcc")
I(f"v_cndmask_b32 {v(17)}, {v(17)}, {v(19)}, vcc")
I(f"v_add_co_u32 {v(16)}, vcc, {v(16)}, {v(t1)}")
I("s_nop 1")
I(f"v_addc_co_u32 {v(17)}, vcc, {v(17)}, {v(VZ)}, vcc")
I(f"s_mov_b32 {s(S_T1)}, {32*3584}")
for p in range(16):
    I(f"global_load_dwordx4 {v(WL+4*p,4)}, {v(16,2)}, off")
    if p < 15:
        I(f"v_add_co_u32 {v(16)}, vcc, {s(S_T1)}, {v(16)}")
        I("s_nop 1")
        I(f"v_addc_co_u32 {v(17)}, vcc, {v(17)}, {v(VZ)}, vcc")
WD = 96
I(f"s_lshl_b32 {s(S_T0)}, {s(S_G)}, 15")
I(f"v_lshl_add_u32 {v(t3)}, v0, 2, {s(S_T0)}")
for f in range(32):
    if f and f % 4 == 0:
        I(f"v_add_u32 {v(t3)}, 4096, {v(t3)}")
    I(f"global_load_dword {v(WD+f)}, {v(t3)}, {s(P_WD,2)} offset:{(f&3)*1024}")
I(f"s_add_u32 {s(S_STATS)}, {s(P_WS)}, {WS_STATS}")
I(f"s_addc_u32 {s(S_STATS+1)}, {s(P_WS+1)}, 0")
I(f"s_add_u32 {s(S_PART)}, {s(P_WS)}, {WS_PART}")
I(f"s_addc_u32 {s(S_PART+1)}, {s(P_WS+1)}, 0")
I(f"s_cmp_lg_u32 {s(S_WAVE)}, 0")
I("s_cbranch_scc1 L_f_nononce")
nonce_start(VZ, 20)
L("L_f_nononce")
I(f"v_lshlrev_b32 {v(t4)}, 4, v0")
for p in range(16):
    I(f"s_waitcnt vmcnt({min(63, 32 + 15 - p)})")
    I(f"ds_write_b128 {v(t4)}, {v(WL+4*p,4)} offset:{F_W + 4096*p}")
I(f"s_cmp_lg_u32 {s(S_WAVE)}, 0")
I("s_cbranch_scc1 L_f_nopoll")
nonce_poll(VZ, 20)
L("L_f_nopoll")
I("s_waitcnt vmcnt(0) lgkmcnt(0)")
I("s_barrier")
stamp()
I(f"ds_read_b32 {v(20)}, {v(VZ)} offset:{L_MISC}")
I(f"v_lshrrev_b32 {v(t1)}, 2, {v(VJ)}")
I(f"v_lshl_add_u32 {v(t1)}, {v(VKG)}, 3, {v(t1)}")
I(f"v_lshlrev_b32 {v(t1)}, 7, {v(t1)}")
I(f"v_and_b32 {v(t2)}, 1, {v(VL)}")
I(f"v_lshl_add_u32 {v(t1)}, {v(t2)}, 3, {v(t1)}")
I(f"v_and_b32 {v(t2)}, 2, {v(VL)}")
I(f"v_lshl_add_u32 {v(t1)}, {v(t2)}, 5, {v(t1)}")
I(f"s_lshl_b32 {s(S_T0)}, {s(S_WAVE)}, 4")
I(f"v_add_u32 {v(t1)}, {s(S_T0)}, {v(t1)}")
for st in range(16):
    I(f"ds_read_b64_tr_b16 {v(WL+4*st,2)}, {v(t1)} offset:{F_W + 4096*st}")
    I(f"ds_read_b64_tr_b16 {v(WL+4*st+2,2)}, {v(t1)} offset:{F_W + 4096*st + 512}")
WF = 128
for f in range(32):
    I(f"v_lshlrev_b32 {v(WF+2*f)}, 16, {v(WD+f)}")
    I(f"v_and_b32 {v(WF+2*f+1)}, {s(S_MASK)}, {v(WD+f)}")
I("s_waitcnt lgkmcnt(0)")
I(f"v_readfirstlane_b32 {s(S_NONCE)}, {v(20)}")
GR = 192
I("s_nop 1")
stamp()
sweep(VGA, GR, 20)
stamp()
M1, M2 = 224, 225
I(f"v_sub_u32 {v(20)}, 0xffff, {v(VT0)}")
top2_wave(GR, 20, M1, M2, 21, 22, 23)
I(f"s_lshl_b32 {s(S_T0)}, {s(S_WAVE)}, 3")
I(f"v_mov_b32 {v(20)}, {s(S_T0)}")
I(f"ds_write_b64 {v(20)}, {v(M1,2)} offset:{L_MISC + 16}")
I("s_waitcnt lgkmcnt(0)")
I("s_barrier")
I(f"ds_read_b128 {v(96,4)}, {v(VZ)} offset:{L_MISC+16}")
I(f"ds_read_b128 {v(100,4)}, {v(VZ)} offset:{L_MISC+32}")
I("s_waitcnt lgkmcnt(0)")
top2_combine(96, 104)
I(f"s_lshr_b32 {s(S_T0)}, {s(S_WAVE)}, 1")
I(f"s_cmp_eq_u32 {s(S_T0)}, 0")
I(f"s_cselect_b64 vcc, -1, 0")
I(f"v_cndmask_b32 {v(96)}, {v(97)}, {v(96)}, vcc")
I(f"v_and_b32 {v(96)}, 0xffff, {v(96)}")
I(f"v_sub_u32 {v(96)}, 0xffff, {v(96)}")
I(f"v_min_u32 {v(96)}, 2047, {v(96)}")
I(f"s_and_b32 {s(S_T1)}, {s(S_WAVE)}, 1")
I(f"s_lshl_b32 {s(S_T1)}, {s(S_T1)}, 9")
I(f"v_lshl_add_u32 {v(98)}, {v(VL)}, 3, {s(S_T1)}")
I(f"v_lshl_add_u32 {v(97)}, {v(96)}, 10, {v(98)}")
I(f"v_lshlrev_b32 {v(99)}, 4, {v(96)}")
I(f"global_load_dwordx2 {v(100,2)}, {v(97)}, {s(P_U,2)}")
I(f"global_load_dwordx4 {v(104,4)}, {v(99)}, {s(S_STATS,2)} sc1")
I(f"s_lshl_b32 {s(S_T1)}, {s(S_T0)}, 10")
I(f"v_add_u32 {v(98)}, {s(S_T1)}, {v(98)}")
I(f"v_bfe_u32 {v(t2)}, {v(VJ)}, 2, 1")
I(f"v_lshlrev_b32 {v(t2)}, 10, {v(t2)}")
I(f"v_lshl_add_u32 {v(t2)}, {v(VKG)}, 4, {v(t2)}")
I("s_waitcnt vmcnt(0)")
stamp()
I(f"v_and_b32 {v(104)}, {s(S_MASK)}, {v(104)}")
for k in range(2):
    I(f"v_lshlrev_b32 {v(108+2*k)}, 16, {v(100+k)}")
    I(f"v_and_b32 {v(109+2*k)}, {s(S_MASK)}, {v(100+k)}")
    I(f"v_pk_add_f32 {v(108+2*k,2)}, {v(108+2*k,2)}, {v(104,2)} op_sel_hi:[1,0] neg_lo:[0,1] neg_hi:[0,1]")
    I(f"v_cvt_pk_bf16_f32 {v(100+k)}, {v(108+2*k)}, {v(109+2*k)}")
    I(f"v_lshlrev_b32 {v(108+2*k)}, 16, {v(100+k)}")
    I(f"v_and_b32 {v(109+2*k)}, {s(S_MASK)}, {v(100+k)}")
    I(f"v_pk_mul_f32 {v(108+2*k,2)}, {v(108+2*k,2)}, {v(106,2)} op_sel_hi:[1,0]")
    I(f"v_cvt_pk_bf16_f32 {v(100+k)}, {v(108+2*k)}, {v(109+2*k)}")
I(f"ds_write_b64 {v(98)}, {v(100,2)} offset:{F_XS}")
I("s_waitcnt lgkmcnt(0)")
I("s_barrier")
AX = 192
for st in range(16):
    I(f"ds_read_b128 {v(AX+4*st,4)}, {v(t2)} offset:{F_XS + 64*st}")
AC = 96
for st in range(16):
    I(f"s_waitcnt lgkmcnt({15-st})")
    a = AC + 4*(st & 1)
    I(f"v_mfma_f32_16x16x32_bf16 {v(a,4)}, {v(AX+4*st,4)}, {v(WL+4*st,4)}, {'0' if st < 2 else v(a,4)}")
I("s_nop 7")
I(f"v_add_f32 {v(104)}, {v(AC)}, {v(AC+4)}")
I(f"v_cvt_pk_bf16_f32 {v(104)}, {v(104)}, {v(104)}")
I(f"v_lshlrev_b32 {v(104)}, 16, {v(104)}")
I(f"v_mul_f32 {v(105)}, {f2u(-LOG2E):#x}, {v(104)}")
I(f"v_exp_f32 {v(105)}, {v(105)}")
I(f"v_mov_b32_dpp {v(106)}, {v(104)} row_ror:8 row_mask:0xf bank_mask:0xf")
I(f"v_add_f32 {v(105)}, 1.0, {v(105)}")
I(f"v_rcp_f32 {v(105)}, {v(105)}")
I("s_nop 0")
I(f"v_mul_f32 {v(105)}, {v(104)}, {v(105)}")
I(f"v_cvt_pk_bf16_f32 {v(105)}, {v(105)}, {v(105)}")
I(f"v_lshlrev_b32 {v(105)}, 16, {v(105)}")
I(f"v_mul_f32 {v(105)}, {v(105)}, {v(106)}")
I(f"v_cvt_pk_bf16_f32 {v(105)}, {v(105)}, {v(105)}")
I(f"v_lshlrev_b32 {v(105)}, 16, {v(105)}")
I(f"v_lshlrev_b32 {v(107)}, 7, {v(VKG)}")
I(f"v_lshl_add_u32 {v(107)}, {v(VJ)}, 2, {v(107)}")
I(f"s_lshl_b32 {s(S_T0)}, {s(S_WAVE)}, 5")
I(f"v_add_u32 {v(107)}, {s(S_T0)}, {v(107)}")
I("s_mov_b64 exec, 0x00ff00ff")
I(f"ds_write_b32 {v(107)}, {v(105)} offset:{F_H}")
I("s_mov_b64 exec, -1")
I("s_waitcnt lgkmcnt(0)")
I("s_barrier")
HB = 192
for q in range(16):
    I(f"ds_read_b128 {v(HB+4*q,4)}, {v(VZ)} offset:{F_H + 16*q}")
Y0, Y1 = 96, 100
for q in range(16):
    tok = q >> 3
    I(f"s_waitcnt lgkmcnt({15-q})")
    for e in range(4):
        f = 4*(q & 7) + e
        acc = 104 + 4*tok + 2*(e & 1)
        hreg = HB + 4*q + e
        hp = hreg & ~1
        sel = hreg & 1
        if f < 2:
            I(f"v_pk_mul_f32 {v(acc,2)}, {v(WF+2*f,2)}, {v(hp,2)} op_sel:[0,{sel}] op_sel_hi:[1,{sel}]")
        else:
            I(f"v_pk_fma_f32 {v(acc,2)}, {v(WF+2*f,2)}, {v(hp,2)}, {v(acc,2)} op_sel:[0,{sel},0] op_sel_hi:[1,{sel},1]")
for tok, Y in ((0, Y0), (1, Y1)):
    I(f"v_add_f32 {v(Y)}, {v(104+4*tok)}, {v(106+4*tok)}")
    I(f"v_add_f32 {v(Y+2)}, {v(105+4*tok)}, {v(107+4*tok)}")
    I(f"v_mov_b32 {v(Y+1)}, {s(S_NONCE)}")
    I(f"v_mov_b32 {v(Y+3)}, {s(S_NONCE)}")
I(f"s_lshl_b32 {s(S_T0)}, {s(S_G)}, 4")
I(f"v_lshl_add_u32 {v(112)}, v0, 10, {s(S_T0)}")
I(f"v_add_u32 {v(113)}, 0x40000, {v(112)}")
I(f"global_store_dwordx4 {v(112)}, {v(Y0,4)}, {s(S_PART,2)} sc1")
I(f"global_store_dwordx4 {v(113)}, {v(Y1,4)}, {s(S_PART,2)} sc1")
stamp()
L("L_fin")
if STAMP:
    I("s_waitcnt vmcnt(0) lgkmcnt(0)")
    I(f"s_memtime {s(S_ST + 22, 2)}")
    I(f"s_add_u32 {s(S_STB)}, {s(P_WS)}, {WS_STAMP}")
    I(f"s_addc_u32 {s(S_STB+1)}, {s(P_WS+1)}, 0")
    I(f"s_lshl_b32 {s(S_T0)}, s2, 2")
    I(f"s_add_u32 {s(S_T0)}, {s(S_T0)}, {s(S_WAVE)}")
    I(f"s_lshl_b32 {s(S_T0)}, {s(S_T0)}, 7")
    I("s_waitcnt lgkmcnt(0)")
    I(f"v_mov_b32 v10, {s(S_T0)}")
    I("s_mov_b64 exec, 1")
    for k in range(12):
        I(f"v_mov_b32 v12, {s(S_ST+2*k)}")
        I(f"v_mov_b32 v13, {s(S_ST+2*k+1)}")
        I(f"global_store_dwordx2 v10, v[12:13], {s(S_STB,2)} offset:{8*k}")
        I("s_nop 1")
    I(f"s_getreg_b32 {s(S_T1)}, hwreg(HW_REG_XCC_ID)")
    I(f"s_getreg_b32 {s(S_T2)}, hwreg(HW_REG_HW_ID)")
    I(f"v_mov_b32 v12, {s(S_T1)}")
    I(f"v_mov_b32 v13, {s(S_T2)}")
    I(f"global_store_dwordx2 v10, v[12:13], {s(S_STB,2)} offset:96")
L("L_end")
I("s_endpgm")
out.append('.section .rodata,"a"')
out.append(".p2align 6")
out.append(f".amdhsa_kernel {KNAME}")
out.append("  .amdhsa_next_free_vgpr 256")
out.append("  .amdhsa_next_free_sgpr 102")
out.append("  .amdhsa_accum_offset 256")
out.append("  .amdhsa_group_segment_fixed_size 0")
out.append("  .amdhsa_kernarg_size 136")
out.append("  .amdhsa_user_sgpr_count 2")
out.append("  .amdhsa_user_sgpr_kernarg_segment_ptr 1")
out.append("  .amdhsa_system_sgpr_workgroup_id_x 1")
out.append("  .amdhsa_float_denorm_mode_32 3")
out.append(".end_amdhsa_kernel")
dst = [a for a in sys.argv[1:] if not a.startswith("--")]
open(dst[0] if dst else "k.s", "w").write("\n".join(out) + "\n")
```

```python
import sys, struct, math

KNAME = "parallel_sum__ssm_conv_s4__moe_arch_mod__prompt_kernel"
NCONV = 256
G = 112
NWG = NCONV + G
STAMP = "--stamp" in sys.argv

WS_STATS = 0
WS_KEYS = 16384
WS_FLAG = 32768
WS_PART = 65536
WS_STAMP = 2 << 20
WS_XNG = 4 << 20

L_MISC = 0
L_KC = 256
KC_S = 4160
KC_D = 4 * KC_S
L_U = L_KC + 2 * KC_D
U_D = 4608
L_XL = L_U + 2 * U_D
L_R1 = L_XL + 8192
L_KTAB = L_R1
KTAB_D = 6144
L_PAR = L_R1 + 2 * KTAB_D
L_R2 = L_KC
LDS_BYTES = L_R1 + 16384
ZIDX = 760
TS = 1040
L_T1 = L_KC
L_T2 = L_T1 + 8 * TS
F_H = 256
F_XS = 512
F_W = F_XS + 2048
assert F_W + 32768 <= LDS_BYTES
assert LDS_BYTES <= 81920
POLL_LIMIT = 40000

out = []
cur = [out]
def I(s): cur[0].append("    " + s)
def L(s): cur[0].append(s + ":")
def C(s): cur[0].append("    ; " + s)
class capture:
    def __enter__(self):
        self.prev = cur[0]; self.lst = []; cur[0] = self.lst; return self.lst
    def __exit__(self, *a): cur[0] = self.prev
def f2u(x): return struct.unpack("<I", struct.pack("<f", x))[0]
def v(a, n=1): return f"v{a}" if n == 1 else f"v[{a}:{a+n-1}]"
def s(a, n=1): return f"s{a}" if n == 1 else f"s[{a}:{a+n-1}]"
uid = [0]
def lab(p):
    uid[0] += 1
    return f"L_{p}_{uid[0]}"

P_U, P_ARE, P_AIM, P_BRE, P_BIM, P_CRE, P_CIM, P_LDT = 8, 10, 12, 14, 16, 18, 20, 22
P_DSK, P_BX, P_WR, P_WG, P_WU, P_WD, P_OUT, P_DBG = 24, 26, 28, 30, 32, 34, 36, 38
P_WS = 40
S_WAVE, S_DP, S_NONCE, S_LDT, S_DSK, S_ROW0 = 42, 43, 44, 45, 46, 47
S_T0, S_T1, S_T2, S_T3 = 48, 49, 50, 51
S_X0 = 52
S_R = 56
S_DS2 = 60
S_UNS = 62
S_M0 = 63
S_CNT = 64
S_EXEC = 66
S_PART = 70
S_K1, S_K2 = 72, 73
S_XNG = 68
S_XT = 4
S_XNB = 6
S_MASK = 74
S_ST = 76
S_STB = 100
LOG2E = math.log2(math.e)

nstamp = [0]
def stamp():
    if not STAMP: return
    k = nstamp[0]; nstamp[0] += 1
    assert k < 11
    I(f"s_memtime {s(S_ST + 2*k, 2)}")

DPP4 = ("quad_perm:[1,0,3,2] row_mask:0xf bank_mask:0xf",
        "quad_perm:[2,3,0,1] row_mask:0xf bank_mask:0xf",
        "row_half_mirror row_mask:0xf bank_mask:0xf",
        "row_mirror row_mask:0xf bank_mask:0xf")
DPP6 = DPP4 + ("row_bcast:15 row_mask:0xa bank_mask:0xf", "row_bcast:31 row_mask:0xc bank_mask:0xf")
def dpp_reduce(regs, op="v_add_f32"):
    for mode in DPP6:
        pad = max(0, 3 - len(regs))
        if pad: I(f"s_nop {pad-1}")
        for r in regs:
            I(f"{op}_dpp {v(r)}, {v(r)}, {v(r)} {mode}")

def nonce_cas(vz, vt):
    l = lab("nocas")
    I(f"s_sub_u32 {s(S_T0)}, s2, {NCONV}")
    I(f"s_lshr_b32 {s(S_T0)}, {s(S_T0)}, 3")
    I(f"s_or_b32 {s(S_T0)}, {s(S_T0)}, {s(S_WAVE)}")
    I(f"s_cmp_lg_u32 {s(S_T0)}, 0")
    I(f"s_cbranch_scc1 {l}")
    I(f"s_memrealtime {s(S_T2,2)}")
    I("s_waitcnt lgkmcnt(0)")
    I(f"s_or_b32 {s(S_T2)}, {s(S_T2)}, 1")
    I(f"v_mov_b32 {v(vt)}, {s(S_T2)}")
    I(f"v_mov_b32 {v(vt+1)}, 0")
    I("s_mov_b64 exec, 1")
    I(f"global_atomic_cmpswap {v(vz)}, {v(vt,2)}, {s(P_DBG,2)} sc1")
    I("s_mov_b64 exec, -1")
    L(l)

def nonce_issue(vz, vt):
    I(f"global_load_dword {v(vt)}, {v(vz)}, {s(P_DBG,2)} sc1")

def nonce_wait(vz, vt):
    l = lab("npoll"); done = l + "_done"
    I(f"s_mov_b32 {s(S_CNT)}, 0")
    L(l)
    I("s_waitcnt vmcnt(0)")
    I(f"v_readfirstlane_b32 {s(S_NONCE)}, {v(vt)}")
    I(f"s_add_u32 {s(S_CNT)}, {s(S_CNT)}, 1")
    I(f"s_cmp_lg_u32 {s(S_NONCE)}, 0")
    I(f"s_cbranch_scc1 {done}")
    I(f"s_cmp_ge_u32 {s(S_CNT)}, {POLL_LIMIT}")
    I(f"s_cbranch_scc1 {done}")
    nonce_issue(vz, vt)
    I(f"s_branch {l}")
    L(done)

def sweep_issue(vaddr, GR, base):
    for k in range(4):
        I(f"global_load_dwordx4 {v(GR+4*k,4)}, {v(vaddr+k)}, {s(base,2)} sc1")

def sweep_check(GR, vtmp):
    I(f"v_xor_b32 {v(vtmp)}, {s(S_NONCE)}, {v(GR+1)}")
    I(f"v_xor_b32 {v(vtmp+1)}, {s(S_NONCE)}, {v(GR+3)}")
    for k in range(1, 4):
        I(f"v_xor_b32 {v(vtmp+2)}, {s(S_NONCE)}, {v(GR+4*k+1)}")
        I(f"v_xor_b32 {v(vtmp+3)}, {s(S_NONCE)}, {v(GR+4*k+3)}")
        I(f"v_or3_b32 {v(vtmp)}, {v(vtmp)}, {v(vtmp+2)}, {v(vtmp+3)}")
    I(f"v_or_b32 {v(vtmp)}, {v(vtmp)}, {v(vtmp+1)}")
    I(f"v_cmp_ne_u32 vcc, 0, {v(vtmp)}")

def sweep(vaddr, GR, vtmp, base, issued=False, first_wait=0):
    l = lab("sweep"); done = l + "_done"; chk = l + "_chk"
    I(f"s_mov_b32 {s(S_CNT)}, 0")
    if issued:
        I(f"s_waitcnt vmcnt({first_wait})")
        I(f"s_branch {chk}")
    L(l)
    sweep_issue(vaddr, GR, base)
    I("s_waitcnt vmcnt(0)")
    L(chk)
    sweep_check(GR, vtmp)
    I(f"s_add_u32 {s(S_CNT)}, {s(S_CNT)}, 1")
    I(f"s_cmp_eq_u64 vcc, 0")
    I(f"s_cbranch_scc1 {done}")
    I(f"s_cmp_lt_u32 {s(S_CNT)}, {POLL_LIMIT}")
    I(f"s_cbranch_scc1 {l}")
    L(done)

def poll4(vaddr, GR, tagpos, vtmp, issued=False, first_wait=0, sleep=2):
    l = lab("poll"); done = l + "_done"; chk = l + "_chk"
    I(f"s_mov_b32 {s(S_CNT)}, 0")
    if issued:
        I(f"s_waitcnt vmcnt({first_wait})")
        I(f"s_branch {chk}")
    L(l)
    I(f"global_load_dwordx4 {v(GR,4)}, {v(vaddr)}, {s(P_WS,2)} sc1")
    I("s_waitcnt vmcnt(0)")
    L(chk)
    for k, tp in enumerate(tagpos): I(f"v_xor_b32 {v(vtmp+k)}, {s(S_NONCE)}, {v(GR+tp)}")
    if len(tagpos) == 4:
        I(f"v_or3_b32 {v(vtmp)}, {v(vtmp)}, {v(vtmp+2)}, {v(vtmp+3)}")
    I(f"v_or_b32 {v(vtmp)}, {v(vtmp)}, {v(vtmp+1)}")
    I(f"v_cmp_ne_u32 vcc, 0, {v(vtmp)}")
    I(f"s_add_u32 {s(S_CNT)}, {s(S_CNT)}, 1")
    I(f"s_cmp_eq_u64 vcc, 0")
    I(f"s_cbranch_scc1 {done}")
    I(f"s_sleep {sleep}")
    I(f"s_cmp_lt_u32 {s(S_CNT)}, {POLL_LIMIT}")
    I(f"s_cbranch_scc1 {l}")
    L(done)

def top2_wave(GR, m1, m2, t1, t2):
    I(f"v_mov_b32 {v(m1)}, {v(GR)}")
    I(f"v_mov_b32 {v(m2)}, {v(GR+2)}")
    for mode in DPP4:
        I("s_nop 1")
        I(f"v_mov_b32_dpp {v(t1)}, {v(m1)} {mode}")
        I(f"v_max_u32_dpp {v(t2)}, {v(m2)}, {v(m2)} {mode}")
        I(f"v_med3_u32 {v(m2)}, {v(m1)}, {v(t1)}, {v(t2)}")
        I(f"v_max_u32 {v(m1)}, {v(m1)}, {v(t1)}")
    for swp in ("v_permlane16_swap_b32", "v_permlane32_swap_b32"):
        I(f"v_mov_b32 {v(t1)}, {v(m1)}")
        I(f"v_mov_b32 {v(t2)}, {v(m2)}")
        I("s_nop 1")
        I(f"{swp} {v(m1)}, {v(t1)}")
        I(f"{swp} {v(m2)}, {v(t2)}")
        I("s_nop 0")
        I(f"v_max_u32 {v(t2)}, {v(m2)}, {v(t2)}")
        I(f"v_med3_u32 {v(m2)}, {v(m1)}, {v(t1)}, {v(t2)}")
        I(f"v_max_u32 {v(m1)}, {v(m1)}, {v(t1)}")

def top2_combine(a, t1):
    for k in (1, 2, 3):
        I(f"v_max_u32 {v(t1)}, {v(a+1)}, {v(a+2*k+1)}")
        I(f"v_med3_u32 {v(a+1)}, {v(a)}, {v(a+2*k)}, {v(t1)}")
        I(f"v_max_u32 {v(a)}, {v(a)}, {v(a+2*k)}")

def unpack(dst, src):
    I(f"v_lshlrev_b32 {v(dst)}, 16, {v(src)}")
    I(f"v_and_b32 {v(dst+1)}, {s(S_MASK)}, {v(src)}")

hdr = open("parallel_sum__ssm_conv_s4__moe_arch_mod__prompt.s.ref").read().split("; Override")[0]
out.append(hdr.rstrip())
out.append(f"; @launch grid=({NWG},1,1) block=(256,1,1) lds={LDS_BYTES}")
out.append('.amdgcn_target "amdgcn-amd-amdhsa--gfx950"')
out.append(".text")
out.append(f".globl {KNAME}")
out.append(".p2align 8")
out.append(f".type {KNAME},@function")
L(KNAME)
I(f"s_cmp_ge_u32 s2, {NWG}")
I("s_cbranch_scc1 L_end")
I(f"s_load_dwordx16 s[8:23], s[0:1], 0")
I(f"s_load_dwordx16 s[24:39], s[0:1], 64")
I(f"s_load_dwordx2 {s(P_WS,2)}, s[0:1], 128")
stamp()
VL, VZ, VJ, VKG = 1, 2, 5, 6
VSW = 248
I(f"v_and_b32 {v(VL)}, 63, v0")
I(f"v_lshrrev_b32 v3, 6, v0")
I(f"v_mov_b32 {v(VZ)}, 0")
I(f"v_readfirstlane_b32 {s(S_WAVE)}, v3")
I(f"s_mov_b32 {s(S_MASK)}, 0xffff0000")
I(f"v_and_b32 {v(VJ)}, 15, {v(VL)}")
I(f"v_lshrrev_b32 {v(VKG)}, 4, {v(VL)}")
I(f"s_cmp_ge_u32 s2, {NCONV}")
I("s_cbranch_scc1 L_ffn")

C("---- conv role")
I(f"s_lshl_b32 {s(S_ROW0)}, s2, 3")
I(f"s_lshl_b32 {s(S_T0)}, {s(S_WAVE)}, 1")
I(f"s_add_u32 {s(S_ROW0)}, {s(S_ROW0)}, {s(S_T0)}")
XA, XB, WR = 12, 16, 20
PRM = 24
VO, VO2 = 10, 11
I(f"s_lshl_b32 {s(S_T0)}, {s(S_ROW0)}, 10")
I(f"v_lshlrev_b32 {v(VO2)}, 4, {v(VL)}")
I(f"v_add_u32 {v(VO)}, {s(S_T0)}, {v(VO2)}")
I(f"s_and_b32 {s(S_T0)}, s2, 7")
I(f"s_lshl_b32 {s(S_T0)}, {s(S_T0)}, 5")
I(f"s_lshr_b32 {s(S_T1)}, s2, 3")
I(f"s_add_u32 {s(S_DP)}, {s(S_T0)}, {s(S_T1)}")
I(f"s_lshl_b32 {s(S_T0)}, {s(S_DP)}, 9")
I(f"s_lshl_b32 {s(S_T1)}, {s(S_WAVE)}, 7")
I(f"s_add_u32 {s(S_T0)}, {s(S_T0)}, {s(S_T1)}")
VPO = 30
I(f"v_lshl_add_u32 {v(VPO)}, {v(VL)}, 1, {s(S_T0)}")
for k in range(6): I(f"v_mov_b32 {v(PRM+k)}, 0")
I(f"s_lshl_b32 {s(S_T1)}, {s(S_DP)}, 2")
I("s_waitcnt lgkmcnt(0)")
I(f"global_load_dwordx4 {v(XA,4)}, {v(VO)}, {s(P_U,2)}")
I(f"global_load_dwordx4 {v(XB,4)}, {v(VO)}, {s(P_U,2)} offset:1024")
I(f"global_load_dwordx4 {v(WR,4)}, {v(VO2)}, {s(P_WR,2)}")
for k, p in enumerate((P_ARE, P_AIM, P_BRE, P_BIM, P_CRE, P_CIM)):
    I(f"global_load_short_d16_hi {v(PRM+k)}, {v(VPO)}, {s(p,2)}")
I(f"s_lshl_b32 {s(S_T1)}, {s(S_DP)}, 2")
I(f"s_load_dword {s(S_LDT)}, {s(P_LDT,2)}, {s(S_T1)}")
I(f"s_load_dword {s(S_DSK)}, {s(P_DSK,2)}, {s(S_T1)}")
I(f"s_add_u32 {s(S_PART)}, {s(P_WS)}, {WS_PART}")
I(f"s_addc_u32 {s(S_PART+1)}, {s(P_WS+1)}, 0")
I(f"s_add_u32 {s(S_XNB)}, {s(P_WS)}, {WS_XNG}")
I(f"s_addc_u32 {s(S_XNB+1)}, {s(P_WS+1)}, 0")
I(f"s_lshl_b32 {s(S_T0)}, {s(S_DP)}, 14")
I(f"s_add_u32 {s(S_XNG)}, {s(S_XNB)}, {s(S_T0)}")
I(f"s_addc_u32 {s(S_XNG+1)}, {s(S_XNB+1)}, 0")

C("---- constants (while loads are in flight)")
AL = 200
VBETA = 206
SC0, SC1A, SC1B, SC2 = 208, 209, 210, 211
GA = 212
VGX = 224
VA_, VB_ = 226, 227
VRW, VRR = 228, 229
VT0 = 230
VOUT = 232
VPAR = 234
VKCW = 235
VPW = 236
VT8 = 237
VT4 = 238
M1, M2 = 240, 241
VEX = 242
VEU = 243
t1, t2, t3, t4 = 32, 33, 34, 35
I(f"v_lshlrev_b32 {v(VKCW)}, 4, v0")
I(f"v_lshlrev_b32 {v(VT8)}, 3, v0")
I(f"v_lshlrev_b32 {v(VT4)}, 2, v0")
for k in range(4):
    I(f"v_add_u32 {v(VSW+k)}, {4096*k}, {v(VKCW)}")
I(f"v_add_u32 {v(VSW+4)}, {WS_KEYS}, {v(VKCW)}")
I(f"v_and_b32 {v(t1)}, 7, {v(VJ)}")
I(f"v_lshrrev_b32 {v(t2)}, 3, {v(VJ)}")
I(f"v_lshl_add_u32 {v(t1)}, {v(t2)}, 7, {v(t1)}")
I(f"v_cvt_f32_u32 {v(AL)}, {v(t1)}")
I(f"v_lshrrev_b32 {v(t1)}, 2, {v(VJ)}")
I(f"v_lshlrev_b32 {v(t1)}, 7, {v(t1)}")
I(f"v_and_b32 {v(t2)}, 3, {v(VJ)}")
I(f"v_lshl_add_u32 {v(t1)}, {v(t2)}, 1, {v(t1)}")
I(f"v_add_u32 {v(t1)}, 256, {v(t1)}")
I(f"v_lshrrev_b32 {v(t2)}, 1, {v(VJ)}")
I(f"v_lshlrev_b32 {v(t2)}, 7, {v(t2)}")
I(f"v_and_b32 {v(t3)}, 1, {v(VJ)}")
I(f"v_lshl_add_u32 {v(t2)}, {v(t3)}, 2, {v(t2)}")
I(f"v_cmp_gt_u32 vcc, 8, {v(VJ)}")
I("s_nop 1")
I(f"v_cndmask_b32 {v(t1)}, {v(t2)}, {v(t1)}, vcc")
I(f"v_cvt_f32_u32 {v(AL+2)}, {v(t1)}")
I(f"v_lshlrev_b32 {v(t1)}, 7, {v(VJ)}")
I(f"v_add_u32 {v(t1)}, 1024, {v(t1)}")
I(f"v_cmp_gt_u32 vcc, 9, {v(VJ)}")
I("s_nop 1")
I(f"v_cndmask_b32 {v(t1)}, 0, {v(t1)}, vcc")
I(f"v_cvt_f32_u32 {v(AL+4)}, {v(t1)}")
I(f"v_lshlrev_b32 {v(t1)}, 3, {v(VJ)}")
I(f"v_cvt_f32_u32 {v(VBETA)}, {v(t1)}")
I(f"s_lshr_b32 {s(S_T0)}, {s(S_WAVE)}, 1")
I(f"s_mul_i32 {s(S_T0)}, {s(S_T0)}, {KTAB_D}")
I(f"s_and_b32 {s(S_T1)}, {s(S_WAVE)}, 1")
I(f"s_lshl_b32 {s(S_T1)}, {s(S_T1)}, 2")
I(f"s_add_u32 {s(S_T0)}, {s(S_T0)}, {s(S_T1)}")
I(f"s_add_u32 {s(S_T0)}, {s(S_T0)}, {L_KTAB}")
I(f"v_and_b32 {v(t1)}, 1, {v(VKG)}")
I(f"v_lshlrev_b32 {v(t1)}, 2, {v(t1)}")
I(f"v_lshrrev_b32 {v(t2)}, 1, {v(VKG)}")
I(f"v_lshl_add_u32 {v(t1)}, {v(t2)}, 7, {v(t1)}")
I(f"v_lshl_add_u32 {v(t1)}, {v(VJ)}, 3, {v(t1)}")
I(f"v_lshl_add_u32 {v(SC0)}, {v(t1)}, 3, {s(S_T0)}")
I(f"v_lshlrev_b32 {v(t1)}, 6, {v(VKG)}")
I(f"v_add_u32 {v(t1)}, 256, {v(t1)}")
I(f"v_lshl_add_u32 {v(t2)}, {v(VJ)}, 2, {v(t1)}")
I(f"v_lshl_add_u32 {v(t3)}, {v(VJ)}, 1, {v(t1)}")
I(f"v_cmp_gt_u32 vcc, 2, {v(VKG)}")
I(f"v_mov_b32 {v(t4)}, 32")
I("s_nop 0")
I(f"v_cndmask_b32 {v(t1)}, {v(t3)}, {v(t2)}, vcc")
I(f"v_cndmask_b32 {v(t4)}, {v(t4)}, 2, vcc")
I(f"v_lshl_add_u32 {v(SC1A)}, {v(t1)}, 3, {s(S_T0)}")
I(f"v_lshl_add_u32 {v(SC1B)}, {v(t4)}, 3, {v(SC1A)}")
I(f"v_lshlrev_b32 {v(t1)}, 6, {v(VKG)}")
I(f"v_add3_u32 {v(t1)}, {v(t1)}, {v(VJ)}, {v(VZ)}")
I(f"v_add_u32 {v(t1)}, 512, {v(t1)}")
I(f"v_add_u32 {v(t2)}, 648, {v(VJ)}")
I(f"v_cmp_gt_u32 vcc, 33, {v(VL)}")
I("s_nop 1")
I(f"v_cndmask_b32 {v(t1)}, {v(t2)}, {v(t1)}, vcc")
I(f"v_lshl_add_u32 {v(SC2)}, {v(t1)}, 3, {s(S_T0)}")
I(f"v_sub_u32 {v(t1)}, 2047, {v(VT8)}")
I(f"s_movk_i32 {s(S_T1)}, 128")
I(f"v_mov_b32 {v(t4)}, {ZIDX}")
for k in range(11):
    I(f"v_subrev_u32 {v(t2)}, {k}, {v(t1)}")
    I(f"v_cvt_f32_i32 {v(t3)}, {v(t2)}")
    I(f"v_cmp_gt_i32 vcc, {s(S_T1)}, {v(t2)}")
    I(f"v_cvt_pk_bf16_f32 {v(t3)}, {v(t3)}, {v(VZ)}")
    I(f"v_subrev_u32 {v(t3)}, 0x4280, {v(t3)}")
    I(f"v_cndmask_b32 {v(t3)}, {v(t3)}, {v(t2)}, vcc")
    if k >= 8:
        I(f"v_cmp_gt_i32 vcc, 0, {v(t2)}")
        I("s_nop 1")
        I(f"v_cndmask_b32 {v(t3)}, {v(t3)}, {v(t4)}, vcc")
    I(f"v_lshlrev_b32 {v(GA+k)}, 3, {v(t3)}")
I(f"s_lshr_b32 {s(S_T0)}, {s(S_WAVE)}, 1")
I(f"s_and_b32 {s(S_T1)}, {s(S_WAVE)}, 1")
I(f"s_mul_i32 {s(S_T2)}, {s(S_T0)}, {KC_D}")
I(f"s_lshl_b32 {s(S_T3)}, {s(S_T1)}, 8")
I(f"s_sub_u32 {s(S_T2)}, {s(S_T2)}, {s(S_T3)}")
I(f"s_add_u32 {s(S_T2)}, {s(S_T2)}, {L_KC + 3*KC_S + 72}")
I(f"v_and_b32 {v(t1)}, 3, {v(VJ)}")
I(f"v_mul_u32_u24 {v(t1)}, {KC_S}, {v(t1)}")
I(f"v_lshrrev_b32 {v(t2)}, 2, {v(VJ)}")
I(f"v_lshl_add_u32 {v(t1)}, {v(t2)}, 3, {v(t1)}")
I(f"v_lshl_add_u32 {v(t1)}, {v(VKG)}, 4, {v(t1)}")
I(f"v_sub_u32 {v(VA_)}, {s(S_T2)}, {v(t1)}")
I(f"s_mul_i32 {s(S_T2)}, {s(S_T0)}, {U_D}")
I(f"s_sub_u32 {s(S_T2)}, {s(S_T2)}, {s(S_T3)}")
I(f"s_add_u32 {s(S_T2)}, {s(S_T2)}, {L_U + 336}")
I(f"v_lshlrev_b32 {v(t1)}, 5, {v(VJ)}")
I(f"v_lshlrev_b32 {v(t2)}, 4, {v(VKG)}")
I(f"v_sub_u32 {v(t1)}, {v(t1)}, {v(t2)}")
I(f"v_add_u32 {v(VB_)}, {s(S_T2)}, {v(t1)}")
I(f"s_lshl_b32 {s(S_T2)}, {s(S_WAVE)}, 12")
I(f"v_add_u32 {v(VRW)}, {s(S_T2)}, {v(VO2)}")
I(f"s_lshl_b32 {s(S_T2)}, {s(S_WAVE)}, 10")
I(f"v_add_u32 {v(VRR)}, {s(S_T2)}, {v(VO2)}")
I(f"s_lshl_b32 {s(S_T2)}, {s(S_WAVE)}, 8")
I(f"v_lshl_add_u32 {v(VT0)}, {v(VJ)}, 4, {s(S_T2)}")
I(f"v_lshl_add_u32 {v(VT0)}, {v(VKG)}, 2, {v(VT0)}")
I(f"v_lshlrev_b32 {v(VEX)}, 2, {v(VT0)}")
I(f"v_lshlrev_b32 {v(VEU)}, 1, {v(VT0)}")
I(f"s_lshl_b32 {s(S_T2)}, {s(S_DP)}, 2")
I(f"v_lshl_add_u32 {v(VOUT)}, {v(VT0)}, 10, {s(S_T2)}")
I(f"v_add_u32 {v(VOUT+1)}, 0x100000, {v(VOUT)}")
VTW, VTR1, VTR2, VTS1, VTS2 = 100, 101, 102, 103, 104
I(f"s_mul_i32 {s(S_T2)}, {s(S_WAVE)}, {2*TS}")
I(f"v_add_u32 {v(VTW)}, {s(S_T2)}, {v(VO2)}")
I(f"v_and_b32 {v(t1)}, 3, v0")
I(f"v_lshrrev_b32 {v(t2)}, 2, v0")
I(f"v_mul_u32_u24 {v(VTR1)}, {2*TS}, {v(t1)}")
I(f"v_lshl_add_u32 {v(VTR1)}, {v(t2)}, 2, {v(VTR1)}")
I(f"s_lshl_b32 {s(S_T2)}, s2, 6")
I(f"v_lshl_add_u32 {v(VTS1)}, {v(t1)}, 4, {s(S_T2)}")
I(f"v_lshl_add_u32 {v(VTS1)}, {v(t2)}, 14, {v(VTS1)}")
VXW = 224
I(f"v_add_u32 {v(VXW)}, {L_XL}, {v(VT8)}")
VFL = 239
VFP = 244
I(f"v_add_u32 {v(VFL)}, {WS_FLAG}, {v(VKCW)}")
I(f"s_lshl_b32 {s(S_T2)}, s2, 2")
I(f"s_add_u32 {s(S_T2)}, {s(S_T2)}, {s(S_WAVE)}")
I(f"s_lshl_b32 {s(S_T2)}, {s(S_T2)}, 2")
I(f"s_add_u32 {s(S_T2)}, {s(S_T2)}, {WS_FLAG}")
I(f"v_mov_b32 {v(VFP)}, {s(S_T2)}")
I(f"s_lshl_b32 {s(S_T2)}, {s(S_WAVE)}, 10")
I(f"s_add_u32 {s(S_T2)}, {s(S_T2)}, {L_PAR}")
I(f"v_lshl_add_u32 {v(VPAR)}, {v(VKG)}, 6, {s(S_T2)}")
I(f"v_add_u32 {v(VPW)}, {s(S_T2)}, {v(VO2)}")
Z4 = 36
I(f"v_mov_b32 {v(Z4)}, 0")
I(f"v_mov_b32 {v(Z4+1)}, 0")
I(f"v_lshlrev_b32 {v(t2)}, 1, v0")
I(f"ds_write_b16 {v(t2)}, {v(Z4)} offset:{L_U}")
I(f"ds_write_b16 {v(t2)}, {v(Z4)} offset:{L_U + U_D}")
I(f"v_lshrrev_b32 {v(t3)}, 5, v0")
I(f"v_mul_u32_u24 {v(t3)}, {KC_S}, {v(t3)}")
I(f"v_and_b32 {v(t4)}, 31, v0")
VTL = 245
I(f"v_lshl_add_u32 {v(VTL)}, {v(t4)}, 1, {v(t3)}")

C("---- LayerNorm stats for 2 rows")
FA, FB = 40, 48
DA, DB = 56, 64
S1A, S2A, S1B, S2B = 72, 73, 74, 75
TA = 76
VNON = 38
I("s_waitcnt vmcnt(7)")
stamp()
nonce_issue(VZ, VNON)
I(f"ds_write_b128 {v(VTW)}, {v(XA,4)} offset:{L_T2}")
I(f"ds_write_b128 {v(VTW)}, {v(XB,4)} offset:{L_T2 + TS}")
for X, F in ((XA, FA), (XB, FB)):
    for k in range(4): unpack(F+2*k, X+k)
I(f"v_readfirstlane_b32 {s(S_X0)}, {v(FA)}")
I(f"v_readfirstlane_b32 {s(S_X0+2)}, {v(FB)}")
I("s_nop 0")
for k in range(4):
    for F, D, sx in ((FA, DA, S_X0), (FB, DB, S_X0+2)):
        I(f"v_pk_add_f32 {v(D+2*k,2)}, {v(F+2*k,2)}, {s(sx,2)} op_sel_hi:[1,0] neg_lo:[0,1] neg_hi:[0,1]")
rows = ((DA, TA, S1A, S2A), (DB, TA+8, S1B, S2B))
for D, T, S1, S2 in rows: I(f"v_pk_add_f32 {v(T,2)}, {v(D,2)}, {v(D+2,2)}")
for D, T, S1, S2 in rows: I(f"v_pk_mul_f32 {v(T+4,2)}, {v(D,2)}, {v(D,2)}")
for D, T, S1, S2 in rows: I(f"v_pk_add_f32 {v(T+2,2)}, {v(D+4,2)}, {v(D+6,2)}")
for D, T, S1, S2 in rows: I(f"v_pk_mul_f32 {v(T+6,2)}, {v(D+2,2)}, {v(D+2,2)}")
for D, T, S1, S2 in rows: I(f"v_pk_add_f32 {v(T,2)}, {v(T,2)}, {v(T+2,2)}")
for D, T, S1, S2 in rows: I(f"v_pk_fma_f32 {v(T+4,2)}, {v(D+4,2)}, {v(D+4,2)}, {v(T+4,2)}")
for D, T, S1, S2 in rows: I(f"v_pk_fma_f32 {v(T+6,2)}, {v(D+6,2)}, {v(D+6,2)}, {v(T+6,2)}")
for D, T, S1, S2 in rows: I(f"v_add_f32 {v(S1)}, {v(T)}, {v(T+1)}")
for D, T, S1, S2 in rows: I(f"v_pk_add_f32 {v(T+4,2)}, {v(T+4,2)}, {v(T+6,2)}")
for D, T, S1, S2 in rows: I(f"v_add_f32 {v(S2)}, {v(T+4)}, {v(T+5)}")
I("s_nop 0")
dpp_reduce([S1A, S1B, S2A, S2B])
I("s_nop 0")
for k, r in enumerate((S1A, S2A, S1B, S2B)):
    I(f"v_readlane_b32 {s(S_R+k)}, {v(r)}, 63")
I(f"v_mov_b32 {v(TA)}, {f2u(1.0/512):#x}")
MD_A, MD_B, VA2, VB2, MA, MB = TA+1, TA+2, TA+3, TA+4, TA+5, TA+6
I(f"v_mul_f32 {v(MD_A)}, {s(S_R)}, {v(TA)}")
I(f"v_mul_f32 {v(MD_B)}, {s(S_R+2)}, {v(TA)}")
I(f"v_mul_f32 {v(VA2)}, {s(S_R+1)}, {v(TA)}")
I(f"v_mul_f32 {v(VB2)}, {s(S_R+3)}, {v(TA)}")
I(f"v_add_f32 {v(MA)}, {s(S_X0)}, {v(MD_A)}")
I(f"v_add_f32 {v(MB)}, {s(S_X0+2)}, {v(MD_B)}")
I(f"v_fma_f32 {v(VA2)}, -{v(MD_A)}, {v(MD_A)}, {v(VA2)}")
I(f"v_fma_f32 {v(VB2)}, -{v(MD_B)}, {v(MD_B)}, {v(VB2)}")
MPK, VPK = TA+7, TA+8
I(f"v_cvt_pk_bf16_f32 {v(MPK)}, {v(MA)}, {v(MB)}")
I(f"v_max_f32 {v(VA2)}, 0, {v(VA2)}")
I(f"v_max_f32 {v(VB2)}, 0, {v(VB2)}")
MA2, MB2 = TA+10, TA+12
RA2, RB2 = TA+14, TA+16
I(f"v_lshlrev_b32 {v(MA2)}, 16, {v(MPK)}")
I(f"v_cvt_pk_bf16_f32 {v(VPK)}, {v(VA2)}, {v(VB2)}")
I(f"v_and_b32 {v(MB2)}, {s(S_MASK)}, {v(MPK)}")
I(f"v_lshlrev_b32 {v(VA2)}, 16, {v(VPK)}")
I(f"v_and_b32 {v(VB2)}, {s(S_MASK)}, {v(VPK)}")
eps = f2u(1e-5)
I(f"v_add_f32 {v(VA2)}, {eps:#x}, {v(VA2)}")
I(f"v_add_f32 {v(VB2)}, {eps:#x}, {v(VB2)}")
sub = []
with capture() as sub:
    for k in range(4):
        for F, D, M2_ in ((FA, DA, MA2), (FB, DB, MB2)):
            I(f"v_pk_add_f32 {v(D+2*k,2)}, {v(F+2*k,2)}, {v(M2_,2)} op_sel_hi:[1,0] neg_lo:[0,1] neg_hi:[0,1]")
    for k in range(4):
        for F, D in ((FA, DA), (FB, DB)):
            I(f"v_cvt_pk_bf16_f32 {v(F+k)}, {v(D+2*k)}, {v(D+2*k+1)}")
    for k in range(4):
        for F, D in ((FA, DA), (FB, DB)):
            unpack(D+2*k, F+k)
with capture() as chain:
    I(f"v_cvt_pk_bf16_f32 {v(VPK)}, {v(VA2)}, {v(VB2)}")
    I(f"v_lshlrev_b32 {v(VA2)}, 16, {v(VPK)}")
    I(f"v_and_b32 {v(VB2)}, {s(S_MASK)}, {v(VPK)}")
    I(f"v_sqrt_f32 {v(VA2)}, {v(VA2)}")
    I(f"v_sqrt_f32 {v(VB2)}, {v(VB2)}")
    I(f"v_cvt_pk_bf16_f32 {v(VPK)}, {v(VA2)}, {v(VB2)}")
    I(f"v_lshlrev_b32 {v(VA2)}, 16, {v(VPK)}")
    I(f"v_and_b32 {v(VB2)}, {s(S_MASK)}, {v(VPK)}")
    I(f"v_rcp_f32 {v(RA2)}, {v(VA2)}")
    I(f"v_rcp_f32 {v(RB2)}, {v(VB2)}")
si = 0
for c_ in chain:
    out.append(c_)
    out.extend(sub[si:si+3]); si += 3
out.extend(sub[si:])
for k in range(4):
    for D, R2 in ((DA, RA2), (DB, RB2)):
        I(f"v_pk_mul_f32 {v(D+2*k,2)}, {v(D+2*k,2)}, {v(R2,2)} op_sel_hi:[1,0]")
for k in range(4):
    for F, D in ((FA, DA), (FB, DB)):
        I(f"v_cvt_pk_bf16_f32 {v(F+k)}, {v(D+2*k)}, {v(D+2*k+1)}")
I(f"ds_write_b128 {v(VTW)}, {v(FA,4)} offset:{L_T1}")
I(f"ds_write_b128 {v(VTW)}, {v(FB,4)} offset:{L_T1 + TS}")
I("s_waitcnt vmcnt(7)")
I(f"v_mov_b32 {v(S1A)}, 0")
I(f"v_mov_b32 {v(S1B)}, 0")
I(f"v_mov_b32 {v(S2A)}, 0")
I(f"v_mov_b32 {v(S2B)}, 0")
for k in range(2):
    I(f"v_dot2c_f32_bf16 {v(S1A)}, {v(FA+k)}, {v(WR+k)}")
    I(f"v_dot2c_f32_bf16 {v(S1B)}, {v(FB+k)}, {v(WR+k)}")
    I(f"v_dot2c_f32_bf16 {v(S2A)}, {v(FA+2+k)}, {v(WR+2+k)}")
    I(f"v_dot2c_f32_bf16 {v(S2B)}, {v(FB+2+k)}, {v(WR+2+k)}")
GP = 96
MSA, MSB = TA+1, TA+2
I(f"v_perm_b32 {v(MSA)}, {v(VPK)}, {v(MPK)}, {v(TA+18)}" if False else f"v_and_b32 {v(MSA)}, 0xffff, {v(MPK)}")
I(f"v_lshrrev_b32 {v(MSB)}, 16, {v(MPK)}")
I(f"v_add_f32 {v(S1A)}, {v(S1A)}, {v(S2A)}")
I(f"v_add_f32 {v(S1B)}, {v(S1B)}, {v(S2B)}")
I(f"v_or_b32 {v(MSA)}, {v(MSA)}, {v(VA2)}")
I(f"v_or_b32 {v(MSB)}, {v(MSB)}, {v(VB2)}")
dpp_reduce([S1A, S1B])
I("s_nop 0")
RPK = TA+3
I(f"v_cvt_pk_bf16_f32 {v(RPK)}, {v(S1A)}, {v(S1B)}")
I("s_nop 0")
I(f"v_readlane_b32 {s(S_R)}, {v(RPK)}, 63")
I(f"s_lshl_b32 {s(S_T2)}, {s(S_ROW0)}, 3")
I(f"v_mov_b32 {v(VO)}, {s(S_T2)}")
I(f"v_mov_b32 {v(GP)}, {v(MSA)}")
I(f"v_mov_b32 {v(GP+2)}, {v(MSB)}")
I(f"s_and_b32 {s(S_T0)}, {s(S_R)}, 0x80008000")
I(f"s_lshr_b32 {s(S_T1)}, {s(S_T0)}, 15")
I(f"s_mul_i32 {s(S_T1)}, {s(S_T1)}, 0x7fff")
I(f"s_or_b32 {s(S_T1)}, {s(S_T1)}, 0x80008000")
I(f"s_xor_b32 {s(S_R)}, {s(S_R)}, {s(S_T1)}")
I(f"s_sub_u32 {s(S_T3)}, 0xffff, {s(S_ROW0)}")
I(f"s_lshl_b32 {s(S_T0)}, {s(S_R)}, 16")
I(f"s_or_b32 {s(S_T0)}, {s(S_T0)}, {s(S_T3)}")
I(f"s_and_b32 {s(S_T1)}, {s(S_R)}, 0xffff0000")
I(f"s_sub_u32 {s(S_T3)}, {s(S_T3)}, 1")
I(f"s_or_b32 {s(S_T1)}, {s(S_T1)}, {s(S_T3)}")
I(f"s_max_u32 {s(S_T2)}, {s(S_T0)}, {s(S_T1)}")
I(f"s_min_u32 {s(S_T3)}, {s(S_T0)}, {s(S_T1)}")
I(f"v_mov_b32 {v(40)}, {s(S_T2)}")
I(f"v_mov_b32 {v(41)}, {s(S_T3)}")
I(f"s_lshl_b32 {s(S_T0)}, {s(S_WAVE)}, 3")
I(f"v_mov_b32 {v(42)}, {s(S_T0)}")
I(f"ds_write_b64 {v(42)}, {v(40,2)} offset:{L_MISC + 64}")
stamp()
I("s_waitcnt lgkmcnt(0)")
I("s_barrier")
TG = 56
for i in range(4):
    I(f"ds_read_b32 {v(TG+4*i)}, {v(VTR1)} offset:{L_T1 + 256*i}")
    I(f"ds_read_b32 {v(TG+4*i+1)}, {v(VTR1)} offset:{L_T2 + 256*i}")
    I(f"ds_read_b32 {v(TG+4*i+2)}, {v(VTR1)} offset:{L_T1 + 256*i + TS}")
    I(f"ds_read_b32 {v(TG+4*i+3)}, {v(VTR1)} offset:{L_T2 + 256*i + TS}")
nonce_wait(VZ, VNON)
I(f"v_mov_b32 {v(GP+1)}, {v(VNON)}")
I(f"v_mov_b32 {v(GP+3)}, {v(VNON)}")
I(f"s_cmp_lg_u32 {s(S_WAVE)}, 0")
I("s_cbranch_scc1 L_nokeys")
I(f"ds_read_b128 {v(72,4)}, {v(VZ)} offset:{L_MISC+64}")
I(f"ds_read_b128 {v(76,4)}, {v(VZ)} offset:{L_MISC+80}")
I(f"s_lshl_b32 {s(S_T0)}, s2, 4")
I(f"s_add_u32 {s(S_T0)}, {s(S_T0)}, {WS_KEYS}")
I(f"v_mov_b32 {v(81)}, {s(S_T0)}")
I("s_waitcnt lgkmcnt(0)")
top2_combine(72, 80)
I(f"v_mov_b32 {v(74)}, {v(73)}")
I(f"v_mov_b32 {v(73)}, {v(VNON)}")
I(f"v_mov_b32 {v(75)}, {v(VNON)}")
I("s_mov_b64 exec, 1")
I(f"global_store_dwordx4 {v(81)}, {v(72,4)}, {s(P_WS,2)} sc1")
I("s_mov_b64 exec, -1")
L("L_nokeys")
I("s_mov_b64 exec, 1")
I(f"global_store_dwordx4 {v(VO)}, {v(GP,4)}, {s(P_WS,2)} sc1")
I("s_mov_b64 exec, -1")
for i in range(4):
    I(f"s_waitcnt lgkmcnt({12 - 4*i})")
    I(f"global_store_dwordx4 {v(VTS1)}, {v(TG+4*i,4)}, {s(S_XNB,2)} sc1")
    if i < 3: I(f"v_add_u32 {v(VTS1)}, 0x100000, {v(VTS1)}")
stamp()

C("---- K-gen parameters")
I("s_waitcnt lgkmcnt(0)")
I(f"s_lshr_b32 {s(S_T0)}, {s(S_WAVE)}, 1")
I(f"s_lshl_b32 {s(S_T0)}, {s(S_T0)}, 4")
I(f"s_lshr_b32 {s(S_T1)}, {s(S_LDT)}, {s(S_T0)}")
I(f"s_lshl_b32 {s(S_T1)}, {s(S_T1)}, 16")
I(f"s_lshl_b32 {s(S_DS2)}, {s(S_DSK)}, 16")
I(f"s_and_b32 {s(S_DS2+1)}, {s(S_DSK)}, 0xffff0000")
l2e_hi = struct.unpack("<f", struct.pack("<f", LOG2E))[0]
l2e_lo = LOG2E - l2e_hi
T0_, T1_, T2_, T3_, DT = 40, 41, 42, 43, 44
I(f"v_mov_b32 {v(T0_)}, {f2u(l2e_hi):#x}")
I(f"v_mov_b32 {v(T3_)}, {f2u(l2e_lo):#x}")
I(f"v_mul_f32 {v(T1_)}, {s(S_T1)}, {v(T0_)}")
I(f"v_fma_f32 {v(T2_)}, {s(S_T1)}, {v(T0_)}, -{v(T1_)}")
I(f"v_fma_f32 {v(T2_)}, {s(S_T1)}, {v(T3_)}, {v(T2_)}")
I(f"v_exp_f32 {v(T1_)}, {v(T1_)}")
I(f"v_mul_f32 {v(T2_)}, {f2u(math.log(2.0)):#x}, {v(T2_)}")
I("s_nop 0")
I(f"v_fma_f32 {v(T1_)}, {v(T1_)}, {v(T2_)}, {v(T1_)}")
I(f"v_cvt_pk_bf16_f32 {v(T1_)}, {v(T1_)}, {v(T1_)}")
I(f"v_lshlrev_b32 {v(DT)}, 16, {v(T1_)}")
PW = 48
I(f"v_mul_f32 {v(T1_)}, {v(DT)}, {v(PRM+2)}")
I(f"v_mul_f32 {v(T2_)}, {v(DT)}, {v(PRM+3)}")
I(f"v_mul_f32 {v(PW)}, {v(DT)}, {v(PRM+0)}")
I(f"v_mul_f32 {v(PW+1)}, {v(DT)}, {v(PRM+1)}")
I(f"v_mul_f32 {v(PW+2)}, {v(PRM+4)}, {v(T1_)}")
I(f"v_mul_f32 {v(PW+3)}, {v(PRM+4)}, {v(T2_)}")
I(f"v_fma_f32 {v(PW+2)}, -{v(PRM+5)}, {v(T2_)}, {v(PW+2)}")
I(f"v_fma_f32 {v(PW+3)}, {v(PRM+5)}, {v(T1_)}, {v(PW+3)}")
I(f"v_mul_f32 {v(PW)}, {v(T0_)}, {v(PW)}")
I(f"v_max_f32 {v(T3_)}, |{v(PW+2)}|, |{v(PW+3)}|")
I(f"v_mul_f32 {v(PW+1)}, 0.15915494, {v(PW+1)}")
dpp_reduce([T3_], "v_max_f32")
I("s_nop 0")
I(f"v_readlane_b32 {s(S_T0)}, {v(T3_)}, 63")
I("s_nop 3")
I(f"s_bfe_u32 {s(S_T0)}, {s(S_T0)}, 0x80017")
I(f"s_max_u32 {s(S_T0)}, {s(S_T0)}, 1")
I(f"s_min_u32 {s(S_T0)}, {s(S_T0)}, 253")
I(f"s_lshl_b32 {s(S_UNS)}, {s(S_T0)}, 23")
I(f"s_sub_u32 {s(S_T0)}, 254, {s(S_T0)}")
I(f"s_lshl_b32 {s(S_T0)}, {s(S_T0)}, 23")
I(f"v_mul_f32 {v(PW+2)}, {s(S_T0)}, {v(PW+2)}")
I(f"v_mul_f32 {v(PW+3)}, {s(S_T0)}, {v(PW+3)}")
I(f"ds_write_b128 {v(VPW)}, {v(PW,4)}")
C("---- K-gen main loop: 4 super-groups of 16 n")
ACC = 100
PP = 56
OPS = 112
TM = 72
for k in range(12): I(f"v_mov_b32 {v(ACC+k)}, 0")
I(f"s_mov_b32 {s(S_CNT)}, 0")
I("s_waitcnt lgkmcnt(0)")
L("L_kgen")
for q in range(4):
    I(f"ds_read_b128 {v(PP+4*q,4)}, {v(VPAR)} offset:{16*q}")
I(f"v_add_u32 {v(VPAR)}, 256, {v(VPAR)}")
alphas = [VBETA, AL, AL+2, AL+4]
for q in range(4):
    P = PP + 4*q
    I(f"s_waitcnt lgkmcnt({3-q})")
    for x in range(4): I(f"v_pk_mul_f32 {v(TM+4*x,2)}, {v(P,2)}, {v(alphas[x],2)} op_sel_hi:[1,0]")
    for x in range(4): I(f"v_fract_f32 {v(TM+4*x+1)}, {v(TM+4*x+1)}")
    for x in range(4): I(f"v_exp_f32 {v(TM+4*x)}, {v(TM+4*x)}")
    for x in range(4): I(f"v_cos_f32 {v(TM+4*x+2)}, {v(TM+4*x+1)}")
    for x in range(4): I(f"v_sin_f32 {v(TM+4*x+3)}, {v(TM+4*x+1)}")
    for x in range(4): I(f"v_pk_mul_f32 {v(88+2*x,2)}, {v(TM+4*x+2,2)}, {v(TM+4*x,2)} op_sel_hi:[1,0]")
    I(f"v_pk_mul_f32 {v(96,2)}, {v(88,2)}, {v(P+2,2)} op_sel_hi:[0,1] neg_hi:[0,1]")
    I(f"v_cvt_pk_f16_f32 {v(OPS+4+q)}, {v(90)}, {v(91)}")
    I(f"v_cvt_pk_f16_f32 {v(OPS+8+q)}, {v(92)}, {v(93)}")
    I(f"v_fma_f32 {v(96)}, -{v(89)}, {v(P+3)}, {v(96)}")
    I(f"v_fma_f32 {v(97)}, -{v(89)}, {v(P+2)}, {v(97)}")
    I(f"v_cvt_pk_f16_f32 {v(OPS+12+q)}, {v(94)}, {v(95)}")
    I(f"v_cvt_pk_f16_f32 {v(OPS+q)}, {v(96)}, {v(97)}")
I(f"s_cmp_lg_u32 {s(S_CNT)}, 1")
I("s_cbranch_scc1 L_kg_noflag")
I("s_waitcnt vmcnt(0)")
I("s_mov_b64 exec, 1")
I(f"global_store_dword {v(VFP)}, {v(VNON)}, {s(P_WS,2)} sc1")
I("s_mov_b64 exec, -1")
L("L_kg_noflag")
I("s_nop 1")
for t in range(3):
    I(f"v_mfma_f32_16x16x32_f16 {v(ACC+4*t,4)}, {v(OPS+4+4*t,4)}, {v(OPS,4)}, {v(ACC+4*t,4)}")
I(f"s_add_u32 {s(S_CNT)}, {s(S_CNT)}, 1")
I(f"s_cmp_lt_u32 {s(S_CNT)}, 4")
I("s_cbranch_scc1 L_kgen")
stamp()
I(f"global_load_dwordx4 {v(144,4)}, {v(VFL)}, {s(P_WS,2)} sc1")
I("s_nop 6")
for k in range(12): I(f"v_mul_f32 {v(ACC+k)}, {s(S_UNS)}, {v(ACC+k)}")
for r in range(4): I(f"ds_write_b32 {v(SC0)}, {v(ACC+r)} offset:{8*r}")
for r in range(2): I(f"ds_write_b32 {v(SC1A)}, {v(ACC+4+r)} offset:{8*r}")
for r in range(2): I(f"ds_write_b32 {v(SC1B)}, {v(ACC+6+r)} offset:{8*r}")
for r in range(4): I(f"ds_write_b32 {v(SC2)}, {v(ACC+8+r)} offset:{128*r}")
GR = 160
GK = 176
GF = 144
I(f"v_mov_b32 {v(40)}, 0")
I(f"v_mov_b32 {v(41)}, 0")
I(f"ds_write_b64 {v(VZ)}, {v(40,2)} offset:{L_KTAB + 8*ZIDX}")
I(f"ds_write_b64 {v(VZ)}, {v(40,2)} offset:{L_KTAB + KTAB_D + 8*ZIDX}")
poll4(VFL, GF, (0, 1, 2, 3), 44, issued=True, first_wait=0)
I("s_waitcnt lgkmcnt(0)")
I("s_barrier")
sweep_issue(VSW, GR, S_XNG)
I(f"global_load_dwordx4 {v(GK,4)}, {v(VSW+4)}, {s(P_WS,2)} sc1")
C("---- expand K into 4 shifted bf16 copies")
I(f"ds_write_b16 {v(VTL)}, {v(VZ)} offset:{L_KC + 4096}")
E0 = 40
CP = 96
for d in range(2):
    Eb = E0 + 24*d
    for k in range(11):
        I(f"ds_read_b64 {v(Eb+2*k,2)}, {v(GA+k)} offset:{L_KTAB + d*KTAB_D}")
for d in range(2):
    Eb = E0 + 24*d
    I(f"s_waitcnt lgkmcnt({11 if d == 0 else 4})")
    for k in range(11):
        I(f"v_add_f32 {v(Eb+2*k)}, {v(Eb+2*k)}, {v(Eb+2*k+1)}")
    for sg in range(4):
        Cb = CP + 16*d + 4*sg
        for m in range(4):
            I(f"v_cvt_pk_bf16_f32 {v(Cb+m)}, {v(Eb+2*(sg+2*m))}, {v(Eb+2*(sg+2*m+1))}")
        I(f"ds_write_b128 {v(VKCW)}, {v(Cb,4)} offset:{L_KC + d*KC_D + sg*KC_S}")
stamp()
C("---- records of this channel pair -> LDS")
I(f"s_mov_b32 {s(S_T0)}, 0x05040100")
I(f"s_mov_b32 {s(S_T1)}, 0x07060302")
XX = 40
for k in range(4):
    I(f"s_waitcnt vmcnt({4-k})")
    if k == 0: stamp()
    for d in range(2):
        I(f"v_perm_b32 {v(XX+4*k+d)}, {v(GR+4*k+2)}, {v(GR+4*k)}, {s(S_T0+d)}")
        I(f"ds_write_b32 {v(VT4)}, {v(XX+4*k+d)} offset:{L_U + 512 + d*U_D + 1024*k}")
    I(f"ds_write2_b32 {v(VXW)}, {v(GR+4*k+1)}, {v(GR+4*k+3)} offset0:0 offset1:1")
    if k < 3: I(f"v_add_u32 {v(VXW)}, 2048, {v(VXW)}")
I("s_waitcnt lgkmcnt(0)")
I("s_barrier")
stamp()
C("---- convolution")
CA = [32, 96]
CB = [64, 128]
YA = 144
YA = 8
EP = 192
def conv_loads(rl, buf, n):
    ls = []
    for k in range(n):
        off = 64 * (63 - 8*k - rl)
        ls.append(f"ds_read_b64 {v(CA[buf]+4*k,2)}, {v(VA_)} offset:{off}")
        ls.append(f"ds_read_b64 {v(CA[buf]+4*k+2,2)}, {v(VA_)} offset:{off+8}")
        off = 512*k + 64*(3 - rl)
        ls.append(f"ds_read_b128 {v(CB[buf]+4*k,4)}, {v(VB_)} offset:{off}")
    return ["    " + x for x in ls]
def epilogue(ph, RD, XQ, UQ, T):
    for d in range(2):
        a = RD + 8*d
        I(f"v_pk_add_f32 {v(a,2)}, {v(a,2)}, {v(a+4,2)}")
        I(f"v_pk_add_f32 {v(a+2,2)}, {v(a+2,2)}, {v(a+6,2)}")
    XNr = RD + 4
    def xn(r): return (RD+4+2*(r & 1)) + 8*(r >> 1)
    for r in range(4):
        for d in range(2):
            src = UQ + 2*d + (r >> 1)
            if r & 1: I(f"v_and_b32 {v(xn(r)+d)}, {s(S_MASK)}, {v(src)}")
            else:     I(f"v_lshlrev_b32 {v(xn(r)+d)}, 16, {v(src)}")
    for r in range(4):
        a = T + 6*(r & 1)
        I(f"v_pk_mul_f32 {v(a+2,2)}, {v(xn(r),2)}, {s(S_DS2,2)}")
        I(f"v_cvt_pk_bf16_f32 {v(a)}, {v(RD+r)}, {v(RD+8+r)}")
        I(f"v_cvt_pk_bf16_f32 {v(a+1)}, {v(a+2)}, {v(a+3)}")
        unpack(a+2, a)
        unpack(a+4, a+1)
        I(f"v_pk_add_f32 {v(a+2,2)}, {v(a+2,2)}, {v(a+4,2)}")
        unpack(a+4, XQ+r)
        I(f"v_cvt_pk_bf16_f32 {v(a)}, {v(a+2)}, {v(a+3)}")
        unpack(a+2, a)
        I(f"v_pk_add_f32 {v(a+2,2)}, {v(a+2,2)}, {v(a+4,2)}")
        I(f"v_cvt_pk_bf16_f32 {v(XQ+r)}, {v(a+2)}, {v(a+3)}")
        unpack(a+2, XQ+r)
        I(f"v_pk_add_f32 {v(a+2,2)}, {v(a+2,2)}, {v(xn(r),2)}")
        I(f"v_cvt_pk_bf16_f32 {v(RD+r)}, {v(a+2)}, {v(a+3)}")
        I(f"global_store_dword {v(VOUT+ph)}, {v(RD+r)}, {s(P_OUT,2)} offset:{r*1024}")
    I(f"ds_write_b128 {v(VEX)}, {v(XQ,4)} offset:{L_XL + 4096*ph}")
def red_reads(ph, base, RD, XQ, UQ):
    for w in range(4):
        I(f"ds_read_b128 {v(RD+4*w,4)}, {v(VRR)} offset:{base + 4096*w}")
    I(f"ds_read_b128 {v(XQ,4)}, {v(VEX)} offset:{L_XL + 4096*ph}")
    for d in range(2):
        I(f"ds_read_b64 {v(UQ+2*d,2)}, {v(VEU)} offset:{L_U + 512 + d*U_D + 2048*ph}")

def mf(T, ch, dl, buf, first):
    a = YA + 4*(T & 3)
    return f"    v_mfma_f32_16x16x32_bf16 {v(a,4)}, {v(CA[buf]+4*ch,4)}, {v(CB[buf]+4*dl,4)}, {'0' if first else v(a,4)}"
out.extend(conv_loads(0, 0, 4))
seq = 0
for rl in range(4):
    buf = seq & 1; seq += 1
    nxt = conv_loads(rl+1, 1-buf, 4) if rl < 3 else conv_loads(0, 1-buf, 8)
    pairs = [(ch, T-ch) for T in range(4) for ch in range(T+1)]
    pairs.sort(key=lambda p: (max(p), p[0]+p[1]))
    I("s_waitcnt lgkmcnt(0)")
    seen = set()
    per = -(-len(nxt) // len(pairs))
    ni = 0
    for (ch, dl) in pairs:
        T = ch + dl
        out.append(mf(T, ch, dl, buf, rl == 0 and T not in seen)); seen.add(T)
        out.extend(nxt[ni:ni+per]); ni += per
    out.extend(nxt[ni:])
I("s_nop 7")
for T in range(4):
    I(f"ds_write_b128 {v(VRW)}, {v(YA+4*T,4)} offset:{L_R1 + 1024*T}")
I("s_waitcnt vmcnt(0) lgkmcnt(0)")
I("s_barrier")
stamp()
RD1, XQ1, UQ1, TP1 = 160, 24, 28, 192
TP1 = 244 - 52
fill = [[], [], [], []]
with capture() as f0: red_reads(0, L_R1, RD1, XQ1, UQ1)
fill[0] = f0
with capture() as f1: epilogue(0, RD1, XQ1, UQ1, TP1)
fill[1] = f1[:len(f1)//2]; fill[2] = f1[len(f1)//2:]
for rl in range(4):
    buf = seq & 1; seq += 1
    nxt = conv_loads(rl+1, 1-buf, 8) if rl < 3 else []
    pairs = [(ch, T-ch) for T in range(4, 8) for ch in range(T+1)]
    pairs.sort(key=lambda p: (max(p), p[0]+p[1]))
    I("s_waitcnt lgkmcnt(0)")
    seen = set()
    fl = fill[rl]
    per = -(-len(fl) // len(pairs)) if fl else 0
    ni = fi = 0
    for (ch, dl) in pairs:
        T = ch + dl
        out.append(mf(T, ch, dl, buf, rl == 0 and T not in seen)); seen.add(T)
        out.extend(nxt[ni:ni+1]); ni += 1
        out.extend(fl[fi:fi+per]); fi += per
    out.extend(nxt[ni:]); out.extend(fl[fi:])
stamp()
I("s_nop 7")
I("s_barrier")
for T in range(4):
    I(f"ds_write_b128 {v(VRW)}, {v(YA+4*T,4)} offset:{L_R2 + 1024*T}")
poll4(VSW+4, GK, (1, 3), 40, issued=True, first_wait=4)
top2_wave(GK, M1, M2, 44, 45)
I(f"s_lshl_b32 {s(S_T0)}, {s(S_WAVE)}, 3")
I(f"v_mov_b32 {v(46)}, {s(S_T0)}")
I(f"ds_write_b64 {v(46)}, {v(M1,2)} offset:{L_MISC + 16}")
I("s_waitcnt lgkmcnt(0)")
I("s_barrier")
RD2, XQ2, UQ2 = 96, 112, 116
red_reads(1, L_R2, RD2, XQ2, UQ2)
I(f"ds_read_b128 {v(64,4)}, {v(VZ)} offset:{L_MISC+16}")
I(f"ds_read_b128 {v(68,4)}, {v(VZ)} offset:{L_MISC+32}")
I("s_waitcnt lgkmcnt(0)")
epilogue(1, RD2, XQ2, UQ2, 120)
stamp()
C("---- routed rows fix-up")
top2_combine(64, 73)
I("s_nop 0")
I(f"v_readfirstlane_b32 {s(S_K1)}, {v(64)}")
I(f"v_readfirstlane_b32 {s(S_K2)}, {v(65)}")
I("s_waitcnt lgkmcnt(0)")
I(f"s_mov_b32 {s(S_X0)}, 0")
L("L_fix")
I(f"s_and_b32 {s(S_T0)}, {s(S_K1)}, 0xffff")
I(f"s_sub_u32 {s(S_T0)}, 0xffff, {s(S_T0)}")
I(f"s_lshr_b32 {s(S_T1)}, {s(S_T0)}, 8")
I(f"s_cmp_ge_u32 {s(S_T1)}, 8")
I("s_cbranch_scc1 L_fix_skip")
I(f"s_and_b32 {s(S_T1)}, {s(S_T1)}, 3")
I(f"s_cmp_lg_u32 {s(S_T1)}, {s(S_WAVE)}")
I("s_cbranch_scc1 L_fix_skip")
I(f"s_lshl_b32 {s(S_T1)}, {s(S_DP)}, 11")
I(f"s_lshl_b32 {s(S_T2)}, {s(S_X0)}, 19")
I(f"s_add_u32 {s(S_T1)}, {s(S_T1)}, {s(S_T2)}")
I(f"v_lshl_add_u32 {v(76)}, {v(VL)}, 4, {s(S_T1)}")
I(f"s_lshl_b32 {s(S_T2)}, {s(S_T0)}, 2")
I(f"v_mov_b32 {v(77)}, {s(S_T2)}")
I(f"s_lshl_b32 {s(S_T2)}, {s(S_T0)}, 1")
I(f"v_mov_b32 {v(78)}, {s(S_T2)}")
I(f"v_mov_b32 {v(90)}, 0")
I(f"v_mov_b32 {v(91)}, 0")
I(f"ds_read_b32 {v(79)}, {v(77)} offset:{L_XL}")
I(f"ds_read_u16_d16_hi {v(90)}, {v(78)} offset:{L_U + 512}")
I(f"ds_read_u16_d16_hi {v(91)}, {v(78)} offset:{L_U + 512 + U_D}")
I(f"s_lshr_b32 {s(S_T2)}, {s(S_K1)}, 16")
I(f"s_lshr_b32 {s(S_T3)}, {s(S_T2)}, 15")
I(f"s_cmp_eq_u32 {s(S_T3)}, 1")
I(f"s_mov_b32 {s(S_T3)}, 0xffff")
I(f"s_cselect_b32 {s(S_T3)}, 0x8000, {s(S_T3)}")
I(f"s_xor_b32 {s(S_T2)}, {s(S_T2)}, {s(S_T3)}")
I(f"s_lshl_b32 {s(S_T2)}, {s(S_T2)}, 16")
I(f"v_mov_b32 {v(92)}, {f2u(-LOG2E):#x}")
I(f"v_mul_f32 {v(92)}, {s(S_T2)}, {v(92)}")
I(f"v_exp_f32 {v(92)}, {v(92)}")
I("s_nop 0")
I(f"v_add_f32 {v(92)}, 1.0, {v(92)}")
I(f"v_rcp_f32 {v(92)}, {v(92)}")
I("s_nop 0")
I(f"v_cvt_pk_bf16_f32 {v(92)}, {v(92)}, {v(92)}")
I(f"v_lshlrev_b32 {v(92)}, 16, {v(92)}")
I(f"s_mov_b32 {s(S_CNT)}, 0")
I(f"v_mov_b32 {v(84)}, 0")
I(f"v_mov_b32 {v(85)}, {s(S_NONCE)}")
I(f"v_mov_b32 {v(86)}, 0")
I(f"v_mov_b32 {v(87)}, {s(S_NONCE)}")
L("L_fixpoll")
I(f"global_load_dwordx4 {v(80,4)}, {v(76)}, {s(S_PART,2)} sc1")
I(f"s_bfm_b64 exec, {G-64}, 0")
I(f"global_load_dwordx4 {v(84,4)}, {v(76)}, {s(S_PART,2)} offset:1024 sc1")
I("s_mov_b64 exec, -1")
I("s_waitcnt vmcnt(0)")
I(f"v_xor_b32 {v(88)}, {s(S_NONCE)}, {v(81)}")
I(f"v_xor_b32 {v(89)}, {s(S_NONCE)}, {v(83)}")
I(f"v_xor_b32 {v(93)}, {s(S_NONCE)}, {v(85)}")
I(f"v_xor_b32 {v(94)}, {s(S_NONCE)}, {v(87)}")
I(f"v_or3_b32 {v(88)}, {v(88)}, {v(89)}, {v(93)}")
I(f"v_or_b32 {v(88)}, {v(88)}, {v(94)}")
I(f"v_cmp_ne_u32 vcc, 0, {v(88)}")
I(f"s_add_u32 {s(S_CNT)}, {s(S_CNT)}, 1")
I(f"s_cmp_eq_u64 vcc, 0")
I(f"s_cbranch_scc1 L_fixpoll_done")
I("s_sleep 2")
I(f"s_cmp_lt_u32 {s(S_CNT)}, {POLL_LIMIT}")
I(f"s_cbranch_scc1 L_fixpoll")
L("L_fixpoll_done")
I(f"v_add_f32 {v(80)}, {v(80)}, {v(84)}")
I(f"v_add_f32 {v(82)}, {v(82)}, {v(86)}")
I("s_nop 0")
dpp_reduce([80, 82])
I("s_nop 0")
I(f"v_cvt_pk_bf16_f32 {v(84)}, {v(80)}, {v(82)}")
unpack(80, 84)
I(f"v_pk_mul_f32 {v(80,2)}, {v(80,2)}, {v(92,2)} op_sel_hi:[1,0]")
I(f"v_cvt_pk_bf16_f32 {v(84)}, {v(80)}, {v(81)}")
unpack(80, 84)
I("s_waitcnt lgkmcnt(0)")
I(f"v_pk_add_f32 {v(80,2)}, {v(80,2)}, {v(90,2)}")
I(f"v_cvt_pk_bf16_f32 {v(84)}, {v(80)}, {v(81)}")
unpack(80, 84)
unpack(82, 79)
I(f"v_pk_add_f32 {v(80,2)}, {v(80,2)}, {v(82,2)}")
I(f"v_cvt_pk_bf16_f32 {v(84)}, {v(80)}, {v(81)}")
I(f"s_lshl_b32 {s(S_T1)}, {s(S_T0)}, 10")
I(f"s_lshl_b32 {s(S_T2)}, {s(S_DP)}, 2")
I(f"s_add_u32 {s(S_T1)}, {s(S_T1)}, {s(S_T2)}")
I(f"v_mov_b32 {v(85)}, {s(S_T1)}")
I("s_lshl_b64 exec, 1, 63")
I(f"global_store_dword {v(85)}, {v(84)}, {s(P_OUT,2)}")
I("s_mov_b64 exec, -1")
L("L_fix_skip")
I(f"s_mov_b32 {s(S_K1)}, {s(S_K2)}")
I(f"s_add_u32 {s(S_X0)}, {s(S_X0)}, 1")
I(f"s_cmp_lt_u32 {s(S_X0)}, 2")
I("s_cbranch_scc1 L_fix")
I("s_branch L_fin")

L("L_ffn")
nstamp[0] = 1
C("---- FFN role")
S_G = 47
I(f"s_sub_u32 {s(S_T0)}, s2, {NCONV}")
I(f"s_and_b32 {s(S_T1)}, {s(S_T0)}, 7")
I(f"s_mul_i32 {s(S_T1)}, {s(S_T1)}, 14")
I(f"s_lshr_b32 {s(S_T0)}, {s(S_T0)}, 3")
I(f"s_add_u32 {s(S_G)}, {s(S_T0)}, {s(S_T1)}")
WL = 32
t1, t2, t3, t4 = 12, 13, 14, 15
I(f"v_lshlrev_b32 {v(t4)}, 4, v0")
I(f"v_add_u32 {v(VSW+4)}, {WS_KEYS}, {v(t4)}")
I(f"v_lshrrev_b32 {v(t1)}, 2, v0")
I(f"v_mul_u32_u24 {v(t1)}, 3584, {v(t1)}")
I(f"v_and_b32 {v(t2)}, 1, v0")
I(f"v_lshl_add_u32 {v(t1)}, {v(t2)}, 4, {v(t1)}")
I(f"s_lshl_b32 {s(S_T0)}, {s(S_G)}, 5")
I(f"v_add_u32 {v(t1)}, {s(S_T0)}, {v(t1)}")
I(f"v_and_b32 {v(t2)}, 2, v0")
I(f"v_cmp_eq_u32 vcc, 0, {v(t2)}")
I("s_waitcnt lgkmcnt(0)")
I(f"v_mov_b32 {v(16)}, {s(P_WU)}")
I(f"v_mov_b32 {v(17)}, {s(P_WU+1)}")
I(f"v_mov_b32 {v(18)}, {s(P_WG)}")
I(f"v_mov_b32 {v(19)}, {s(P_WG+1)}")
I(f"v_cndmask_b32 {v(16)}, {v(16)}, {v(18)}, vcc")
I(f"v_cndmask_b32 {v(17)}, {v(17)}, {v(19)}, vcc")
I(f"v_add_co_u32 {v(16)}, vcc, {v(16)}, {v(t1)}")
I("s_nop 1")
I(f"v_addc_co_u32 {v(17)}, vcc, {v(17)}, {v(VZ)}, vcc")
I(f"s_add_u32 {s(S_PART)}, {s(P_WS)}, {WS_PART}")
I(f"s_addc_u32 {s(S_PART+1)}, {s(P_WS+1)}, 0")
nonce_cas(VZ, 20)
stamp()
INFL = int([a for a in sys.argv if a.startswith("--infl=")][0][7:]) if any(a.startswith("--infl=") for a in sys.argv) else 2
I(f"s_mov_b32 {s(S_T1)}, {64*3584}")
WD = 96
I(f"s_lshl_b32 {s(S_T0)}, {s(S_G)}, 14")
I(f"v_lshl_add_u32 {v(t3)}, v0, 2, {s(S_T0)}")
for p in range(8):
    I(f"global_load_dwordx4 {v(WL+4*p,4)}, {v(16,2)}, off")
    if p < 7:
        I(f"v_add_co_u32 {v(16)}, vcc, {s(S_T1)}, {v(16)}")
        I("s_nop 1")
        I(f"v_addc_co_u32 {v(17)}, vcc, {v(17)}, {v(VZ)}, vcc")
    if p >= INFL - 1:
        I(f"s_waitcnt vmcnt({INFL-1})")
        q = p - (INFL - 1)
        I(f"ds_write_b128 {v(t4)}, {v(WL+4*q,4)} offset:{F_W + 4096*q}")
nonce_issue(VZ, 22)
for f in range(16):
    if f and f % 4 == 0:
        I(f"v_add_u32 {v(t3)}, 4096, {v(t3)}")
    I(f"global_load_dword {v(WD+f)}, {v(t3)}, {s(P_WD,2)} offset:{(f&3)*1024}")
for q in range(8 - (INFL - 1), 8):
    I(f"s_waitcnt vmcnt({17 + 7 - q})")
    I(f"ds_write_b128 {v(t4)}, {v(WL+4*q,4)} offset:{F_W + 4096*q}")
I(f"v_lshrrev_b32 {v(t1)}, 2, {v(VJ)}")
I(f"v_lshl_add_u32 {v(t1)}, {v(VKG)}, 3, {v(t1)}")
I(f"v_lshlrev_b32 {v(t1)}, 6, {v(t1)}")
I(f"v_and_b32 {v(t2)}, 1, {v(VL)}")
I(f"v_lshl_add_u32 {v(t1)}, {v(t2)}, 3, {v(t1)}")
I(f"v_and_b32 {v(t2)}, 2, {v(VL)}")
I(f"v_lshl_add_u32 {v(t1)}, {v(t2)}, 4, {v(t1)}")
I(f"s_and_b32 {s(S_T0)}, {s(S_WAVE)}, 1")
I(f"s_lshl_b32 {s(S_T0)}, {s(S_T0)}, 4")
I(f"v_add_u32 {v(t1)}, {s(S_T0)}, {v(t1)}")
I("s_waitcnt lgkmcnt(0)")
I("s_barrier")
for st in range(16):
    I(f"ds_read_b64_tr_b16 {v(WL+4*st,2)}, {v(t1)} offset:{F_W + 2048*st}")
    I(f"ds_read_b64_tr_b16 {v(WL+4*st+2,2)}, {v(t1)} offset:{F_W + 2048*st + 256}")
WF = 128
nonce_wait(VZ, 22)
for f in range(16): unpack(WF+2*f, WD+f)
I(f"v_bfe_u32 {v(t2)}, {v(VJ)}, 2, 1")
I(f"v_lshlrev_b32 {v(t2)}, 10, {v(t2)}")
I(f"v_lshl_add_u32 {v(t2)}, {v(VKG)}, 4, {v(t2)}")
I(f"s_and_b32 {s(S_T1)}, {s(S_WAVE)}, 1")
I(f"s_lshl_b32 {s(S_T1)}, {s(S_T1)}, 9")
I(f"v_lshl_add_u32 {v(24)}, {v(VL)}, 3, {s(S_T1)}")
I(f"s_lshr_b32 {s(S_T0)}, {s(S_WAVE)}, 1")
I(f"s_lshl_b32 {s(S_T1)}, {s(S_T0)}, 10")
I(f"v_add_u32 {v(25)}, {s(S_T1)}, {v(24)}")
I(f"s_lshl_b32 {s(S_T0)}, {s(S_WAVE)}, 3")
I(f"v_mov_b32 {v(26)}, {s(S_T0)}")
I("s_waitcnt lgkmcnt(0)")
stamp()
GK = 192
poll4(VSW+4, GK, (1, 3), 20)
stamp()
M1, M2 = 224, 225
top2_wave(GK, M1, M2, 21, 22)
I(f"ds_write_b64 {v(26)}, {v(M1,2)} offset:{L_MISC + 16}")
I("s_waitcnt lgkmcnt(0)")
I("s_barrier")
I(f"ds_read_b128 {v(96,4)}, {v(VZ)} offset:{L_MISC+16}")
I(f"ds_read_b128 {v(100,4)}, {v(VZ)} offset:{L_MISC+32}")
I(f"s_cmp_lt_u32 {s(S_WAVE)}, 2")
I(f"s_cselect_b64 vcc, -1, 0")
I("s_waitcnt lgkmcnt(0)")
top2_combine(96, 104)
I(f"v_cndmask_b32 {v(96)}, {v(97)}, {v(96)}, vcc")
I(f"v_and_b32 {v(96)}, 0xffff, {v(96)}")
I(f"v_sub_u32 {v(96)}, 0xffff, {v(96)}")
I(f"v_min_u32 {v(96)}, 2047, {v(96)}")
I(f"v_lshl_add_u32 {v(97)}, {v(96)}, 10, {v(24)}")
I(f"v_lshlrev_b32 {v(99)}, 3, {v(96)}")
I(f"global_load_dwordx2 {v(100,2)}, {v(97)}, {s(P_U,2)}")
I(f"s_mov_b32 {s(S_CNT)}, 0")
L("L_f_stat")
I(f"global_load_dwordx2 {v(104,2)}, {v(99)}, {s(P_WS,2)} sc1")
I("s_waitcnt vmcnt(0)")
I(f"v_cmp_ne_u32 vcc, {s(S_NONCE)}, {v(105)}")
I(f"s_add_u32 {s(S_CNT)}, {s(S_CNT)}, 1")
I(f"s_cmp_eq_u64 vcc, 0")
I(f"s_cbranch_scc1 L_f_stat_done")
I(f"s_cmp_lt_u32 {s(S_CNT)}, {POLL_LIMIT}")
I(f"s_cbranch_scc1 L_f_stat")
L("L_f_stat_done")
stamp()
I(f"v_and_b32 {v(106)}, {s(S_MASK)}, {v(104)}")
I(f"v_lshlrev_b32 {v(104)}, 16, {v(104)}")
I(f"v_rcp_f32 {v(106)}, {v(106)}")
for k in range(2): unpack(108+2*k, 100+k)
for k in range(2): I(f"v_pk_add_f32 {v(108+2*k,2)}, {v(108+2*k,2)}, {v(104,2)} op_sel_hi:[1,0] neg_lo:[0,1] neg_hi:[0,1]")
for k in range(2): I(f"v_cvt_pk_bf16_f32 {v(100+k)}, {v(108+2*k)}, {v(109+2*k)}")
for k in range(2): unpack(108+2*k, 100+k)
for k in range(2): I(f"v_pk_mul_f32 {v(108+2*k,2)}, {v(108+2*k,2)}, {v(106,2)} op_sel_hi:[1,0]")
for k in range(2): I(f"v_cvt_pk_bf16_f32 {v(100+k)}, {v(108+2*k)}, {v(109+2*k)}")
I(f"ds_write_b64 {v(25)}, {v(100,2)} offset:{F_XS}")
I("s_waitcnt lgkmcnt(0)")
I("s_barrier")
I(f"s_cmp_ge_u32 {s(S_WAVE)}, 2")
I("s_cbranch_scc1 L_f_nogu")
AX = 160
for st in range(16):
    I(f"ds_read_b128 {v(AX+4*st,4)}, {v(t2)} offset:{F_XS + 64*st}")
AC = 96
for st in range(16):
    I(f"s_waitcnt lgkmcnt({15-st})")
    a = AC + 4*(st & 1)
    I(f"v_mfma_f32_16x16x32_bf16 {v(a,4)}, {v(AX+4*st,4)}, {v(WL+4*st,4)}, {'0' if st < 2 else v(a,4)}")
I(f"v_lshlrev_b32 {v(107)}, 7, {v(VKG)}")
I(f"v_lshl_add_u32 {v(107)}, {v(VJ)}, 3, {v(107)}")
I(f"s_lshl_b32 {s(S_T0)}, {s(S_WAVE)}, 6")
I(f"v_add_u32 {v(107)}, {s(S_T0)}, {v(107)}")
I("s_nop 4")
I(f"v_add_f32 {v(104)}, {v(AC)}, {v(AC+4)}")
I(f"v_cvt_pk_bf16_f32 {v(104)}, {v(104)}, {v(104)}")
I(f"v_lshlrev_b32 {v(104)}, 16, {v(104)}")
I(f"v_mul_f32 {v(105)}, {f2u(-LOG2E):#x}, {v(104)}")
I(f"v_exp_f32 {v(105)}, {v(105)}")
I(f"v_mov_b32_dpp {v(106)}, {v(104)} row_ror:8 row_mask:0xf bank_mask:0xf")
I(f"v_add_f32 {v(105)}, 1.0, {v(105)}")
I(f"v_rcp_f32 {v(105)}, {v(105)}")
I("s_nop 0")
I(f"v_mul_f32 {v(105)}, {v(104)}, {v(105)}")
I(f"v_cvt_pk_bf16_f32 {v(105)}, {v(105)}, {v(105)}")
I(f"v_lshlrev_b32 {v(105)}, 16, {v(105)}")
I(f"v_mul_f32 {v(105)}, {v(105)}, {v(106)}")
I(f"v_cvt_pk_bf16_f32 {v(105)}, {v(105)}, {v(105)}")
I(f"v_lshlrev_b32 {v(105)}, 16, {v(105)}")
I("s_mov_b64 exec, 0x00ff00ff")
I(f"ds_write2_b32 {v(107)}, {v(105)}, {v(105)} offset0:{F_H//4} offset1:{F_H//4+1}")
I("s_mov_b64 exec, -1")
I("s_waitcnt lgkmcnt(0)")
L("L_f_nogu")
I("s_barrier")
HB = 160
for q in range(16):
    I(f"ds_read_b128 {v(HB+4*q,4)}, {v(VZ)} offset:{F_H + 16*q}")
Y0, Y1 = 96, 100
I(f"s_lshl_b32 {s(S_T0)}, {s(S_G)}, 4")
I(f"v_lshl_add_u32 {v(112)}, v0, 11, {s(S_T0)}")
I(f"v_add_u32 {v(113)}, 0x80000, {v(112)}")
for Y in (Y0, Y1):
    I(f"v_mov_b32 {v(Y+1)}, {s(S_NONCE)}")
    I(f"v_mov_b32 {v(Y+3)}, {s(S_NONCE)}")
for q in range(16):
    tok = q >> 3
    I(f"s_waitcnt lgkmcnt({15-q})")
    for e in range(2):
        f = 2*(q & 7) + e
        acc = 104 + 4*tok + 2*e
        hp = HB + 4*q + 2*e
        if f < 2:
            I(f"v_pk_mul_f32 {v(acc,2)}, {v(WF+2*f,2)}, {v(hp,2)}")
        else:
            I(f"v_pk_fma_f32 {v(acc,2)}, {v(WF+2*f,2)}, {v(hp,2)}, {v(acc,2)}")
    if q == 7 or q == 15:
        Y = Y0 if q == 7 else Y1
        I(f"v_add_f32 {v(Y)}, {v(104+4*tok)}, {v(106+4*tok)}")
        I(f"v_add_f32 {v(Y+2)}, {v(105+4*tok)}, {v(107+4*tok)}")
        I(f"global_store_dwordx4 {v(112+tok)}, {v(Y,4)}, {s(S_PART,2)} sc1")
stamp()
L("L_fin")
if STAMP:
    I("s_waitcnt vmcnt(0) lgkmcnt(0)")
    I(f"s_memtime {s(S_ST + 22, 2)}")
    I(f"s_memrealtime {s(S_T2, 2)}")
    I(f"s_add_u32 {s(S_STB)}, {s(P_WS)}, {WS_STAMP}")
    I(f"s_addc_u32 {s(S_STB+1)}, {s(P_WS+1)}, 0")
    I(f"s_lshl_b32 {s(S_T0)}, s2, 2")
    I(f"s_add_u32 {s(S_T0)}, {s(S_T0)}, {s(S_WAVE)}")
    I(f"s_lshl_b32 {s(S_T0)}, {s(S_T0)}, 7")
    I("s_waitcnt lgkmcnt(0)")
    I(f"v_mov_b32 v10, {s(S_T0)}")
    I("s_mov_b64 exec, 1")
    for k in range(12):
        I(f"v_mov_b32 v12, {s(S_ST+2*k)}")
        I(f"v_mov_b32 v13, {s(S_ST+2*k+1)}")
        I(f"global_store_dwordx2 v10, v[12:13], {s(S_STB,2)} offset:{8*k}")
        I("s_nop 1")
    I(f"v_mov_b32 v12, {s(S_T2)}")
    I(f"v_mov_b32 v13, {s(S_T3)}")
    I(f"global_store_dwordx2 v10, v[12:13], {s(S_STB,2)} offset:96")
L("L_end")
I("s_endpgm")
out.append('.section .rodata,"a"')
out.append(".p2align 6")
out.append(f".amdhsa_kernel {KNAME}")
out.append("  .amdhsa_next_free_vgpr 256")
out.append("  .amdhsa_next_free_sgpr 102")
out.append("  .amdhsa_accum_offset 256")
out.append("  .amdhsa_group_segment_fixed_size 0")
out.append("  .amdhsa_kernarg_size 136")
out.append("  .amdhsa_user_sgpr_count 2")
out.append("  .amdhsa_user_sgpr_kernarg_segment_ptr 1")
out.append("  .amdhsa_system_sgpr_workgroup_id_x 1")
out.append("  .amdhsa_float_denorm_mode_32 3")
out.append(".end_amdhsa_kernel")
dst = [a for a in sys.argv[1:] if not a.startswith("--")]
open(dst[0] if dst else "k.s", "w").write("\n".join(out) + "\n")
```

```python
import sys, struct, math

KNAME = "parallel_sum__ssm_conv_s4__moe_arch_mod__prompt_kernel"
NLN = 128
NCONV = 256
G = 112
NWG = NLN + NCONV + G
STAMP = "--stamp" in sys.argv

WS_STATS = 0
WS_KEYS = 16384
WS_FLAG = 32768
WS_PART = 65536
WS_STAMP = 2 << 20
WS_XNG = 4 << 20
WS_XT = 8 << 20

L_MISC = 0
L_KC = 256
KC_S = 4160
KC_D = 4 * KC_S
L_U = L_KC + 2 * KC_D
U_D = 4608
L_XL = L_U + 2 * U_D
L_R1 = L_XL + 8192
L_KTAB = L_R1
KTAB_D = 7680
L_PAR = L_XL
L_R2 = L_R1
LDS_BYTES = L_R1 + 16384
ZIDX = 840
TRASH = 848
TS = 1040
L_T1 = L_KC
L_T2 = L_T1 + 16 * TS
F_H = 256
F_XS = 512
F_W = F_XS + 2048
assert F_W + 32768 <= LDS_BYTES
assert LDS_BYTES <= 81920
POLL_LIMIT = 40000

out = []
cur = [out]
def I(s): cur[0].append("    " + s)
def L(s): cur[0].append(s + ":")
def C(s): cur[0].append("    ; " + s)
class capture:
    def __enter__(self):
        self.prev = cur[0]; self.lst = []; cur[0] = self.lst; return self.lst
    def __exit__(self, *a): cur[0] = self.prev
def f2u(x): return struct.unpack("<I", struct.pack("<f", x))[0]
def v(a, n=1): return f"v{a}" if n == 1 else f"v[{a}:{a+n-1}]"
def s(a, n=1): return f"s{a}" if n == 1 else f"s[{a}:{a+n-1}]"
uid = [0]
def lab(p):
    uid[0] += 1
    return f"L_{p}_{uid[0]}"

P_U, P_ARE, P_AIM, P_BRE, P_BIM, P_CRE, P_CIM, P_LDT = 8, 10, 12, 14, 16, 18, 20, 22
P_DSK, P_BX, P_WR, P_WG, P_WU, P_WD, P_OUT, P_DBG = 24, 26, 28, 30, 32, 34, 36, 38
P_WS = 40
S_WAVE, S_DP, S_NONCE, S_LDT, S_DSK, S_ROW0 = 42, 43, 44, 45, 46, 47
S_T0, S_T1, S_T2, S_T3 = 48, 49, 50, 51
S_X0 = 52
S_R = 56
S_DS2 = 60
S_UNS = 62
S_M0 = 63
S_CNT = 64
S_EXEC = 66
S_PART = 70
S_K1, S_K2 = 72, 73
S_XNG = 68
S_XT = 4
S_XNB = 6
S_MASK = 74
S_ST = 76
S_STB = 100
LOG2E = math.log2(math.e)

nstamp = [0]
def stamp():
    if not STAMP: return
    k = nstamp[0]; nstamp[0] += 1
    assert k < 11
    I(f"s_memtime {s(S_ST + 2*k, 2)}")

DPP4 = ("quad_perm:[1,0,3,2] row_mask:0xf bank_mask:0xf",
        "quad_perm:[2,3,0,1] row_mask:0xf bank_mask:0xf",
        "row_half_mirror row_mask:0xf bank_mask:0xf",
        "row_mirror row_mask:0xf bank_mask:0xf")
DPP6 = DPP4 + ("row_bcast:15 row_mask:0xa bank_mask:0xf", "row_bcast:31 row_mask:0xc bank_mask:0xf")
def dpp_reduce(regs, op="v_add_f32"):
    for mode in DPP6:
        pad = max(0, 3 - len(regs))
        if pad: I(f"s_nop {pad-1}")
        for r in regs:
            I(f"{op}_dpp {v(r)}, {v(r)}, {v(r)} {mode}")

def nonce_cas(vz, vt):
    l = lab("nocas")
    I(f"s_cmp_lg_u32 {s(S_T0)}, 0")
    I(f"s_cbranch_scc1 {l}")
    I(f"s_memrealtime {s(S_T2,2)}")
    I("s_waitcnt lgkmcnt(0)")
    I(f"s_or_b32 {s(S_T2)}, {s(S_T2)}, 1")
    I(f"v_mov_b32 {v(vt)}, {s(S_T2)}")
    I(f"v_mov_b32 {v(vt+1)}, 0")
    I("s_mov_b64 exec, 1")
    I(f"global_atomic_cmpswap {v(vz)}, {v(vt,2)}, {s(P_DBG,2)} sc1")
    I("s_mov_b64 exec, -1")
    L(l)

def nonce_issue(vz, vt):
    I(f"global_load_dword {v(vt)}, {v(vz)}, {s(P_DBG,2)} sc1")

def nonce_wait(vz, vt):
    l = lab("npoll"); done = l + "_done"
    I(f"s_mov_b32 {s(S_CNT)}, 0")
    L(l)
    I("s_waitcnt vmcnt(0)")
    I(f"v_readfirstlane_b32 {s(S_NONCE)}, {v(vt)}")
    I(f"s_add_u32 {s(S_CNT)}, {s(S_CNT)}, 1")
    I(f"s_cmp_lg_u32 {s(S_NONCE)}, 0")
    I(f"s_cbranch_scc1 {done}")
    I(f"s_cmp_ge_u32 {s(S_CNT)}, {POLL_LIMIT}")
    I(f"s_cbranch_scc1 {done}")
    I("s_sleep 1")
    nonce_issue(vz, vt)
    I(f"s_branch {l}")
    L(done)

def sweep_issue(vaddr, GR, base):
    for k in range(4):
        I(f"global_load_dwordx4 {v(GR+4*k,4)}, {v(vaddr+k)}, {s(base,2)} sc1")

def sweep_check(GR, vtmp):
    I(f"v_xor_b32 {v(vtmp)}, {s(S_NONCE)}, {v(GR+1)}")
    I(f"v_xor_b32 {v(vtmp+1)}, {s(S_NONCE)}, {v(GR+3)}")
    for k in range(1, 4):
        I(f"v_xor_b32 {v(vtmp+2)}, {s(S_NONCE)}, {v(GR+4*k+1)}")
        I(f"v_xor_b32 {v(vtmp+3)}, {s(S_NONCE)}, {v(GR+4*k+3)}")
        I(f"v_or3_b32 {v(vtmp)}, {v(vtmp)}, {v(vtmp+2)}, {v(vtmp+3)}")
    I(f"v_or_b32 {v(vtmp)}, {v(vtmp)}, {v(vtmp+1)}")
    I(f"v_cmp_ne_u32 vcc, 0, {v(vtmp)}")

def sweep(vaddr, GR, vtmp, base, issued=False, first_wait=0):
    l = lab("sweep"); done = l + "_done"; chk = l + "_chk"
    I(f"s_mov_b32 {s(S_CNT)}, 0")
    if issued:
        I(f"s_waitcnt vmcnt({first_wait})")
        I(f"s_branch {chk}")
    L(l)
    sweep_issue(vaddr, GR, base)
    I("s_waitcnt vmcnt(0)")
    L(chk)
    sweep_check(GR, vtmp)
    I(f"s_add_u32 {s(S_CNT)}, {s(S_CNT)}, 1")
    I(f"s_cmp_eq_u64 vcc, 0")
    I(f"s_cbranch_scc1 {done}")
    I("s_sleep 4")
    I(f"s_cmp_lt_u32 {s(S_CNT)}, {POLL_LIMIT}")
    I(f"s_cbranch_scc1 {l}")
    L(done)

def poll4(vaddr, GR, tagpos, vtmp, issued=False, first_wait=0, sleep=2):
    l = lab("poll"); done = l + "_done"; chk = l + "_chk"
    I(f"s_mov_b32 {s(S_CNT)}, 0")
    if issued:
        I(f"s_waitcnt vmcnt({first_wait})")
        I(f"s_branch {chk}")
    L(l)
    I(f"global_load_dwordx4 {v(GR,4)}, {v(vaddr)}, {s(P_WS,2)} sc1")
    I("s_waitcnt vmcnt(0)")
    L(chk)
    for k, tp in enumerate(tagpos): I(f"v_xor_b32 {v(vtmp+k)}, {s(S_NONCE)}, {v(GR+tp)}")
    if len(tagpos) == 4:
        I(f"v_or3_b32 {v(vtmp)}, {v(vtmp)}, {v(vtmp+2)}, {v(vtmp+3)}")
    I(f"v_or_b32 {v(vtmp)}, {v(vtmp)}, {v(vtmp+1)}")
    I(f"v_cmp_ne_u32 vcc, 0, {v(vtmp)}")
    I(f"s_add_u32 {s(S_CNT)}, {s(S_CNT)}, 1")
    I(f"s_cmp_eq_u64 vcc, 0")
    I(f"s_cbranch_scc1 {done}")
    I(f"s_sleep {sleep}")
    I(f"s_cmp_lt_u32 {s(S_CNT)}, {POLL_LIMIT}")
    I(f"s_cbranch_scc1 {l}")
    L(done)

def top2_wave(GR, m1, m2, t1, t2):
    I(f"v_mov_b32 {v(m1)}, {v(GR)}")
    I(f"v_mov_b32 {v(m2)}, {v(GR+2)}")
    for mode in DPP4:
        I("s_nop 1")
        I(f"v_mov_b32_dpp {v(t1)}, {v(m1)} {mode}")
        I(f"v_max_u32_dpp {v(t2)}, {v(m2)}, {v(m2)} {mode}")
        I(f"v_med3_u32 {v(m2)}, {v(m1)}, {v(t1)}, {v(t2)}")
        I(f"v_max_u32 {v(m1)}, {v(m1)}, {v(t1)}")
    for swp in ("v_permlane16_swap_b32", "v_permlane32_swap_b32"):
        I(f"v_mov_b32 {v(t1)}, {v(m1)}")
        I(f"v_mov_b32 {v(t2)}, {v(m2)}")
        I("s_nop 1")
        I(f"{swp} {v(m1)}, {v(t1)}")
        I(f"{swp} {v(m2)}, {v(t2)}")
        I("s_nop 0")
        I(f"v_max_u32 {v(t2)}, {v(m2)}, {v(t2)}")
        I(f"v_med3_u32 {v(m2)}, {v(m1)}, {v(t1)}, {v(t2)}")
        I(f"v_max_u32 {v(m1)}, {v(m1)}, {v(t1)}")

def top2_combine(a, t1):
    for k in (1, 2, 3):
        I(f"v_max_u32 {v(t1)}, {v(a+1)}, {v(a+2*k+1)}")
        I(f"v_med3_u32 {v(a+1)}, {v(a)}, {v(a+2*k)}, {v(t1)}")
        I(f"v_max_u32 {v(a)}, {v(a)}, {v(a+2*k)}")

def unpack(dst, src):
    I(f"v_lshlrev_b32 {v(dst)}, 16, {v(src)}")
    I(f"v_and_b32 {v(dst+1)}, {s(S_MASK)}, {v(src)}")


def keys_poll(vaddr, GK, vtmp):
    l = lab("kpoll"); done = l + "_done"
    I(f"s_mov_b32 {s(S_CNT)}, 0")
    L(l)
    I(f"global_load_dwordx4 {v(GK,4)}, {v(vaddr)}, {s(P_WS,2)} sc1")
    I(f"global_load_dwordx4 {v(GK+4,4)}, {v(vaddr+1)}, {s(P_WS,2)} sc1")
    I("s_waitcnt vmcnt(0)")
    for k in range(4): I(f"v_xor_b32 {v(vtmp+k)}, {s(S_NONCE)}, {v(GK+2*k+1)}")
    I(f"v_or3_b32 {v(vtmp)}, {v(vtmp)}, {v(vtmp+2)}, {v(vtmp+3)}")
    I(f"v_or_b32 {v(vtmp)}, {v(vtmp)}, {v(vtmp+1)}")
    I(f"v_cmp_ne_u32 vcc, 0, {v(vtmp)}")
    I(f"s_add_u32 {s(S_CNT)}, {s(S_CNT)}, 1")
    I(f"s_cmp_eq_u64 vcc, 0")
    I(f"s_cbranch_scc1 {done}")
    I("s_sleep 6")
    I(f"s_cmp_lt_u32 {s(S_CNT)}, {POLL_LIMIT}")
    I(f"s_cbranch_scc1 {l}")
    L(done)

def keys_top2(GK, m1, m2, t1, t2):
    I(f"v_max_u32 {v(t2)}, {v(GK+2)}, {v(GK+6)}")
    I(f"v_med3_u32 {v(GK+2)}, {v(GK)}, {v(GK+4)}, {v(t2)}")
    I(f"v_max_u32 {v(GK)}, {v(GK)}, {v(GK+4)}")
    top2_wave(GK, m1, m2, t1, t2)
    I("s_nop 0")
    I(f"v_readfirstlane_b32 {s(S_K1)}, {v(m1)}")
    I(f"v_readfirstlane_b32 {s(S_K2)}, {v(m2)}")


def keys_issue(vaddr, GK):
    I(f"global_load_dwordx4 {v(GK,4)}, {v(vaddr)}, {s(P_WS,2)} sc1")
    I(f"global_load_dwordx4 {v(GK+4,4)}, {v(vaddr+1)}, {s(P_WS,2)} sc1")
def keys_check(GK, vtmp):
    for k in range(4): I(f"v_xor_b32 {v(vtmp+k)}, {s(S_NONCE)}, {v(GK+2*k+1)}")
    I(f"v_or3_b32 {v(vtmp)}, {v(vtmp)}, {v(vtmp+2)}, {v(vtmp+3)}")
    I(f"v_or_b32 {v(vtmp)}, {v(vtmp)}, {v(vtmp+1)}")
    I(f"v_cmp_ne_u32 vcc, 0, {v(vtmp)}")
    I(f"s_cmp_eq_u64 vcc, 0")

hdr = open("parallel_sum__ssm_conv_s4__moe_arch_mod__prompt.s.ref").read().split("; Override")[0]
out.append(hdr.rstrip())
out.append(f"; @launch grid=({NWG},1,1) block=(256,1,1) lds={LDS_BYTES}")
out.append('.amdgcn_target "amdgcn-amd-amdhsa--gfx950"')
out.append(".text")
out.append(f".globl {KNAME}")
out.append(".p2align 8")
out.append(f".type {KNAME},@function")
L(KNAME)
I(f"s_cmp_ge_u32 s2, {NWG}")
I("s_cbranch_scc1 L_end")
I(f"s_load_dwordx16 s[8:23], s[0:1], 0")
I(f"s_load_dwordx16 s[24:39], s[0:1], 64")
I(f"s_load_dwordx2 {s(P_WS,2)}, s[0:1], 128")
stamp()
VL, VZ, VJ, VKG = 1, 2, 5, 6
VO, VO2 = 10, 11
I(f"v_and_b32 {v(VL)}, 63, v0")
I(f"v_lshrrev_b32 v3, 6, v0")
I(f"v_mov_b32 {v(VZ)}, 0")
I(f"v_readfirstlane_b32 {s(S_WAVE)}, v3")
I(f"s_mov_b32 {s(S_MASK)}, 0xffff0000")
I(f"v_lshlrev_b32 {v(VO2)}, 4, {v(VL)}")
I(f"s_cmp_ge_u32 s2, {NLN}")
I("s_cbranch_scc1 L_notln")

C("==== LayerNorm role: 16 rows per workgroup, 4 per wave")
NR = 4
X = [12 + 4*r for r in range(NR)]
WR = 28
F = [32 + 8*r for r in range(NR)]
D = [64 + 8*r for r in range(NR)]
T = [96 + 8*r for r in range(NR)]
S1 = [128 + r for r in range(NR)]
S2 = [132 + r for r in range(NR)]
S3 = [136 + r for r in range(NR)]
SW = 140
SX0 = [52 + 2*r for r in range(NR)]
VNON = 141
VTW, VTR2, VTS2 = 142, 143, 144
t1, t2 = 145, 146
VC, VONE = 147, 148
TX = 160
R_ = range(NR)
I(f"s_lshl_b32 {s(S_ROW0)}, s2, 4")
I(f"s_lshl_b32 {s(S_T0)}, {s(S_WAVE)}, 2")
I(f"s_add_u32 {s(S_ROW0)}, {s(S_ROW0)}, {s(S_T0)}")
I(f"s_lshl_b32 {s(S_T0)}, {s(S_ROW0)}, 10")
I(f"v_add_u32 {v(VO)}, {s(S_T0)}, {v(VO2)}")
I("s_waitcnt lgkmcnt(0)")
for r in R_:
    I(f"global_load_dwordx4 {v(X[r],4)}, {v(VO)}, {s(P_U,2)} offset:{1024*r}")
I(f"global_load_dwordx4 {v(WR,4)}, {v(VO2)}, {s(P_WR,2)}")
I(f"s_add_u32 {s(S_XT)}, {s(P_WS)}, {WS_XT}")
I(f"s_addc_u32 {s(S_XT+1)}, {s(P_WS+1)}, 0")
I(f"s_mul_i32 {s(S_T2)}, {s(S_WAVE)}, {4*TS}")
I(f"v_add_u32 {v(VTW)}, {s(S_T2)}, {v(VO2)}")
I(f"v_and_b32 {v(t1)}, 3, v0")
I(f"v_lshrrev_b32 {v(t2)}, 2, v0")
I(f"v_mul_u32_u24 {v(VTR2)}, {4*TS}, {v(t1)}")
I(f"v_lshl_add_u32 {v(VTR2)}, {v(t2)}, 2, {v(VTR2)}")
I(f"s_lshl_b32 {s(S_T2)}, s2, 6")
I(f"v_lshl_add_u32 {v(VTS2)}, {v(t1)}, 4, {s(S_T2)}")
I(f"v_lshl_add_u32 {v(VTS2)}, {v(t2)}, 13, {v(VTS2)}")
I(f"s_lshl_b32 {s(S_T2)}, {s(S_ROW0)}, 3")
I(f"v_add_u32 {v(VO)}, {s(S_T2)}, {v(VO2)}")
I(f"v_mov_b32 {v(VC)}, {f2u(1.0/512):#x}")
I(f"v_mov_b32 {v(VONE)}, 0x3f803f80")
for r in R_: I(f"v_mov_b32 {v(S3[r])}, 0")
I(f"v_mov_b32 {v(SW)}, 0")
for r in R_:
    I(f"s_waitcnt vmcnt({NR - r})")
    if r == 0: stamp()
    I(f"ds_write_b128 {v(VTW)}, {v(X[r],4)} offset:{L_T2 + r*TS}")
    if r < NR - 1:
        for k in range(4): unpack(F[r]+2*k, X[r]+k)
I("s_waitcnt lgkmcnt(0)")
I("s_barrier")
for i in range(4):
    for e in range(4):
        I(f"ds_read_b32 {v(TX+4*i+e)}, {v(VTR2)} offset:{L_T2 + 256*i + e*TS}")
for k in range(4): unpack(F[NR-1]+2*k, X[NR-1]+k)
for r in R_: I(f"v_readfirstlane_b32 {s(SX0[r])}, {v(F[r])}")
for i in range(4):
    I(f"s_waitcnt lgkmcnt({12 - 4*i})")
    I(f"global_store_dwordx4 {v(VTS2)}, {v(TX+4*i,4)}, {s(S_XT,2)} sc1")
    if i < 3: I(f"v_add_u32 {v(VTS2)}, 0x80000, {v(VTS2)}")
nonce_issue(VZ, VNON)
stamp()
for k in range(4):
    for r in R_:
        I(f"v_pk_add_f32 {v(D[r]+2*k,2)}, {v(F[r]+2*k,2)}, {s(SX0[r],2)} op_sel_hi:[1,0] neg_lo:[0,1] neg_hi:[0,1]")
I("s_waitcnt vmcnt(5)")
for k in range(4):
    for r in R_: I(f"v_dot2c_f32_bf16 {v(S3[r])}, {v(X[r]+k)}, {v(WR+k)}")
    I(f"v_dot2c_f32_bf16 {v(SW)}, {v(VONE)}, {v(WR+k)}")
for r in R_: I(f"v_pk_add_f32 {v(T[r],2)}, {v(D[r],2)}, {v(D[r]+2,2)}")
for r in R_: I(f"v_pk_mul_f32 {v(T[r]+4,2)}, {v(D[r],2)}, {v(D[r],2)}")
for r in R_: I(f"v_pk_add_f32 {v(T[r]+2,2)}, {v(D[r]+4,2)}, {v(D[r]+6,2)}")
for r in R_: I(f"v_pk_fma_f32 {v(T[r]+4,2)}, {v(D[r]+2,2)}, {v(D[r]+2,2)}, {v(T[r]+4,2)}")
for r in R_: I(f"v_pk_add_f32 {v(T[r],2)}, {v(T[r],2)}, {v(T[r]+2,2)}")
for r in R_: I(f"v_pk_fma_f32 {v(T[r]+4,2)}, {v(D[r]+4,2)}, {v(D[r]+4,2)}, {v(T[r]+4,2)}")
for r in R_: I(f"v_add_f32 {v(S1[r])}, {v(T[r])}, {v(T[r]+1)}")
for r in R_: I(f"v_pk_fma_f32 {v(T[r]+4,2)}, {v(D[r]+6,2)}, {v(D[r]+6,2)}, {v(T[r]+4,2)}")
for r in R_: I(f"v_add_f32 {v(S2[r])}, {v(T[r]+4)}, {v(T[r]+5)}")
dpp_reduce(S1 + S3 + [SW] + S2)
for r in R_: I(f"v_mul_f32 {v(S1[r])}, {v(VC)}, {v(S1[r])}")
for r in R_: I(f"v_mul_f32 {v(S2[r])}, {v(VC)}, {v(S2[r])}")
for r in R_: I(f"v_fma_f32 {v(S2[r])}, -{v(S1[r])}, {v(S1[r])}, {v(S2[r])}")
for r in R_: I(f"v_add_f32 {v(S1[r])}, {s(SX0[r])}, {v(S1[r])}")
for r in R_: I(f"v_max_f32 {v(S2[r])}, 0, {v(S2[r])}")
MP = [T[0], T[0]+1]; VP = [T[0]+2, T[0]+3]
for h in range(2): I(f"v_cvt_pk_bf16_f32 {v(MP[h])}, {v(S1[2*h])}, {v(S1[2*h+1])}")
for h in range(2): I(f"v_cvt_pk_bf16_f32 {v(VP[h])}, {v(S2[2*h])}, {v(S2[2*h+1])}")
for h in range(2): unpack(S1[2*h], MP[h])
for h in range(2): unpack(S2[2*h], VP[h])
eps = f2u(1e-5)
for r in R_: I(f"v_add_f32 {v(S2[r])}, {eps:#x}, {v(S2[r])}")
for r in R_: I(f"v_fma_f32 {v(S3[r])}, -{v(S1[r])}, {v(SW)}, {v(S3[r])}")
for h in range(2): I(f"v_cvt_pk_bf16_f32 {v(VP[h])}, {v(S2[2*h])}, {v(S2[2*h+1])}")
for r in R_: I(f"v_lshrrev_b32 {v(S1[r])}, 16, {v(S1[r])}")
for h in range(2): unpack(S2[2*h], VP[h])
for r in R_: I(f"v_sqrt_f32 {v(S2[r])}, {v(S2[r])}")
I("s_nop 0")
for h in range(2): I(f"v_cvt_pk_bf16_f32 {v(VP[h])}, {v(S2[2*h])}, {v(S2[2*h+1])}")
for h in range(2): unpack(S2[2*h], VP[h])
RC = [T[1]+r for r in R_]
for r in R_: I(f"v_rcp_f32 {v(RC[r])}, {v(S2[r])}")
for r in R_: I(f"v_or_b32 {v(S1[r])}, {v(S1[r])}, {v(S2[r])}")
for r in R_: I(f"v_mul_f32 {v(S3[r])}, {v(S3[r])}, {v(RC[r])}")
SMS = [10, 11, 12, 13]
for r in R_: I(f"v_readlane_b32 {s(SMS[r])}, {v(S1[r])}, 63")
for h in range(2): I(f"v_cvt_pk_bf16_f32 {v(MP[h])}, {v(S3[2*h])}, {v(S3[2*h+1])}")
GP = 152
I(f"v_cmp_eq_u32 vcc, 0, {v(VL)}")
for h in range(2): I(f"v_readlane_b32 {s(S_R+h)}, {v(MP[h])}, 63")
I(f"v_mov_b32 {v(GP)}, {s(SMS[2])}")
I(f"v_mov_b32 {v(GP+2)}, {s(SMS[3])}")
I(f"v_mov_b32 {v(t1)}, {s(SMS[0])}")
I(f"v_mov_b32 {v(t2)}, {s(SMS[1])}")
I(f"v_cndmask_b32 {v(GP)}, {v(GP)}, {v(t1)}, vcc")
I(f"v_cndmask_b32 {v(GP+2)}, {v(GP+2)}, {v(t2)}, vcc")
I(f"s_sub_u32 {s(S_T3)}, 0xffff, {s(S_ROW0)}")
KK = [14, 15, 16, 17]
for h in range(2):
    I(f"s_and_b32 {s(S_T0)}, {s(S_R+h)}, 0x80008000")
    I(f"s_lshr_b32 {s(S_T1)}, {s(S_T0)}, 15")
    I(f"s_mul_i32 {s(S_T1)}, {s(S_T1)}, 0x7fff")
    I(f"s_or_b32 {s(S_T1)}, {s(S_T1)}, 0x80008000")
    I(f"s_xor_b32 {s(S_T2)}, {s(S_R+h)}, {s(S_T1)}")
    I(f"s_lshl_b32 {s(S_T0)}, {s(S_T2)}, 16")
    I(f"s_or_b32 {s(S_T0)}, {s(S_T0)}, {s(S_T3)}")
    I(f"s_sub_u32 {s(S_T3)}, {s(S_T3)}, 1")
    I(f"s_and_b32 {s(S_T1)}, {s(S_T2)}, 0xffff0000")
    I(f"s_or_b32 {s(S_T1)}, {s(S_T1)}, {s(S_T3)}")
    I(f"s_sub_u32 {s(S_T3)}, {s(S_T3)}, 1")
    I(f"s_max_u32 {s(KK[2*h])}, {s(S_T0)}, {s(S_T1)}")
    I(f"s_min_u32 {s(KK[2*h+1])}, {s(S_T0)}, {s(S_T1)}")
I(f"s_max_u32 {s(S_T0)}, {s(KK[0])}, {s(KK[2])}")
I(f"s_min_u32 {s(S_T1)}, {s(KK[0])}, {s(KK[2])}")
I(f"s_max_u32 {s(S_T2)}, {s(KK[1])}, {s(KK[3])}")
I(f"s_max_u32 {s(S_T1)}, {s(S_T1)}, {s(S_T2)}")
I(f"v_mov_b32 {v(156)}, {s(S_T0)}")
I(f"v_mov_b32 {v(157)}, {s(S_T1)}")
I(f"s_lshl_b32 {s(S_T0)}, {s(S_WAVE)}, 3")
I(f"v_mov_b32 {v(158)}, {s(S_T0)}")
I(f"ds_write_b64 {v(158)}, {v(156,2)} offset:{L_MISC + 64}")
stamp()
nonce_wait(VZ, VNON)
stamp()
I(f"v_mov_b32 {v(GP+1)}, {v(VNON)}")
I(f"v_mov_b32 {v(GP+3)}, {v(VNON)}")
I("s_mov_b64 exec, 3")
I(f"global_store_dwordx4 {v(VO)}, {v(GP,4)}, {s(P_WS,2)} sc1")
I("s_mov_b64 exec, -1")
I("s_waitcnt lgkmcnt(0)")
I("s_barrier")
I(f"s_cmp_lg_u32 {s(S_WAVE)}, 0")
I("s_cbranch_scc1 L_fin")
I(f"ds_read_b128 {v(96,4)}, {v(VZ)} offset:{L_MISC+64}")
I(f"ds_read_b128 {v(100,4)}, {v(VZ)} offset:{L_MISC+80}")
I(f"s_lshl_b32 {s(S_T0)}, s2, 7")
I(f"s_add_u32 {s(S_T0)}, {s(S_T0)}, {WS_KEYS}")
I(f"v_mov_b32 {v(105)}, {s(S_T0)}")
I("s_waitcnt lgkmcnt(0)")
top2_combine(96, 104)
I(f"v_mov_b32 {v(98)}, {v(97)}")
I(f"v_mov_b32 {v(97)}, {v(VNON)}")
I(f"v_mov_b32 {v(99)}, {v(VNON)}")
I("s_mov_b64 exec, 1")
I(f"global_store_dwordx4 {v(105)}, {v(96,4)}, {s(P_WS,2)} sc1")
I("s_mov_b64 exec, -1")
stamp()
I("s_branch L_fin")

L("L_notln")
nstamp[0] = 1
I(f"v_and_b32 {v(VJ)}, 15, {v(VL)}")
I(f"v_lshrrev_b32 {v(VKG)}, 4, {v(VL)}")
VKEY = 252
I(f"v_lshlrev_b32 {v(VKEY)}, 7, {v(VL)}")
I(f"v_add_u32 {v(VKEY+1)}, {WS_KEYS + 8192}, {v(VKEY)}")
I(f"v_add_u32 {v(VKEY)}, {WS_KEYS}, {v(VKEY)}")
I(f"s_cmp_ge_u32 s2, {NLN + NCONV}")
I("s_cbranch_scc1 L_ffn")

C("==== conv role")
S_C = 47
I(f"s_sub_u32 {s(S_C)}, s2, {NLN}")
PRM = 24
I(f"s_and_b32 {s(S_T0)}, {s(S_C)}, 7")
I(f"s_lshl_b32 {s(S_T0)}, {s(S_T0)}, 5")
I(f"s_lshr_b32 {s(S_T1)}, {s(S_C)}, 3")
I(f"s_add_u32 {s(S_DP)}, {s(S_T0)}, {s(S_T1)}")
I(f"s_lshl_b32 {s(S_T0)}, {s(S_DP)}, 9")
I(f"s_lshl_b32 {s(S_T1)}, {s(S_WAVE)}, 7")
I(f"s_add_u32 {s(S_T0)}, {s(S_T0)}, {s(S_T1)}")
VPO = 30
I(f"v_lshl_add_u32 {v(VPO)}, {v(VL)}, 1, {s(S_T0)}")
for k in range(6): I(f"v_mov_b32 {v(PRM+k)}, 0")
I(f"s_lshl_b32 {s(S_T1)}, {s(S_DP)}, 2")
I("s_waitcnt lgkmcnt(0)")
for k, p in enumerate((P_ARE, P_AIM, P_BRE, P_BIM, P_CRE, P_CIM)):
    I(f"global_load_short_d16_hi {v(PRM+k)}, {v(VPO)}, {s(p,2)}")
I(f"s_load_dword {s(S_LDT)}, {s(P_LDT,2)}, {s(S_T1)}")
I(f"s_load_dword {s(S_DSK)}, {s(P_DSK,2)}, {s(S_T1)}")
I(f"s_lshr_b32 {s(S_T0)}, {s(S_C)}, 3")
I(f"s_xor_b32 {s(S_T0)}, {s(S_T0)}, 31")
I(f"s_xor_b32 {s(S_T1)}, {s(S_WAVE)}, 3")
I(f"s_or_b32 {s(S_T0)}, {s(S_T0)}, {s(S_T1)}")
nonce_cas(VZ, 32)
I(f"s_add_u32 {s(S_PART)}, {s(P_WS)}, {WS_PART}")
I(f"s_addc_u32 {s(S_PART+1)}, {s(P_WS+1)}, 0")
I(f"s_lshl_b32 {s(S_T0)}, {s(S_DP)}, 13")
I(f"s_add_u32 {s(S_T0)}, {s(S_T0)}, {WS_XT}")
I(f"s_add_u32 {s(S_XNG)}, {s(P_WS)}, {s(S_T0)}")
I(f"s_addc_u32 {s(S_XNG+1)}, {s(P_WS+1)}, 0")

C("---- constants")
AL = 200
VBETA = 206
SC0, SC1A, SC1B, SC2 = 208, 209, 210, 211
GA = 212
VGX = 224
VA_, VB_ = 226, 227
VRW, VRR = 228, 229
VT0 = 230
VOUT = 232
VPAR = 234
VKCW = 235
VPW = 236
VT8 = 237
VT4 = 238
VFL = 239
M1, M2 = 240, 241
VEX, VEU = 242, 243
VTL = 245
VNON = 246
VSW = 248
t1, t2, t3, t4 = 12, 13, 14, 15
I(f"v_lshlrev_b32 {v(VKCW)}, 4, v0")
I(f"v_lshlrev_b32 {v(VT8)}, 3, v0")
I(f"v_lshlrev_b32 {v(VT4)}, 2, v0")
I(f"s_lshl_b32 {s(S_T2)}, {s(S_WAVE)}, 11")
I(f"s_add_u32 {s(S_T2)}, {s(S_T2)}, {L_PAR}")
I(f"v_lshl_add_u32 {v(VPAR)}, {v(VKG)}, 7, {s(S_T2)}")
I(f"v_lshl_add_u32 {v(VPW)}, {v(VL)}, 5, {s(S_T2)}")
for k in range(4):
    I(f"v_add_u32 {v(VSW+k)}, {4096*k}, {v(VKCW)}")
I(f"v_add_u32 {v(VFL)}, 4096, {v(VT8)}")
I(f"v_mov_b32 {v(t1)}, {v(VJ)}")
for i_, al in ((8, 512), (9, 516), (10, 1024), (11, 1536), (12, 2048), (13, 0), (14, 0), (15, 0)):
    I(f"v_cmp_eq_u32 vcc, {i_}, {v(VJ)}")
    I(f"v_mov_b32 {v(t2)}, {al}")
    I("s_nop 0")
    I(f"v_cndmask_b32 {v(t1)}, {v(t1)}, {v(t2)}, vcc")
I(f"v_cvt_f32_u32 {v(AL)}, {v(t1)}")
I(f"v_lshlrev_b32 {v(t1)}, 3, {v(VJ)}")
I(f"v_cvt_f32_u32 {v(VBETA)}, {v(t1)}")
SCB, SCS = 208, 202
I(f"s_lshr_b32 {s(S_T0)}, {s(S_WAVE)}, 1")
I(f"s_mul_i32 {s(S_T0)}, {s(S_T0)}, {KTAB_D}")
I(f"s_and_b32 {s(S_T1)}, {s(S_WAVE)}, 1")
I(f"s_lshl_b32 {s(S_T1)}, {s(S_T1)}, 2")
I(f"s_add_u32 {s(S_T0)}, {s(S_T0)}, {s(S_T1)}")
I(f"s_add_u32 {s(S_T0)}, {s(S_T0)}, {L_KTAB}")
I(f"v_mul_u32_u24 {v(t1)}, 9, {v(VJ)}")
I(f"v_lshl_add_u32 {v(t1)}, {v(VKG)}, 2, {v(t1)}")
I(f"v_cmp_eq_u32 {s(S_T2,2)}, 2, {v(VKG)}")
I(f"v_cmp_eq_u32 {s(S_X0,2)}, 3, {v(VKG)}")
I(f"v_cmp_eq_u32 {s(S_X0+2,2)}, 48, {v(VL)}")
for r in range(4):
    I(f"v_add_u32 {v(t2)}, {r}, {v(t1)}")
    if r < 2: I(f"v_lshl_add_u32 {v(t3)}, {v(VJ)}, 1, {v(VZ)}"); I(f"v_add_u32 {v(t3)}, {576 + r}, {v(t3)}")
    else:     I(f"v_add_u32 {v(t3)}, {704 + 64*(r-2)}, {v(VJ)}")
    I(f"v_cndmask_b32 {v(t2)}, {v(t2)}, {v(t3)}, {s(S_T2,2)}")
    I(f"v_add_u32 {v(t3)}, {TRASH + 16*r}, {v(VJ)}")
    I(f"v_cndmask_b32 {v(t2)}, {v(t2)}, {v(t3)}, {s(S_X0,2)}")
    if r == 0:
        I(f"v_mov_b32 {v(t3)}, 832")
        I(f"v_cndmask_b32 {v(t2)}, {v(t2)}, {v(t3)}, {s(S_X0+2,2)}")
    I(f"v_lshl_add_u32 {v(SCB+r)}, {v(t2)}, 3, {s(S_T0)}")
for hh, st2 in ((0, 32), (1, 16)):
    I(f"v_mov_b32 {v(t2)}, {144*8}")
    I(f"v_mov_b32 {v(t3)}, {st2*8}")
    I(f"v_cndmask_b32 {v(t2)}, {v(t2)}, {v(t3)}, {s(S_T2,2)}")
    I(f"v_cndmask_b32 {v(t2)}, {v(t2)}, {v(VZ)}, {s(S_X0,2)}")
    if hh == 0:
        I(f"v_mov_b32 {v(t3)}, {16*8}")
        I(f"v_cndmask_b32 {v(t2)}, {v(t2)}, {v(t3)}, {s(S_X0+2,2)}")
    I(f"v_mov_b32 {v(SCS+hh)}, {v(t2)}")
I(f"v_sub_u32 {v(t1)}, 2047, {v(VT8)}")
I(f"s_movk_i32 {s(S_T1)}, 0x4400")
I(f"v_mov_b32 {v(t4)}, {ZIDX}")
for k in range(11):
    I(f"v_subrev_u32 {v(t2)}, {k}, {v(t1)}")
    I(f"v_cvt_f32_i32 {v(t3)}, {v(t2)}")
    I(f"v_cvt_pk_bf16_f32 {v(t3)}, {v(t3)}, {v(VZ)}")
    I(f"v_lshlrev_b32 {v(16)}, 16, {v(t3)}")
    I(f"v_cmp_gt_u32 vcc, {s(S_T1)}, {v(t3)}")
    I(f"v_cvt_u32_f32 {v(16)}, {v(16)}")
    I(f"v_subrev_u32 {v(t3)}, {0x4400 - 576}, {v(t3)}")
    I(f"v_lshrrev_b32 {v(17)}, 3, {v(16)}")
    I(f"v_add_u32 {v(16)}, {v(16)}, {v(17)}")
    I(f"v_cndmask_b32 {v(t3)}, {v(t3)}, {v(16)}, vcc")
    if k >= 8:
        I(f"v_cmp_gt_i32 vcc, 0, {v(t2)}")
        I("s_nop 1")
        I(f"v_cndmask_b32 {v(t3)}, {v(t3)}, {v(t4)}, vcc")
    I(f"v_lshlrev_b32 {v(GA+k)}, 3, {v(t3)}")
I(f"s_lshr_b32 {s(S_T0)}, {s(S_WAVE)}, 1")
I(f"s_and_b32 {s(S_T1)}, {s(S_WAVE)}, 1")
I(f"s_mul_i32 {s(S_T2)}, {s(S_T0)}, {KC_D}")
I(f"s_lshl_b32 {s(S_T3)}, {s(S_T1)}, 8")
I(f"s_sub_u32 {s(S_T2)}, {s(S_T2)}, {s(S_T3)}")
I(f"s_add_u32 {s(S_T2)}, {s(S_T2)}, {L_KC + 3*KC_S + 72}")
I(f"v_and_b32 {v(t1)}, 3, {v(VJ)}")
I(f"v_mul_u32_u24 {v(t1)}, {KC_S}, {v(t1)}")
I(f"v_lshrrev_b32 {v(t2)}, 2, {v(VJ)}")
I(f"v_lshl_add_u32 {v(t1)}, {v(t2)}, 3, {v(t1)}")
I(f"v_lshl_add_u32 {v(t1)}, {v(VKG)}, 4, {v(t1)}")
I(f"v_sub_u32 {v(VA_)}, {s(S_T2)}, {v(t1)}")
I(f"s_mul_i32 {s(S_T2)}, {s(S_T0)}, {U_D}")
I(f"s_sub_u32 {s(S_T2)}, {s(S_T2)}, {s(S_T3)}")
I(f"s_add_u32 {s(S_T2)}, {s(S_T2)}, {L_U + 336}")
I(f"v_lshlrev_b32 {v(t1)}, 5, {v(VJ)}")
I(f"v_lshlrev_b32 {v(t2)}, 4, {v(VKG)}")
I(f"v_sub_u32 {v(t1)}, {v(t1)}, {v(t2)}")
I(f"v_add_u32 {v(VB_)}, {s(S_T2)}, {v(t1)}")
I(f"s_lshl_b32 {s(S_T2)}, {s(S_WAVE)}, 12")
I(f"v_add_u32 {v(VRW)}, {s(S_T2)}, {v(VO2)}")
I(f"s_lshl_b32 {s(S_T2)}, {s(S_WAVE)}, 10")
I(f"v_add_u32 {v(VRR)}, {s(S_T2)}, {v(VO2)}")
I(f"s_lshl_b32 {s(S_T2)}, {s(S_WAVE)}, 8")
I(f"v_lshl_add_u32 {v(VT0)}, {v(VJ)}, 4, {s(S_T2)}")
I(f"v_lshl_add_u32 {v(VT0)}, {v(VKG)}, 2, {v(VT0)}")
I(f"v_lshlrev_b32 {v(VEX)}, 2, {v(VT0)}")
I(f"v_lshlrev_b32 {v(VEU)}, 1, {v(VT0)}")
I(f"s_lshl_b32 {s(S_T2)}, {s(S_DP)}, 2")
I(f"v_lshl_add_u32 {v(VOUT)}, {v(VT0)}, 10, {s(S_T2)}")
I(f"v_add_u32 {v(VOUT+1)}, 0x100000, {v(VOUT)}")
I(f"v_mov_b32 {v(38)}, 0")
I(f"v_mov_b32 {v(39)}, 0")
I(f"ds_write_b64 {v(VZ)}, {v(38,2)} offset:{L_KTAB + 8*ZIDX}")
I(f"ds_write_b64 {v(VZ)}, {v(38,2)} offset:{L_KTAB + KTAB_D + 8*ZIDX}")
I(f"v_lshlrev_b32 {v(t2)}, 1, v0")
I(f"ds_write_b16 {v(t2)}, {v(VZ)} offset:{L_U}")
I(f"ds_write_b16 {v(t2)}, {v(VZ)} offset:{L_U + U_D}")
I(f"v_lshrrev_b32 {v(t3)}, 5, v0")
I(f"v_mul_u32_u24 {v(t3)}, {KC_S}, {v(t3)}")
I(f"v_and_b32 {v(t4)}, 31, v0")
I(f"v_lshl_add_u32 {v(t3)}, {v(t4)}, 1, {v(t3)}")
I(f"ds_write_b16 {v(t3)}, {v(VZ)} offset:{L_KC + 4096}")

C("---- K-gen parameters")
I("s_waitcnt lgkmcnt(0)")
I(f"s_lshr_b32 {s(S_T0)}, {s(S_WAVE)}, 1")
I(f"s_lshl_b32 {s(S_T0)}, {s(S_T0)}, 4")
I(f"s_lshr_b32 {s(S_T1)}, {s(S_LDT)}, {s(S_T0)}")
I(f"s_lshl_b32 {s(S_T1)}, {s(S_T1)}, 16")
l2e_hi = struct.unpack("<f", struct.pack("<f", LOG2E))[0]
l2e_lo = LOG2E - l2e_hi
T0_, T1_, T2_, T3_, DT = 40, 41, 42, 43, 44
VDS = 8
I(f"s_lshl_b32 {s(S_DS2)}, {s(S_DSK)}, 16")
I(f"s_and_b32 {s(S_DS2+1)}, {s(S_DSK)}, 0xffff0000")
I(f"v_mov_b32 {v(T0_)}, {f2u(l2e_hi):#x}")
I(f"v_mov_b32 {v(T3_)}, {f2u(l2e_lo):#x}")
I(f"v_add_f32 {v(VDS)}, {s(S_DS2)}, 1.0")
I(f"v_add_f32 {v(VDS+1)}, {s(S_DS2+1)}, 1.0")
I(f"v_mul_f32 {v(T1_)}, {s(S_T1)}, {v(T0_)}")
I(f"v_fma_f32 {v(T2_)}, {s(S_T1)}, {v(T0_)}, -{v(T1_)}")
I(f"v_fma_f32 {v(T2_)}, {s(S_T1)}, {v(T3_)}, {v(T2_)}")
I(f"v_exp_f32 {v(T1_)}, {v(T1_)}")
I(f"v_mul_f32 {v(T2_)}, {f2u(math.log(2.0)):#x}, {v(T2_)}")
I(f"v_readfirstlane_b32 {s(S_DS2)}, {v(VDS)}")
I(f"v_readfirstlane_b32 {s(S_DS2+1)}, {v(VDS+1)}")
I(f"v_fma_f32 {v(T1_)}, {v(T1_)}, {v(T2_)}, {v(T1_)}")
I(f"v_cvt_pk_bf16_f32 {v(T1_)}, {v(T1_)}, {v(T1_)}")
I(f"v_lshlrev_b32 {v(DT)}, 16, {v(T1_)}")
PW = 48
I("s_waitcnt vmcnt(1)")
stamp()
I("s_waitcnt vmcnt(0)") if False else None
I(f"v_mul_f32 {v(T1_)}, {v(DT)}, {v(PRM+2)}")
I(f"v_mul_f32 {v(T2_)}, {v(DT)}, {v(PRM+3)}")
I(f"v_mul_f32 {v(PW)}, {v(DT)}, {v(PRM+0)}")
I(f"v_mul_f32 {v(PW+1)}, {v(DT)}, {v(PRM+1)}")
I(f"v_mul_f32 {v(PW+2)}, {v(PRM+4)}, {v(T1_)}")
I(f"v_mul_f32 {v(PW+3)}, {v(PRM+4)}, {v(T2_)}")
I(f"v_mul_f32 {v(PW)}, {v(T0_)}, {v(PW)}")
I(f"v_mul_f32 {v(PW+1)}, 0.15915494, {v(PW+1)}")
I(f"s_lshr_b32 {s(S_T0)}, {s(S_C)}, 3")
I(f"s_xor_b32 {s(S_T0)}, {s(S_T0)}, 31")
I(f"s_xor_b32 {s(S_T2)}, {s(S_WAVE)}, 3")
I(f"s_or_b32 {s(S_T0)}, {s(S_T0)}, {s(S_T2)}")
I(f"s_cmp_eq_u32 {s(S_T0)}, 0")
I("s_cbranch_scc1 L_p5b")
I("s_waitcnt vmcnt(0)")
L("L_p5b")
I(f"v_mul_f32 {v(56)}, 0x43000000, {v(PW)}")
I(f"v_mul_f32 {v(57)}, 0x43000000, {v(PW+1)}")
I(f"v_exp_f32 {v(56)}, {v(56)}")
I(f"v_fract_f32 {v(57)}, {v(57)}")
I(f"v_cos_f32 {v(PW+4)}, {v(57)}")
I(f"v_sin_f32 {v(PW+5)}, {v(57)}")
I(f"v_fma_f32 {v(PW+2)}, -{v(PRM+5)}, {v(T2_)}, {v(PW+2)}")
I(f"v_fma_f32 {v(PW+3)}, {v(PRM+5)}, {v(T1_)}, {v(PW+3)}")
I(f"v_max_f32 {v(T3_)}, |{v(PW+2)}|, |{v(PW+3)}|")
I(f"v_mul_f32 {v(PW+4)}, {v(PW+4)}, {v(56)}")
I(f"v_mul_f32 {v(PW+5)}, {v(PW+5)}, {v(56)}")
I(f"ds_write_b64 {v(VPW)}, {v(PW+4,2)} offset:16")
dpp_reduce([T3_], "v_max_f32")
I("s_nop 0")
I(f"v_readlane_b32 {s(S_T0)}, {v(T3_)}, 63")
I("s_nop 3")
I(f"s_bfe_u32 {s(S_T0)}, {s(S_T0)}, 0x80017")
I(f"s_max_u32 {s(S_T0)}, {s(S_T0)}, 1")
I(f"s_min_u32 {s(S_T0)}, {s(S_T0)}, 253")
I(f"s_lshl_b32 {s(S_UNS)}, {s(S_T0)}, 23")
I(f"s_sub_u32 {s(S_T0)}, 254, {s(S_T0)}")
I(f"s_lshl_b32 {s(S_T0)}, {s(S_T0)}, 23")
I(f"v_mul_f32 {v(PW+2)}, {s(S_T0)}, {v(PW+2)}")
I(f"v_mul_f32 {v(PW+3)}, {s(S_T0)}, {v(PW+3)}")
I(f"ds_write_b128 {v(VPW)}, {v(PW,4)}")
nonce_issue(VZ, VNON)
C("---- K-gen main loop: 4 super-groups of 16 n ; one A tile (rows) x four B tiles (columns)")
ACC = 100
PP = 56
OPA = 116
OPB = 120
TM = 136
for k in range(16): I(f"v_mov_b32 {v(ACC+k)}, 0")
I(f"s_mov_b32 {s(S_CNT)}, 0")
I("s_waitcnt lgkmcnt(0)")
stamp()
L("L_kgen")
for q in range(4):
    I(f"ds_read_b128 {v(PP+8*q,4)}, {v(VPAR)} offset:{32*q}")
    I(f"ds_read_b64 {v(PP+8*q+4,2)}, {v(VPAR)} offset:{32*q+16}")
PFIT = int([a for a in sys.argv if a.startswith("--pfit=")][0][7:]) if any(a.startswith("--pfit=") for a in sys.argv) else 1
I(f"v_add_u32 {v(VPAR)}, 512, {v(VPAR)}")
for qp in range(2):
    QS = (2*qp, 2*qp+1)
    I(f"s_waitcnt lgkmcnt({4 - 4*qp})")
    def tm(q, x): return TM + 16*(q & 1) + 4*x
    EV = [(q, x) for q in QS for x in range(2)]
    for q, x in EV: I(f"v_pk_mul_f32 {v(tm(q,x),2)}, {v(PP+8*q,2)}, {v(VBETA if x == 0 else AL,2)} op_sel_hi:[1,0]")
    for q, x in EV: I(f"v_fract_f32 {v(tm(q,x)+1)}, {v(tm(q,x)+1)}")
    for q, x in EV: I(f"v_exp_f32 {v(tm(q,x))}, {v(tm(q,x))}")
    for q, x in EV: I(f"v_cos_f32 {v(tm(q,x)+2)}, {v(tm(q,x)+1)}")
    for q, x in EV: I(f"v_sin_f32 {v(tm(q,x)+3)}, {v(tm(q,x)+1)}")
    def ep(q, x): return TM + 16*(q & 1) + 8 + 2*x
    def bc(q, alt): return TM + 16*(q & 1) + 12 + 2*alt
    for q, x in EV: I(f"v_pk_mul_f32 {v(ep(q,x),2)}, {v(tm(q,x)+2,2)}, {v(tm(q,x),2)} op_sel_hi:[1,0]")
    for q in QS: I(f"v_pk_mul_f32 {v(bc(q,0),2)}, {v(ep(q,0),2)}, {v(PP+8*q+2,2)} op_sel_hi:[0,1] neg_hi:[0,1]")
    for q in QS: I(f"v_cvt_pk_f16_f32 {v(OPA+q)}, {v(ep(q,1))}, {v(ep(q,1)+1)}")
    for q in QS: I(f"v_fma_f32 {v(bc(q,0))}, -{v(ep(q,0)+1)}, {v(PP+8*q+3)}, {v(bc(q,0))}")
    for q in QS: I(f"v_fma_f32 {v(bc(q,0)+1)}, -{v(ep(q,0)+1)}, {v(PP+8*q+2)}, {v(bc(q,0)+1)}")
    for k in range(4):
        cur_, nx = k & 1, 1 - (k & 1)
        if k < 3:
            for q in QS: I(f"v_pk_mul_f32 {v(bc(q,nx),2)}, {v(bc(q,cur_),2)}, {v(PP+8*q+4,2)} op_sel_hi:[1,0]")
        for q in QS: I(f"v_cvt_pk_f16_f32 {v(OPB+4*k+q)}, {v(bc(q,cur_))}, {v(bc(q,cur_)+1)}")
        if k < 3:
            for q in QS: I(f"v_fma_f32 {v(bc(q,nx))}, {v(bc(q,cur_)+1)}, {v(PP+8*q+5)}, {v(bc(q,nx))}")
            for q in QS: I(f"v_fma_f32 {v(bc(q,nx)+1)}, -{v(bc(q,cur_))}, {v(PP+8*q+5)}, {v(bc(q,nx)+1)}")
I(f"s_add_u32 {s(S_CNT)}, {s(S_CNT)}, 1")
I(f"s_cmp_lt_u32 {s(S_CNT)}, 4")
for k in range(4):
    I(f"v_mfma_f32_16x16x32_f16 {v(ACC+4*k,4)}, {v(OPA,4)}, {v(OPB+4*k,4)}, {v(ACC+4*k,4)}")
I("s_cbranch_scc1 L_kgen")
stamp()
GR, GK = 160, 176
nonce_wait(VZ, VNON)
keys_issue(VKEY, GK)
for k in range(16): I(f"v_mul_f32 {v(ACC+k)}, {s(S_UNS)}, {v(ACC+k)}")
for k in range(4):
    for r in range(4):
        I(f"ds_write_b32 {v(SCB+r)}, {v(ACC+4*k+r)}")
        if k < 3: I(f"v_add_u32 {v(SCB+r)}, {v(SCB+r)}, {v(SCS + (r >> 1))}")
I("s_waitcnt lgkmcnt(0)")
I("s_barrier")
C("---- expand K into 4 shifted bf16 copies")
E0 = 40
CP = 96
XX = 144
def xs_issue():
    for k in range(4):
        I(f"global_load_dwordx2 {v(XX+2*k,2)}, {v(VT8 if k < 2 else VFL)}, {s(S_XNG,2)} offset:{2048*(k&1)} sc1")
    sweep_issue(VSW, GR, P_WS)
for d in range(2):
    Eb = E0 + 24*d
    for k in range(11):
        I(f"ds_read_b64 {v(Eb+2*k,2)}, {v(GA+k)} offset:{L_KTAB + d*KTAB_D}")
def expand(d):
    Eb = E0 + 24*d
    I(f"s_waitcnt lgkmcnt({11 if d == 0 else 4})")
    for k in range(11):
        I(f"v_add_f32 {v(Eb+2*k)}, {v(Eb+2*k)}, {v(Eb+2*k+1)}")
    for sg in range(4):
        Cb = CP + 16*d + 4*sg
        for m in range(4):
            I(f"v_cvt_pk_bf16_f32 {v(Cb+m)}, {v(Eb+2*(sg+2*m))}, {v(Eb+2*(sg+2*m+1))}")
        I(f"ds_write_b128 {v(VKCW)}, {v(Cb,4)} offset:{L_KC + d*KC_D + sg*KC_S}")
expand(0)
I("s_waitcnt vmcnt(0)")
keys_check(GK, 32)
I(f"s_cselect_b32 {s(S_M0)}, 1, 0")
I("s_cbranch_scc0 L_k_late")
xs_issue()
L("L_k_late")
expand(1)
stamp()
I(f"s_cmp_eq_u32 {s(S_M0)}, 1")
I("s_cbranch_scc1 L_k_ok")
keys_poll(VKEY, GK, 32)
xs_issue()
L("L_k_ok")
stamp()
keys_top2(GK, M1, M2, 44, 45)
for k in range(4):
    I(f"s_waitcnt vmcnt({7-k})")
    I(f"ds_write_b64 {v(VT8)}, {v(XX+2*k,2)} offset:{L_XL + 2048*k}")
XF = 48
for k in range(8): unpack(XF+6*k+2, XX+k)
sweep(VSW, GR, 40, P_WS, issued=True, first_wait=0)
stamp()
RI = 128
for k in range(8):
    g = GR + 2*k
    I(f"v_and_b32 {v(RI+2*k)}, {s(S_MASK)}, {v(g)}")
    I(f"v_lshlrev_b32 {v(XF+6*k)}, 16, {v(g)}")
    I(f"v_rcp_f32 {v(RI+2*k)}, {v(RI+2*k)}")
for k in range(8):
    b = XF+6*k
    I(f"v_pk_add_f32 {v(b+2,2)}, {v(b+2,2)}, {v(b,2)} op_sel_hi:[1,0] neg_lo:[0,1] neg_hi:[0,1]")
for k in range(8):
    b = XF+6*k
    I(f"v_cvt_pk_bf16_f32 {v(b+4)}, {v(b+2)}, {v(b+3)}")
for k in range(8): unpack(XF+6*k+2, XF+6*k+4)
for k in range(8):
    b = XF+6*k
    I(f"v_pk_mul_f32 {v(b+2,2)}, {v(b+2,2)}, {v(RI+2*k,2)} op_sel_hi:[1,0]")
for k in range(4):
    for d in range(2):
        I(f"v_cvt_pk_bf16_f32 {v(XX+2*k+d)}, {v(XF+12*k+2+d)}, {v(XF+12*k+8+d)}")
        I(f"ds_write_b32 {v(VT4)}, {v(XX+2*k+d)} offset:{L_U + 512 + d*U_D + 1024*k}")
I("s_waitcnt lgkmcnt(0)")
I("s_barrier")
stamp()
C("---- convolution")
CA = [32, 96]
CB = [64, 128]
YA = 8
def conv_loads(rl, buf, n):
    ls = []
    for k in range(n):
        off = 64 * (63 - 8*k - rl)
        ls.append(f"ds_read_b64 {v(CA[buf]+4*k,2)}, {v(VA_)} offset:{off}")
        ls.append(f"ds_read_b64 {v(CA[buf]+4*k+2,2)}, {v(VA_)} offset:{off+8}")
        off = 512*k + 64*(3 - rl)
        ls.append(f"ds_read_b128 {v(CB[buf]+4*k,4)}, {v(VB_)} offset:{off}")
    return ["    " + x for x in ls]
def epilogue(ph, RD, XQ, UQ, T):
    for d in range(2):
        a = RD + 8*d
        I(f"v_pk_add_f32 {v(a,2)}, {v(a,2)}, {v(a+4,2)}")
        I(f"v_pk_add_f32 {v(a+2,2)}, {v(a+2,2)}, {v(a+6,2)}")
    for r in range(4):
        a = T + 4*(r & 1)
        unpack(a, XQ+r)
        for d in range(2):
            src = UQ + 2*d + (r >> 1)
            if r & 1: I(f"v_and_b32 {v(a+2+d)}, {s(S_MASK)}, {v(src)}")
            else:     I(f"v_lshlrev_b32 {v(a+2+d)}, 16, {v(src)}")
        I(f"v_add_f32 {v(a)}, {v(a)}, {v(RD+r)}")
        I(f"v_add_f32 {v(a+1)}, {v(a+1)}, {v(RD+8+r)}")
        I(f"v_pk_fma_f32 {v(a,2)}, {v(a+2,2)}, {s(S_DS2,2)}, {v(a,2)}")
        I(f"v_cvt_pk_bf16_f32 {v(XQ+r)}, {v(a)}, {v(a+1)}")
        I(f"global_store_dword {v(VOUT+ph)}, {v(XQ+r)}, {s(P_OUT,2)} offset:{r*1024}")
    I(f"ds_write_b128 {v(VEX)}, {v(XQ,4)} offset:{L_XL + 4096*ph}")
def red_reads(ph, base, RD):
    for w in range(4):
        I(f"ds_read_b128 {v(RD+4*w,4)}, {v(VRR)} offset:{base + 4096*w}")
def xu_reads(ph, XQ, UQ):
    I(f"ds_read_b128 {v(XQ,4)}, {v(VEX)} offset:{L_XL + 4096*ph}")
    for d in range(2):
        I(f"ds_read_b64 {v(UQ+2*d,2)}, {v(VEU)} offset:{L_U + 512 + d*U_D + 2048*ph}")
def mf(T, ch, dl, buf, first):
    a = YA + 4*(T & 3)
    return f"    v_mfma_f32_16x16x32_bf16 {v(a,4)}, {v(CA[buf]+4*ch,4)}, {v(CB[buf]+4*dl,4)}, {'0' if first else v(a,4)}"
out.extend(conv_loads(0, 0, 4))
seq = 0
for rl in range(4):
    buf = seq & 1; seq += 1
    nxt = conv_loads(rl+1, 1-buf, 4) if rl < 3 else conv_loads(0, 1-buf, 8)
    pairs = [(ch, T-ch) for T in range(4) for ch in range(T+1)]
    pairs.sort(key=lambda p: (max(p), p[0]+p[1]))
    seen = set()
    per = -(-len(nxt) // len(pairs))
    ni = 0
    lastmax = -1
    if rl > 0: I("s_waitcnt lgkmcnt(0)")
    for (ch, dl) in pairs:
        T = ch + dl
        if rl == 0 and max(ch, dl) > lastmax:
            lastmax = max(ch, dl)
            I(f"s_waitcnt lgkmcnt({min(15, 9 - 3*lastmax + ni)})")
        out.append(mf(T, ch, dl, buf, rl == 0 and T not in seen)); seen.add(T)
        out.extend(nxt[ni:ni+per]); ni += len(nxt[ni:ni+per])
    out.extend(nxt[ni:])
I("s_nop 7")
for T in range(4):
    I(f"ds_write_b128 {v(VRW)}, {v(YA+4*T,4)} offset:{L_R1 + 1024*T}")
I("s_waitcnt lgkmcnt(0)")
I("s_barrier")
stamp()
RD1, XQ1, UQ1, TP1 = 160, 24, 28, 192
XQ2, UQ2 = 176, 180
fill = [[], [], [], []]
with capture() as f0:
    red_reads(0, L_R1, RD1)
    xu_reads(0, XQ1, UQ1)
    xu_reads(1, XQ2, UQ2)
fill[0] = f0
with capture() as f3: epilogue(0, RD1, XQ1, UQ1, TP1)
fill[1] = f3[:len(f3)//2]; fill[2] = f3[len(f3)//2:]
for rl in range(4):
    buf = seq & 1; seq += 1
    nxt = conv_loads(rl+1, 1-buf, 8) if rl < 3 else []
    pairs = [(ch, T-ch) for T in range(4, 8) for ch in range(T+1)]
    pairs.sort(key=lambda p: (max(p), p[0]+p[1]))
    if rl > 0: I("s_waitcnt lgkmcnt(0)")
    if rl == 2: I("s_barrier")
    seen = set()
    fl = fill[rl]
    per = -(-len(fl) // len(pairs)) if fl else 0
    ni = fi = 0
    for n_, (ch, dl) in enumerate(pairs):
        T = ch + dl
        out.append(mf(T, ch, dl, buf, rl == 0 and T not in seen)); seen.add(T)
        out.extend(nxt[ni:ni+1]); ni += 1
        out.extend(fl[fi:fi+per]); fi += per
    out.extend(nxt[ni:]); out.extend(fl[fi:])
stamp()
I("s_nop 7")
for T in range(4):
    I(f"ds_write_b128 {v(VRW)}, {v(YA+4*T,4)} offset:{L_R2 + 1024*T}")
I("s_waitcnt lgkmcnt(0)")
I("s_barrier")
RD2 = 96
red_reads(1, L_R2, RD2)
I("s_waitcnt lgkmcnt(0)")
epilogue(1, RD2, XQ2, UQ2, 120)
stamp()
C("---- routed rows fix-up")
I("s_waitcnt lgkmcnt(0)")
I(f"s_mov_b32 {s(S_X0)}, 0")
L("L_fix")
I(f"s_and_b32 {s(S_T0)}, {s(S_K1)}, 0xffff")
I(f"s_sub_u32 {s(S_T0)}, 0xffff, {s(S_T0)}")
I(f"s_lshr_b32 {s(S_T1)}, {s(S_T0)}, 8")
I(f"s_cmp_ge_u32 {s(S_T1)}, 8")
I("s_cbranch_scc1 L_fix_skip")
I(f"s_and_b32 {s(S_T1)}, {s(S_T1)}, 3")
I(f"s_cmp_lg_u32 {s(S_T1)}, {s(S_WAVE)}")
I("s_cbranch_scc1 L_fix_skip")
I(f"s_lshl_b32 {s(S_T1)}, {s(S_DP)}, 11")
I(f"s_lshl_b32 {s(S_T2)}, {s(S_X0)}, 19")
I(f"s_add_u32 {s(S_T1)}, {s(S_T1)}, {s(S_T2)}")
I(f"v_lshl_add_u32 {v(76)}, {v(VL)}, 4, {s(S_T1)}")
I(f"s_lshl_b32 {s(S_T2)}, {s(S_T0)}, 2")
I(f"v_mov_b32 {v(77)}, {s(S_T2)}")
I(f"ds_read_b32 {v(79)}, {v(77)} offset:{L_XL}")
I(f"s_lshr_b32 {s(S_T2)}, {s(S_K1)}, 16")
I(f"s_lshr_b32 {s(S_T3)}, {s(S_T2)}, 15")
I(f"s_cmp_eq_u32 {s(S_T3)}, 1")
I(f"s_mov_b32 {s(S_T3)}, 0xffff")
I(f"s_cselect_b32 {s(S_T3)}, 0x8000, {s(S_T3)}")
I(f"s_xor_b32 {s(S_T2)}, {s(S_T2)}, {s(S_T3)}")
I(f"s_lshl_b32 {s(S_T2)}, {s(S_T2)}, 16")
I(f"v_mov_b32 {v(92)}, {f2u(-LOG2E):#x}")
I(f"v_mul_f32 {v(92)}, {s(S_T2)}, {v(92)}")
I(f"v_exp_f32 {v(92)}, {v(92)}")
I("s_nop 0")
I(f"v_add_f32 {v(92)}, 1.0, {v(92)}")
I(f"v_rcp_f32 {v(92)}, {v(92)}")
I("s_nop 0")
I(f"v_cvt_pk_bf16_f32 {v(92)}, {v(92)}, {v(92)}")
I(f"v_lshlrev_b32 {v(92)}, 16, {v(92)}")
I(f"s_mov_b32 {s(S_CNT)}, 0")
I(f"v_mov_b32 {v(84)}, 0")
I(f"v_mov_b32 {v(85)}, {s(S_NONCE)}")
I(f"v_mov_b32 {v(86)}, 0")
I(f"v_mov_b32 {v(87)}, {s(S_NONCE)}")
L("L_fixpoll")
I(f"global_load_dwordx4 {v(80,4)}, {v(76)}, {s(S_PART,2)} sc1")
I(f"s_bfm_b64 exec, {G-64}, 0")
I(f"global_load_dwordx4 {v(84,4)}, {v(76)}, {s(S_PART,2)} offset:1024 sc1")
I("s_mov_b64 exec, -1")
I("s_waitcnt vmcnt(0)")
I(f"v_xor_b32 {v(88)}, {s(S_NONCE)}, {v(81)}")
I(f"v_xor_b32 {v(89)}, {s(S_NONCE)}, {v(83)}")
I(f"v_xor_b32 {v(93)}, {s(S_NONCE)}, {v(85)}")
I(f"v_xor_b32 {v(94)}, {s(S_NONCE)}, {v(87)}")
I(f"v_or3_b32 {v(88)}, {v(88)}, {v(89)}, {v(93)}")
I(f"v_or_b32 {v(88)}, {v(88)}, {v(94)}")
I(f"v_cmp_ne_u32 vcc, 0, {v(88)}")
I(f"s_add_u32 {s(S_CNT)}, {s(S_CNT)}, 1")
I(f"s_cmp_eq_u64 vcc, 0")
I(f"s_cbranch_scc1 L_fixpoll_done")
I("s_sleep 2")
I(f"s_cmp_lt_u32 {s(S_CNT)}, {POLL_LIMIT}")
I(f"s_cbranch_scc1 L_fixpoll")
L("L_fixpoll_done")
I(f"v_add_f32 {v(80)}, {v(80)}, {v(84)}")
I(f"v_add_f32 {v(82)}, {v(82)}, {v(86)}")
I("s_nop 0")
dpp_reduce([80, 82])
I("s_nop 0")
I(f"v_cvt_pk_bf16_f32 {v(84)}, {v(80)}, {v(82)}")
unpack(80, 84)
I("s_waitcnt lgkmcnt(0)")
unpack(82, 79)
I(f"v_pk_fma_f32 {v(80,2)}, {v(80,2)}, {v(92,2)}, {v(82,2)} op_sel_hi:[1,0,1]")
I(f"v_cvt_pk_bf16_f32 {v(84)}, {v(80)}, {v(81)}")
I(f"s_lshl_b32 {s(S_T1)}, {s(S_T0)}, 10")
I(f"s_lshl_b32 {s(S_T2)}, {s(S_DP)}, 2")
I(f"s_add_u32 {s(S_T1)}, {s(S_T1)}, {s(S_T2)}")
I(f"v_mov_b32 {v(85)}, {s(S_T1)}")
I("s_lshl_b64 exec, 1, 63")
I(f"global_store_dword {v(85)}, {v(84)}, {s(P_OUT,2)}")
I("s_mov_b64 exec, -1")
L("L_fix_skip")
I(f"s_mov_b32 {s(S_K1)}, {s(S_K2)}")
I(f"s_add_u32 {s(S_X0)}, {s(S_X0)}, 1")
I(f"s_cmp_lt_u32 {s(S_X0)}, 2")
I("s_cbranch_scc1 L_fix")
I("s_branch L_fin")

L("L_ffn")
nstamp[0] = 1
C("==== FFN role")
S_G = 47
I(f"s_sub_u32 {s(S_T0)}, s2, {NLN + NCONV}")
I(f"s_and_b32 {s(S_T1)}, {s(S_T0)}, 7")
I(f"s_mul_i32 {s(S_T1)}, {s(S_T1)}, 14")
I(f"s_lshr_b32 {s(S_T0)}, {s(S_T0)}, 3")
I(f"s_add_u32 {s(S_G)}, {s(S_T0)}, {s(S_T1)}")
WL = 32
t1, t2, t3, t4 = 12, 13, 14, 15
I(f"v_lshlrev_b32 {v(t4)}, 4, v0")
I(f"v_lshrrev_b32 {v(t1)}, 2, v0")
I(f"v_mul_u32_u24 {v(t1)}, 3584, {v(t1)}")
I(f"v_and_b32 {v(t2)}, 1, v0")
I(f"v_lshl_add_u32 {v(t1)}, {v(t2)}, 4, {v(t1)}")
I(f"s_lshl_b32 {s(S_T0)}, {s(S_G)}, 5")
I(f"v_add_u32 {v(t1)}, {s(S_T0)}, {v(t1)}")
I(f"v_and_b32 {v(t2)}, 2, v0")
I(f"v_cmp_eq_u32 vcc, 0, {v(t2)}")
I("s_waitcnt lgkmcnt(0)")
I(f"v_mov_b32 {v(16)}, {s(P_WU)}")
I(f"v_mov_b32 {v(17)}, {s(P_WU+1)}")
I(f"v_mov_b32 {v(18)}, {s(P_WG)}")
I(f"v_mov_b32 {v(19)}, {s(P_WG+1)}")
I(f"v_cndmask_b32 {v(16)}, {v(16)}, {v(18)}, vcc")
I(f"v_cndmask_b32 {v(17)}, {v(17)}, {v(19)}, vcc")
I(f"v_add_co_u32 {v(16)}, vcc, {v(16)}, {v(t1)}")
I("s_nop 1")
I(f"v_addc_co_u32 {v(17)}, vcc, {v(17)}, {v(VZ)}, vcc")
I(f"s_add_u32 {s(S_PART)}, {s(P_WS)}, {WS_PART}")
I(f"s_addc_u32 {s(S_PART+1)}, {s(P_WS+1)}, 0")
stamp()
I(f"s_mov_b32 {s(S_T1)}, {64*3584}")
WD = 96
I(f"s_lshl_b32 {s(S_T0)}, {s(S_G)}, 14")
I(f"v_lshl_add_u32 {v(t3)}, v0, 2, {s(S_T0)}")
for p in range(8):
    I(f"global_load_dwordx4 {v(WL+4*p,4)}, {v(16,2)}, off")
    if p < 7:
        I(f"v_add_co_u32 {v(16)}, vcc, {s(S_T1)}, {v(16)}")
        I("s_nop 1")
        I(f"v_addc_co_u32 {v(17)}, vcc, {v(17)}, {v(VZ)}, vcc")
for f in range(16):
    if f and f % 4 == 0:
        I(f"v_add_u32 {v(t3)}, 4096, {v(t3)}")
    I(f"global_load_dword {v(WD+f)}, {v(t3)}, {s(P_WD,2)} offset:{(f&3)*1024}")
nonce_issue(VZ, 22)
for p in range(8):
    I(f"s_waitcnt vmcnt({17 + 7 - p})")
    I(f"ds_write_b128 {v(t4)}, {v(WL+4*p,4)} offset:{F_W + 4096*p}")
stamp()
I(f"v_lshrrev_b32 {v(t1)}, 2, {v(VJ)}")
I(f"v_lshl_add_u32 {v(t1)}, {v(VKG)}, 3, {v(t1)}")
I(f"v_lshlrev_b32 {v(t1)}, 6, {v(t1)}")
I(f"v_and_b32 {v(t2)}, 1, {v(VL)}")
I(f"v_lshl_add_u32 {v(t1)}, {v(t2)}, 3, {v(t1)}")
I(f"v_and_b32 {v(t2)}, 2, {v(VL)}")
I(f"v_lshl_add_u32 {v(t1)}, {v(t2)}, 4, {v(t1)}")
I(f"s_and_b32 {s(S_T0)}, {s(S_WAVE)}, 1")
I(f"s_lshl_b32 {s(S_T0)}, {s(S_T0)}, 4")
I(f"v_add_u32 {v(t1)}, {s(S_T0)}, {v(t1)}")
I("s_waitcnt lgkmcnt(0)")
I("s_barrier")
for st in range(16):
    I(f"ds_read_b64_tr_b16 {v(WL+4*st,2)}, {v(t1)} offset:{F_W + 2048*st}")
    I(f"ds_read_b64_tr_b16 {v(WL+4*st+2,2)}, {v(t1)} offset:{F_W + 2048*st + 256}")
WF = 128
nonce_wait(VZ, 22)
for f in range(16): unpack(WF+2*f, WD+f)
I(f"v_bfe_u32 {v(t2)}, {v(VJ)}, 2, 1")
I(f"v_lshlrev_b32 {v(t2)}, 10, {v(t2)}")
I(f"v_lshl_add_u32 {v(t2)}, {v(VKG)}, 4, {v(t2)}")
I(f"s_and_b32 {s(S_T1)}, {s(S_WAVE)}, 1")
I(f"s_lshl_b32 {s(S_T1)}, {s(S_T1)}, 9")
I(f"v_lshl_add_u32 {v(24)}, {v(VL)}, 3, {s(S_T1)}")
I(f"s_lshr_b32 {s(S_T0)}, {s(S_WAVE)}, 1")
I(f"s_lshl_b32 {s(S_T1)}, {s(S_T0)}, 10")
I(f"v_add_u32 {v(25)}, {s(S_T1)}, {v(24)}")
I("s_waitcnt lgkmcnt(0)")
stamp()
GK = 192
keys_poll(VKEY, GK, 20)
I("s_setprio 3")
stamp()
keys_top2(GK, 224, 225, 21, 22)
I(f"s_cmp_lt_u32 {s(S_WAVE)}, 2")
I("s_nop 2")
I(f"s_cselect_b32 {s(S_T0)}, {s(S_K1)}, {s(S_K2)}")
I(f"s_and_b32 {s(S_T0)}, {s(S_T0)}, 0xffff")
I(f"s_sub_u32 {s(S_T0)}, 0xffff, {s(S_T0)}")
I(f"s_min_u32 {s(S_T0)}, {s(S_T0)}, 2047")
I(f"s_lshl_b32 {s(S_T1)}, {s(S_T0)}, 10")
I(f"v_add_u32 {v(97)}, {s(S_T1)}, {v(24)}")
I(f"s_lshl_b32 {s(S_T1)}, {s(S_T0)}, 3")
I(f"v_mov_b32 {v(99)}, {s(S_T1)}")
I(f"global_load_dwordx2 {v(100,2)}, {v(97)}, {s(P_U,2)}")
I(f"s_mov_b32 {s(S_CNT)}, 0")
L("L_f_stat")
I(f"global_load_dwordx2 {v(104,2)}, {v(99)}, {s(P_WS,2)} sc1")
I("s_waitcnt vmcnt(0)")
I(f"v_cmp_ne_u32 vcc, {s(S_NONCE)}, {v(105)}")
I(f"s_add_u32 {s(S_CNT)}, {s(S_CNT)}, 1")
I(f"s_cmp_eq_u64 vcc, 0")
I(f"s_cbranch_scc1 L_f_stat_done")
I("s_sleep 1")
I(f"s_cmp_lt_u32 {s(S_CNT)}, {POLL_LIMIT}")
I(f"s_cbranch_scc1 L_f_stat")
L("L_f_stat_done")
stamp()
I(f"v_and_b32 {v(106)}, {s(S_MASK)}, {v(104)}")
I(f"v_lshlrev_b32 {v(104)}, 16, {v(104)}")
I(f"v_rcp_f32 {v(106)}, {v(106)}")
for k in range(2): unpack(108+2*k, 100+k)
for k in range(2): I(f"v_pk_add_f32 {v(108+2*k,2)}, {v(108+2*k,2)}, {v(104,2)} op_sel_hi:[1,0] neg_lo:[0,1] neg_hi:[0,1]")
for k in range(2): I(f"v_cvt_pk_bf16_f32 {v(100+k)}, {v(108+2*k)}, {v(109+2*k)}")
for k in range(2): unpack(108+2*k, 100+k)
for k in range(2): I(f"v_pk_mul_f32 {v(108+2*k,2)}, {v(108+2*k,2)}, {v(106,2)} op_sel_hi:[1,0]")
for k in range(2): I(f"v_cvt_pk_bf16_f32 {v(100+k)}, {v(108+2*k)}, {v(109+2*k)}")
I(f"ds_write_b64 {v(25)}, {v(100,2)} offset:{F_XS}")
I("s_waitcnt lgkmcnt(0)")
I("s_barrier")
I(f"s_cmp_ge_u32 {s(S_WAVE)}, 2")
I("s_cbranch_scc1 L_f_nogu")
AX = 160
for st in range(16):
    I(f"ds_read_b128 {v(AX+4*st,4)}, {v(t2)} offset:{F_XS + 64*st}")
AC = 96
for st in range(16):
    I(f"s_waitcnt lgkmcnt({15-st})")
    a = AC + 4*(st & 1)
    I(f"v_mfma_f32_16x16x32_bf16 {v(a,4)}, {v(AX+4*st,4)}, {v(WL+4*st,4)}, {'0' if st < 2 else v(a,4)}")
I(f"v_lshlrev_b32 {v(107)}, 7, {v(VKG)}")
I(f"v_lshl_add_u32 {v(107)}, {v(VJ)}, 3, {v(107)}")
I(f"s_lshl_b32 {s(S_T0)}, {s(S_WAVE)}, 6")
I(f"v_add_u32 {v(107)}, {s(S_T0)}, {v(107)}")
I("s_nop 4")
I(f"v_add_f32 {v(104)}, {v(AC)}, {v(AC+4)}")
I(f"v_cvt_pk_bf16_f32 {v(104)}, {v(104)}, {v(104)}")
I(f"v_lshlrev_b32 {v(104)}, 16, {v(104)}")
I(f"v_mul_f32 {v(105)}, {f2u(-LOG2E):#x}, {v(104)}")
I(f"v_exp_f32 {v(105)}, {v(105)}")
I(f"v_mov_b32_dpp {v(106)}, {v(104)} row_ror:8 row_mask:0xf bank_mask:0xf")
I(f"v_add_f32 {v(105)}, 1.0, {v(105)}")
I(f"v_rcp_f32 {v(105)}, {v(105)}")
I("s_nop 0")
I(f"v_mul_f32 {v(105)}, {v(104)}, {v(105)}")
I(f"v_cvt_pk_bf16_f32 {v(105)}, {v(105)}, {v(105)}")
I(f"v_lshlrev_b32 {v(105)}, 16, {v(105)}")
I(f"v_mul_f32 {v(105)}, {v(105)}, {v(106)}")
I(f"v_cvt_pk_bf16_f32 {v(105)}, {v(105)}, {v(105)}")
I(f"v_lshlrev_b32 {v(105)}, 16, {v(105)}")
I("s_mov_b64 exec, 0x00ff00ff")
I(f"ds_write2_b32 {v(107)}, {v(105)}, {v(105)} offset0:{F_H//4} offset1:{F_H//4+1}")
I("s_mov_b64 exec, -1")
I("s_waitcnt lgkmcnt(0)")
L("L_f_nogu")
I("s_barrier")
HB = 160
for q in range(16):
    I(f"ds_read_b128 {v(HB+4*q,4)}, {v(VZ)} offset:{F_H + 16*q}")
Y0, Y1 = 96, 100
I(f"s_lshl_b32 {s(S_T0)}, {s(S_G)}, 4")
I(f"v_lshl_add_u32 {v(112)}, v0, 11, {s(S_T0)}")
I(f"v_add_u32 {v(113)}, 0x80000, {v(112)}")
for Y in (Y0, Y1):
    I(f"v_mov_b32 {v(Y+1)}, {s(S_NONCE)}")
    I(f"v_mov_b32 {v(Y+3)}, {s(S_NONCE)}")
for q in range(16):
    tok = q >> 3
    I(f"s_waitcnt lgkmcnt({15-q})")
    for e in range(2):
        f = 2*(q & 7) + e
        acc = 104 + 4*tok + 2*e
        hp = HB + 4*q + 2*e
        if f < 2:
            I(f"v_pk_mul_f32 {v(acc,2)}, {v(WF+2*f,2)}, {v(hp,2)}")
        else:
            I(f"v_pk_fma_f32 {v(acc,2)}, {v(WF+2*f,2)}, {v(hp,2)}, {v(acc,2)}")
    if q == 7 or q == 15:
        Y = Y0 if q == 7 else Y1
        I(f"v_add_f32 {v(Y)}, {v(104+4*tok)}, {v(106+4*tok)}")
        I(f"v_add_f32 {v(Y+2)}, {v(105+4*tok)}, {v(107+4*tok)}")
        I(f"global_store_dwordx4 {v(112+tok)}, {v(Y,4)}, {s(S_PART,2)} sc1")
stamp()
L("L_fin")
if STAMP:
    I("s_waitcnt vmcnt(0) lgkmcnt(0)")
    I(f"s_memtime {s(S_ST + 22, 2)}")
    I(f"s_memrealtime {s(S_T2, 2)}")
    I(f"s_add_u32 {s(S_STB)}, {s(P_WS)}, {WS_STAMP}")
    I(f"s_addc_u32 {s(S_STB+1)}, {s(P_WS+1)}, 0")
    I(f"s_lshl_b32 {s(S_T0)}, s2, 2")
    I(f"s_add_u32 {s(S_T0)}, {s(S_T0)}, {s(S_WAVE)}")
    I(f"s_lshl_b32 {s(S_T0)}, {s(S_T0)}, 7")
    I("s_waitcnt lgkmcnt(0)")
    I(f"v_mov_b32 v10, {s(S_T0)}")
    I("s_mov_b64 exec, 1")
    for k in range(12):
        I(f"v_mov_b32 v12, {s(S_ST+2*k)}")
        I(f"v_mov_b32 v13, {s(S_ST+2*k+1)}")
        I(f"global_store_dwordx2 v10, v[12:13], {s(S_STB,2)} offset:{8*k}")
        I("s_nop 1")
    I(f"v_mov_b32 v12, {s(S_T2)}")
    I(f"v_mov_b32 v13, {s(S_T3)}")
    I(f"global_store_dwordx2 v10, v[12:13], {s(S_STB,2)} offset:96")
L("L_end")
I("s_endpgm")
out.append('.section .rodata,"a"')
out.append(".p2align 6")
out.append(f".amdhsa_kernel {KNAME}")
out.append("  .amdhsa_next_free_vgpr 256")
out.append("  .amdhsa_next_free_sgpr 102")
out.append("  .amdhsa_accum_offset 256")
out.append("  .amdhsa_group_segment_fixed_size 0")
out.append("  .amdhsa_kernarg_size 136")
out.append("  .amdhsa_user_sgpr_count 2")
out.append("  .amdhsa_user_sgpr_kernarg_segment_ptr 1")
out.append("  .amdhsa_system_sgpr_workgroup_id_x 1")
out.append("  .amdhsa_float_denorm_mode_32 3")
out.append(".end_amdhsa_kernel")
dst = [a for a in sys.argv[1:] if not a.startswith("--")]
open(dst[0] if dst else "k.s", "w").write("\n".join(x for x in out if x is not None) + "\n")
```

```python
import sys, struct, math

KNAME = "parallel_sum__ssm_conv_s4__moe_arch_mod__prompt_kernel"
NLN = 128
NCONV = 256
G = 112
NWG = NLN + NCONV + G
STAMP = "--stamp" in sys.argv

WS_STATS = 0
WS_KEYS = 16384
WS_FLAG = 32768
WS_PART = 65536
WS_STAMP = 2 << 20
WS_XNG = 4 << 20
WS_XT = 8 << 20

L_MISC = 0
L_KC = 256
KC_S = 4160
KC_D = 4 * KC_S
L_U = L_KC + 2 * KC_D
U_D = 4608
L_XL = L_U + 2 * U_D
L_R1 = L_XL + 8192
L_KTAB = L_R1
KTAB_D = 7680
L_PAR = L_XL
L_R2 = L_R1
LDS_BYTES = L_R1 + 16384
ZIDX = 840
TRASH = 848
TS = 1040
L_T1 = L_KC
L_T2 = L_T1 + 16 * TS
F_H = 256
F_XS = 512
F_W = F_XS + 2048
assert F_W + 32768 <= LDS_BYTES
assert LDS_BYTES <= 81920
POLL_LIMIT = 40000
KSLEEP = int([a for a in sys.argv if a.startswith("--ksleep=")][0][9:]) if any(a.startswith("--ksleep=") for a in sys.argv) else 3

out = []
cur = [out]
def I(s): cur[0].append("    " + s)
def L(s): cur[0].append(s + ":")
def C(s): cur[0].append("    ; " + s)
class capture:
    def __enter__(self):
        self.prev = cur[0]; self.lst = []; cur[0] = self.lst; return self.lst
    def __exit__(self, *a): cur[0] = self.prev
def f2u(x): return struct.unpack("<I", struct.pack("<f", x))[0]
def v(a, n=1): return f"v{a}" if n == 1 else f"v[{a}:{a+n-1}]"
def s(a, n=1): return f"s{a}" if n == 1 else f"s[{a}:{a+n-1}]"
uid = [0]
def lab(p):
    uid[0] += 1
    return f"L_{p}_{uid[0]}"

P_U, P_ARE, P_AIM, P_BRE, P_BIM, P_CRE, P_CIM, P_LDT = 8, 10, 12, 14, 16, 18, 20, 22
P_DSK, P_BX, P_WR, P_WG, P_WU, P_WD, P_OUT, P_DBG = 24, 26, 28, 30, 32, 34, 36, 38
P_WS = 40
S_WAVE, S_DP, S_NONCE, S_LDT, S_DSK, S_ROW0 = 42, 43, 44, 45, 46, 47
S_T0, S_T1, S_T2, S_T3 = 48, 49, 50, 51
S_X0 = 52
S_R = 56
S_DS2 = 60
S_UNS = 62
S_M0 = 63
S_CNT = 64
S_EXEC = 66
S_PART = 70
S_K1, S_K2 = 72, 73
S_XNG = 68
S_XT = 4
S_XNB = 6
S_MASK = 74
S_ST = 76
S_STB = 100
LOG2E = math.log2(math.e)

nstamp = [0]
def stamp():
    if not STAMP: return
    k = nstamp[0]; nstamp[0] += 1
    assert k < 11
    I(f"s_memtime {s(S_ST + 2*k, 2)}")

DPP4 = ("quad_perm:[1,0,3,2] row_mask:0xf bank_mask:0xf",
        "quad_perm:[2,3,0,1] row_mask:0xf bank_mask:0xf",
        "row_half_mirror row_mask:0xf bank_mask:0xf",
        "row_mirror row_mask:0xf bank_mask:0xf")
DPP6 = DPP4 + ("row_bcast:15 row_mask:0xa bank_mask:0xf", "row_bcast:31 row_mask:0xc bank_mask:0xf")
def dpp_reduce(regs, op="v_add_f32"):
    for mode in DPP6:
        pad = max(0, 3 - len(regs))
        if pad: I(f"s_nop {pad-1}")
        for r in regs:
            I(f"{op}_dpp {v(r)}, {v(r)}, {v(r)} {mode}")

def nonce_cas(vz, vt):
    l = lab("nocas")
    I(f"s_cmp_lg_u32 {s(S_T0)}, 0")
    I(f"s_cbranch_scc1 {l}")
    I(f"s_memrealtime {s(S_T2,2)}")
    I("s_waitcnt lgkmcnt(0)")
    I(f"s_or_b32 {s(S_T2)}, {s(S_T2)}, 1")
    I(f"v_mov_b32 {v(vt)}, {s(S_T2)}")
    I(f"v_mov_b32 {v(vt+1)}, 0")
    I("s_mov_b64 exec, 1")
    I(f"global_atomic_cmpswap {v(vz)}, {v(vt,2)}, {s(P_DBG,2)} sc1")
    I("s_mov_b64 exec, -1")
    L(l)

def nonce_issue(vz, vt):
    I(f"global_load_dword {v(vt)}, {v(vz)}, {s(P_DBG,2)} sc1")

def nonce_wait(vz, vt):
    l = lab("npoll"); done = l + "_done"
    I(f"s_mov_b32 {s(S_CNT)}, 0")
    L(l)
    I("s_waitcnt vmcnt(0)")
    I(f"v_readfirstlane_b32 {s(S_NONCE)}, {v(vt)}")
    I(f"s_add_u32 {s(S_CNT)}, {s(S_CNT)}, 1")
    I(f"s_cmp_lg_u32 {s(S_NONCE)}, 0")
    I(f"s_cbranch_scc1 {done}")
    I(f"s_cmp_ge_u32 {s(S_CNT)}, {POLL_LIMIT}")
    I(f"s_cbranch_scc1 {done}")
    I("s_sleep 1")
    nonce_issue(vz, vt)
    I(f"s_branch {l}")
    L(done)

def sweep_issue(vaddr, GR, base):
    for k in range(4):
        I(f"global_load_dwordx4 {v(GR+4*k,4)}, {v(vaddr+k)}, {s(base,2)} sc1")

def sweep_check(GR, vtmp):
    I(f"v_xor_b32 {v(vtmp)}, {s(S_NONCE)}, {v(GR+1)}")
    I(f"v_xor_b32 {v(vtmp+1)}, {s(S_NONCE)}, {v(GR+3)}")
    for k in range(1, 4):
        I(f"v_xor_b32 {v(vtmp+2)}, {s(S_NONCE)}, {v(GR+4*k+1)}")
        I(f"v_xor_b32 {v(vtmp+3)}, {s(S_NONCE)}, {v(GR+4*k+3)}")
        I(f"v_or3_b32 {v(vtmp)}, {v(vtmp)}, {v(vtmp+2)}, {v(vtmp+3)}")
    I(f"v_or_b32 {v(vtmp)}, {v(vtmp)}, {v(vtmp+1)}")
    I(f"v_cmp_ne_u32 vcc, 0, {v(vtmp)}")

def sweep(vaddr, GR, vtmp, base, issued=False, first_wait=0):
    l = lab("sweep"); done = l + "_done"; chk = l + "_chk"
    I(f"s_mov_b32 {s(S_CNT)}, 0")
    if issued:
        I(f"s_waitcnt vmcnt({first_wait})")
        I(f"s_branch {chk}")
    L(l)
    sweep_issue(vaddr, GR, base)
    I("s_waitcnt vmcnt(0)")
    L(chk)
    sweep_check(GR, vtmp)
    I(f"s_add_u32 {s(S_CNT)}, {s(S_CNT)}, 1")
    I(f"s_cmp_eq_u64 vcc, 0")
    I(f"s_cbranch_scc1 {done}")
    I("s_sleep 4")
    I(f"s_cmp_lt_u32 {s(S_CNT)}, {POLL_LIMIT}")
    I(f"s_cbranch_scc1 {l}")
    L(done)

def poll4(vaddr, GR, tagpos, vtmp, issued=False, first_wait=0, sleep=2):
    l = lab("poll"); done = l + "_done"; chk = l + "_chk"
    I(f"s_mov_b32 {s(S_CNT)}, 0")
    if issued:
        I(f"s_waitcnt vmcnt({first_wait})")
        I(f"s_branch {chk}")
    L(l)
    I(f"global_load_dwordx4 {v(GR,4)}, {v(vaddr)}, {s(P_WS,2)} sc1")
    I("s_waitcnt vmcnt(0)")
    L(chk)
    for k, tp in enumerate(tagpos): I(f"v_xor_b32 {v(vtmp+k)}, {s(S_NONCE)}, {v(GR+tp)}")
    if len(tagpos) == 4:
        I(f"v_or3_b32 {v(vtmp)}, {v(vtmp)}, {v(vtmp+2)}, {v(vtmp+3)}")
    I(f"v_or_b32 {v(vtmp)}, {v(vtmp)}, {v(vtmp+1)}")
    I(f"v_cmp_ne_u32 vcc, 0, {v(vtmp)}")
    I(f"s_add_u32 {s(S_CNT)}, {s(S_CNT)}, 1")
    I(f"s_cmp_eq_u64 vcc, 0")
    I(f"s_cbranch_scc1 {done}")
    I(f"s_sleep {sleep}")
    I(f"s_cmp_lt_u32 {s(S_CNT)}, {POLL_LIMIT}")
    I(f"s_cbranch_scc1 {l}")
    L(done)

def top2_wave(GR, m1, m2, t1, t2):
    I(f"v_mov_b32 {v(m1)}, {v(GR)}")
    I(f"v_mov_b32 {v(m2)}, {v(GR+2)}")
    for mode in DPP4:
        I("s_nop 1")
        I(f"v_mov_b32_dpp {v(t1)}, {v(m1)} {mode}")
        I(f"v_max_u32_dpp {v(t2)}, {v(m2)}, {v(m2)} {mode}")
        I(f"v_med3_u32 {v(m2)}, {v(m1)}, {v(t1)}, {v(t2)}")
        I(f"v_max_u32 {v(m1)}, {v(m1)}, {v(t1)}")
    for swp in ("v_permlane16_swap_b32", "v_permlane32_swap_b32"):
        I(f"v_mov_b32 {v(t1)}, {v(m1)}")
        I(f"v_mov_b32 {v(t2)}, {v(m2)}")
        I("s_nop 1")
        I(f"{swp} {v(m1)}, {v(t1)}")
        I(f"{swp} {v(m2)}, {v(t2)}")
        I("s_nop 0")
        I(f"v_max_u32 {v(t2)}, {v(m2)}, {v(t2)}")
        I(f"v_med3_u32 {v(m2)}, {v(m1)}, {v(t1)}, {v(t2)}")
        I(f"v_max_u32 {v(m1)}, {v(m1)}, {v(t1)}")

def top2_combine(a, t1):
    for k in (1, 2, 3):
        I(f"v_max_u32 {v(t1)}, {v(a+1)}, {v(a+2*k+1)}")
        I(f"v_med3_u32 {v(a+1)}, {v(a)}, {v(a+2*k)}, {v(t1)}")
        I(f"v_max_u32 {v(a)}, {v(a)}, {v(a+2*k)}")

def unpack(dst, src):
    I(f"v_lshlrev_b32 {v(dst)}, 16, {v(src)}")
    I(f"v_and_b32 {v(dst+1)}, {s(S_MASK)}, {v(src)}")


def keys_poll(vaddr, GK, vtmp):
    l = lab("kpoll"); done = l + "_done"
    I(f"s_mov_b32 {s(S_CNT)}, 0")
    L(l)
    I(f"global_load_dwordx4 {v(GK,4)}, {v(vaddr)}, {s(P_WS,2)} sc1")
    I(f"global_load_dwordx4 {v(GK+4,4)}, {v(vaddr+1)}, {s(P_WS,2)} sc1")
    I("s_waitcnt vmcnt(0)")
    for k in range(4): I(f"v_xor_b32 {v(vtmp+k)}, {s(S_NONCE)}, {v(GK+2*k+1)}")
    I(f"v_or3_b32 {v(vtmp)}, {v(vtmp)}, {v(vtmp+2)}, {v(vtmp+3)}")
    I(f"v_or_b32 {v(vtmp)}, {v(vtmp)}, {v(vtmp+1)}")
    I(f"v_cmp_ne_u32 vcc, 0, {v(vtmp)}")
    I(f"s_add_u32 {s(S_CNT)}, {s(S_CNT)}, 1")
    I(f"s_cmp_eq_u64 vcc, 0")
    I(f"s_cbranch_scc1 {done}")
    I(f"s_sleep {KSLEEP}")
    I(f"s_cmp_lt_u32 {s(S_CNT)}, {POLL_LIMIT}")
    I(f"s_cbranch_scc1 {l}")
    L(done)

def keys_top2(GK, m1, m2, t1, t2):
    I(f"v_max_u32 {v(t2)}, {v(GK+2)}, {v(GK+6)}")
    I(f"v_med3_u32 {v(GK+2)}, {v(GK)}, {v(GK+4)}, {v(t2)}")
    I(f"v_max_u32 {v(GK)}, {v(GK)}, {v(GK+4)}")
    top2_wave(GK, m1, m2, t1, t2)
    I("s_nop 0")
    I(f"v_readfirstlane_b32 {s(S_K1)}, {v(m1)}")
    I(f"v_readfirstlane_b32 {s(S_K2)}, {v(m2)}")


def keys_issue(vaddr, GK):
    I(f"global_load_dwordx4 {v(GK,4)}, {v(vaddr)}, {s(P_WS,2)} sc1")
    I(f"global_load_dwordx4 {v(GK+4,4)}, {v(vaddr+1)}, {s(P_WS,2)} sc1")
def keys_check(GK, vtmp):
    for k in range(4): I(f"v_xor_b32 {v(vtmp+k)}, {s(S_NONCE)}, {v(GK+2*k+1)}")
    I(f"v_or3_b32 {v(vtmp)}, {v(vtmp)}, {v(vtmp+2)}, {v(vtmp+3)}")
    I(f"v_or_b32 {v(vtmp)}, {v(vtmp)}, {v(vtmp+1)}")
    I(f"v_cmp_ne_u32 vcc, 0, {v(vtmp)}")
    I(f"s_cmp_eq_u64 vcc, 0")

hdr = open("parallel_sum__ssm_conv_s4__moe_arch_mod__prompt.s.ref").read().split("; Override")[0]
out.append(hdr.rstrip())
out.append(f"; @launch grid=({NWG},1,1) block=(256,1,1) lds={LDS_BYTES}")
out.append('.amdgcn_target "amdgcn-amd-amdhsa--gfx950"')
out.append(".text")
out.append(f".globl {KNAME}")
out.append(".p2align 8")
out.append(f".type {KNAME},@function")
L(KNAME)
I(f"s_cmp_ge_u32 s2, {NWG}")
I("s_cbranch_scc1 L_end")
I(f"s_load_dwordx16 s[8:23], s[0:1], 0")
I(f"s_load_dwordx16 s[24:39], s[0:1], 64")
I(f"s_load_dwordx2 {s(P_WS,2)}, s[0:1], 128")
stamp()
VL, VZ, VJ, VKG = 1, 2, 5, 6
VO, VO2 = 10, 11
I(f"v_and_b32 {v(VL)}, 63, v0")
I(f"v_lshrrev_b32 v3, 6, v0")
I(f"v_mov_b32 {v(VZ)}, 0")
I(f"v_readfirstlane_b32 {s(S_WAVE)}, v3")
I(f"s_mov_b32 {s(S_MASK)}, 0xffff0000")
I(f"v_lshlrev_b32 {v(VO2)}, 4, {v(VL)}")
I(f"s_cmp_ge_u32 s2, {NLN}")
I("s_cbranch_scc1 L_notln")

C("==== LayerNorm role: 16 rows per workgroup, 4 per wave")
I("s_setprio 2")
NR = 4
X = [12 + 4*r for r in range(NR)]
WR = 28
F = [32 + 8*r for r in range(NR)]
D = [64 + 8*r for r in range(NR)]
T = [96 + 8*r for r in range(NR)]
S1 = [128 + r for r in range(NR)]
S2 = [132 + r for r in range(NR)]
S3 = [136 + r for r in range(NR)]
SW = 140
SX0 = [52 + 2*r for r in range(NR)]
VNON = 141
VTW, VTR2, VTS2 = 142, 143, 144
t1, t2 = 145, 146
VC, VONE = 147, 148
TX = 160
R_ = range(NR)
I(f"s_lshl_b32 {s(S_ROW0)}, s2, 4")
I(f"s_lshl_b32 {s(S_T0)}, {s(S_WAVE)}, 2")
I(f"s_add_u32 {s(S_ROW0)}, {s(S_ROW0)}, {s(S_T0)}")
I(f"s_lshl_b32 {s(S_T0)}, {s(S_ROW0)}, 10")
I(f"v_add_u32 {v(VO)}, {s(S_T0)}, {v(VO2)}")
I("s_waitcnt lgkmcnt(0)")
for r in R_:
    I(f"global_load_dwordx4 {v(X[r],4)}, {v(VO)}, {s(P_U,2)} offset:{1024*r}")
I(f"global_load_dwordx4 {v(WR,4)}, {v(VO2)}, {s(P_WR,2)}")
I(f"s_add_u32 {s(S_XT)}, {s(P_WS)}, {WS_XT}")
I(f"s_addc_u32 {s(S_XT+1)}, {s(P_WS+1)}, 0")
I(f"s_mul_i32 {s(S_T2)}, {s(S_WAVE)}, {4*TS}")
I(f"v_add_u32 {v(VTW)}, {s(S_T2)}, {v(VO2)}")
I(f"v_and_b32 {v(t1)}, 3, v0")
I(f"v_lshrrev_b32 {v(t2)}, 2, v0")
I(f"v_mul_u32_u24 {v(VTR2)}, {4*TS}, {v(t1)}")
I(f"v_lshl_add_u32 {v(VTR2)}, {v(t2)}, 2, {v(VTR2)}")
I(f"s_lshl_b32 {s(S_T2)}, s2, 6")
I(f"v_lshl_add_u32 {v(VTS2)}, {v(t1)}, 4, {s(S_T2)}")
I(f"v_lshl_add_u32 {v(VTS2)}, {v(t2)}, 13, {v(VTS2)}")
I(f"s_lshl_b32 {s(S_T2)}, {s(S_ROW0)}, 3")
I(f"v_add_u32 {v(VO)}, {s(S_T2)}, {v(VO2)}")
I(f"v_mov_b32 {v(VC)}, {f2u(1.0/512):#x}")
I(f"v_mov_b32 {v(VONE)}, 0x3f803f80")
for r in R_: I(f"v_mov_b32 {v(S3[r])}, 0")
I(f"v_mov_b32 {v(SW)}, 0")
for r in R_:
    I(f"s_waitcnt vmcnt({NR - r})")
    if r == 0: stamp()
    I(f"ds_write_b128 {v(VTW)}, {v(X[r],4)} offset:{L_T2 + r*TS}")
    if r < NR - 1:
        for k in range(4): unpack(F[r]+2*k, X[r]+k)
I("s_waitcnt lgkmcnt(0)")
I("s_barrier")
for i in range(4):
    for e in range(4):
        I(f"ds_read_b32 {v(TX+4*i+e)}, {v(VTR2)} offset:{L_T2 + 256*i + e*TS}")
for k in range(4): unpack(F[NR-1]+2*k, X[NR-1]+k)
for r in R_: I(f"v_readfirstlane_b32 {s(SX0[r])}, {v(F[r])}")
for i in range(4):
    I(f"s_waitcnt lgkmcnt({12 - 4*i})")
    I(f"global_store_dwordx4 {v(VTS2)}, {v(TX+4*i,4)}, {s(S_XT,2)} sc1")
    if i < 3: I(f"v_add_u32 {v(VTS2)}, 0x80000, {v(VTS2)}")
nonce_issue(VZ, VNON)
stamp()
for k in range(4):
    for r in R_:
        I(f"v_pk_add_f32 {v(D[r]+2*k,2)}, {v(F[r]+2*k,2)}, {s(SX0[r],2)} op_sel_hi:[1,0] neg_lo:[0,1] neg_hi:[0,1]")
I("s_waitcnt vmcnt(5)")
for k in range(4):
    for r in R_: I(f"v_dot2c_f32_bf16 {v(S3[r])}, {v(X[r]+k)}, {v(WR+k)}")
    I(f"v_dot2c_f32_bf16 {v(SW)}, {v(VONE)}, {v(WR+k)}")
for r in R_: I(f"v_pk_add_f32 {v(T[r],2)}, {v(D[r],2)}, {v(D[r]+2,2)}")
for r in R_: I(f"v_pk_mul_f32 {v(T[r]+4,2)}, {v(D[r],2)}, {v(D[r],2)}")
for r in R_: I(f"v_pk_add_f32 {v(T[r]+2,2)}, {v(D[r]+4,2)}, {v(D[r]+6,2)}")
for r in R_: I(f"v_pk_fma_f32 {v(T[r]+4,2)}, {v(D[r]+2,2)}, {v(D[r]+2,2)}, {v(T[r]+4,2)}")
for r in R_: I(f"v_pk_add_f32 {v(T[r],2)}, {v(T[r],2)}, {v(T[r]+2,2)}")
for r in R_: I(f"v_pk_fma_f32 {v(T[r]+4,2)}, {v(D[r]+4,2)}, {v(D[r]+4,2)}, {v(T[r]+4,2)}")
for r in R_: I(f"v_add_f32 {v(S1[r])}, {v(T[r])}, {v(T[r]+1)}")
for r in R_: I(f"v_pk_fma_f32 {v(T[r]+4,2)}, {v(D[r]+6,2)}, {v(D[r]+6,2)}, {v(T[r]+4,2)}")
for r in R_: I(f"v_add_f32 {v(S2[r])}, {v(T[r]+4)}, {v(T[r]+5)}")
dpp_reduce(S1 + S3 + [SW] + S2)
for r in R_: I(f"v_mul_f32 {v(S1[r])}, {v(VC)}, {v(S1[r])}")
for r in R_: I(f"v_mul_f32 {v(S2[r])}, {v(VC)}, {v(S2[r])}")
for r in R_: I(f"v_fma_f32 {v(S2[r])}, -{v(S1[r])}, {v(S1[r])}, {v(S2[r])}")
for r in R_: I(f"v_add_f32 {v(S1[r])}, {s(SX0[r])}, {v(S1[r])}")
for r in R_: I(f"v_max_f32 {v(S2[r])}, 0, {v(S2[r])}")
MP = [T[0], T[0]+1]; VP = [T[0]+2, T[0]+3]
for h in range(2): I(f"v_cvt_pk_bf16_f32 {v(MP[h])}, {v(S1[2*h])}, {v(S1[2*h+1])}")
for h in range(2): I(f"v_cvt_pk_bf16_f32 {v(VP[h])}, {v(S2[2*h])}, {v(S2[2*h+1])}")
for h in range(2): unpack(S1[2*h], MP[h])
for h in range(2): unpack(S2[2*h], VP[h])
eps = f2u(1e-5)
for r in R_: I(f"v_add_f32 {v(S2[r])}, {eps:#x}, {v(S2[r])}")
for r in R_: I(f"v_fma_f32 {v(S3[r])}, -{v(S1[r])}, {v(SW)}, {v(S3[r])}")
for h in range(2): I(f"v_cvt_pk_bf16_f32 {v(VP[h])}, {v(S2[2*h])}, {v(S2[2*h+1])}")
for r in R_: I(f"v_lshrrev_b32 {v(S1[r])}, 16, {v(S1[r])}")
for h in range(2): unpack(S2[2*h], VP[h])
for r in R_: I(f"v_sqrt_f32 {v(S2[r])}, {v(S2[r])}")
I("s_nop 0")
for h in range(2): I(f"v_cvt_pk_bf16_f32 {v(VP[h])}, {v(S2[2*h])}, {v(S2[2*h+1])}")
for h in range(2): unpack(S2[2*h], VP[h])
RC = [T[1]+r for r in R_]
for r in R_: I(f"v_rcp_f32 {v(RC[r])}, {v(S2[r])}")
for r in R_: I(f"v_or_b32 {v(S1[r])}, {v(S1[r])}, {v(S2[r])}")
for r in R_: I(f"v_mul_f32 {v(S3[r])}, {v(S3[r])}, {v(RC[r])}")
SMS = [10, 11, 12, 13]
for r in R_: I(f"v_readlane_b32 {s(SMS[r])}, {v(S1[r])}, 63")
for h in range(2): I(f"v_cvt_pk_bf16_f32 {v(MP[h])}, {v(S3[2*h])}, {v(S3[2*h+1])}")
GP = 152
I(f"v_cmp_eq_u32 vcc, 0, {v(VL)}")
for h in range(2): I(f"v_readlane_b32 {s(S_R+h)}, {v(MP[h])}, 63")
I(f"v_mov_b32 {v(GP)}, {s(SMS[2])}")
I(f"v_mov_b32 {v(GP+2)}, {s(SMS[3])}")
I(f"v_mov_b32 {v(t1)}, {s(SMS[0])}")
I(f"v_mov_b32 {v(t2)}, {s(SMS[1])}")
I(f"v_cndmask_b32 {v(GP)}, {v(GP)}, {v(t1)}, vcc")
I(f"v_cndmask_b32 {v(GP+2)}, {v(GP+2)}, {v(t2)}, vcc")
I(f"s_sub_u32 {s(S_T3)}, 0xffff, {s(S_ROW0)}")
KK = [14, 15, 16, 17]
for h in range(2):
    I(f"s_and_b32 {s(S_T0)}, {s(S_R+h)}, 0x80008000")
    I(f"s_lshr_b32 {s(S_T1)}, {s(S_T0)}, 15")
    I(f"s_mul_i32 {s(S_T1)}, {s(S_T1)}, 0x7fff")
    I(f"s_or_b32 {s(S_T1)}, {s(S_T1)}, 0x80008000")
    I(f"s_xor_b32 {s(S_T2)}, {s(S_R+h)}, {s(S_T1)}")
    I(f"s_lshl_b32 {s(S_T0)}, {s(S_T2)}, 16")
    I(f"s_or_b32 {s(S_T0)}, {s(S_T0)}, {s(S_T3)}")
    I(f"s_sub_u32 {s(S_T3)}, {s(S_T3)}, 1")
    I(f"s_and_b32 {s(S_T1)}, {s(S_T2)}, 0xffff0000")
    I(f"s_or_b32 {s(S_T1)}, {s(S_T1)}, {s(S_T3)}")
    I(f"s_sub_u32 {s(S_T3)}, {s(S_T3)}, 1")
    I(f"s_max_u32 {s(KK[2*h])}, {s(S_T0)}, {s(S_T1)}")
    I(f"s_min_u32 {s(KK[2*h+1])}, {s(S_T0)}, {s(S_T1)}")
I(f"s_max_u32 {s(S_T0)}, {s(KK[0])}, {s(KK[2])}")
I(f"s_min_u32 {s(S_T1)}, {s(KK[0])}, {s(KK[2])}")
I(f"s_max_u32 {s(S_T2)}, {s(KK[1])}, {s(KK[3])}")
I(f"s_max_u32 {s(S_T1)}, {s(S_T1)}, {s(S_T2)}")
I(f"v_mov_b32 {v(156)}, {s(S_T0)}")
I(f"v_mov_b32 {v(157)}, {s(S_T1)}")
I(f"s_lshl_b32 {s(S_T0)}, {s(S_WAVE)}, 3")
I(f"v_mov_b32 {v(158)}, {s(S_T0)}")
I(f"ds_write_b64 {v(158)}, {v(156,2)} offset:{L_MISC + 64}")
stamp()
nonce_wait(VZ, VNON)
stamp()
I(f"v_mov_b32 {v(GP+1)}, {v(VNON)}")
I(f"v_mov_b32 {v(GP+3)}, {v(VNON)}")
I("s_mov_b64 exec, 3")
I(f"global_store_dwordx4 {v(VO)}, {v(GP,4)}, {s(P_WS,2)} sc1")
I("s_mov_b64 exec, -1")
I("s_waitcnt lgkmcnt(0)")
I("s_barrier")
I(f"s_cmp_lg_u32 {s(S_WAVE)}, 0")
I("s_cbranch_scc1 L_ln_pf" if "--nopf" not in sys.argv else "s_cbranch_scc1 L_fin")
I(f"ds_read_b128 {v(96,4)}, {v(VZ)} offset:{L_MISC+64}")
I(f"ds_read_b128 {v(100,4)}, {v(VZ)} offset:{L_MISC+80}")
I(f"s_lshl_b32 {s(S_T0)}, s2, 7")
I(f"s_add_u32 {s(S_T0)}, {s(S_T0)}, {WS_KEYS}")
I(f"v_mov_b32 {v(105)}, {s(S_T0)}")
I("s_waitcnt lgkmcnt(0)")
top2_combine(96, 104)
I(f"v_mov_b32 {v(98)}, {v(97)}")
I(f"v_mov_b32 {v(97)}, {v(VNON)}")
I(f"v_mov_b32 {v(99)}, {v(VNON)}")
I("s_mov_b64 exec, 1")
I(f"global_store_dwordx4 {v(105)}, {v(96,4)}, {s(P_WS,2)} sc1")
I("s_mov_b64 exec, -1")
stamp()
if "--nopf" in sys.argv: I("s_branch L_fin")
L("L_ln_pf")
C("---- warm this die's L2 with FFN weight lines that its FFN workgroups read last (speed only)")
I(f"s_and_b32 {s(S_T0)}, s2, 7")
I(f"s_lshr_b32 {s(S_T1)}, s2, 3")
I(f"s_sub_u32 {s(S_T2)}, {s(S_WAVE)}, 1")
I(f"s_cmp_ge_u32 {s(S_T2)}, 2")
I("s_cbranch_scc1 L_pf_down")
I(f"s_mul_i32 {s(S_T2)}, {s(S_T0)}, 448")
I(f"s_mul_i32 {s(S_T3)}, {s(S_T1)}, {16*3584}")
I(f"s_add_u32 {s(S_T2)}, {s(S_T2)}, {s(S_T3)}")
I(f"s_add_u32 {s(S_T2)}, {s(S_T2)}, {256*3584}")
I(f"v_lshrrev_b32 {v(34)}, 2, {v(VL)}")
I(f"v_mul_u32_u24 {v(34)}, 3584, {v(34)}")
I(f"v_and_b32 {v(35)}, 3, {v(VL)}")
I(f"v_mul_u32_u24 {v(35)}, 148, {v(35)}")
I(f"v_add3_u32 {v(34)}, {v(34)}, {v(35)}, {s(S_T2)}")
I(f"s_cmp_eq_u32 {s(S_WAVE)}, 1")
I(f"s_cselect_b32 {s(S_EXEC)}, {s(P_WG)}, {s(P_WU)}")
I(f"s_cselect_b32 {s(S_EXEC+1)}, {s(P_WG+1)}, {s(P_WU+1)}")
I(f"v_add_u32 {v(35)}, 72, {v(34)}")
I(f"v_min_u32 {v(35)}, {512*3584-4}, {v(35)}")
I("s_branch L_pf_go")
L("L_pf_down")
I(f"s_mul_i32 {s(S_T2)}, {s(S_T0)}, {224*1024}")
I(f"s_mul_i32 {s(S_T3)}, {s(S_T1)}, {14*1024}")
I(f"s_add_u32 {s(S_T2)}, {s(S_T2)}, {s(S_T3)}")
I(f"s_and_b32 {s(S_T3)}, {s(S_WAVE)}, 1")
I(f"s_mul_i32 {s(S_T3)}, {s(S_T3)}, 7168")
I(f"s_add_u32 {s(S_T2)}, {s(S_T2)}, {s(S_T3)}")
I(f"v_min_u32 {v(34)}, 55, {v(VL)}")
I(f"v_lshl_add_u32 {v(34)}, {v(34)}, 6, {s(S_T2)}")
I(f"v_add_u32 {v(35)}, 3584, {v(34)}")
I(f"s_mov_b64 {s(S_EXEC,2)}, {s(P_WD,2)}")
L("L_pf_go")
I(f"global_load_dword {v(36)}, {v(34)}, {s(S_EXEC,2)}")
I(f"global_load_dword {v(37)}, {v(35)}, {s(S_EXEC,2)}")
I("s_waitcnt vmcnt(0)")
I("s_branch L_fin")

L("L_notln")
nstamp[0] = 1
I(f"v_and_b32 {v(VJ)}, 15, {v(VL)}")
I(f"v_lshrrev_b32 {v(VKG)}, 4, {v(VL)}")
VKEY = 252
I(f"v_lshlrev_b32 {v(VKEY)}, 7, {v(VL)}")
I(f"v_add_u32 {v(VKEY+1)}, {WS_KEYS + 8192}, {v(VKEY)}")
I(f"v_add_u32 {v(VKEY)}, {WS_KEYS}, {v(VKEY)}")
I(f"s_cmp_ge_u32 s2, {NLN + NCONV}")
I("s_cbranch_scc1 L_ffn")

C("==== conv role")
S_C = 47
I(f"s_sub_u32 {s(S_C)}, s2, {NLN}")
PRM = 24
I(f"s_and_b32 {s(S_T0)}, {s(S_C)}, 7")
I(f"s_lshl_b32 {s(S_T0)}, {s(S_T0)}, 5")
I(f"s_lshr_b32 {s(S_T1)}, {s(S_C)}, 3")
I(f"s_add_u32 {s(S_DP)}, {s(S_T0)}, {s(S_T1)}")
I(f"s_lshl_b32 {s(S_T0)}, {s(S_DP)}, 9")
I(f"s_lshl_b32 {s(S_T1)}, {s(S_WAVE)}, 7")
I(f"s_add_u32 {s(S_T0)}, {s(S_T0)}, {s(S_T1)}")
VPO = 30
I(f"v_lshl_add_u32 {v(VPO)}, {v(VL)}, 1, {s(S_T0)}")
for k in range(6): I(f"v_mov_b32 {v(PRM+k)}, 0")
I(f"s_lshl_b32 {s(S_T1)}, {s(S_DP)}, 2")
I("s_waitcnt lgkmcnt(0)")
for k, p in enumerate((P_ARE, P_AIM, P_BRE, P_BIM, P_CRE, P_CIM)):
    I(f"global_load_short_d16_hi {v(PRM+k)}, {v(VPO)}, {s(p,2)}")
I(f"s_load_dword {s(S_LDT)}, {s(P_LDT,2)}, {s(S_T1)}")
I(f"s_load_dword {s(S_DSK)}, {s(P_DSK,2)}, {s(S_T1)}")
I(f"s_lshr_b32 {s(S_T0)}, {s(S_C)}, 3")
I(f"s_xor_b32 {s(S_T0)}, {s(S_T0)}, 31")
I(f"s_xor_b32 {s(S_T1)}, {s(S_WAVE)}, 3")
I(f"s_or_b32 {s(S_T0)}, {s(S_T0)}, {s(S_T1)}")
nonce_cas(VZ, 32)
I(f"s_add_u32 {s(S_PART)}, {s(P_WS)}, {WS_PART}")
I(f"s_addc_u32 {s(S_PART+1)}, {s(P_WS+1)}, 0")
I(f"s_lshl_b32 {s(S_T0)}, {s(S_DP)}, 13")
I(f"s_add_u32 {s(S_T0)}, {s(S_T0)}, {WS_XT}")
I(f"s_add_u32 {s(S_XNG)}, {s(P_WS)}, {s(S_T0)}")
I(f"s_addc_u32 {s(S_XNG+1)}, {s(P_WS+1)}, 0")

C("---- constants")
AL = 200
VBETA = 206
SC0, SC1A, SC1B, SC2 = 208, 209, 210, 211
GA = 212
VGX = 224
VA_, VB_ = 226, 227
VRW, VRR = 228, 229
VT0 = 230
VOUT = 232
VPAR = 234
VKCW = 235
VPW = 236
VT8 = 237
VT4 = 238
VFL = 239
M1, M2 = 240, 241
VEX, VEU = 242, 243
VTL = 245
VNON = 246
VSW = 248
t1, t2, t3, t4 = 12, 13, 14, 15
I(f"v_lshlrev_b32 {v(VKCW)}, 4, v0")
I(f"v_lshlrev_b32 {v(VT8)}, 3, v0")
I(f"v_lshlrev_b32 {v(VT4)}, 2, v0")
I(f"s_lshl_b32 {s(S_T2)}, {s(S_WAVE)}, 11")
I(f"s_add_u32 {s(S_T2)}, {s(S_T2)}, {L_PAR}")
I(f"v_lshl_add_u32 {v(VPAR)}, {v(VKG)}, 7, {s(S_T2)}")
I(f"v_lshl_add_u32 {v(VPW)}, {v(VL)}, 5, {s(S_T2)}")
for k in range(4):
    I(f"v_add_u32 {v(VSW+k)}, {4096*k}, {v(VKCW)}")
I(f"v_add_u32 {v(VFL)}, 4096, {v(VT8)}")
I(f"v_mov_b32 {v(t1)}, {v(VJ)}")
for i_, al in ((8, 512), (9, 516), (10, 1024), (11, 1536), (12, 2048), (13, 0), (14, 0), (15, 0)):
    I(f"v_cmp_eq_u32 vcc, {i_}, {v(VJ)}")
    I(f"v_mov_b32 {v(t2)}, {al}")
    I("s_nop 0")
    I(f"v_cndmask_b32 {v(t1)}, {v(t1)}, {v(t2)}, vcc")
I(f"v_cvt_f32_u32 {v(AL)}, {v(t1)}")
I(f"v_lshlrev_b32 {v(t1)}, 3, {v(VJ)}")
I(f"v_cvt_f32_u32 {v(VBETA)}, {v(t1)}")
SCB, SCS = 208, 202
I(f"s_lshr_b32 {s(S_T0)}, {s(S_WAVE)}, 1")
I(f"s_mul_i32 {s(S_T0)}, {s(S_T0)}, {KTAB_D}")
I(f"s_and_b32 {s(S_T1)}, {s(S_WAVE)}, 1")
I(f"s_lshl_b32 {s(S_T1)}, {s(S_T1)}, 2")
I(f"s_add_u32 {s(S_T0)}, {s(S_T0)}, {s(S_T1)}")
I(f"s_add_u32 {s(S_T0)}, {s(S_T0)}, {L_KTAB}")
I(f"v_mul_u32_u24 {v(t1)}, 9, {v(VJ)}")
I(f"v_lshl_add_u32 {v(t1)}, {v(VKG)}, 2, {v(t1)}")
I(f"v_cmp_eq_u32 {s(S_T2,2)}, 2, {v(VKG)}")
I(f"v_cmp_eq_u32 {s(S_X0,2)}, 3, {v(VKG)}")
I(f"v_cmp_eq_u32 {s(S_X0+2,2)}, 48, {v(VL)}")
for r in range(4):
    I(f"v_add_u32 {v(t2)}, {r}, {v(t1)}")
    if r < 2: I(f"v_lshl_add_u32 {v(t3)}, {v(VJ)}, 1, {v(VZ)}"); I(f"v_add_u32 {v(t3)}, {576 + r}, {v(t3)}")
    else:     I(f"v_add_u32 {v(t3)}, {704 + 64*(r-2)}, {v(VJ)}")
    I(f"v_cndmask_b32 {v(t2)}, {v(t2)}, {v(t3)}, {s(S_T2,2)}")
    I(f"v_add_u32 {v(t3)}, {TRASH + 16*r}, {v(VJ)}")
    I(f"v_cndmask_b32 {v(t2)}, {v(t2)}, {v(t3)}, {s(S_X0,2)}")
    if r == 0:
        I(f"v_mov_b32 {v(t3)}, 832")
        I(f"v_cndmask_b32 {v(t2)}, {v(t2)}, {v(t3)}, {s(S_X0+2,2)}")
    I(f"v_lshl_add_u32 {v(SCB+r)}, {v(t2)}, 3, {s(S_T0)}")
for hh, st2 in ((0, 32), (1, 16)):
    I(f"v_mov_b32 {v(t2)}, {144*8}")
    I(f"v_mov_b32 {v(t3)}, {st2*8}")
    I(f"v_cndmask_b32 {v(t2)}, {v(t2)}, {v(t3)}, {s(S_T2,2)}")
    I(f"v_cndmask_b32 {v(t2)}, {v(t2)}, {v(VZ)}, {s(S_X0,2)}")
    if hh == 0:
        I(f"v_mov_b32 {v(t3)}, {16*8}")
        I(f"v_cndmask_b32 {v(t2)}, {v(t2)}, {v(t3)}, {s(S_X0+2,2)}")
    I(f"v_mov_b32 {v(SCS+hh)}, {v(t2)}")
I(f"v_sub_u32 {v(t1)}, 2047, {v(VT8)}")
I(f"s_movk_i32 {s(S_T1)}, 0x4400")
I(f"v_mov_b32 {v(t4)}, {ZIDX}")
for k in range(11):
    I(f"v_subrev_u32 {v(t2)}, {k}, {v(t1)}")
    I(f"v_cvt_f32_i32 {v(t3)}, {v(t2)}")
    I(f"v_cvt_pk_bf16_f32 {v(t3)}, {v(t3)}, {v(VZ)}")
    I(f"v_lshlrev_b32 {v(16)}, 16, {v(t3)}")
    I(f"v_cmp_gt_u32 vcc, {s(S_T1)}, {v(t3)}")
    I(f"v_cvt_u32_f32 {v(16)}, {v(16)}")
    I(f"v_subrev_u32 {v(t3)}, {0x4400 - 576}, {v(t3)}")
    I(f"v_lshrrev_b32 {v(17)}, 3, {v(16)}")
    I(f"v_add_u32 {v(16)}, {v(16)}, {v(17)}")
    I(f"v_cndmask_b32 {v(t3)}, {v(t3)}, {v(16)}, vcc")
    if k >= 8:
        I(f"v_cmp_gt_i32 vcc, 0, {v(t2)}")
        I("s_nop 1")
        I(f"v_cndmask_b32 {v(t3)}, {v(t3)}, {v(t4)}, vcc")
    I(f"v_lshlrev_b32 {v(GA+k)}, 3, {v(t3)}")
I(f"s_lshr_b32 {s(S_T0)}, {s(S_WAVE)}, 1")
I(f"s_and_b32 {s(S_T1)}, {s(S_WAVE)}, 1")
I(f"s_mul_i32 {s(S_T2)}, {s(S_T0)}, {KC_D}")
I(f"s_lshl_b32 {s(S_T3)}, {s(S_T1)}, 8")
I(f"s_sub_u32 {s(S_T2)}, {s(S_T2)}, {s(S_T3)}")
I(f"s_add_u32 {s(S_T2)}, {s(S_T2)}, {L_KC + 3*KC_S + 72}")
I(f"v_and_b32 {v(t1)}, 3, {v(VJ)}")
I(f"v_mul_u32_u24 {v(t1)}, {KC_S}, {v(t1)}")
I(f"v_lshrrev_b32 {v(t2)}, 2, {v(VJ)}")
I(f"v_lshl_add_u32 {v(t1)}, {v(t2)}, 3, {v(t1)}")
I(f"v_lshl_add_u32 {v(t1)}, {v(VKG)}, 4, {v(t1)}")
I(f"v_sub_u32 {v(VA_)}, {s(S_T2)}, {v(t1)}")
I(f"s_mul_i32 {s(S_T2)}, {s(S_T0)}, {U_D}")
I(f"s_sub_u32 {s(S_T2)}, {s(S_T2)}, {s(S_T3)}")
I(f"s_add_u32 {s(S_T2)}, {s(S_T2)}, {L_U + 336}")
I(f"v_lshlrev_b32 {v(t1)}, 5, {v(VJ)}")
I(f"v_lshlrev_b32 {v(t2)}, 4, {v(VKG)}")
I(f"v_sub_u32 {v(t1)}, {v(t1)}, {v(t2)}")
I(f"v_add_u32 {v(VB_)}, {s(S_T2)}, {v(t1)}")
I(f"s_lshl_b32 {s(S_T2)}, {s(S_WAVE)}, 12")
I(f"v_add_u32 {v(VRW)}, {s(S_T2)}, {v(VO2)}")
I(f"s_lshl_b32 {s(S_T2)}, {s(S_WAVE)}, 10")
I(f"v_add_u32 {v(VRR)}, {s(S_T2)}, {v(VO2)}")
I(f"s_lshl_b32 {s(S_T2)}, {s(S_WAVE)}, 8")
I(f"v_lshl_add_u32 {v(VT0)}, {v(VJ)}, 4, {s(S_T2)}")
I(f"v_lshl_add_u32 {v(VT0)}, {v(VKG)}, 2, {v(VT0)}")
I(f"v_lshlrev_b32 {v(VEX)}, 2, {v(VT0)}")
I(f"v_lshlrev_b32 {v(VEU)}, 1, {v(VT0)}")
I(f"s_lshl_b32 {s(S_T2)}, {s(S_DP)}, 2")
I(f"v_lshl_add_u32 {v(VOUT)}, {v(VT0)}, 10, {s(S_T2)}")
I(f"v_add_u32 {v(VOUT+1)}, 0x100000, {v(VOUT)}")
I(f"v_mov_b32 {v(38)}, 0")
I(f"v_mov_b32 {v(39)}, 0")
I(f"ds_write_b64 {v(VZ)}, {v(38,2)} offset:{L_KTAB + 8*ZIDX}")
I(f"ds_write_b64 {v(VZ)}, {v(38,2)} offset:{L_KTAB + KTAB_D + 8*ZIDX}")
I(f"v_lshlrev_b32 {v(t2)}, 1, v0")
I(f"ds_write_b16 {v(t2)}, {v(VZ)} offset:{L_U}")
I(f"ds_write_b16 {v(t2)}, {v(VZ)} offset:{L_U + U_D}")
I(f"v_lshrrev_b32 {v(t3)}, 5, v0")
I(f"v_mul_u32_u24 {v(t3)}, {KC_S}, {v(t3)}")
I(f"v_and_b32 {v(t4)}, 31, v0")
I(f"v_lshl_add_u32 {v(t3)}, {v(t4)}, 1, {v(t3)}")
I(f"ds_write_b16 {v(t3)}, {v(VZ)} offset:{L_KC + 4096}")

C("---- K-gen parameters")
I("s_waitcnt lgkmcnt(0)")
I(f"s_lshr_b32 {s(S_T0)}, {s(S_WAVE)}, 1")
I(f"s_lshl_b32 {s(S_T0)}, {s(S_T0)}, 4")
I(f"s_lshr_b32 {s(S_T1)}, {s(S_LDT)}, {s(S_T0)}")
I(f"s_lshl_b32 {s(S_T1)}, {s(S_T1)}, 16")
l2e_hi = struct.unpack("<f", struct.pack("<f", LOG2E))[0]
l2e_lo = LOG2E - l2e_hi
T0_, T1_, T2_, T3_, DT = 40, 41, 42, 43, 44
VDS = 8
I(f"s_lshl_b32 {s(S_DS2)}, {s(S_DSK)}, 16")
I(f"s_and_b32 {s(S_DS2+1)}, {s(S_DSK)}, 0xffff0000")
I(f"v_mov_b32 {v(T0_)}, {f2u(l2e_hi):#x}")
I(f"v_mov_b32 {v(T3_)}, {f2u(l2e_lo):#x}")
I(f"v_add_f32 {v(VDS)}, {s(S_DS2)}, 1.0")
I(f"v_add_f32 {v(VDS+1)}, {s(S_DS2+1)}, 1.0")
I(f"v_mul_f32 {v(T1_)}, {s(S_T1)}, {v(T0_)}")
I(f"v_fma_f32 {v(T2_)}, {s(S_T1)}, {v(T0_)}, -{v(T1_)}")
I(f"v_fma_f32 {v(T2_)}, {s(S_T1)}, {v(T3_)}, {v(T2_)}")
I(f"v_exp_f32 {v(T1_)}, {v(T1_)}")
I(f"v_mul_f32 {v(T2_)}, {f2u(math.log(2.0)):#x}, {v(T2_)}")
I(f"v_readfirstlane_b32 {s(S_DS2)}, {v(VDS)}")
I(f"v_readfirstlane_b32 {s(S_DS2+1)}, {v(VDS+1)}")
I(f"v_fma_f32 {v(T1_)}, {v(T1_)}, {v(T2_)}, {v(T1_)}")
I(f"v_cvt_pk_bf16_f32 {v(T1_)}, {v(T1_)}, {v(T1_)}")
I(f"v_lshlrev_b32 {v(DT)}, 16, {v(T1_)}")
PW = 48
I("s_waitcnt vmcnt(1)")
stamp()
I("s_waitcnt vmcnt(0)") if False else None
I(f"v_mul_f32 {v(T1_)}, {v(DT)}, {v(PRM+2)}")
I(f"v_mul_f32 {v(T2_)}, {v(DT)}, {v(PRM+3)}")
I(f"v_mul_f32 {v(PW)}, {v(DT)}, {v(PRM+0)}")
I(f"v_mul_f32 {v(PW+1)}, {v(DT)}, {v(PRM+1)}")
I(f"v_mul_f32 {v(PW+2)}, {v(PRM+4)}, {v(T1_)}")
I(f"v_mul_f32 {v(PW+3)}, {v(PRM+4)}, {v(T2_)}")
I(f"v_mul_f32 {v(PW)}, {v(T0_)}, {v(PW)}")
I(f"v_mul_f32 {v(PW+1)}, 0.15915494, {v(PW+1)}")
I(f"s_lshr_b32 {s(S_T0)}, {s(S_C)}, 3")
I(f"s_xor_b32 {s(S_T0)}, {s(S_T0)}, 31")
I(f"s_xor_b32 {s(S_T2)}, {s(S_WAVE)}, 3")
I(f"s_or_b32 {s(S_T0)}, {s(S_T0)}, {s(S_T2)}")
I(f"s_cmp_eq_u32 {s(S_T0)}, 0")
I("s_cbranch_scc1 L_p5b")
I("s_waitcnt vmcnt(0)")
L("L_p5b")
I(f"v_mul_f32 {v(56)}, 0x43000000, {v(PW)}")
I(f"v_mul_f32 {v(57)}, 0x43000000, {v(PW+1)}")
I(f"v_exp_f32 {v(56)}, {v(56)}")
I(f"v_fract_f32 {v(57)}, {v(57)}")
I(f"v_cos_f32 {v(PW+4)}, {v(57)}")
I(f"v_sin_f32 {v(PW+5)}, {v(57)}")
I(f"v_fma_f32 {v(PW+2)}, -{v(PRM+5)}, {v(T2_)}, {v(PW+2)}")
I(f"v_fma_f32 {v(PW+3)}, {v(PRM+5)}, {v(T1_)}, {v(PW+3)}")
I(f"v_max_f32 {v(T3_)}, |{v(PW+2)}|, |{v(PW+3)}|")
I(f"v_mul_f32 {v(PW+4)}, {v(PW+4)}, {v(56)}")
I(f"v_mul_f32 {v(PW+5)}, {v(PW+5)}, {v(56)}")
I(f"ds_write_b64 {v(VPW)}, {v(PW+4,2)} offset:16")
dpp_reduce([T3_], "v_max_f32")
I("s_nop 0")
I(f"v_readlane_b32 {s(S_T0)}, {v(T3_)}, 63")
I("s_nop 3")
I(f"s_bfe_u32 {s(S_T0)}, {s(S_T0)}, 0x80017")
I(f"s_max_u32 {s(S_T0)}, {s(S_T0)}, 1")
I(f"s_min_u32 {s(S_T0)}, {s(S_T0)}, 253")
I(f"s_lshl_b32 {s(S_UNS)}, {s(S_T0)}, 23")
I(f"s_sub_u32 {s(S_T0)}, 254, {s(S_T0)}")
I(f"s_lshl_b32 {s(S_T0)}, {s(S_T0)}, 23")
I(f"v_mul_f32 {v(PW+2)}, {s(S_T0)}, {v(PW+2)}")
I(f"v_mul_f32 {v(PW+3)}, {s(S_T0)}, {v(PW+3)}")
I(f"ds_write_b128 {v(VPW)}, {v(PW,4)}")
nonce_issue(VZ, VNON)
C("---- K-gen main loop: 4 super-groups of 16 n ; one A tile (rows) x four B tiles (columns)")
ACC = 100
PP = 56
OPA = 116
OPB = 120
TM = 136
for k in range(16): I(f"v_mov_b32 {v(ACC+k)}, 0")
I(f"s_mov_b32 {s(S_CNT)}, 0")
I("s_waitcnt lgkmcnt(0)")
stamp()
L("L_kgen")
for q in range(4):
    I(f"ds_read_b128 {v(PP+8*q,4)}, {v(VPAR)} offset:{32*q}")
    I(f"ds_read_b64 {v(PP+8*q+4,2)}, {v(VPAR)} offset:{32*q+16}")
PFIT = int([a for a in sys.argv if a.startswith("--pfit=")][0][7:]) if any(a.startswith("--pfit=") for a in sys.argv) else 1
I(f"v_add_u32 {v(VPAR)}, 512, {v(VPAR)}")
for qp in range(2):
    QS = (2*qp, 2*qp+1)
    I(f"s_waitcnt lgkmcnt({4 - 4*qp})")
    def tm(q, x): return TM + 16*(q & 1) + 4*x
    EV = [(q, x) for q in QS for x in range(2)]
    for q, x in EV: I(f"v_pk_mul_f32 {v(tm(q,x),2)}, {v(PP+8*q,2)}, {v(VBETA if x == 0 else AL,2)} op_sel_hi:[1,0]")
    for q, x in EV: I(f"v_fract_f32 {v(tm(q,x)+1)}, {v(tm(q,x)+1)}")
    for q, x in EV: I(f"v_exp_f32 {v(tm(q,x))}, {v(tm(q,x))}")
    for q, x in EV: I(f"v_cos_f32 {v(tm(q,x)+2)}, {v(tm(q,x)+1)}")
    for q, x in EV: I(f"v_sin_f32 {v(tm(q,x)+3)}, {v(tm(q,x)+1)}")
    def ep(q, x): return TM + 16*(q & 1) + 8 + 2*x
    def bc(q, alt): return TM + 16*(q & 1) + 12 + 2*alt
    for q, x in EV: I(f"v_pk_mul_f32 {v(ep(q,x),2)}, {v(tm(q,x)+2,2)}, {v(tm(q,x),2)} op_sel_hi:[1,0]")
    for q in QS: I(f"v_pk_mul_f32 {v(bc(q,0),2)}, {v(ep(q,0),2)}, {v(PP+8*q+2,2)} op_sel_hi:[0,1] neg_hi:[0,1]")
    for q in QS: I(f"v_cvt_pk_f16_f32 {v(OPA+q)}, {v(ep(q,1))}, {v(ep(q,1)+1)}")
    for q in QS: I(f"v_fma_f32 {v(bc(q,0))}, -{v(ep(q,0)+1)}, {v(PP+8*q+3)}, {v(bc(q,0))}")
    for q in QS: I(f"v_fma_f32 {v(bc(q,0)+1)}, -{v(ep(q,0)+1)}, {v(PP+8*q+2)}, {v(bc(q,0)+1)}")
    for k in range(4):
        cur_, nx = k & 1, 1 - (k & 1)
        if k < 3:
            for q in QS: I(f"v_pk_mul_f32 {v(bc(q,nx),2)}, {v(bc(q,cur_),2)}, {v(PP+8*q+4,2)} op_sel_hi:[1,0]")
        for q in QS: I(f"v_cvt_pk_f16_f32 {v(OPB+4*k+q)}, {v(bc(q,cur_))}, {v(bc(q,cur_)+1)}")
        if k < 3:
            for q in QS: I(f"v_fma_f32 {v(bc(q,nx))}, {v(bc(q,cur_)+1)}, {v(PP+8*q+5)}, {v(bc(q,nx))}")
            for q in QS: I(f"v_fma_f32 {v(bc(q,nx)+1)}, -{v(bc(q,cur_))}, {v(PP+8*q+5)}, {v(bc(q,nx)+1)}")
I(f"s_add_u32 {s(S_CNT)}, {s(S_CNT)}, 1")
I(f"s_cmp_lt_u32 {s(S_CNT)}, 4")
for k in range(4):
    I(f"v_mfma_f32_16x16x32_f16 {v(ACC+4*k,4)}, {v(OPA,4)}, {v(OPB+4*k,4)}, {v(ACC+4*k,4)}")
I("s_cbranch_scc1 L_kgen")
stamp()
GR, GK = 160, 176
nonce_wait(VZ, VNON)
for k in range(16): I(f"v_mul_f32 {v(ACC+k)}, {s(S_UNS)}, {v(ACC+k)}")
for k in range(4):
    for r in range(4):
        I(f"ds_write_b32 {v(SCB+r)}, {v(ACC+4*k+r)}")
        if k < 3: I(f"v_add_u32 {v(SCB+r)}, {v(SCB+r)}, {v(SCS + (r >> 1))}")
I("s_waitcnt lgkmcnt(0)")
I("s_barrier")
C("---- expand K into 4 shifted bf16 copies")
E0 = 40
CP = 96
XX = 144
def xs_issue():
    for k in range(4):
        I(f"global_load_dwordx2 {v(XX+2*k,2)}, {v(VT8 if k < 2 else VFL)}, {s(S_XNG,2)} offset:{2048*(k&1)} sc1")
    sweep_issue(VSW, GR, P_WS)
for d in range(2):
    Eb = E0 + 24*d
    for k in range(11):
        I(f"ds_read_b64 {v(Eb+2*k,2)}, {v(GA+k)} offset:{L_KTAB + d*KTAB_D}")
def expand(d):
    Eb = E0 + 24*d
    I(f"s_waitcnt lgkmcnt({11 if d == 0 else 4})")
    for k in range(11):
        I(f"v_add_f32 {v(Eb+2*k)}, {v(Eb+2*k)}, {v(Eb+2*k+1)}")
    for sg in range(4):
        Cb = CP + 16*d + 4*sg
        for m in range(4):
            I(f"v_cvt_pk_bf16_f32 {v(Cb+m)}, {v(Eb+2*(sg+2*m))}, {v(Eb+2*(sg+2*m+1))}")
        I(f"ds_write_b128 {v(VKCW)}, {v(Cb,4)} offset:{L_KC + d*KC_D + sg*KC_S}")
expand(0)
expand(1)
stamp()
I(f"s_cmp_lg_u32 {s(S_WAVE)}, 0")
I("s_cbranch_scc1 L_k_wait")
keys_poll(VKEY, GK, 32)
L("L_k_wait")
I("s_barrier")
xs_issue()
stamp()
I(f"s_cmp_lg_u32 {s(S_WAVE)}, 0")
I("s_cbranch_scc1 L_k_not0")
keys_top2(GK, M1, M2, 44, 45)
I(f"ds_write_b64 {v(VZ)}, {v(M1,2)} offset:{L_MISC + 16}")
L("L_k_not0")
for k in range(4):
    I(f"s_waitcnt vmcnt({7-k})")
    I(f"ds_write_b64 {v(VT8)}, {v(XX+2*k,2)} offset:{L_XL + 2048*k}")
XF = 48
for k in range(8): unpack(XF+6*k+2, XX+k)
sweep(VSW, GR, 40, P_WS, issued=True, first_wait=0)
stamp()
RI = 128
for k in range(8):
    g = GR + 2*k
    I(f"v_and_b32 {v(RI+2*k)}, {s(S_MASK)}, {v(g)}")
    I(f"v_lshlrev_b32 {v(XF+6*k)}, 16, {v(g)}")
    I(f"v_rcp_f32 {v(RI+2*k)}, {v(RI+2*k)}")
for k in range(8):
    b = XF+6*k
    I(f"v_pk_add_f32 {v(b+2,2)}, {v(b+2,2)}, {v(b,2)} op_sel_hi:[1,0] neg_lo:[0,1] neg_hi:[0,1]")
for k in range(8):
    b = XF+6*k
    I(f"v_cvt_pk_bf16_f32 {v(b+4)}, {v(b+2)}, {v(b+3)}")
for k in range(8): unpack(XF+6*k+2, XF+6*k+4)
for k in range(8):
    b = XF+6*k
    I(f"v_pk_mul_f32 {v(b+2,2)}, {v(b+2,2)}, {v(RI+2*k,2)} op_sel_hi:[1,0]")
for k in range(4):
    for d in range(2):
        I(f"v_cvt_pk_bf16_f32 {v(XX+2*k+d)}, {v(XF+12*k+2+d)}, {v(XF+12*k+8+d)}")
        I(f"ds_write_b32 {v(VT4)}, {v(XX+2*k+d)} offset:{L_U + 512 + d*U_D + 1024*k}")
I("s_waitcnt lgkmcnt(0)")
I("s_barrier")
stamp()
C("---- convolution")
CA = [32, 96]
CB = [64, 128]
YA = 8
def conv_loads(rl, buf, n):
    ls = []
    for k in range(n):
        off = 64 * (63 - 8*k - rl)
        ls.append(f"ds_read_b64 {v(CA[buf]+4*k,2)}, {v(VA_)} offset:{off}")
        ls.append(f"ds_read_b64 {v(CA[buf]+4*k+2,2)}, {v(VA_)} offset:{off+8}")
        off = 512*k + 64*(3 - rl)
        ls.append(f"ds_read_b128 {v(CB[buf]+4*k,4)}, {v(VB_)} offset:{off}")
    return ["    " + x for x in ls]
def epilogue(ph, RD, XQ, UQ, T):
    for d in range(2):
        a = RD + 8*d
        I(f"v_pk_add_f32 {v(a,2)}, {v(a,2)}, {v(a+4,2)}")
        I(f"v_pk_add_f32 {v(a+2,2)}, {v(a+2,2)}, {v(a+6,2)}")
    for r in range(4):
        a = T + 4*(r & 1)
        unpack(a, XQ+r)
        for d in range(2):
            src = UQ + 2*d + (r >> 1)
            if r & 1: I(f"v_and_b32 {v(a+2+d)}, {s(S_MASK)}, {v(src)}")
            else:     I(f"v_lshlrev_b32 {v(a+2+d)}, 16, {v(src)}")
        I(f"v_add_f32 {v(a)}, {v(a)}, {v(RD+r)}")
        I(f"v_add_f32 {v(a+1)}, {v(a+1)}, {v(RD+8+r)}")
        I(f"v_pk_fma_f32 {v(a,2)}, {v(a+2,2)}, {s(S_DS2,2)}, {v(a,2)}")
        I(f"v_cvt_pk_bf16_f32 {v(XQ+r)}, {v(a)}, {v(a+1)}")
        I(f"global_store_dword {v(VOUT+ph)}, {v(XQ+r)}, {s(P_OUT,2)} offset:{r*1024}")
    I(f"ds_write_b128 {v(VEX)}, {v(XQ,4)} offset:{L_XL + 4096*ph}")
def red_reads(ph, base, RD):
    for w in range(4):
        I(f"ds_read_b128 {v(RD+4*w,4)}, {v(VRR)} offset:{base + 4096*w}")
def xu_reads(ph, XQ, UQ):
    I(f"ds_read_b128 {v(XQ,4)}, {v(VEX)} offset:{L_XL + 4096*ph}")
    for d in range(2):
        I(f"ds_read_b64 {v(UQ+2*d,2)}, {v(VEU)} offset:{L_U + 512 + d*U_D + 2048*ph}")
def mf(T, ch, dl, buf, first):
    a = YA + 4*(T & 3)
    return f"    v_mfma_f32_16x16x32_bf16 {v(a,4)}, {v(CA[buf]+4*ch,4)}, {v(CB[buf]+4*dl,4)}, {'0' if first else v(a,4)}"
out.extend(conv_loads(0, 0, 4))
seq = 0
for rl in range(4):
    buf = seq & 1; seq += 1
    nxt = conv_loads(rl+1, 1-buf, 4) if rl < 3 else conv_loads(0, 1-buf, 8)
    pairs = [(ch, T-ch) for T in range(4) for ch in range(T+1)]
    pairs.sort(key=lambda p: (max(p), p[0]+p[1]))
    seen = set()
    per = -(-len(nxt) // len(pairs))
    ni = 0
    lastmax = -1
    if rl > 0: I("s_waitcnt lgkmcnt(0)")
    for (ch, dl) in pairs:
        T = ch + dl
        if rl == 0 and max(ch, dl) > lastmax:
            lastmax = max(ch, dl)
            I(f"s_waitcnt lgkmcnt({min(15, 9 - 3*lastmax + ni)})")
        out.append(mf(T, ch, dl, buf, rl == 0 and T not in seen)); seen.add(T)
        out.extend(nxt[ni:ni+per]); ni += len(nxt[ni:ni+per])
    out.extend(nxt[ni:])
I("s_nop 7")
for T in range(4):
    I(f"ds_write_b128 {v(VRW)}, {v(YA+4*T,4)} offset:{L_R1 + 1024*T}")
I("s_waitcnt lgkmcnt(0)")
I("s_barrier")
stamp()
RD1, XQ1, UQ1, TP1 = 160, 24, 28, 192
XQ2, UQ2 = 176, 180
fill = [[], [], [], []]
with capture() as f0:
    red_reads(0, L_R1, RD1)
    xu_reads(0, XQ1, UQ1)
    xu_reads(1, XQ2, UQ2)
fill[0] = f0
with capture() as f3: epilogue(0, RD1, XQ1, UQ1, TP1)
fill[1] = f3[:len(f3)//2]; fill[2] = f3[len(f3)//2:]
for rl in range(4):
    buf = seq & 1; seq += 1
    nxt = conv_loads(rl+1, 1-buf, 8) if rl < 3 else []
    pairs = [(ch, T-ch) for T in range(4, 8) for ch in range(T+1)]
    pairs.sort(key=lambda p: (max(p), p[0]+p[1]))
    if rl > 0: I("s_waitcnt lgkmcnt(0)")
    if rl == 2: I("s_barrier")
    seen = set()
    fl = fill[rl]
    per = -(-len(fl) // len(pairs)) if fl else 0
    ni = fi = 0
    for n_, (ch, dl) in enumerate(pairs):
        T = ch + dl
        out.append(mf(T, ch, dl, buf, rl == 0 and T not in seen)); seen.add(T)
        out.extend(nxt[ni:ni+1]); ni += 1
        out.extend(fl[fi:fi+per]); fi += per
    out.extend(nxt[ni:]); out.extend(fl[fi:])
stamp()
I("s_nop 7")
for T in range(4):
    I(f"ds_write_b128 {v(VRW)}, {v(YA+4*T,4)} offset:{L_R2 + 1024*T}")
I("s_waitcnt lgkmcnt(0)")
I("s_barrier")
RD2 = 96
red_reads(1, L_R2, RD2)
I("s_waitcnt lgkmcnt(0)")
epilogue(1, RD2, XQ2, UQ2, 120)
stamp()
C("---- routed rows fix-up")
I(f"ds_read_b64 {v(64,2)}, {v(VZ)} offset:{L_MISC + 16}")
I("s_waitcnt lgkmcnt(0)")
I(f"v_readfirstlane_b32 {s(S_K1)}, {v(64)}")
I(f"v_readfirstlane_b32 {s(S_K2)}, {v(65)}")
I(f"s_mov_b32 {s(S_X0)}, 0")
L("L_fix")
I(f"s_and_b32 {s(S_T0)}, {s(S_K1)}, 0xffff")
I(f"s_sub_u32 {s(S_T0)}, 0xffff, {s(S_T0)}")
I(f"s_lshr_b32 {s(S_T1)}, {s(S_T0)}, 8")
I(f"s_cmp_ge_u32 {s(S_T1)}, 8")
I("s_cbranch_scc1 L_fix_skip")
I(f"s_and_b32 {s(S_T1)}, {s(S_T1)}, 3")
I(f"s_cmp_lg_u32 {s(S_T1)}, {s(S_WAVE)}")
I("s_cbranch_scc1 L_fix_skip")
I(f"s_lshl_b32 {s(S_T1)}, {s(S_DP)}, 4")
I(f"s_lshl_b32 {s(S_T2)}, {s(S_X0)}, 19")
I(f"s_add_u32 {s(S_T1)}, {s(S_T1)}, {s(S_T2)}")
I(f"v_lshl_add_u32 {v(76)}, {v(VL)}, 12, {s(S_T1)}")
I(f"v_add_u32 {v(78)}, 0x40000, {v(76)}")
I(f"s_lshl_b32 {s(S_T2)}, {s(S_T0)}, 2")
I(f"v_mov_b32 {v(77)}, {s(S_T2)}")
I(f"ds_read_b32 {v(79)}, {v(77)} offset:{L_XL}")
I(f"s_lshr_b32 {s(S_T2)}, {s(S_K1)}, 16")
I(f"s_lshr_b32 {s(S_T3)}, {s(S_T2)}, 15")
I(f"s_cmp_eq_u32 {s(S_T3)}, 1")
I(f"s_mov_b32 {s(S_T3)}, 0xffff")
I(f"s_cselect_b32 {s(S_T3)}, 0x8000, {s(S_T3)}")
I(f"s_xor_b32 {s(S_T2)}, {s(S_T2)}, {s(S_T3)}")
I(f"s_lshl_b32 {s(S_T2)}, {s(S_T2)}, 16")
I(f"v_mov_b32 {v(92)}, {f2u(-LOG2E):#x}")
I(f"v_mul_f32 {v(92)}, {s(S_T2)}, {v(92)}")
I(f"v_exp_f32 {v(92)}, {v(92)}")
I("s_nop 0")
I(f"v_add_f32 {v(92)}, 1.0, {v(92)}")
I(f"v_rcp_f32 {v(92)}, {v(92)}")
I("s_nop 0")
I(f"v_cvt_pk_bf16_f32 {v(92)}, {v(92)}, {v(92)}")
I(f"v_lshlrev_b32 {v(92)}, 16, {v(92)}")
I(f"s_mov_b32 {s(S_CNT)}, 0")
I(f"v_mov_b32 {v(84)}, 0")
I(f"v_mov_b32 {v(85)}, {s(S_NONCE)}")
I(f"v_mov_b32 {v(86)}, 0")
I(f"v_mov_b32 {v(87)}, {s(S_NONCE)}")
L("L_fixpoll")
I(f"global_load_dwordx4 {v(80,4)}, {v(76)}, {s(S_PART,2)} sc1")
I(f"s_bfm_b64 exec, {G-64}, 0")
I(f"global_load_dwordx4 {v(84,4)}, {v(78)}, {s(S_PART,2)} sc1")
I("s_mov_b64 exec, -1")
I("s_waitcnt vmcnt(0)")
I(f"v_xor_b32 {v(88)}, {s(S_NONCE)}, {v(81)}")
I(f"v_xor_b32 {v(89)}, {s(S_NONCE)}, {v(83)}")
I(f"v_xor_b32 {v(93)}, {s(S_NONCE)}, {v(85)}")
I(f"v_xor_b32 {v(94)}, {s(S_NONCE)}, {v(87)}")
I(f"v_or3_b32 {v(88)}, {v(88)}, {v(89)}, {v(93)}")
I(f"v_or_b32 {v(88)}, {v(88)}, {v(94)}")
I(f"v_cmp_ne_u32 vcc, 0, {v(88)}")
I(f"s_add_u32 {s(S_CNT)}, {s(S_CNT)}, 1")
I(f"s_cmp_eq_u64 vcc, 0")
I(f"s_cbranch_scc1 L_fixpoll_done")
I("s_sleep 2")
I(f"s_cmp_lt_u32 {s(S_CNT)}, {POLL_LIMIT}")
I(f"s_cbranch_scc1 L_fixpoll")
L("L_fixpoll_done")
I(f"v_add_f32 {v(80)}, {v(80)}, {v(84)}")
I(f"v_add_f32 {v(82)}, {v(82)}, {v(86)}")
I("s_nop 0")
dpp_reduce([80, 82])
I("s_nop 0")
I(f"v_cvt_pk_bf16_f32 {v(84)}, {v(80)}, {v(82)}")
unpack(80, 84)
I("s_waitcnt lgkmcnt(0)")
unpack(82, 79)
I(f"v_pk_fma_f32 {v(80,2)}, {v(80,2)}, {v(92,2)}, {v(82,2)} op_sel_hi:[1,0,1]")
I(f"v_cvt_pk_bf16_f32 {v(84)}, {v(80)}, {v(81)}")
I(f"s_lshl_b32 {s(S_T1)}, {s(S_T0)}, 10")
I(f"s_lshl_b32 {s(S_T2)}, {s(S_DP)}, 2")
I(f"s_add_u32 {s(S_T1)}, {s(S_T1)}, {s(S_T2)}")
I(f"v_mov_b32 {v(85)}, {s(S_T1)}")
I("s_lshl_b64 exec, 1, 63")
I(f"global_store_dword {v(85)}, {v(84)}, {s(P_OUT,2)}")
I("s_mov_b64 exec, -1")
L("L_fix_skip")
I(f"s_mov_b32 {s(S_K1)}, {s(S_K2)}")
I(f"s_add_u32 {s(S_X0)}, {s(S_X0)}, 1")
I(f"s_cmp_lt_u32 {s(S_X0)}, 2")
I("s_cbranch_scc1 L_fix")
I("s_branch L_fin")

L("L_ffn")
nstamp[0] = 1
C("==== FFN role")
S_G = 47
I(f"s_sub_u32 {s(S_T0)}, s2, {NLN + NCONV}")
I(f"s_and_b32 {s(S_T1)}, {s(S_T0)}, 7")
I(f"s_mul_i32 {s(S_T1)}, {s(S_T1)}, 14")
I(f"s_lshr_b32 {s(S_T0)}, {s(S_T0)}, 3")
I(f"s_add_u32 {s(S_G)}, {s(S_T0)}, {s(S_T1)}")
WL = 32
t1, t2, t3, t4 = 12, 13, 14, 15
I(f"v_lshlrev_b32 {v(t4)}, 4, v0")
I(f"v_lshrrev_b32 {v(t1)}, 2, v0")
I(f"v_mul_u32_u24 {v(t1)}, 3584, {v(t1)}")
I(f"v_and_b32 {v(t2)}, 1, v0")
I(f"v_lshl_add_u32 {v(t1)}, {v(t2)}, 4, {v(t1)}")
I(f"s_lshl_b32 {s(S_T0)}, {s(S_G)}, 5")
I(f"v_add_u32 {v(t1)}, {s(S_T0)}, {v(t1)}")
I(f"v_and_b32 {v(t2)}, 2, v0")
I(f"v_cmp_eq_u32 vcc, 0, {v(t2)}")
I("s_waitcnt lgkmcnt(0)")
I(f"v_mov_b32 {v(16)}, {s(P_WU)}")
I(f"v_mov_b32 {v(17)}, {s(P_WU+1)}")
I(f"v_mov_b32 {v(18)}, {s(P_WG)}")
I(f"v_mov_b32 {v(19)}, {s(P_WG+1)}")
I(f"v_cndmask_b32 {v(16)}, {v(16)}, {v(18)}, vcc")
I(f"v_cndmask_b32 {v(17)}, {v(17)}, {v(19)}, vcc")
I(f"v_add_co_u32 {v(16)}, vcc, {v(16)}, {v(t1)}")
I("s_nop 1")
I(f"v_addc_co_u32 {v(17)}, vcc, {v(17)}, {v(VZ)}, vcc")
I(f"s_add_u32 {s(S_PART)}, {s(P_WS)}, {WS_PART}")
I(f"s_addc_u32 {s(S_PART+1)}, {s(P_WS+1)}, 0")
stamp()
I(f"s_mov_b32 {s(S_T1)}, {64*3584}")
WD = 96
I(f"s_lshl_b32 {s(S_T0)}, {s(S_G)}, 14")
I(f"v_lshl_add_u32 {v(t3)}, v0, 2, {s(S_T0)}")
for p in range(8):
    I(f"global_load_dwordx4 {v(WL+4*p,4)}, {v(16,2)}, off")
    if p < 7:
        I(f"v_add_co_u32 {v(16)}, vcc, {s(S_T1)}, {v(16)}")
        I("s_nop 1")
        I(f"v_addc_co_u32 {v(17)}, vcc, {v(17)}, {v(VZ)}, vcc")
for f in range(16):
    if f and f % 4 == 0:
        I(f"v_add_u32 {v(t3)}, 4096, {v(t3)}")
    I(f"global_load_dword {v(WD+f)}, {v(t3)}, {s(P_WD,2)} offset:{(f&3)*1024}")
nonce_issue(VZ, 22)
for p in range(8):
    I(f"s_waitcnt vmcnt({17 + 7 - p})")
    I(f"ds_write_b128 {v(t4)}, {v(WL+4*p,4)} offset:{F_W + 4096*p}")
stamp()
I(f"v_lshrrev_b32 {v(t1)}, 2, {v(VJ)}")
I(f"v_lshl_add_u32 {v(t1)}, {v(VKG)}, 3, {v(t1)}")
I(f"v_lshlrev_b32 {v(t1)}, 6, {v(t1)}")
I(f"v_and_b32 {v(t2)}, 1, {v(VL)}")
I(f"v_lshl_add_u32 {v(t1)}, {v(t2)}, 3, {v(t1)}")
I(f"v_and_b32 {v(t2)}, 2, {v(VL)}")
I(f"v_lshl_add_u32 {v(t1)}, {v(t2)}, 4, {v(t1)}")
I(f"s_and_b32 {s(S_T0)}, {s(S_WAVE)}, 1")
I(f"s_lshl_b32 {s(S_T0)}, {s(S_T0)}, 4")
I(f"v_add_u32 {v(t1)}, {s(S_T0)}, {v(t1)}")
I("s_waitcnt lgkmcnt(0)")
I("s_barrier")
for st in range(16):
    I(f"ds_read_b64_tr_b16 {v(WL+4*st,2)}, {v(t1)} offset:{F_W + 2048*st}")
    I(f"ds_read_b64_tr_b16 {v(WL+4*st+2,2)}, {v(t1)} offset:{F_W + 2048*st + 256}")
WF = 128
nonce_wait(VZ, 22)
for f in range(16): unpack(WF+2*f, WD+f)
I(f"v_bfe_u32 {v(t2)}, {v(VJ)}, 2, 1")
I(f"v_lshlrev_b32 {v(t2)}, 10, {v(t2)}")
I(f"v_lshl_add_u32 {v(t2)}, {v(VKG)}, 4, {v(t2)}")
I(f"s_and_b32 {s(S_T1)}, {s(S_WAVE)}, 1")
I(f"s_lshl_b32 {s(S_T1)}, {s(S_T1)}, 9")
I(f"v_lshl_add_u32 {v(24)}, {v(VL)}, 3, {s(S_T1)}")
I(f"s_lshr_b32 {s(S_T0)}, {s(S_WAVE)}, 1")
I(f"s_lshl_b32 {s(S_T1)}, {s(S_T0)}, 10")
I(f"v_add_u32 {v(25)}, {s(S_T1)}, {v(24)}")
I("s_waitcnt lgkmcnt(0)")
stamp()
GK = 192
I("s_setprio 3")
I(f"s_cmp_lg_u32 {s(S_WAVE)}, 0")
I("s_cbranch_scc1 L_fk_wait")
keys_poll(VKEY, GK, 20)
keys_top2(GK, 224, 225, 21, 22)
I(f"ds_write_b64 {v(VZ)}, {v(224,2)} offset:{L_MISC + 16}")
I("s_waitcnt lgkmcnt(0)")
L("L_fk_wait")
I("s_barrier")
stamp()
I(f"ds_read_b64 {v(224,2)}, {v(VZ)} offset:{L_MISC + 16}")
I("s_waitcnt lgkmcnt(0)")
I(f"v_readfirstlane_b32 {s(S_K1)}, {v(224)}")
I(f"v_readfirstlane_b32 {s(S_K2)}, {v(225)}")
I(f"s_cmp_lt_u32 {s(S_WAVE)}, 2")
I("s_nop 2")
I(f"s_cselect_b32 {s(S_T0)}, {s(S_K1)}, {s(S_K2)}")
I(f"s_and_b32 {s(S_T0)}, {s(S_T0)}, 0xffff")
I(f"s_sub_u32 {s(S_T0)}, 0xffff, {s(S_T0)}")
I(f"s_min_u32 {s(S_T0)}, {s(S_T0)}, 2047")
I(f"s_lshl_b32 {s(S_T1)}, {s(S_T0)}, 10")
I(f"v_add_u32 {v(97)}, {s(S_T1)}, {v(24)}")
I(f"s_lshl_b32 {s(S_T1)}, {s(S_T0)}, 3")
I(f"v_mov_b32 {v(99)}, {s(S_T1)}")
I(f"global_load_dwordx2 {v(100,2)}, {v(97)}, {s(P_U,2)}")
I(f"s_mov_b32 {s(S_CNT)}, 0")
L("L_f_stat")
I(f"global_load_dwordx2 {v(104,2)}, {v(99)}, {s(P_WS,2)} sc1")
I("s_waitcnt vmcnt(0)")
I(f"v_cmp_ne_u32 vcc, {s(S_NONCE)}, {v(105)}")
I(f"s_add_u32 {s(S_CNT)}, {s(S_CNT)}, 1")
I(f"s_cmp_eq_u64 vcc, 0")
I(f"s_cbranch_scc1 L_f_stat_done")
I("s_sleep 1")
I(f"s_cmp_lt_u32 {s(S_CNT)}, {POLL_LIMIT}")
I(f"s_cbranch_scc1 L_f_stat")
L("L_f_stat_done")
stamp()
I(f"v_and_b32 {v(106)}, {s(S_MASK)}, {v(104)}")
I(f"v_lshlrev_b32 {v(104)}, 16, {v(104)}")
I(f"v_rcp_f32 {v(106)}, {v(106)}")
for k in range(2): unpack(108+2*k, 100+k)
for k in range(2): I(f"v_pk_add_f32 {v(108+2*k,2)}, {v(108+2*k,2)}, {v(104,2)} op_sel_hi:[1,0] neg_lo:[0,1] neg_hi:[0,1]")
for k in range(2): I(f"v_cvt_pk_bf16_f32 {v(100+k)}, {v(108+2*k)}, {v(109+2*k)}")
for k in range(2): unpack(108+2*k, 100+k)
for k in range(2): I(f"v_pk_mul_f32 {v(108+2*k,2)}, {v(108+2*k,2)}, {v(106,2)} op_sel_hi:[1,0]")
for k in range(2): I(f"v_cvt_pk_bf16_f32 {v(100+k)}, {v(108+2*k)}, {v(109+2*k)}")
I(f"ds_write_b64 {v(25)}, {v(100,2)} offset:{F_XS}")
I("s_waitcnt lgkmcnt(0)")
I("s_barrier")
I(f"s_cmp_ge_u32 {s(S_WAVE)}, 2")
I("s_cbranch_scc1 L_f_nogu")
AX = 160
for st in range(16):
    I(f"ds_read_b128 {v(AX+4*st,4)}, {v(t2)} offset:{F_XS + 64*st}")
AC = 96
for st in range(16):
    I(f"s_waitcnt lgkmcnt({15-st})")
    a = AC + 4*(st & 1)
    I(f"v_mfma_f32_16x16x32_bf16 {v(a,4)}, {v(AX+4*st,4)}, {v(WL+4*st,4)}, {'0' if st < 2 else v(a,4)}")
I(f"v_lshlrev_b32 {v(107)}, 7, {v(VKG)}")
I(f"v_lshl_add_u32 {v(107)}, {v(VJ)}, 3, {v(107)}")
I(f"s_lshl_b32 {s(S_T0)}, {s(S_WAVE)}, 6")
I(f"v_add_u32 {v(107)}, {s(S_T0)}, {v(107)}")
I("s_nop 4")
I(f"v_add_f32 {v(104)}, {v(AC)}, {v(AC+4)}")
I(f"v_cvt_pk_bf16_f32 {v(104)}, {v(104)}, {v(104)}")
I(f"v_lshlrev_b32 {v(104)}, 16, {v(104)}")
I(f"v_mul_f32 {v(105)}, {f2u(-LOG2E):#x}, {v(104)}")
I(f"v_exp_f32 {v(105)}, {v(105)}")
I(f"v_mov_b32_dpp {v(106)}, {v(104)} row_ror:8 row_mask:0xf bank_mask:0xf")
I(f"v_add_f32 {v(105)}, 1.0, {v(105)}")
I(f"v_rcp_f32 {v(105)}, {v(105)}")
I("s_nop 0")
I(f"v_mul_f32 {v(105)}, {v(104)}, {v(105)}")
I(f"v_cvt_pk_bf16_f32 {v(105)}, {v(105)}, {v(105)}")
I(f"v_lshlrev_b32 {v(105)}, 16, {v(105)}")
I(f"v_mul_f32 {v(105)}, {v(105)}, {v(106)}")
I(f"v_cvt_pk_bf16_f32 {v(105)}, {v(105)}, {v(105)}")
I(f"v_lshlrev_b32 {v(105)}, 16, {v(105)}")
I("s_mov_b64 exec, 0x00ff00ff")
I(f"ds_write2_b32 {v(107)}, {v(105)}, {v(105)} offset0:{F_H//4} offset1:{F_H//4+1}")
I("s_mov_b64 exec, -1")
I("s_waitcnt lgkmcnt(0)")
L("L_f_nogu")
I("s_barrier")
HB = 160
for q in range(16):
    I(f"ds_read_b128 {v(HB+4*q,4)}, {v(VZ)} offset:{F_H + 16*q}")
Y0, Y1 = 96, 100
I(f"s_lshl_b32 {s(S_T0)}, {s(S_G)}, 12")
I(f"v_lshl_add_u32 {v(112)}, v0, 4, {s(S_T0)}")
I(f"v_add_u32 {v(113)}, 0x80000, {v(112)}")
for Y in (Y0, Y1):
    I(f"v_mov_b32 {v(Y+1)}, {s(S_NONCE)}")
    I(f"v_mov_b32 {v(Y+3)}, {s(S_NONCE)}")
for q in range(16):
    tok = q >> 3
    I(f"s_waitcnt lgkmcnt({15-q})")
    for e in range(2):
        f = 2*(q & 7) + e
        acc = 104 + 4*tok + 2*e
        hp = HB + 4*q + 2*e
        if f < 2:
            I(f"v_pk_mul_f32 {v(acc,2)}, {v(WF+2*f,2)}, {v(hp,2)}")
        else:
            I(f"v_pk_fma_f32 {v(acc,2)}, {v(WF+2*f,2)}, {v(hp,2)}, {v(acc,2)}")
    if q == 7 or q == 15:
        Y = Y0 if q == 7 else Y1
        I(f"v_add_f32 {v(Y)}, {v(104+4*tok)}, {v(106+4*tok)}")
        I(f"v_add_f32 {v(Y+2)}, {v(105+4*tok)}, {v(107+4*tok)}")
        I(f"global_store_dwordx4 {v(112+tok)}, {v(Y,4)}, {s(S_PART,2)} sc1")
stamp()
L("L_fin")
if STAMP:
    I("s_waitcnt vmcnt(0) lgkmcnt(0)")
    I(f"s_memtime {s(S_ST + 22, 2)}")
    I(f"s_memrealtime {s(S_T2, 2)}")
    I(f"s_add_u32 {s(S_STB)}, {s(P_WS)}, {WS_STAMP}")
    I(f"s_addc_u32 {s(S_STB+1)}, {s(P_WS+1)}, 0")
    I(f"s_lshl_b32 {s(S_T0)}, s2, 2")
    I(f"s_add_u32 {s(S_T0)}, {s(S_T0)}, {s(S_WAVE)}")
    I(f"s_lshl_b32 {s(S_T0)}, {s(S_T0)}, 7")
    I("s_waitcnt lgkmcnt(0)")
    I(f"v_mov_b32 v10, {s(S_T0)}")
    I("s_mov_b64 exec, 1")
    for k in range(12):
        I(f"v_mov_b32 v12, {s(S_ST+2*k)}")
        I(f"v_mov_b32 v13, {s(S_ST+2*k+1)}")
        I(f"global_store_dwordx2 v10, v[12:13], {s(S_STB,2)} offset:{8*k}")
        I("s_nop 1")
    I(f"v_mov_b32 v12, {s(S_T2)}")
    I(f"v_mov_b32 v13, {s(S_T3)}")
    I(f"global_store_dwordx2 v10, v[12:13], {s(S_STB,2)} offset:96")
L("L_end")
I("s_endpgm")
out.append('.section .rodata,"a"')
out.append(".p2align 6")
out.append(f".amdhsa_kernel {KNAME}")
out.append("  .amdhsa_next_free_vgpr 256")
out.append("  .amdhsa_next_free_sgpr 102")
out.append("  .amdhsa_accum_offset 256")
out.append("  .amdhsa_group_segment_fixed_size 0")
out.append("  .amdhsa_kernarg_size 136")
out.append("  .amdhsa_user_sgpr_count 2")
out.append("  .amdhsa_user_sgpr_kernarg_segment_ptr 1")
out.append("  .amdhsa_system_sgpr_workgroup_id_x 1")
out.append("  .amdhsa_float_denorm_mode_32 3")
out.append(".end_amdhsa_kernel")
dst = [a for a in sys.argv[1:] if not a.startswith("--")]
open(dst[0] if dst else "k.s", "w").write("\n".join(x for x in out if x is not None) + "\n")
```

```python
import sys, struct, math

KNAME = "parallel_sum__ssm_conv_s4__moe_arch_mod__prompt_kernel"
NLN = 128
NCONV = 256
G = 112
NWG = NLN + NCONV + G
STAMP = "--stamp" in sys.argv

WS_STATS = 0
WS_KEYS = 16384
WS_FLAG = 32768
WS_PART = 65536
WS_STAMP = 2 << 20
WS_XNG = 4 << 20
WS_XT = 8 << 20

L_MISC = 0
L_KC = 256
KC_S = 4160
KC_D = 4 * KC_S
L_U = L_KC + 2 * KC_D
U_D = 4608
L_XL = L_U + 2 * U_D
L_R1 = L_XL + 8192
L_KTAB = L_R1
KTAB_D = 7680
L_PAR = L_XL
L_R2 = L_R1
LDS_BYTES = L_R1 + 16384
ZIDX = 840
TRASH = 848
TS = 1040
L_T1 = L_KC
L_T2 = L_T1 + 16 * TS
F_H = 256
F_XS = 512
F_W = F_XS + 2048
assert F_W + 32768 <= LDS_BYTES
assert LDS_BYTES <= 81920
POLL_LIMIT = 40000
KSLEEP = int([a for a in sys.argv if a.startswith("--ksleep=")][0][9:]) if any(a.startswith("--ksleep=") for a in sys.argv) else 3

out = []
cur = [out]
def I(s): cur[0].append("    " + s)
def L(s): cur[0].append(s + ":")
def C(s): cur[0].append("    ; " + s)
class capture:
    def __enter__(self):
        self.prev = cur[0]; self.lst = []; cur[0] = self.lst; return self.lst
    def __exit__(self, *a): cur[0] = self.prev
def f2u(x): return struct.unpack("<I", struct.pack("<f", x))[0]
def v(a, n=1): return f"v{a}" if n == 1 else f"v[{a}:{a+n-1}]"
def s(a, n=1): return f"s{a}" if n == 1 else f"s[{a}:{a+n-1}]"
uid = [0]
def lab(p):
    uid[0] += 1
    return f"L_{p}_{uid[0]}"

P_U, P_ARE, P_AIM, P_BRE, P_BIM, P_CRE, P_CIM, P_LDT = 8, 10, 12, 14, 16, 18, 20, 22
P_DSK, P_BX, P_WR, P_WG, P_WU, P_WD, P_OUT, P_DBG = 24, 26, 28, 30, 32, 34, 36, 38
P_WS = 40
S_WAVE, S_DP, S_NONCE, S_LDT, S_DSK, S_ROW0 = 42, 43, 44, 45, 46, 47
S_T0, S_T1, S_T2, S_T3 = 48, 49, 50, 51
S_X0 = 52
S_R = 56
S_DS2 = 60
S_UNS = 62
S_M0 = 63
S_CNT = 64
S_EXEC = 66
S_PART = 70
S_K1, S_K2 = 72, 73
S_XNG = 68
S_XT = 4
S_XNB = 6
S_MASK = 74
S_ST = 76
S_STB = 100
LOG2E = math.log2(math.e)

nstamp = [0]
def stamp():
    if not STAMP: return
    k = nstamp[0]; nstamp[0] += 1
    assert k < 11
    I(f"s_memtime {s(S_ST + 2*k, 2)}")

DPP4 = ("quad_perm:[1,0,3,2] row_mask:0xf bank_mask:0xf",
        "quad_perm:[2,3,0,1] row_mask:0xf bank_mask:0xf",
        "row_half_mirror row_mask:0xf bank_mask:0xf",
        "row_mirror row_mask:0xf bank_mask:0xf")
DPP6 = DPP4 + ("row_bcast:15 row_mask:0xa bank_mask:0xf", "row_bcast:31 row_mask:0xc bank_mask:0xf")
def dpp_reduce(regs, op="v_add_f32"):
    for mode in DPP6:
        pad = max(0, 3 - len(regs))
        if pad: I(f"s_nop {pad-1}")
        for r in regs:
            I(f"{op}_dpp {v(r)}, {v(r)}, {v(r)} {mode}")

def nonce_cas(vz, vt):
    l = lab("nocas")
    I(f"s_cmp_lg_u32 {s(S_T0)}, 0")
    I(f"s_cbranch_scc1 {l}")
    I(f"s_memrealtime {s(S_T2,2)}")
    I("s_waitcnt lgkmcnt(0)")
    I(f"s_or_b32 {s(S_T2)}, {s(S_T2)}, 1")
    I(f"v_mov_b32 {v(vt)}, {s(S_T2)}")
    I(f"v_mov_b32 {v(vt+1)}, 0")
    I("s_mov_b64 exec, 1")
    I(f"global_atomic_cmpswap {v(vz)}, {v(vt,2)}, {s(P_DBG,2)} sc1")
    I("s_mov_b64 exec, -1")
    L(l)

def nonce_issue(vz, vt):
    I(f"global_load_dword {v(vt)}, {v(vz)}, {s(P_DBG,2)} sc1")

def nonce_wait(vz, vt, first=0):
    l = lab("npoll"); done = l + "_done"
    I(f"s_mov_b32 {s(S_CNT)}, 0")
    if first:
        I(f"s_waitcnt vmcnt({first})")
        I(f"s_branch {l}_chk")
    L(l)
    I("s_waitcnt vmcnt(0)")
    L(l + "_chk")
    I(f"v_readfirstlane_b32 {s(S_NONCE)}, {v(vt)}")
    I(f"s_add_u32 {s(S_CNT)}, {s(S_CNT)}, 1")
    I(f"s_cmp_lg_u32 {s(S_NONCE)}, 0")
    I(f"s_cbranch_scc1 {done}")
    I(f"s_cmp_ge_u32 {s(S_CNT)}, {POLL_LIMIT}")
    I(f"s_cbranch_scc1 {done}")
    I("s_sleep 1")
    nonce_issue(vz, vt)
    I(f"s_branch {l}")
    L(done)

def sweep_issue(vaddr, GR, base):
    for k in range(4):
        I(f"global_load_dwordx4 {v(GR+4*k,4)}, {v(vaddr+k)}, {s(base,2)} sc1")

def sweep_check(GR, vtmp):
    I(f"v_xor_b32 {v(vtmp)}, {s(S_NONCE)}, {v(GR+1)}")
    I(f"v_xor_b32 {v(vtmp+1)}, {s(S_NONCE)}, {v(GR+3)}")
    for k in range(1, 4):
        I(f"v_xor_b32 {v(vtmp+2)}, {s(S_NONCE)}, {v(GR+4*k+1)}")
        I(f"v_xor_b32 {v(vtmp+3)}, {s(S_NONCE)}, {v(GR+4*k+3)}")
        I(f"v_or3_b32 {v(vtmp)}, {v(vtmp)}, {v(vtmp+2)}, {v(vtmp+3)}")
    I(f"v_or_b32 {v(vtmp)}, {v(vtmp)}, {v(vtmp+1)}")
    I(f"v_cmp_ne_u32 vcc, 0, {v(vtmp)}")

def sweep(vaddr, GR, vtmp, base, issued=False, first_wait=0):
    l = lab("sweep"); done = l + "_done"; chk = l + "_chk"
    I(f"s_mov_b32 {s(S_CNT)}, 0")
    if issued:
        I(f"s_waitcnt vmcnt({first_wait})")
        I(f"s_branch {chk}")
    L(l)
    sweep_issue(vaddr, GR, base)
    I("s_waitcnt vmcnt(0)")
    L(chk)
    sweep_check(GR, vtmp)
    I(f"s_add_u32 {s(S_CNT)}, {s(S_CNT)}, 1")
    I(f"s_cmp_eq_u64 vcc, 0")
    I(f"s_cbranch_scc1 {done}")
    I("s_sleep 4")
    I(f"s_cmp_lt_u32 {s(S_CNT)}, {POLL_LIMIT}")
    I(f"s_cbranch_scc1 {l}")
    L(done)

def poll4(vaddr, GR, tagpos, vtmp, issued=False, first_wait=0, sleep=2):
    l = lab("poll"); done = l + "_done"; chk = l + "_chk"
    I(f"s_mov_b32 {s(S_CNT)}, 0")
    if issued:
        I(f"s_waitcnt vmcnt({first_wait})")
        I(f"s_branch {chk}")
    L(l)
    I(f"global_load_dwordx4 {v(GR,4)}, {v(vaddr)}, {s(P_WS,2)} sc1")
    I("s_waitcnt vmcnt(0)")
    L(chk)
    for k, tp in enumerate(tagpos): I(f"v_xor_b32 {v(vtmp+k)}, {s(S_NONCE)}, {v(GR+tp)}")
    if len(tagpos) == 4:
        I(f"v_or3_b32 {v(vtmp)}, {v(vtmp)}, {v(vtmp+2)}, {v(vtmp+3)}")
    I(f"v_or_b32 {v(vtmp)}, {v(vtmp)}, {v(vtmp+1)}")
    I(f"v_cmp_ne_u32 vcc, 0, {v(vtmp)}")
    I(f"s_add_u32 {s(S_CNT)}, {s(S_CNT)}, 1")
    I(f"s_cmp_eq_u64 vcc, 0")
    I(f"s_cbranch_scc1 {done}")
    I(f"s_sleep {sleep}")
    I(f"s_cmp_lt_u32 {s(S_CNT)}, {POLL_LIMIT}")
    I(f"s_cbranch_scc1 {l}")
    L(done)

def top2_wave(GR, m1, m2, t1, t2):
    I(f"v_mov_b32 {v(m1)}, {v(GR)}")
    I(f"v_mov_b32 {v(m2)}, {v(GR+2)}")
    for mode in DPP4:
        I("s_nop 1")
        I(f"v_mov_b32_dpp {v(t1)}, {v(m1)} {mode}")
        I(f"v_max_u32_dpp {v(t2)}, {v(m2)}, {v(m2)} {mode}")
        I(f"v_med3_u32 {v(m2)}, {v(m1)}, {v(t1)}, {v(t2)}")
        I(f"v_max_u32 {v(m1)}, {v(m1)}, {v(t1)}")
    for swp in ("v_permlane16_swap_b32", "v_permlane32_swap_b32"):
        I(f"v_mov_b32 {v(t1)}, {v(m1)}")
        I(f"v_mov_b32 {v(t2)}, {v(m2)}")
        I("s_nop 1")
        I(f"{swp} {v(m1)}, {v(t1)}")
        I(f"{swp} {v(m2)}, {v(t2)}")
        I("s_nop 0")
        I(f"v_max_u32 {v(t2)}, {v(m2)}, {v(t2)}")
        I(f"v_med3_u32 {v(m2)}, {v(m1)}, {v(t1)}, {v(t2)}")
        I(f"v_max_u32 {v(m1)}, {v(m1)}, {v(t1)}")

def top2_combine(a, t1):
    for k in (1, 2, 3):
        I(f"v_max_u32 {v(t1)}, {v(a+1)}, {v(a+2*k+1)}")
        I(f"v_med3_u32 {v(a+1)}, {v(a)}, {v(a+2*k)}, {v(t1)}")
        I(f"v_max_u32 {v(a)}, {v(a)}, {v(a+2*k)}")

def unpack(dst, src):
    I(f"v_lshlrev_b32 {v(dst)}, 16, {v(src)}")
    I(f"v_and_b32 {v(dst+1)}, {s(S_MASK)}, {v(src)}")


def keys_poll(vaddr, GK, vtmp):
    l = lab("kpoll"); done = l + "_done"
    I(f"s_mov_b32 {s(S_CNT)}, 0")
    L(l)
    I(f"global_load_dwordx4 {v(GK,4)}, {v(vaddr)}, {s(P_WS,2)} sc1")
    I(f"global_load_dwordx4 {v(GK+4,4)}, {v(vaddr+1)}, {s(P_WS,2)} sc1")
    I("s_waitcnt vmcnt(0)")
    for k in range(4): I(f"v_xor_b32 {v(vtmp+k)}, {s(S_NONCE)}, {v(GK+2*k+1)}")
    I(f"v_or3_b32 {v(vtmp)}, {v(vtmp)}, {v(vtmp+2)}, {v(vtmp+3)}")
    I(f"v_or_b32 {v(vtmp)}, {v(vtmp)}, {v(vtmp+1)}")
    I(f"v_cmp_ne_u32 vcc, 0, {v(vtmp)}")
    I(f"s_add_u32 {s(S_CNT)}, {s(S_CNT)}, 1")
    I(f"s_cmp_eq_u64 vcc, 0")
    I(f"s_cbranch_scc1 {done}")
    I(f"s_sleep {KSLEEP}")
    I(f"s_cmp_lt_u32 {s(S_CNT)}, {POLL_LIMIT}")
    I(f"s_cbranch_scc1 {l}")
    L(done)

def keys_top2(GK, m1, m2, t1, t2):
    I(f"v_max_u32 {v(t2)}, {v(GK+2)}, {v(GK+6)}")
    I(f"v_med3_u32 {v(GK+2)}, {v(GK)}, {v(GK+4)}, {v(t2)}")
    I(f"v_max_u32 {v(GK)}, {v(GK)}, {v(GK+4)}")
    top2_wave(GK, m1, m2, t1, t2)
    I("s_nop 0")
    I(f"v_readfirstlane_b32 {s(S_K1)}, {v(m1)}")
    I(f"v_readfirstlane_b32 {s(S_K2)}, {v(m2)}")


def keys_issue(vaddr, GK):
    I(f"global_load_dwordx4 {v(GK,4)}, {v(vaddr)}, {s(P_WS,2)} sc1")
    I(f"global_load_dwordx4 {v(GK+4,4)}, {v(vaddr+1)}, {s(P_WS,2)} sc1")
def keys_check(GK, vtmp):
    for k in range(4): I(f"v_xor_b32 {v(vtmp+k)}, {s(S_NONCE)}, {v(GK+2*k+1)}")
    I(f"v_or3_b32 {v(vtmp)}, {v(vtmp)}, {v(vtmp+2)}, {v(vtmp+3)}")
    I(f"v_or_b32 {v(vtmp)}, {v(vtmp)}, {v(vtmp+1)}")
    I(f"v_cmp_ne_u32 vcc, 0, {v(vtmp)}")
    I(f"s_cmp_eq_u64 vcc, 0")

hdr = open("parallel_sum__ssm_conv_s4__moe_arch_mod__prompt.s.ref").read().split("; Override")[0]
out.append(hdr.rstrip())
out.append(f"; @launch grid=({NWG},1,1) block=(256,1,1) lds={LDS_BYTES}")
out.append('.amdgcn_target "amdgcn-amd-amdhsa--gfx950"')
out.append(".text")
out.append(f".globl {KNAME}")
out.append(".p2align 8")
out.append(f".type {KNAME},@function")
L(KNAME)
I(f"s_cmp_ge_u32 s2, {NWG}")
I("s_cbranch_scc1 L_end")
I(f"s_load_dwordx16 s[8:23], s[0:1], 0")
I(f"s_load_dwordx16 s[24:39], s[0:1], 64")
I(f"s_load_dwordx2 {s(P_WS,2)}, s[0:1], 128")
stamp()
VL, VZ, VJ, VKG = 1, 2, 5, 6
VO, VO2 = 10, 11
I(f"v_and_b32 {v(VL)}, 63, v0")
I(f"v_lshrrev_b32 v3, 6, v0")
I(f"v_mov_b32 {v(VZ)}, 0")
I(f"v_readfirstlane_b32 {s(S_WAVE)}, v3")
I(f"s_mov_b32 {s(S_MASK)}, 0xffff0000")
I(f"v_lshlrev_b32 {v(VO2)}, 4, {v(VL)}")
I(f"s_cmp_ge_u32 s2, {NLN}")
I("s_cbranch_scc1 L_notln")

C("==== LayerNorm role: 16 rows per workgroup, 4 per wave")
I("s_setprio 2")
NR = 4
X = [12 + 4*r for r in range(NR)]
WR = 28
F = [32 + 8*r for r in range(NR)]
D = [64 + 8*r for r in range(NR)]
T = [96 + 8*r for r in range(NR)]
S1 = [128 + r for r in range(NR)]
S2 = [132 + r for r in range(NR)]
S3 = [136 + r for r in range(NR)]
SW = 140
SX0 = [52 + 2*r for r in range(NR)]
VNON = 141
VTW, VTR2, VTS2 = 142, 143, 144
t1, t2 = 145, 146
VC, VONE = 147, 148
TX = 160
R_ = range(NR)
I(f"s_lshl_b32 {s(S_ROW0)}, s2, 4")
I(f"s_lshl_b32 {s(S_T0)}, {s(S_WAVE)}, 2")
I(f"s_add_u32 {s(S_ROW0)}, {s(S_ROW0)}, {s(S_T0)}")
I(f"s_lshl_b32 {s(S_T0)}, {s(S_ROW0)}, 10")
I(f"v_add_u32 {v(VO)}, {s(S_T0)}, {v(VO2)}")
I("s_waitcnt lgkmcnt(0)")
for r in R_:
    I(f"global_load_dwordx4 {v(X[r],4)}, {v(VO)}, {s(P_U,2)} offset:{1024*r}")
I(f"global_load_dwordx4 {v(WR,4)}, {v(VO2)}, {s(P_WR,2)}")
C("---- pull the kernel's own code into this die's L2 (instruction fetch then misses only to L2)")
NCP = int([a for a in sys.argv if a.startswith("--ncp=")][0][6:]) if any(a.startswith("--ncp=") for a in sys.argv) else 32
I(f"s_getpc_b64 {s(S_EXEC,2)}")
L("L_pc")
I(f"s_sub_u32 {s(S_EXEC)}, {s(S_EXEC)}, L_pc-{KNAME}")
I(f"s_subb_u32 {s(S_EXEC+1)}, {s(S_EXEC+1)}, 0")
I(f"v_lshlrev_b32 {v(t1)}, 6, v0")
I(f"v_min_u32 {v(t1)}, L_end-{KNAME}, {v(t1)}")
I(f"s_cmp_ge_u32 s2, {NCP}")
I("s_cbranch_scc1 L_nocp")
I(f"global_load_dword {v(159)}, {v(t1)}, {s(S_EXEC,2)}")
I("s_branch L_cpdone")
L("L_nocp")
I(f"global_load_dword {v(159)}, {v(VZ)}, {s(P_WR,2)}")
L("L_cpdone")
I(f"s_add_u32 {s(S_XT)}, {s(P_WS)}, {WS_XT}")
I(f"s_addc_u32 {s(S_XT+1)}, {s(P_WS+1)}, 0")
I(f"s_mul_i32 {s(S_T2)}, {s(S_WAVE)}, {4*TS}")
I(f"v_add_u32 {v(VTW)}, {s(S_T2)}, {v(VO2)}")
I(f"v_and_b32 {v(t1)}, 3, v0")
I(f"v_lshrrev_b32 {v(t2)}, 2, v0")
I(f"v_mul_u32_u24 {v(VTR2)}, {4*TS}, {v(t1)}")
I(f"v_lshl_add_u32 {v(VTR2)}, {v(t2)}, 2, {v(VTR2)}")
I(f"s_lshl_b32 {s(S_T2)}, s2, 6")
I(f"v_lshl_add_u32 {v(VTS2)}, {v(t1)}, 4, {s(S_T2)}")
I(f"v_lshl_add_u32 {v(VTS2)}, {v(t2)}, 13, {v(VTS2)}")
I(f"s_lshl_b32 {s(S_T2)}, {s(S_ROW0)}, 3")
I(f"v_add_u32 {v(VO)}, {s(S_T2)}, {v(VO2)}")
C("---- warm this die's L2 with FFN weight lines that its FFN workgroups read last (speed only)")
I(f"s_and_b32 {s(S_T0)}, s2, 7")
I(f"s_lshr_b32 {s(S_T1)}, s2, 3")
I(f"s_sub_u32 {s(S_T2)}, {s(S_WAVE)}, 1")
I(f"s_cmp_ge_u32 {s(S_T2)}, 2")
I("s_cbranch_scc1 L_pf_down")
I(f"s_mul_i32 {s(S_T2)}, {s(S_T0)}, 448")
I(f"s_mul_i32 {s(S_T3)}, {s(S_T1)}, {16*3584}")
I(f"s_add_u32 {s(S_T2)}, {s(S_T2)}, {s(S_T3)}")
I(f"s_add_u32 {s(S_T2)}, {s(S_T2)}, {256*3584}")
I(f"v_lshrrev_b32 {v(176)}, 2, {v(VL)}")
I(f"v_mul_u32_u24 {v(176)}, 3584, {v(176)}")
I(f"v_and_b32 {v(177)}, 3, {v(VL)}")
I(f"v_mul_u32_u24 {v(177)}, 148, {v(177)}")
I(f"v_add3_u32 {v(176)}, {v(176)}, {v(177)}, {s(S_T2)}")
I(f"s_cmp_eq_u32 {s(S_WAVE)}, 1")
I(f"s_cselect_b32 {s(S_EXEC)}, {s(P_WG)}, {s(P_WU)}")
I(f"s_cselect_b32 {s(S_EXEC+1)}, {s(P_WG+1)}, {s(P_WU+1)}")
I(f"v_add_u32 {v(177)}, 72, {v(176)}")
I(f"v_min_u32 {v(177)}, {512*3584-4}, {v(177)}")
I("s_branch L_pf_go")
L("L_pf_down")
I(f"s_mul_i32 {s(S_T2)}, {s(S_T0)}, {224*1024}")
I(f"s_mul_i32 {s(S_T3)}, {s(S_T1)}, {14*1024}")
I(f"s_add_u32 {s(S_T2)}, {s(S_T2)}, {s(S_T3)}")
I(f"s_and_b32 {s(S_T3)}, {s(S_WAVE)}, 1")
I(f"s_mul_i32 {s(S_T3)}, {s(S_T3)}, 7168")
I(f"s_add_u32 {s(S_T2)}, {s(S_T2)}, {s(S_T3)}")
I(f"v_min_u32 {v(176)}, 55, {v(VL)}")
I(f"v_lshl_add_u32 {v(176)}, {v(176)}, 6, {s(S_T2)}")
I(f"v_add_u32 {v(177)}, 3584, {v(176)}")
I(f"s_mov_b64 {s(S_EXEC,2)}, {s(P_WD,2)}")
L("L_pf_go")
I(f"v_mov_b32 {v(VC)}, {f2u(1.0/512):#x}")
I(f"v_mov_b32 {v(VONE)}, 0x3f803f80")
for r in R_: I(f"v_mov_b32 {v(S3[r])}, 0")
I(f"v_mov_b32 {v(SW)}, 0")
for r in R_:
    I(f"s_waitcnt vmcnt({NR + 1 - r})")
    if r == 0: stamp()
    I(f"ds_write_b128 {v(VTW)}, {v(X[r],4)} offset:{L_T2 + r*TS}")
    if r < NR - 1:
        for k in range(4): unpack(F[r]+2*k, X[r]+k)
I("s_waitcnt lgkmcnt(0)")
I("s_barrier")
for i in range(4):
    for e in range(4):
        I(f"ds_read_b32 {v(TX+4*i+e)}, {v(VTR2)} offset:{L_T2 + 256*i + e*TS}")
for k in range(4): unpack(F[NR-1]+2*k, X[NR-1]+k)
for r in R_: I(f"v_readfirstlane_b32 {s(SX0[r])}, {v(F[r])}")
for i in range(4):
    I(f"s_waitcnt lgkmcnt({12 - 4*i})")
    I(f"global_store_dwordx4 {v(VTS2)}, {v(TX+4*i,4)}, {s(S_XT,2)} sc1")
    if i < 3: I(f"v_add_u32 {v(VTS2)}, 0x80000, {v(VTS2)}")
nonce_issue(VZ, VNON)
I(f"global_load_dword {v(178)}, {v(176)}, {s(S_EXEC,2)}")
I(f"global_load_dword {v(179)}, {v(177)}, {s(S_EXEC,2)}")

stamp()
for k in range(4):
    for r in R_:
        I(f"v_pk_add_f32 {v(D[r]+2*k,2)}, {v(F[r]+2*k,2)}, {s(SX0[r],2)} op_sel_hi:[1,0] neg_lo:[0,1] neg_hi:[0,1]")
I("s_waitcnt vmcnt(8)")
for k in range(4):
    for r in R_: I(f"v_dot2c_f32_bf16 {v(S3[r])}, {v(X[r]+k)}, {v(WR+k)}")
    I(f"v_dot2c_f32_bf16 {v(SW)}, {v(VONE)}, {v(WR+k)}")
for r in R_: I(f"v_pk_add_f32 {v(T[r],2)}, {v(D[r],2)}, {v(D[r]+2,2)}")
for r in R_: I(f"v_pk_mul_f32 {v(T[r]+4,2)}, {v(D[r],2)}, {v(D[r],2)}")
for r in R_: I(f"v_pk_add_f32 {v(T[r]+2,2)}, {v(D[r]+4,2)}, {v(D[r]+6,2)}")
for r in R_: I(f"v_pk_fma_f32 {v(T[r]+4,2)}, {v(D[r]+2,2)}, {v(D[r]+2,2)}, {v(T[r]+4,2)}")
for r in R_: I(f"v_pk_add_f32 {v(T[r],2)}, {v(T[r],2)}, {v(T[r]+2,2)}")
for r in R_: I(f"v_pk_fma_f32 {v(T[r]+4,2)}, {v(D[r]+4,2)}, {v(D[r]+4,2)}, {v(T[r]+4,2)}")
for r in R_: I(f"v_add_f32 {v(S1[r])}, {v(T[r])}, {v(T[r]+1)}")
for r in R_: I(f"v_pk_fma_f32 {v(T[r]+4,2)}, {v(D[r]+6,2)}, {v(D[r]+6,2)}, {v(T[r]+4,2)}")
for r in R_: I(f"v_add_f32 {v(S2[r])}, {v(T[r]+4)}, {v(T[r]+5)}")
dpp_reduce(S1 + S3 + [SW] + S2)
for r in R_: I(f"v_mul_f32 {v(S1[r])}, {v(VC)}, {v(S1[r])}")
for r in R_: I(f"v_mul_f32 {v(S2[r])}, {v(VC)}, {v(S2[r])}")
for r in R_: I(f"v_fma_f32 {v(S2[r])}, -{v(S1[r])}, {v(S1[r])}, {v(S2[r])}")
for r in R_: I(f"v_add_f32 {v(S1[r])}, {s(SX0[r])}, {v(S1[r])}")
for r in R_: I(f"v_max_f32 {v(S2[r])}, 0, {v(S2[r])}")
MP = [T[0], T[0]+1]; VP = [T[0]+2, T[0]+3]
for h in range(2): I(f"v_cvt_pk_bf16_f32 {v(MP[h])}, {v(S1[2*h])}, {v(S1[2*h+1])}")
for h in range(2): I(f"v_cvt_pk_bf16_f32 {v(VP[h])}, {v(S2[2*h])}, {v(S2[2*h+1])}")
for h in range(2): unpack(S1[2*h], MP[h])
for h in range(2): unpack(S2[2*h], VP[h])
eps = f2u(1e-5)
for r in R_: I(f"v_add_f32 {v(S2[r])}, {eps:#x}, {v(S2[r])}")
for r in R_: I(f"v_fma_f32 {v(S3[r])}, -{v(S1[r])}, {v(SW)}, {v(S3[r])}")
for h in range(2): I(f"v_cvt_pk_bf16_f32 {v(VP[h])}, {v(S2[2*h])}, {v(S2[2*h+1])}")
for r in R_: I(f"v_lshrrev_b32 {v(S1[r])}, 16, {v(S1[r])}")
for h in range(2): unpack(S2[2*h], VP[h])
for r in R_: I(f"v_sqrt_f32 {v(S2[r])}, {v(S2[r])}")
I("s_nop 0")
for h in range(2): I(f"v_cvt_pk_bf16_f32 {v(VP[h])}, {v(S2[2*h])}, {v(S2[2*h+1])}")
for h in range(2): unpack(S2[2*h], VP[h])
RC = [T[1]+r for r in R_]
for r in R_: I(f"v_rcp_f32 {v(RC[r])}, {v(S2[r])}")
for r in R_: I(f"v_or_b32 {v(S1[r])}, {v(S1[r])}, {v(S2[r])}")
for r in R_: I(f"v_mul_f32 {v(S3[r])}, {v(S3[r])}, {v(RC[r])}")
SMS = [10, 11, 12, 13]
for r in R_: I(f"v_readlane_b32 {s(SMS[r])}, {v(S1[r])}, 63")
for h in range(2): I(f"v_cvt_pk_bf16_f32 {v(MP[h])}, {v(S3[2*h])}, {v(S3[2*h+1])}")
GP = 152
I(f"v_cmp_eq_u32 vcc, 0, {v(VL)}")
for h in range(2): I(f"v_readlane_b32 {s(S_R+h)}, {v(MP[h])}, 63")
I(f"v_mov_b32 {v(GP)}, {s(SMS[2])}")
I(f"v_mov_b32 {v(GP+2)}, {s(SMS[3])}")
I(f"v_mov_b32 {v(t1)}, {s(SMS[0])}")
I(f"v_mov_b32 {v(t2)}, {s(SMS[1])}")
I(f"v_cndmask_b32 {v(GP)}, {v(GP)}, {v(t1)}, vcc")
I(f"v_cndmask_b32 {v(GP+2)}, {v(GP+2)}, {v(t2)}, vcc")
I(f"s_sub_u32 {s(S_T3)}, 0xffff, {s(S_ROW0)}")
KK = [14, 15, 16, 17]
for h in range(2):
    I(f"s_and_b32 {s(S_T0)}, {s(S_R+h)}, 0x80008000")
    I(f"s_lshr_b32 {s(S_T1)}, {s(S_T0)}, 15")
    I(f"s_mul_i32 {s(S_T1)}, {s(S_T1)}, 0x7fff")
    I(f"s_or_b32 {s(S_T1)}, {s(S_T1)}, 0x80008000")
    I(f"s_xor_b32 {s(S_T2)}, {s(S_R+h)}, {s(S_T1)}")
    I(f"s_lshl_b32 {s(S_T0)}, {s(S_T2)}, 16")
    I(f"s_or_b32 {s(S_T0)}, {s(S_T0)}, {s(S_T3)}")
    I(f"s_sub_u32 {s(S_T3)}, {s(S_T3)}, 1")
    I(f"s_and_b32 {s(S_T1)}, {s(S_T2)}, 0xffff0000")
    I(f"s_or_b32 {s(S_T1)}, {s(S_T1)}, {s(S_T3)}")
    I(f"s_sub_u32 {s(S_T3)}, {s(S_T3)}, 1")
    I(f"s_max_u32 {s(KK[2*h])}, {s(S_T0)}, {s(S_T1)}")
    I(f"s_min_u32 {s(KK[2*h+1])}, {s(S_T0)}, {s(S_T1)}")
I(f"s_max_u32 {s(S_T0)}, {s(KK[0])}, {s(KK[2])}")
I(f"s_min_u32 {s(S_T1)}, {s(KK[0])}, {s(KK[2])}")
I(f"s_max_u32 {s(S_T2)}, {s(KK[1])}, {s(KK[3])}")
I(f"s_max_u32 {s(S_T1)}, {s(S_T1)}, {s(S_T2)}")
I(f"v_mov_b32 {v(156)}, {s(S_T0)}")
I(f"v_mov_b32 {v(157)}, {s(S_T1)}")
I(f"s_lshl_b32 {s(S_T0)}, {s(S_WAVE)}, 3")
I(f"v_mov_b32 {v(158)}, {s(S_T0)}")
I(f"ds_write_b64 {v(158)}, {v(156,2)} offset:{L_MISC + 64}")
stamp()
nonce_wait(VZ, VNON, first=2)
stamp()
I(f"v_mov_b32 {v(GP+1)}, {v(VNON)}")
I(f"v_mov_b32 {v(GP+3)}, {v(VNON)}")
I("s_mov_b64 exec, 3")
I(f"global_store_dwordx4 {v(VO)}, {v(GP,4)}, {s(P_WS,2)} sc1")
I("s_mov_b64 exec, -1")
I("s_waitcnt lgkmcnt(0)")
I("s_barrier")
I(f"s_cmp_lg_u32 {s(S_WAVE)}, 0")
I("s_cbranch_scc1 L_ln_pf" if "--nopf" not in sys.argv else "s_cbranch_scc1 L_fin")
I(f"ds_read_b128 {v(96,4)}, {v(VZ)} offset:{L_MISC+64}")
I(f"ds_read_b128 {v(100,4)}, {v(VZ)} offset:{L_MISC+80}")
I(f"s_lshl_b32 {s(S_T0)}, s2, 7")
I(f"s_add_u32 {s(S_T0)}, {s(S_T0)}, {WS_KEYS}")
I(f"v_mov_b32 {v(105)}, {s(S_T0)}")
I("s_waitcnt lgkmcnt(0)")
top2_combine(96, 104)
I(f"v_mov_b32 {v(98)}, {v(97)}")
I(f"v_mov_b32 {v(97)}, {v(VNON)}")
I(f"v_mov_b32 {v(99)}, {v(VNON)}")
I("s_mov_b64 exec, 1")
I(f"global_store_dwordx4 {v(105)}, {v(96,4)}, {s(P_WS,2)} sc1")
I("s_mov_b64 exec, -1")
stamp()
if "--nopf" in sys.argv: I("s_branch L_fin")
L("L_ln_pf")
I("s_branch L_fin")

L("L_notln")
nstamp[0] = 1
I(f"v_and_b32 {v(VJ)}, 15, {v(VL)}")
I(f"v_lshrrev_b32 {v(VKG)}, 4, {v(VL)}")
VKEY = 252
I(f"v_lshlrev_b32 {v(VKEY)}, 7, {v(VL)}")
I(f"v_add_u32 {v(VKEY+1)}, {WS_KEYS + 8192}, {v(VKEY)}")
I(f"v_add_u32 {v(VKEY)}, {WS_KEYS}, {v(VKEY)}")
I(f"s_cmp_ge_u32 s2, {NLN + NCONV}")
I("s_cbranch_scc1 L_ffn")

C("==== conv role")
S_C = 47
I(f"s_sub_u32 {s(S_C)}, s2, {NLN}")
PRM = 24
I(f"s_and_b32 {s(S_T0)}, {s(S_C)}, 7")
I(f"s_lshl_b32 {s(S_T0)}, {s(S_T0)}, 5")
I(f"s_lshr_b32 {s(S_T1)}, {s(S_C)}, 3")
I(f"s_add_u32 {s(S_DP)}, {s(S_T0)}, {s(S_T1)}")
I(f"s_lshl_b32 {s(S_T0)}, {s(S_DP)}, 9")
I(f"s_lshl_b32 {s(S_T1)}, {s(S_WAVE)}, 7")
I(f"s_add_u32 {s(S_T0)}, {s(S_T0)}, {s(S_T1)}")
VPO = 30
I(f"v_lshl_add_u32 {v(VPO)}, {v(VL)}, 1, {s(S_T0)}")
for k in range(6): I(f"v_mov_b32 {v(PRM+k)}, 0")
I(f"s_lshl_b32 {s(S_T1)}, {s(S_DP)}, 2")
I("s_waitcnt lgkmcnt(0)")
for k, p in enumerate((P_ARE, P_AIM, P_BRE, P_BIM, P_CRE, P_CIM)):
    I(f"global_load_short_d16_hi {v(PRM+k)}, {v(VPO)}, {s(p,2)}")
I(f"s_load_dword {s(S_LDT)}, {s(P_LDT,2)}, {s(S_T1)}")
I(f"s_load_dword {s(S_DSK)}, {s(P_DSK,2)}, {s(S_T1)}")
I(f"s_lshr_b32 {s(S_T0)}, {s(S_C)}, 3")
I(f"s_xor_b32 {s(S_T0)}, {s(S_T0)}, 31")
I(f"s_xor_b32 {s(S_T1)}, {s(S_WAVE)}, 3")
I(f"s_or_b32 {s(S_T0)}, {s(S_T0)}, {s(S_T1)}")
nonce_cas(VZ, 32)
I(f"s_add_u32 {s(S_PART)}, {s(P_WS)}, {WS_PART}")
I(f"s_addc_u32 {s(S_PART+1)}, {s(P_WS+1)}, 0")
I(f"s_lshl_b32 {s(S_T0)}, {s(S_DP)}, 13")
I(f"s_add_u32 {s(S_T0)}, {s(S_T0)}, {WS_XT}")
I(f"s_add_u32 {s(S_XNG)}, {s(P_WS)}, {s(S_T0)}")
I(f"s_addc_u32 {s(S_XNG+1)}, {s(P_WS+1)}, 0")

C("---- constants")
AL = 200
VBETA = 206
SC0, SC1A, SC1B, SC2 = 208, 209, 210, 211
GA = 212
VGX = 224
VA_, VB_ = 226, 227
VRW, VRR = 228, 229
VT0 = 230
VOUT = 232
VPAR = 234
VKCW = 235
VPW = 236
VT8 = 237
VT4 = 238
VFL = 239
M1, M2 = 240, 241
VEX, VEU = 242, 243
VTL = 245
VNON = 246
VSW = 248
t1, t2, t3, t4 = 12, 13, 14, 15
I(f"v_lshlrev_b32 {v(VKCW)}, 4, v0")
I(f"v_lshlrev_b32 {v(VT8)}, 3, v0")
I(f"v_lshlrev_b32 {v(VT4)}, 2, v0")
I(f"s_lshl_b32 {s(S_T2)}, {s(S_WAVE)}, 11")
I(f"s_add_u32 {s(S_T2)}, {s(S_T2)}, {L_PAR}")
I(f"v_lshl_add_u32 {v(VPAR)}, {v(VKG)}, 7, {s(S_T2)}")
I(f"v_lshl_add_u32 {v(VPW)}, {v(VL)}, 5, {s(S_T2)}")
for k in range(4):
    I(f"v_add_u32 {v(VSW+k)}, {4096*k}, {v(VKCW)}")
I(f"v_add_u32 {v(VFL)}, 4096, {v(VT8)}")
I(f"v_mov_b32 {v(t1)}, {v(VJ)}")
for i_, al in ((8, 512), (9, 516), (10, 1024), (11, 1536), (12, 2048), (13, 0), (14, 0), (15, 0)):
    I(f"v_cmp_eq_u32 vcc, {i_}, {v(VJ)}")
    I(f"v_mov_b32 {v(t2)}, {al}")
    I("s_nop 0")
    I(f"v_cndmask_b32 {v(t1)}, {v(t1)}, {v(t2)}, vcc")
I(f"v_cvt_f32_u32 {v(AL)}, {v(t1)}")
I(f"v_lshlrev_b32 {v(t1)}, 3, {v(VJ)}")
I(f"v_cvt_f32_u32 {v(VBETA)}, {v(t1)}")
SCB, SCS = 208, 202
I(f"s_lshr_b32 {s(S_T0)}, {s(S_WAVE)}, 1")
I(f"s_mul_i32 {s(S_T0)}, {s(S_T0)}, {KTAB_D}")
I(f"s_and_b32 {s(S_T1)}, {s(S_WAVE)}, 1")
I(f"s_lshl_b32 {s(S_T1)}, {s(S_T1)}, 2")
I(f"s_add_u32 {s(S_T0)}, {s(S_T0)}, {s(S_T1)}")
I(f"s_add_u32 {s(S_T0)}, {s(S_T0)}, {L_KTAB}")
I(f"v_mul_u32_u24 {v(t1)}, 9, {v(VJ)}")
I(f"v_lshl_add_u32 {v(t1)}, {v(VKG)}, 2, {v(t1)}")
I(f"v_cmp_eq_u32 {s(S_T2,2)}, 2, {v(VKG)}")
I(f"v_cmp_eq_u32 {s(S_X0,2)}, 3, {v(VKG)}")
I(f"v_cmp_eq_u32 {s(S_X0+2,2)}, 48, {v(VL)}")
for r in range(4):
    I(f"v_add_u32 {v(t2)}, {r}, {v(t1)}")
    if r < 2: I(f"v_lshl_add_u32 {v(t3)}, {v(VJ)}, 1, {v(VZ)}"); I(f"v_add_u32 {v(t3)}, {576 + r}, {v(t3)}")
    else:     I(f"v_add_u32 {v(t3)}, {704 + 64*(r-2)}, {v(VJ)}")
    I(f"v_cndmask_b32 {v(t2)}, {v(t2)}, {v(t3)}, {s(S_T2,2)}")
    I(f"v_add_u32 {v(t3)}, {TRASH + 16*r}, {v(VJ)}")
    I(f"v_cndmask_b32 {v(t2)}, {v(t2)}, {v(t3)}, {s(S_X0,2)}")
    if r == 0:
        I(f"v_mov_b32 {v(t3)}, 832")
        I(f"v_cndmask_b32 {v(t2)}, {v(t2)}, {v(t3)}, {s(S_X0+2,2)}")
    I(f"v_lshl_add_u32 {v(SCB+r)}, {v(t2)}, 3, {s(S_T0)}")
for hh, st2 in ((0, 32), (1, 16)):
    I(f"v_mov_b32 {v(t2)}, {144*8}")
    I(f"v_mov_b32 {v(t3)}, {st2*8}")
    I(f"v_cndmask_b32 {v(t2)}, {v(t2)}, {v(t3)}, {s(S_T2,2)}")
    I(f"v_cndmask_b32 {v(t2)}, {v(t2)}, {v(VZ)}, {s(S_X0,2)}")
    if hh == 0:
        I(f"v_mov_b32 {v(t3)}, {16*8}")
        I(f"v_cndmask_b32 {v(t2)}, {v(t2)}, {v(t3)}, {s(S_X0+2,2)}")
    I(f"v_mov_b32 {v(SCS+hh)}, {v(t2)}")
I(f"v_sub_u32 {v(t1)}, 2047, {v(VT8)}")
I(f"s_movk_i32 {s(S_T1)}, 0x4400")
I(f"v_mov_b32 {v(t4)}, {ZIDX}")
for k in range(11):
    I(f"v_subrev_u32 {v(t2)}, {k}, {v(t1)}")
    I(f"v_cvt_f32_i32 {v(t3)}, {v(t2)}")
    I(f"v_cvt_pk_bf16_f32 {v(t3)}, {v(t3)}, {v(VZ)}")
    I(f"v_lshlrev_b32 {v(16)}, 16, {v(t3)}")
    I(f"v_cmp_gt_u32 vcc, {s(S_T1)}, {v(t3)}")
    I(f"v_cvt_u32_f32 {v(16)}, {v(16)}")
    I(f"v_subrev_u32 {v(t3)}, {0x4400 - 576}, {v(t3)}")
    I(f"v_lshrrev_b32 {v(17)}, 3, {v(16)}")
    I(f"v_add_u32 {v(16)}, {v(16)}, {v(17)}")
    I(f"v_cndmask_b32 {v(t3)}, {v(t3)}, {v(16)}, vcc")
    if k >= 8:
        I(f"v_cmp_gt_i32 vcc, 0, {v(t2)}")
        I("s_nop 1")
        I(f"v_cndmask_b32 {v(t3)}, {v(t3)}, {v(t4)}, vcc")
    I(f"v_lshlrev_b32 {v(GA+k)}, 3, {v(t3)}")
I(f"s_lshr_b32 {s(S_T0)}, {s(S_WAVE)}, 1")
I(f"s_and_b32 {s(S_T1)}, {s(S_WAVE)}, 1")
I(f"s_mul_i32 {s(S_T2)}, {s(S_T0)}, {KC_D}")
I(f"s_lshl_b32 {s(S_T3)}, {s(S_T1)}, 8")
I(f"s_sub_u32 {s(S_T2)}, {s(S_T2)}, {s(S_T3)}")
I(f"s_add_u32 {s(S_T2)}, {s(S_T2)}, {L_KC + 3*KC_S + 72}")
I(f"v_and_b32 {v(t1)}, 3, {v(VJ)}")
I(f"v_mul_u32_u24 {v(t1)}, {KC_S}, {v(t1)}")
I(f"v_lshrrev_b32 {v(t2)}, 2, {v(VJ)}")
I(f"v_lshl_add_u32 {v(t1)}, {v(t2)}, 3, {v(t1)}")
I(f"v_lshl_add_u32 {v(t1)}, {v(VKG)}, 4, {v(t1)}")
I(f"v_sub_u32 {v(VA_)}, {s(S_T2)}, {v(t1)}")
I(f"s_mul_i32 {s(S_T2)}, {s(S_T0)}, {U_D}")
I(f"s_sub_u32 {s(S_T2)}, {s(S_T2)}, {s(S_T3)}")
I(f"s_add_u32 {s(S_T2)}, {s(S_T2)}, {L_U + 336}")
I(f"v_lshlrev_b32 {v(t1)}, 5, {v(VJ)}")
I(f"v_lshlrev_b32 {v(t2)}, 4, {v(VKG)}")
I(f"v_sub_u32 {v(t1)}, {v(t1)}, {v(t2)}")
I(f"v_add_u32 {v(VB_)}, {s(S_T2)}, {v(t1)}")
I(f"s_lshl_b32 {s(S_T2)}, {s(S_WAVE)}, 12")
I(f"v_add_u32 {v(VRW)}, {s(S_T2)}, {v(VO2)}")
I(f"s_lshl_b32 {s(S_T2)}, {s(S_WAVE)}, 10")
I(f"v_add_u32 {v(VRR)}, {s(S_T2)}, {v(VO2)}")
I(f"s_lshl_b32 {s(S_T2)}, {s(S_WAVE)}, 8")
I(f"v_lshl_add_u32 {v(VT0)}, {v(VJ)}, 4, {s(S_T2)}")
I(f"v_lshl_add_u32 {v(VT0)}, {v(VKG)}, 2, {v(VT0)}")
I(f"v_lshlrev_b32 {v(VEX)}, 2, {v(VT0)}")
I(f"v_lshlrev_b32 {v(VEU)}, 1, {v(VT0)}")
I(f"s_lshl_b32 {s(S_T2)}, {s(S_DP)}, 2")
I(f"v_lshl_add_u32 {v(VOUT)}, {v(VT0)}, 10, {s(S_T2)}")
I(f"v_add_u32 {v(VOUT+1)}, 0x100000, {v(VOUT)}")
I(f"v_mov_b32 {v(38)}, 0")
I(f"v_mov_b32 {v(39)}, 0")
I(f"ds_write_b64 {v(VZ)}, {v(38,2)} offset:{L_KTAB + 8*ZIDX}")
I(f"ds_write_b64 {v(VZ)}, {v(38,2)} offset:{L_KTAB + KTAB_D + 8*ZIDX}")
I(f"v_lshlrev_b32 {v(t2)}, 1, v0")
I(f"ds_write_b16 {v(t2)}, {v(VZ)} offset:{L_U}")
I(f"ds_write_b16 {v(t2)}, {v(VZ)} offset:{L_U + U_D}")
I(f"v_lshrrev_b32 {v(t3)}, 5, v0")
I(f"v_mul_u32_u24 {v(t3)}, {KC_S}, {v(t3)}")
I(f"v_and_b32 {v(t4)}, 31, v0")
I(f"v_lshl_add_u32 {v(t3)}, {v(t4)}, 1, {v(t3)}")
I(f"ds_write_b16 {v(t3)}, {v(VZ)} offset:{L_KC + 4096}")

C("---- K-gen parameters")
I("s_waitcnt lgkmcnt(0)")
I(f"s_lshr_b32 {s(S_T0)}, {s(S_WAVE)}, 1")
I(f"s_lshl_b32 {s(S_T0)}, {s(S_T0)}, 4")
I(f"s_lshr_b32 {s(S_T1)}, {s(S_LDT)}, {s(S_T0)}")
I(f"s_lshl_b32 {s(S_T1)}, {s(S_T1)}, 16")
l2e_hi = struct.unpack("<f", struct.pack("<f", LOG2E))[0]
l2e_lo = LOG2E - l2e_hi
T0_, T1_, T2_, T3_, DT = 40, 41, 42, 43, 44
VDS = 8
I(f"s_lshl_b32 {s(S_DS2)}, {s(S_DSK)}, 16")
I(f"s_and_b32 {s(S_DS2+1)}, {s(S_DSK)}, 0xffff0000")
I(f"v_mov_b32 {v(T0_)}, {f2u(l2e_hi):#x}")
I(f"v_mov_b32 {v(T3_)}, {f2u(l2e_lo):#x}")
I(f"v_add_f32 {v(VDS)}, {s(S_DS2)}, 1.0")
I(f"v_add_f32 {v(VDS+1)}, {s(S_DS2+1)}, 1.0")
I(f"v_mul_f32 {v(T1_)}, {s(S_T1)}, {v(T0_)}")
I(f"v_fma_f32 {v(T2_)}, {s(S_T1)}, {v(T0_)}, -{v(T1_)}")
I(f"v_fma_f32 {v(T2_)}, {s(S_T1)}, {v(T3_)}, {v(T2_)}")
I(f"v_exp_f32 {v(T1_)}, {v(T1_)}")
I(f"v_mul_f32 {v(T2_)}, {f2u(math.log(2.0)):#x}, {v(T2_)}")
I(f"v_readfirstlane_b32 {s(S_DS2)}, {v(VDS)}")
I(f"v_readfirstlane_b32 {s(S_DS2+1)}, {v(VDS+1)}")
I(f"v_fma_f32 {v(T1_)}, {v(T1_)}, {v(T2_)}, {v(T1_)}")
I(f"v_cvt_pk_bf16_f32 {v(T1_)}, {v(T1_)}, {v(T1_)}")
I(f"v_lshlrev_b32 {v(DT)}, 16, {v(T1_)}")
PW = 48
I("s_waitcnt vmcnt(1)")
stamp()
I("s_waitcnt vmcnt(0)") if False else None
I(f"v_mul_f32 {v(T1_)}, {v(DT)}, {v(PRM+2)}")
I(f"v_mul_f32 {v(T2_)}, {v(DT)}, {v(PRM+3)}")
I(f"v_mul_f32 {v(PW)}, {v(DT)}, {v(PRM+0)}")
I(f"v_mul_f32 {v(PW+1)}, {v(DT)}, {v(PRM+1)}")
I(f"v_mul_f32 {v(PW+2)}, {v(PRM+4)}, {v(T1_)}")
I(f"v_mul_f32 {v(PW+3)}, {v(PRM+4)}, {v(T2_)}")
I(f"v_mul_f32 {v(PW)}, {v(T0_)}, {v(PW)}")
I(f"v_mul_f32 {v(PW+1)}, 0.15915494, {v(PW+1)}")
I(f"s_lshr_b32 {s(S_T0)}, {s(S_C)}, 3")
I(f"s_xor_b32 {s(S_T0)}, {s(S_T0)}, 31")
I(f"s_xor_b32 {s(S_T2)}, {s(S_WAVE)}, 3")
I(f"s_or_b32 {s(S_T0)}, {s(S_T0)}, {s(S_T2)}")
I(f"s_cmp_eq_u32 {s(S_T0)}, 0")
I("s_cbranch_scc1 L_p5b")
I("s_waitcnt vmcnt(0)")
L("L_p5b")
I(f"v_mul_f32 {v(56)}, 0x43000000, {v(PW)}")
I(f"v_mul_f32 {v(57)}, 0x43000000, {v(PW+1)}")
I(f"v_exp_f32 {v(56)}, {v(56)}")
I(f"v_fract_f32 {v(57)}, {v(57)}")
I(f"v_cos_f32 {v(PW+4)}, {v(57)}")
I(f"v_sin_f32 {v(PW+5)}, {v(57)}")
I(f"v_fma_f32 {v(PW+2)}, -{v(PRM+5)}, {v(T2_)}, {v(PW+2)}")
I(f"v_fma_f32 {v(PW+3)}, {v(PRM+5)}, {v(T1_)}, {v(PW+3)}")
I(f"v_max_f32 {v(T3_)}, |{v(PW+2)}|, |{v(PW+3)}|")
I(f"v_mul_f32 {v(PW+4)}, {v(PW+4)}, {v(56)}")
I(f"v_mul_f32 {v(PW+5)}, {v(PW+5)}, {v(56)}")
I(f"ds_write_b64 {v(VPW)}, {v(PW+4,2)} offset:16")
dpp_reduce([T3_], "v_max_f32")
I("s_nop 0")
I(f"v_readlane_b32 {s(S_T0)}, {v(T3_)}, 63")
I("s_nop 3")
I(f"s_bfe_u32 {s(S_T0)}, {s(S_T0)}, 0x80017")
I(f"s_max_u32 {s(S_T0)}, {s(S_T0)}, 1")
I(f"s_min_u32 {s(S_T0)}, {s(S_T0)}, 253")
I(f"s_lshl_b32 {s(S_UNS)}, {s(S_T0)}, 23")
I(f"s_sub_u32 {s(S_T0)}, 254, {s(S_T0)}")
I(f"s_lshl_b32 {s(S_T0)}, {s(S_T0)}, 23")
I(f"v_mul_f32 {v(PW+2)}, {s(S_T0)}, {v(PW+2)}")
I(f"v_mul_f32 {v(PW+3)}, {s(S_T0)}, {v(PW+3)}")
I(f"ds_write_b128 {v(VPW)}, {v(PW,4)}")
nonce_issue(VZ, VNON)
C("---- K-gen main loop: 4 super-groups of 16 n ; one A tile (rows) x four B tiles (columns)")
ACC = 100
PP = 56
OPA = 116
OPB = 120
TM = 136
for k in range(16): I(f"v_mov_b32 {v(ACC+k)}, 0")
I(f"s_mov_b32 {s(S_CNT)}, 0")
I("s_waitcnt lgkmcnt(0)")
stamp()
L("L_kgen")
for q in range(4):
    I(f"ds_read_b128 {v(PP+8*q,4)}, {v(VPAR)} offset:{32*q}")
    I(f"ds_read_b64 {v(PP+8*q+4,2)}, {v(VPAR)} offset:{32*q+16}")
PFIT = int([a for a in sys.argv if a.startswith("--pfit=")][0][7:]) if any(a.startswith("--pfit=") for a in sys.argv) else 1
I(f"v_add_u32 {v(VPAR)}, 512, {v(VPAR)}")
for qp in range(2):
    QS = (2*qp, 2*qp+1)
    I(f"s_waitcnt lgkmcnt({4 - 4*qp})")
    def tm(q, x): return TM + 16*(q & 1) + 4*x
    EV = [(q, x) for q in QS for x in range(2)]
    for q, x in EV: I(f"v_pk_mul_f32 {v(tm(q,x),2)}, {v(PP+8*q,2)}, {v(VBETA if x == 0 else AL,2)} op_sel_hi:[1,0]")
    for q, x in EV: I(f"v_fract_f32 {v(tm(q,x)+1)}, {v(tm(q,x)+1)}")
    for q, x in EV: I(f"v_exp_f32 {v(tm(q,x))}, {v(tm(q,x))}")
    for q, x in EV: I(f"v_cos_f32 {v(tm(q,x)+2)}, {v(tm(q,x)+1)}")
    for q, x in EV: I(f"v_sin_f32 {v(tm(q,x)+3)}, {v(tm(q,x)+1)}")
    def ep(q, x): return TM + 16*(q & 1) + 8 + 2*x
    def bc(q, alt): return TM + 16*(q & 1) + 12 + 2*alt
    for q, x in EV: I(f"v_pk_mul_f32 {v(ep(q,x),2)}, {v(tm(q,x)+2,2)}, {v(tm(q,x),2)} op_sel_hi:[1,0]")
    for q in QS: I(f"v_pk_mul_f32 {v(bc(q,0),2)}, {v(ep(q,0),2)}, {v(PP+8*q+2,2)} op_sel_hi:[0,1] neg_hi:[0,1]")
    for q in QS: I(f"v_cvt_pk_f16_f32 {v(OPA+q)}, {v(ep(q,1))}, {v(ep(q,1)+1)}")
    for q in QS: I(f"v_fma_f32 {v(bc(q,0))}, -{v(ep(q,0)+1)}, {v(PP+8*q+3)}, {v(bc(q,0))}")
    for q in QS: I(f"v_fma_f32 {v(bc(q,0)+1)}, -{v(ep(q,0)+1)}, {v(PP+8*q+2)}, {v(bc(q,0)+1)}")
    for k in range(4):
        cur_, nx = k & 1, 1 - (k & 1)
        if k < 3:
            for q in QS: I(f"v_pk_mul_f32 {v(bc(q,nx),2)}, {v(bc(q,cur_),2)}, {v(PP+8*q+4,2)} op_sel_hi:[1,0]")
        for q in QS: I(f"v_cvt_pk_f16_f32 {v(OPB+4*k+q)}, {v(bc(q,cur_))}, {v(bc(q,cur_)+1)}")
        if k < 3:
            for q in QS: I(f"v_fma_f32 {v(bc(q,nx))}, {v(bc(q,cur_)+1)}, {v(PP+8*q+5)}, {v(bc(q,nx))}")
            for q in QS: I(f"v_fma_f32 {v(bc(q,nx)+1)}, -{v(bc(q,cur_))}, {v(PP+8*q+5)}, {v(bc(q,nx)+1)}")
I(f"s_add_u32 {s(S_CNT)}, {s(S_CNT)}, 1")
I(f"s_cmp_lt_u32 {s(S_CNT)}, 4")
for k in range(4):
    I(f"v_mfma_f32_16x16x32_f16 {v(ACC+4*k,4)}, {v(OPA,4)}, {v(OPB+4*k,4)}, {v(ACC+4*k,4)}")
I("s_cbranch_scc1 L_kgen")
stamp()
GR, GK = 160, 176
nonce_wait(VZ, VNON)
for k in range(16): I(f"v_mul_f32 {v(ACC+k)}, {s(S_UNS)}, {v(ACC+k)}")
for k in range(4):
    for r in range(4):
        I(f"ds_write_b32 {v(SCB+r)}, {v(ACC+4*k+r)}")
        if k < 3: I(f"v_add_u32 {v(SCB+r)}, {v(SCB+r)}, {v(SCS + (r >> 1))}")
I("s_waitcnt lgkmcnt(0)")
I("s_barrier")
C("---- expand K into 4 shifted bf16 copies")
E0 = 40
CP = 96
XX = 144
def xs_issue():
    for k in range(4):
        I(f"global_load_dwordx2 {v(XX+2*k,2)}, {v(VT8 if k < 2 else VFL)}, {s(S_XNG,2)} offset:{2048*(k&1)} sc1")
    sweep_issue(VSW, GR, P_WS)
for d in range(2):
    Eb = E0 + 24*d
    for k in range(11):
        I(f"ds_read_b64 {v(Eb+2*k,2)}, {v(GA+k)} offset:{L_KTAB + d*KTAB_D}")
def expand(d):
    Eb = E0 + 24*d
    I(f"s_waitcnt lgkmcnt({11 if d == 0 else 4})")
    for k in range(11):
        I(f"v_add_f32 {v(Eb+2*k)}, {v(Eb+2*k)}, {v(Eb+2*k+1)}")
    for sg in range(4):
        Cb = CP + 16*d + 4*sg
        for m in range(4):
            I(f"v_cvt_pk_bf16_f32 {v(Cb+m)}, {v(Eb+2*(sg+2*m))}, {v(Eb+2*(sg+2*m+1))}")
        I(f"ds_write_b128 {v(VKCW)}, {v(Cb,4)} offset:{L_KC + d*KC_D + sg*KC_S}")
expand(0)
expand(1)
stamp()
I(f"s_cmp_lg_u32 {s(S_WAVE)}, 0")
I("s_cbranch_scc1 L_k_wait")
keys_poll(VKEY, GK, 32)
L("L_k_wait")
I("s_barrier")
xs_issue()
stamp()
I(f"s_cmp_lg_u32 {s(S_WAVE)}, 0")
I("s_cbranch_scc1 L_k_not0")
keys_top2(GK, M1, M2, 44, 45)
I(f"ds_write_b64 {v(VZ)}, {v(M1,2)} offset:{L_MISC + 16}")
L("L_k_not0")
for k in range(4):
    I(f"s_waitcnt vmcnt({7-k})")
    I(f"ds_write_b64 {v(VT8)}, {v(XX+2*k,2)} offset:{L_XL + 2048*k}")
XF = 48
for k in range(8): unpack(XF+6*k+2, XX+k)
sweep(VSW, GR, 40, P_WS, issued=True, first_wait=0)
stamp()
RI = 128
for k in range(8):
    g = GR + 2*k
    I(f"v_and_b32 {v(RI+2*k)}, {s(S_MASK)}, {v(g)}")
    I(f"v_lshlrev_b32 {v(XF+6*k)}, 16, {v(g)}")
    I(f"v_rcp_f32 {v(RI+2*k)}, {v(RI+2*k)}")
for k in range(8):
    b = XF+6*k
    I(f"v_pk_add_f32 {v(b+2,2)}, {v(b+2,2)}, {v(b,2)} op_sel_hi:[1,0] neg_lo:[0,1] neg_hi:[0,1]")
for k in range(8):
    b = XF+6*k
    I(f"v_cvt_pk_bf16_f32 {v(b+4)}, {v(b+2)}, {v(b+3)}")
for k in range(8): unpack(XF+6*k+2, XF+6*k+4)
for k in range(8):
    b = XF+6*k
    I(f"v_pk_mul_f32 {v(b+2,2)}, {v(b+2,2)}, {v(RI+2*k,2)} op_sel_hi:[1,0]")
for k in range(4):
    for d in range(2):
        I(f"v_cvt_pk_bf16_f32 {v(XX+2*k+d)}, {v(XF+12*k+2+d)}, {v(XF+12*k+8+d)}")
        I(f"ds_write_b32 {v(VT4)}, {v(XX+2*k+d)} offset:{L_U + 512 + d*U_D + 1024*k}")
I("s_waitcnt lgkmcnt(0)")
I("s_barrier")
stamp()
C("---- convolution")
CA = [32, 96]
CB = [64, 128]
YA = 8
def conv_loads(rl, buf, n):
    ls = []
    for k in range(n):
        off = 64 * (63 - 8*k - rl)
        ls.append(f"ds_read_b64 {v(CA[buf]+4*k,2)}, {v(VA_)} offset:{off}")
        ls.append(f"ds_read_b64 {v(CA[buf]+4*k+2,2)}, {v(VA_)} offset:{off+8}")
        off = 512*k + 64*(3 - rl)
        ls.append(f"ds_read_b128 {v(CB[buf]+4*k,4)}, {v(VB_)} offset:{off}")
    return ["    " + x for x in ls]
def epilogue(ph, RD, XQ, UQ, T):
    for d in range(2):
        a = RD + 8*d
        I(f"v_pk_add_f32 {v(a,2)}, {v(a,2)}, {v(a+4,2)}")
        I(f"v_pk_add_f32 {v(a+2,2)}, {v(a+2,2)}, {v(a+6,2)}")
    for r in range(4):
        a = T + 4*(r & 1)
        unpack(a, XQ+r)
        for d in range(2):
            src = UQ + 2*d + (r >> 1)
            if r & 1: I(f"v_and_b32 {v(a+2+d)}, {s(S_MASK)}, {v(src)}")
            else:     I(f"v_lshlrev_b32 {v(a+2+d)}, 16, {v(src)}")
        I(f"v_add_f32 {v(a)}, {v(a)}, {v(RD+r)}")
        I(f"v_add_f32 {v(a+1)}, {v(a+1)}, {v(RD+8+r)}")
        I(f"v_pk_fma_f32 {v(a,2)}, {v(a+2,2)}, {s(S_DS2,2)}, {v(a,2)}")
        I(f"v_cvt_pk_bf16_f32 {v(XQ+r)}, {v(a)}, {v(a+1)}")
        I(f"global_store_dword {v(VOUT+ph)}, {v(XQ+r)}, {s(P_OUT,2)} offset:{r*1024}")
    I(f"ds_write_b128 {v(VEX)}, {v(XQ,4)} offset:{L_XL + 4096*ph}")
def red_reads(ph, base, RD):
    for w in range(4):
        I(f"ds_read_b128 {v(RD+4*w,4)}, {v(VRR)} offset:{base + 4096*w}")
def xu_reads(ph, XQ, UQ):
    I(f"ds_read_b128 {v(XQ,4)}, {v(VEX)} offset:{L_XL + 4096*ph}")
    for d in range(2):
        I(f"ds_read_b64 {v(UQ+2*d,2)}, {v(VEU)} offset:{L_U + 512 + d*U_D + 2048*ph}")
def mf(T, ch, dl, buf, first):
    a = YA + 4*(T & 3)
    return f"    v_mfma_f32_16x16x32_bf16 {v(a,4)}, {v(CA[buf]+4*ch,4)}, {v(CB[buf]+4*dl,4)}, {'0' if first else v(a,4)}"
out.extend(conv_loads(0, 0, 4))
seq = 0
for rl in range(4):
    buf = seq & 1; seq += 1
    nxt = conv_loads(rl+1, 1-buf, 4) if rl < 3 else conv_loads(0, 1-buf, 8)
    pairs = [(ch, T-ch) for T in range(4) for ch in range(T+1)]
    pairs.sort(key=lambda p: (max(p), p[0]+p[1]))
    seen = set()
    per = -(-len(nxt) // len(pairs))
    ni = 0
    lastmax = -1
    if rl > 0: I("s_waitcnt lgkmcnt(0)")
    for (ch, dl) in pairs:
        T = ch + dl
        if rl == 0 and max(ch, dl) > lastmax:
            lastmax = max(ch, dl)
            I(f"s_waitcnt lgkmcnt({min(15, 9 - 3*lastmax + ni)})")
        out.append(mf(T, ch, dl, buf, rl == 0 and T not in seen)); seen.add(T)
        out.extend(nxt[ni:ni+per]); ni += len(nxt[ni:ni+per])
    out.extend(nxt[ni:])
I("s_nop 7")
for T in range(4):
    I(f"ds_write_b128 {v(VRW)}, {v(YA+4*T,4)} offset:{L_R1 + 1024*T}")
I("s_waitcnt lgkmcnt(0)")
I("s_barrier")
stamp()
RD1, XQ1, UQ1, TP1 = 160, 24, 28, 192
XQ2, UQ2 = 176, 180
fill = [[], [], [], []]
with capture() as f0:
    red_reads(0, L_R1, RD1)
    xu_reads(0, XQ1, UQ1)
    xu_reads(1, XQ2, UQ2)
fill[0] = f0
with capture() as f3: epilogue(0, RD1, XQ1, UQ1, TP1)
fill[1] = f3[:len(f3)//2]; fill[2] = f3[len(f3)//2:]
for rl in range(4):
    buf = seq & 1; seq += 1
    nxt = conv_loads(rl+1, 1-buf, 8) if rl < 3 else []
    pairs = [(ch, T-ch) for T in range(4, 8) for ch in range(T+1)]
    pairs.sort(key=lambda p: (max(p), p[0]+p[1]))
    if rl > 0: I("s_waitcnt lgkmcnt(0)")
    if rl == 2: I("s_barrier")
    seen = set()
    fl = fill[rl]
    per = -(-len(fl) // len(pairs)) if fl else 0
    ni = fi = 0
    for n_, (ch, dl) in enumerate(pairs):
        T = ch + dl
        out.append(mf(T, ch, dl, buf, rl == 0 and T not in seen)); seen.add(T)
        out.extend(nxt[ni:ni+1]); ni += 1
        out.extend(fl[fi:fi+per]); fi += per
    out.extend(nxt[ni:]); out.extend(fl[fi:])
stamp()
I("s_nop 7")
for T in range(4):
    I(f"ds_write_b128 {v(VRW)}, {v(YA+4*T,4)} offset:{L_R2 + 1024*T}")
I("s_waitcnt lgkmcnt(0)")
I("s_barrier")
RD2 = 96
red_reads(1, L_R2, RD2)
I("s_waitcnt lgkmcnt(0)")
epilogue(1, RD2, XQ2, UQ2, 120)
stamp()
C("---- routed rows fix-up")
I(f"ds_read_b64 {v(64,2)}, {v(VZ)} offset:{L_MISC + 16}")
I("s_waitcnt lgkmcnt(0)")
I(f"v_readfirstlane_b32 {s(S_K1)}, {v(64)}")
I(f"v_readfirstlane_b32 {s(S_K2)}, {v(65)}")
I(f"s_mov_b32 {s(S_X0)}, 0")
L("L_fix")
I(f"s_and_b32 {s(S_T0)}, {s(S_K1)}, 0xffff")
I(f"s_sub_u32 {s(S_T0)}, 0xffff, {s(S_T0)}")
I(f"s_lshr_b32 {s(S_T1)}, {s(S_T0)}, 8")
I(f"s_cmp_ge_u32 {s(S_T1)}, 8")
I("s_cbranch_scc1 L_fix_skip")
I(f"s_and_b32 {s(S_T1)}, {s(S_T1)}, 3")
I(f"s_cmp_lg_u32 {s(S_T1)}, {s(S_WAVE)}")
I("s_cbranch_scc1 L_fix_skip")
I(f"s_lshl_b32 {s(S_T1)}, {s(S_DP)}, 4")
I(f"s_lshl_b32 {s(S_T2)}, {s(S_X0)}, 19")
I(f"s_add_u32 {s(S_T1)}, {s(S_T1)}, {s(S_T2)}")
I(f"v_lshl_add_u32 {v(76)}, {v(VL)}, 12, {s(S_T1)}")
I(f"v_add_u32 {v(78)}, 0x40000, {v(76)}")
I(f"s_lshl_b32 {s(S_T2)}, {s(S_T0)}, 2")
I(f"v_mov_b32 {v(77)}, {s(S_T2)}")
I(f"ds_read_b32 {v(79)}, {v(77)} offset:{L_XL}")
I(f"s_lshr_b32 {s(S_T2)}, {s(S_K1)}, 16")
I(f"s_lshr_b32 {s(S_T3)}, {s(S_T2)}, 15")
I(f"s_cmp_eq_u32 {s(S_T3)}, 1")
I(f"s_mov_b32 {s(S_T3)}, 0xffff")
I(f"s_cselect_b32 {s(S_T3)}, 0x8000, {s(S_T3)}")
I(f"s_xor_b32 {s(S_T2)}, {s(S_T2)}, {s(S_T3)}")
I(f"s_lshl_b32 {s(S_T2)}, {s(S_T2)}, 16")
I(f"v_mov_b32 {v(92)}, {f2u(-LOG2E):#x}")
I(f"v_mul_f32 {v(92)}, {s(S_T2)}, {v(92)}")
I(f"v_exp_f32 {v(92)}, {v(92)}")
I("s_nop 0")
I(f"v_add_f32 {v(92)}, 1.0, {v(92)}")
I(f"v_rcp_f32 {v(92)}, {v(92)}")
I("s_nop 0")
I(f"v_cvt_pk_bf16_f32 {v(92)}, {v(92)}, {v(92)}")
I(f"v_lshlrev_b32 {v(92)}, 16, {v(92)}")
I(f"s_mov_b32 {s(S_CNT)}, 0")
I(f"v_mov_b32 {v(84)}, 0")
I(f"v_mov_b32 {v(85)}, {s(S_NONCE)}")
I(f"v_mov_b32 {v(86)}, 0")
I(f"v_mov_b32 {v(87)}, {s(S_NONCE)}")
L("L_fixpoll")
I(f"global_load_dwordx4 {v(80,4)}, {v(76)}, {s(S_PART,2)} sc1")
I(f"s_bfm_b64 exec, {G-64}, 0")
I(f"global_load_dwordx4 {v(84,4)}, {v(78)}, {s(S_PART,2)} sc1")
I("s_mov_b64 exec, -1")
I("s_waitcnt vmcnt(0)")
I(f"v_xor_b32 {v(88)}, {s(S_NONCE)}, {v(81)}")
I(f"v_xor_b32 {v(89)}, {s(S_NONCE)}, {v(83)}")
I(f"v_xor_b32 {v(93)}, {s(S_NONCE)}, {v(85)}")
I(f"v_xor_b32 {v(94)}, {s(S_NONCE)}, {v(87)}")
I(f"v_or3_b32 {v(88)}, {v(88)}, {v(89)}, {v(93)}")
I(f"v_or_b32 {v(88)}, {v(88)}, {v(94)}")
I(f"v_cmp_ne_u32 vcc, 0, {v(88)}")
I(f"s_add_u32 {s(S_CNT)}, {s(S_CNT)}, 1")
I(f"s_cmp_eq_u64 vcc, 0")
I(f"s_cbranch_scc1 L_fixpoll_done")
I("s_sleep 2")
I(f"s_cmp_lt_u32 {s(S_CNT)}, {POLL_LIMIT}")
I(f"s_cbranch_scc1 L_fixpoll")
L("L_fixpoll_done")
I(f"v_add_f32 {v(80)}, {v(80)}, {v(84)}")
I(f"v_add_f32 {v(82)}, {v(82)}, {v(86)}")
I("s_nop 0")
dpp_reduce([80, 82])
I("s_nop 0")
I(f"v_cvt_pk_bf16_f32 {v(84)}, {v(80)}, {v(82)}")
unpack(80, 84)
I("s_waitcnt lgkmcnt(0)")
unpack(82, 79)
I(f"v_pk_fma_f32 {v(80,2)}, {v(80,2)}, {v(92,2)}, {v(82,2)} op_sel_hi:[1,0,1]")
I(f"v_cvt_pk_bf16_f32 {v(84)}, {v(80)}, {v(81)}")
I(f"s_lshl_b32 {s(S_T1)}, {s(S_T0)}, 10")
I(f"s_lshl_b32 {s(S_T2)}, {s(S_DP)}, 2")
I(f"s_add_u32 {s(S_T1)}, {s(S_T1)}, {s(S_T2)}")
I(f"v_mov_b32 {v(85)}, {s(S_T1)}")
I("s_lshl_b64 exec, 1, 63")
I(f"global_store_dword {v(85)}, {v(84)}, {s(P_OUT,2)}")
I("s_mov_b64 exec, -1")
L("L_fix_skip")
I(f"s_mov_b32 {s(S_K1)}, {s(S_K2)}")
I(f"s_add_u32 {s(S_X0)}, {s(S_X0)}, 1")
I(f"s_cmp_lt_u32 {s(S_X0)}, 2")
I("s_cbranch_scc1 L_fix")
I("s_branch L_fin")

L("L_ffn")
nstamp[0] = 1
C("==== FFN role")
S_G = 47
I(f"s_sub_u32 {s(S_T0)}, s2, {NLN + NCONV}")
I(f"s_and_b32 {s(S_T1)}, {s(S_T0)}, 7")
I(f"s_mul_i32 {s(S_T1)}, {s(S_T1)}, 14")
I(f"s_lshr_b32 {s(S_T0)}, {s(S_T0)}, 3")
I(f"s_add_u32 {s(S_G)}, {s(S_T0)}, {s(S_T1)}")
WL = 32
t1, t2, t3, t4 = 12, 13, 14, 15
I(f"v_lshlrev_b32 {v(t4)}, 4, v0")
I(f"v_lshrrev_b32 {v(t1)}, 2, v0")
I(f"v_mul_u32_u24 {v(t1)}, 3584, {v(t1)}")
I(f"v_and_b32 {v(t2)}, 1, v0")
I(f"v_lshl_add_u32 {v(t1)}, {v(t2)}, 4, {v(t1)}")
I(f"s_lshl_b32 {s(S_T0)}, {s(S_G)}, 5")
I(f"v_add_u32 {v(t1)}, {s(S_T0)}, {v(t1)}")
I(f"v_and_b32 {v(t2)}, 2, v0")
I(f"v_cmp_eq_u32 vcc, 0, {v(t2)}")
I("s_waitcnt lgkmcnt(0)")
I(f"v_mov_b32 {v(16)}, {s(P_WU)}")
I(f"v_mov_b32 {v(17)}, {s(P_WU+1)}")
I(f"v_mov_b32 {v(18)}, {s(P_WG)}")
I(f"v_mov_b32 {v(19)}, {s(P_WG+1)}")
I(f"v_cndmask_b32 {v(16)}, {v(16)}, {v(18)}, vcc")
I(f"v_cndmask_b32 {v(17)}, {v(17)}, {v(19)}, vcc")
I(f"v_add_co_u32 {v(16)}, vcc, {v(16)}, {v(t1)}")
I("s_nop 1")
I(f"v_addc_co_u32 {v(17)}, vcc, {v(17)}, {v(VZ)}, vcc")
I(f"s_add_u32 {s(S_PART)}, {s(P_WS)}, {WS_PART}")
I(f"s_addc_u32 {s(S_PART+1)}, {s(P_WS+1)}, 0")
stamp()
I(f"s_mov_b32 {s(S_T1)}, {64*3584}")
WD = 96
I(f"s_lshl_b32 {s(S_T0)}, {s(S_G)}, 14")
I(f"v_lshl_add_u32 {v(t3)}, v0, 2, {s(S_T0)}")
for p in range(8):
    I(f"global_load_dwordx4 {v(WL+4*p,4)}, {v(16,2)}, off")
    if p < 7:
        I(f"v_add_co_u32 {v(16)}, vcc, {s(S_T1)}, {v(16)}")
        I("s_nop 1")
        I(f"v_addc_co_u32 {v(17)}, vcc, {v(17)}, {v(VZ)}, vcc")
for f in range(16):
    if f and f % 4 == 0:
        I(f"v_add_u32 {v(t3)}, 4096, {v(t3)}")
    I(f"global_load_dword {v(WD+f)}, {v(t3)}, {s(P_WD,2)} offset:{(f&3)*1024}")
nonce_issue(VZ, 22)
for p in range(8):
    I(f"s_waitcnt vmcnt({17 + 7 - p})")
    I(f"ds_write_b128 {v(t4)}, {v(WL+4*p,4)} offset:{F_W + 4096*p}")
stamp()
I(f"v_lshrrev_b32 {v(t1)}, 2, {v(VJ)}")
I(f"v_lshl_add_u32 {v(t1)}, {v(VKG)}, 3, {v(t1)}")
I(f"v_lshlrev_b32 {v(t1)}, 6, {v(t1)}")
I(f"v_and_b32 {v(t2)}, 1, {v(VL)}")
I(f"v_lshl_add_u32 {v(t1)}, {v(t2)}, 3, {v(t1)}")
I(f"v_and_b32 {v(t2)}, 2, {v(VL)}")
I(f"v_lshl_add_u32 {v(t1)}, {v(t2)}, 4, {v(t1)}")
I(f"s_and_b32 {s(S_T0)}, {s(S_WAVE)}, 1")
I(f"s_lshl_b32 {s(S_T0)}, {s(S_T0)}, 4")
I(f"v_add_u32 {v(t1)}, {s(S_T0)}, {v(t1)}")
I("s_waitcnt lgkmcnt(0)")
I("s_barrier")
for st in range(16):
    I(f"ds_read_b64_tr_b16 {v(WL+4*st,2)}, {v(t1)} offset:{F_W + 2048*st}")
    I(f"ds_read_b64_tr_b16 {v(WL+4*st+2,2)}, {v(t1)} offset:{F_W + 2048*st + 256}")
WF = 128
nonce_wait(VZ, 22)
for f in range(16): unpack(WF+2*f, WD+f)
I(f"v_bfe_u32 {v(t2)}, {v(VJ)}, 2, 1")
I(f"v_lshlrev_b32 {v(t2)}, 10, {v(t2)}")
I(f"v_lshl_add_u32 {v(t2)}, {v(VKG)}, 4, {v(t2)}")
I(f"s_and_b32 {s(S_T1)}, {s(S_WAVE)}, 1")
I(f"s_lshl_b32 {s(S_T1)}, {s(S_T1)}, 9")
I(f"v_lshl_add_u32 {v(24)}, {v(VL)}, 3, {s(S_T1)}")
I(f"s_lshr_b32 {s(S_T0)}, {s(S_WAVE)}, 1")
I(f"s_lshl_b32 {s(S_T1)}, {s(S_T0)}, 10")
I(f"v_add_u32 {v(25)}, {s(S_T1)}, {v(24)}")
I("s_waitcnt lgkmcnt(0)")
stamp()
GK = 192
I("s_setprio 3")
I(f"s_cmp_lg_u32 {s(S_WAVE)}, 0")
I("s_cbranch_scc1 L_fk_wait")
keys_poll(VKEY, GK, 20)
keys_top2(GK, 224, 225, 21, 22)
I(f"ds_write_b64 {v(VZ)}, {v(224,2)} offset:{L_MISC + 16}")
I("s_waitcnt lgkmcnt(0)")
L("L_fk_wait")
I("s_barrier")
stamp()
I(f"ds_read_b64 {v(224,2)}, {v(VZ)} offset:{L_MISC + 16}")
I("s_waitcnt lgkmcnt(0)")
I(f"v_readfirstlane_b32 {s(S_K1)}, {v(224)}")
I(f"v_readfirstlane_b32 {s(S_K2)}, {v(225)}")
I(f"s_cmp_lt_u32 {s(S_WAVE)}, 2")
I("s_nop 2")
I(f"s_cselect_b32 {s(S_T0)}, {s(S_K1)}, {s(S_K2)}")
I(f"s_and_b32 {s(S_T0)}, {s(S_T0)}, 0xffff")
I(f"s_sub_u32 {s(S_T0)}, 0xffff, {s(S_T0)}")
I(f"s_min_u32 {s(S_T0)}, {s(S_T0)}, 2047")
I(f"s_lshl_b32 {s(S_T1)}, {s(S_T0)}, 10")
I(f"v_add_u32 {v(97)}, {s(S_T1)}, {v(24)}")
I(f"s_lshl_b32 {s(S_T1)}, {s(S_T0)}, 3")
I(f"v_mov_b32 {v(99)}, {s(S_T1)}")
I(f"global_load_dwordx2 {v(100,2)}, {v(97)}, {s(P_U,2)}")
I(f"s_mov_b32 {s(S_CNT)}, 0")
L("L_f_stat")
I(f"global_load_dwordx2 {v(104,2)}, {v(99)}, {s(P_WS,2)} sc1")
I("s_waitcnt vmcnt(0)")
I(f"v_cmp_ne_u32 vcc, {s(S_NONCE)}, {v(105)}")
I(f"s_add_u32 {s(S_CNT)}, {s(S_CNT)}, 1")
I(f"s_cmp_eq_u64 vcc, 0")
I(f"s_cbranch_scc1 L_f_stat_done")
I("s_sleep 1")
I(f"s_cmp_lt_u32 {s(S_CNT)}, {POLL_LIMIT}")
I(f"s_cbranch_scc1 L_f_stat")
L("L_f_stat_done")
stamp()
I(f"v_and_b32 {v(106)}, {s(S_MASK)}, {v(104)}")
I(f"v_lshlrev_b32 {v(104)}, 16, {v(104)}")
I(f"v_rcp_f32 {v(106)}, {v(106)}")
for k in range(2): unpack(108+2*k, 100+k)
for k in range(2): I(f"v_pk_add_f32 {v(108+2*k,2)}, {v(108+2*k,2)}, {v(104,2)} op_sel_hi:[1,0] neg_lo:[0,1] neg_hi:[0,1]")
for k in range(2): I(f"v_cvt_pk_bf16_f32 {v(100+k)}, {v(108+2*k)}, {v(109+2*k)}")
for k in range(2): unpack(108+2*k, 100+k)
for k in range(2): I(f"v_pk_mul_f32 {v(108+2*k,2)}, {v(108+2*k,2)}, {v(106,2)} op_sel_hi:[1,0]")
for k in range(2): I(f"v_cvt_pk_bf16_f32 {v(100+k)}, {v(108+2*k)}, {v(109+2*k)}")
I(f"ds_write_b64 {v(25)}, {v(100,2)} offset:{F_XS}")
I("s_waitcnt lgkmcnt(0)")
I("s_barrier")
I(f"s_cmp_ge_u32 {s(S_WAVE)}, 2")
I("s_cbranch_scc1 L_f_nogu")
AX = 160
for st in range(16):
    I(f"ds_read_b128 {v(AX+4*st,4)}, {v(t2)} offset:{F_XS + 64*st}")
AC = 96
for st in range(16):
    I(f"s_waitcnt lgkmcnt({15-st})")
    a = AC + 4*(st & 1)
    I(f"v_mfma_f32_16x16x32_bf16 {v(a,4)}, {v(AX+4*st,4)}, {v(WL+4*st,4)}, {'0' if st < 2 else v(a,4)}")
I(f"v_lshlrev_b32 {v(107)}, 7, {v(VKG)}")
I(f"v_lshl_add_u32 {v(107)}, {v(VJ)}, 3, {v(107)}")
I(f"s_lshl_b32 {s(S_T0)}, {s(S_WAVE)}, 6")
I(f"v_add_u32 {v(107)}, {s(S_T0)}, {v(107)}")
I("s_nop 4")
I(f"v_add_f32 {v(104)}, {v(AC)}, {v(AC+4)}")
I(f"v_cvt_pk_bf16_f32 {v(104)}, {v(104)}, {v(104)}")
I(f"v_lshlrev_b32 {v(104)}, 16, {v(104)}")
I(f"v_mul_f32 {v(105)}, {f2u(-LOG2E):#x}, {v(104)}")
I(f"v_exp_f32 {v(105)}, {v(105)}")
I(f"v_mov_b32_dpp {v(106)}, {v(104)} row_ror:8 row_mask:0xf bank_mask:0xf")
I(f"v_add_f32 {v(105)}, 1.0, {v(105)}")
I(f"v_rcp_f32 {v(105)}, {v(105)}")
I("s_nop 0")
I(f"v_mul_f32 {v(105)}, {v(104)}, {v(105)}")
I(f"v_cvt_pk_bf16_f32 {v(105)}, {v(105)}, {v(105)}")
I(f"v_lshlrev_b32 {v(105)}, 16, {v(105)}")
I(f"v_mul_f32 {v(105)}, {v(105)}, {v(106)}")
I(f"v_cvt_pk_bf16_f32 {v(105)}, {v(105)}, {v(105)}")
I(f"v_lshlrev_b32 {v(105)}, 16, {v(105)}")
I("s_mov_b64 exec, 0x00ff00ff")
I(f"ds_write2_b32 {v(107)}, {v(105)}, {v(105)} offset0:{F_H//4} offset1:{F_H//4+1}")
I("s_mov_b64 exec, -1")
I("s_waitcnt lgkmcnt(0)")
L("L_f_nogu")
I("s_barrier")
HB = 160
for q in range(16):
    I(f"ds_read_b128 {v(HB+4*q,4)}, {v(VZ)} offset:{F_H + 16*q}")
Y0, Y1 = 96, 100
I(f"s_lshl_b32 {s(S_T0)}, {s(S_G)}, 12")
I(f"v_lshl_add_u32 {v(112)}, v0, 4, {s(S_T0)}")
I(f"v_add_u32 {v(113)}, 0x80000, {v(112)}")
for Y in (Y0, Y1):
    I(f"v_mov_b32 {v(Y+1)}, {s(S_NONCE)}")
    I(f"v_mov_b32 {v(Y+3)}, {s(S_NONCE)}")
for q in range(16):
    tok = q >> 3
    I(f"s_waitcnt lgkmcnt({15-q})")
    for e in range(2):
        f = 2*(q & 7) + e
        acc = 104 + 4*tok + 2*e
        hp = HB + 4*q + 2*e
        if f < 2:
            I(f"v_pk_mul_f32 {v(acc,2)}, {v(WF+2*f,2)}, {v(hp,2)}")
        else:
            I(f"v_pk_fma_f32 {v(acc,2)}, {v(WF+2*f,2)}, {v(hp,2)}, {v(acc,2)}")
    if q == 7 or q == 15:
        Y = Y0 if q == 7 else Y1
        I(f"v_add_f32 {v(Y)}, {v(104+4*tok)}, {v(106+4*tok)}")
        I(f"v_add_f32 {v(Y+2)}, {v(105+4*tok)}, {v(107+4*tok)}")
        I(f"global_store_dwordx4 {v(112+tok)}, {v(Y,4)}, {s(S_PART,2)} sc1")
stamp()
L("L_fin")
if STAMP:
    I("s_waitcnt vmcnt(0) lgkmcnt(0)")
    I(f"s_memtime {s(S_ST + 22, 2)}")
    I(f"s_memrealtime {s(S_T2, 2)}")
    I(f"s_add_u32 {s(S_STB)}, {s(P_WS)}, {WS_STAMP}")
    I(f"s_addc_u32 {s(S_STB+1)}, {s(P_WS+1)}, 0")
    I(f"s_lshl_b32 {s(S_T0)}, s2, 2")
    I(f"s_add_u32 {s(S_T0)}, {s(S_T0)}, {s(S_WAVE)}")
    I(f"s_lshl_b32 {s(S_T0)}, {s(S_T0)}, 7")
    I("s_waitcnt lgkmcnt(0)")
    I(f"v_mov_b32 v10, {s(S_T0)}")
    I("s_mov_b64 exec, 1")
    for k in range(12):
        I(f"v_mov_b32 v12, {s(S_ST+2*k)}")
        I(f"v_mov_b32 v13, {s(S_ST+2*k+1)}")
        I(f"global_store_dwordx2 v10, v[12:13], {s(S_STB,2)} offset:{8*k}")
        I("s_nop 1")
    I(f"v_mov_b32 v12, {s(S_T2)}")
    I(f"v_mov_b32 v13, {s(S_T3)}")
    I(f"global_store_dwordx2 v10, v[12:13], {s(S_STB,2)} offset:96")
L("L_end")
I("s_endpgm")
out.append('.section .rodata,"a"')
out.append(".p2align 6")
out.append(f".amdhsa_kernel {KNAME}")
out.append("  .amdhsa_next_free_vgpr 256")
out.append("  .amdhsa_next_free_sgpr 102")
out.append("  .amdhsa_accum_offset 256")
out.append("  .amdhsa_group_segment_fixed_size 0")
out.append("  .amdhsa_kernarg_size 136")
out.append("  .amdhsa_user_sgpr_count 2")
out.append("  .amdhsa_user_sgpr_kernarg_segment_ptr 1")
out.append("  .amdhsa_system_sgpr_workgroup_id_x 1")
out.append("  .amdhsa_float_denorm_mode_32 3")
out.append(".end_amdhsa_kernel")
dst = [a for a in sys.argv[1:] if not a.startswith("--")]
open(dst[0] if dst else "k.s", "w").write("\n".join(x for x in out if x is not None) + "\n")
```

```python
import sys, struct, math

KNAME = "parallel_sum__ssm_conv_s4__moe_arch_mod__prompt_kernel"
NLN = 128
NCONV = 256
G = 112
NWG = NLN + NCONV + G
STAMP = "--stamp" in sys.argv

WS_STATS = 0
WS_KEYS = 16384
WS_FLAG = 32768
WS_PART = 65536
WS_STAMP = 2 << 20
WS_XNG = 4 << 20
WS_XT = 8 << 20

L_MISC = 0
L_KC = 256
KC_S = 4160
KC_D = 4 * KC_S
L_U = L_KC + 2 * KC_D
U_D = 4608
L_XL = L_U + 2 * U_D
L_R1 = L_XL + 8192
L_KTAB = L_R1
KTAB_D = 7680
L_PAR = L_XL
L_R2 = L_R1
LDS_BYTES = L_R1 + 16384
ZIDX = 840
TRASH = 848
TS = 1040
L_T1 = L_KC
L_T2 = L_T1 + 16 * TS
F_H = 256
F_XS = 512
F_W = F_XS + 2048
assert F_W + 32768 <= LDS_BYTES
assert LDS_BYTES <= 81920
POLL_LIMIT = 40000
KSLEEP = int([a for a in sys.argv if a.startswith("--ksleep=")][0][9:]) if any(a.startswith("--ksleep=") for a in sys.argv) else 3

out = []
cur = [out]
def I(s): cur[0].append("    " + s)
def L(s): cur[0].append(s + ":")
def C(s): cur[0].append("    ; " + s)
class capture:
    def __enter__(self):
        self.prev = cur[0]; self.lst = []; cur[0] = self.lst; return self.lst
    def __exit__(self, *a): cur[0] = self.prev
def f2u(x): return struct.unpack("<I", struct.pack("<f", x))[0]
def v(a, n=1): return f"v{a}" if n == 1 else f"v[{a}:{a+n-1}]"
def s(a, n=1): return f"s{a}" if n == 1 else f"s[{a}:{a+n-1}]"
uid = [0]
def lab(p):
    uid[0] += 1
    return f"L_{p}_{uid[0]}"

P_U, P_ARE, P_AIM, P_BRE, P_BIM, P_CRE, P_CIM, P_LDT = 8, 10, 12, 14, 16, 18, 20, 22
P_DSK, P_BX, P_WR, P_WG, P_WU, P_WD, P_OUT, P_DBG = 24, 26, 28, 30, 32, 34, 36, 38
P_WS = 40
S_WAVE, S_DP, S_NONCE, S_LDT, S_DSK, S_ROW0 = 42, 43, 44, 45, 46, 47
S_T0, S_T1, S_T2, S_T3 = 48, 49, 50, 51
S_X0 = 52
S_R = 56
S_DS2 = 60
S_UNS = 62
S_M0 = 63
S_CNT = 64
S_EXEC = 66
S_PART = 70
S_K1, S_K2 = 72, 73
S_XNG = 68
S_XT = 4
S_XNB = 6
S_MASK = 74
S_ST = 76
S_STB = 100
LOG2E = math.log2(math.e)

nstamp = [0]
def stamp():
    if not STAMP: return
    k = nstamp[0]; nstamp[0] += 1
    assert k < 11
    I(f"s_memtime {s(S_ST + 2*k, 2)}")

DPP4 = ("quad_perm:[1,0,3,2] row_mask:0xf bank_mask:0xf",
        "quad_perm:[2,3,0,1] row_mask:0xf bank_mask:0xf",
        "row_half_mirror row_mask:0xf bank_mask:0xf",
        "row_mirror row_mask:0xf bank_mask:0xf")
DPP6 = DPP4 + ("row_bcast:15 row_mask:0xa bank_mask:0xf", "row_bcast:31 row_mask:0xc bank_mask:0xf")
def dpp_reduce(regs, op="v_add_f32"):
    for mode in DPP6:
        pad = max(0, 3 - len(regs))
        if pad: I(f"s_nop {pad-1}")
        for r in regs:
            I(f"{op}_dpp {v(r)}, {v(r)}, {v(r)} {mode}")

def nonce_cas(vz, vt):
    l = lab("nocas")
    I(f"s_cmp_lg_u32 {s(S_T0)}, 0")
    I(f"s_cbranch_scc1 {l}")
    I(f"s_memrealtime {s(S_T2,2)}")
    I("s_waitcnt lgkmcnt(0)")
    I(f"s_or_b32 {s(S_T2)}, {s(S_T2)}, 1")
    I(f"v_mov_b32 {v(vt)}, {s(S_T2)}")
    I(f"v_mov_b32 {v(vt+1)}, 0")
    I("s_mov_b64 exec, 1")
    I(f"global_atomic_cmpswap {v(vz)}, {v(vt,2)}, {s(P_DBG,2)} sc1")
    I("s_mov_b64 exec, -1")
    L(l)

def nonce_issue(vz, vt):
    I(f"global_load_dword {v(vt)}, {v(vz)}, {s(P_DBG,2)} sc1")

def nonce_wait(vz, vt, first=0):
    l = lab("npoll"); done = l + "_done"
    I(f"s_mov_b32 {s(S_CNT)}, 0")
    if first:
        I(f"s_waitcnt vmcnt({first})")
        I(f"s_branch {l}_chk")
    L(l)
    I("s_waitcnt vmcnt(0)")
    L(l + "_chk")
    I(f"v_readfirstlane_b32 {s(S_NONCE)}, {v(vt)}")
    I(f"s_add_u32 {s(S_CNT)}, {s(S_CNT)}, 1")
    I(f"s_cmp_lg_u32 {s(S_NONCE)}, 0")
    I(f"s_cbranch_scc1 {done}")
    I(f"s_cmp_ge_u32 {s(S_CNT)}, {POLL_LIMIT}")
    I(f"s_cbranch_scc1 {done}")
    I("s_sleep 1")
    nonce_issue(vz, vt)
    I(f"s_branch {l}")
    L(done)

def sweep_issue(vaddr, GR, base):
    for k in range(4):
        I(f"global_load_dwordx4 {v(GR+4*k,4)}, {v(vaddr+k)}, {s(base,2)} sc1")

def sweep_check(GR, vtmp):
    I(f"v_xor_b32 {v(vtmp)}, {s(S_NONCE)}, {v(GR+1)}")
    I(f"v_xor_b32 {v(vtmp+1)}, {s(S_NONCE)}, {v(GR+3)}")
    for k in range(1, 4):
        I(f"v_xor_b32 {v(vtmp+2)}, {s(S_NONCE)}, {v(GR+4*k+1)}")
        I(f"v_xor_b32 {v(vtmp+3)}, {s(S_NONCE)}, {v(GR+4*k+3)}")
        I(f"v_or3_b32 {v(vtmp)}, {v(vtmp)}, {v(vtmp+2)}, {v(vtmp+3)}")
    I(f"v_or_b32 {v(vtmp)}, {v(vtmp)}, {v(vtmp+1)}")
    I(f"v_cmp_ne_u32 vcc, 0, {v(vtmp)}")

def sweep(vaddr, GR, vtmp, base, issued=False, first_wait=0):
    l = lab("sweep"); done = l + "_done"; chk = l + "_chk"
    I(f"s_mov_b32 {s(S_CNT)}, 0")
    if issued:
        I(f"s_waitcnt vmcnt({first_wait})")
        I(f"s_branch {chk}")
    L(l)
    sweep_issue(vaddr, GR, base)
    I("s_waitcnt vmcnt(0)")
    L(chk)
    sweep_check(GR, vtmp)
    I(f"s_add_u32 {s(S_CNT)}, {s(S_CNT)}, 1")
    I(f"s_cmp_eq_u64 vcc, 0")
    I(f"s_cbranch_scc1 {done}")
    I("s_sleep 4")
    I(f"s_cmp_lt_u32 {s(S_CNT)}, {POLL_LIMIT}")
    I(f"s_cbranch_scc1 {l}")
    L(done)

def poll4(vaddr, GR, tagpos, vtmp, issued=False, first_wait=0, sleep=2):
    l = lab("poll"); done = l + "_done"; chk = l + "_chk"
    I(f"s_mov_b32 {s(S_CNT)}, 0")
    if issued:
        I(f"s_waitcnt vmcnt({first_wait})")
        I(f"s_branch {chk}")
    L(l)
    I(f"global_load_dwordx4 {v(GR,4)}, {v(vaddr)}, {s(P_WS,2)} sc1")
    I("s_waitcnt vmcnt(0)")
    L(chk)
    for k, tp in enumerate(tagpos): I(f"v_xor_b32 {v(vtmp+k)}, {s(S_NONCE)}, {v(GR+tp)}")
    if len(tagpos) == 4:
        I(f"v_or3_b32 {v(vtmp)}, {v(vtmp)}, {v(vtmp+2)}, {v(vtmp+3)}")
    I(f"v_or_b32 {v(vtmp)}, {v(vtmp)}, {v(vtmp+1)}")
    I(f"v_cmp_ne_u32 vcc, 0, {v(vtmp)}")
    I(f"s_add_u32 {s(S_CNT)}, {s(S_CNT)}, 1")
    I(f"s_cmp_eq_u64 vcc, 0")
    I(f"s_cbranch_scc1 {done}")
    I(f"s_sleep {sleep}")
    I(f"s_cmp_lt_u32 {s(S_CNT)}, {POLL_LIMIT}")
    I(f"s_cbranch_scc1 {l}")
    L(done)

def top2_wave(GR, m1, m2, t1, t2):
    I(f"v_mov_b32 {v(m1)}, {v(GR)}")
    I(f"v_mov_b32 {v(m2)}, {v(GR+2)}")
    for mode in DPP4:
        I("s_nop 1")
        I(f"v_mov_b32_dpp {v(t1)}, {v(m1)} {mode}")
        I(f"v_max_u32_dpp {v(t2)}, {v(m2)}, {v(m2)} {mode}")
        I(f"v_med3_u32 {v(m2)}, {v(m1)}, {v(t1)}, {v(t2)}")
        I(f"v_max_u32 {v(m1)}, {v(m1)}, {v(t1)}")
    for swp in ("v_permlane16_swap_b32", "v_permlane32_swap_b32"):
        I(f"v_mov_b32 {v(t1)}, {v(m1)}")
        I(f"v_mov_b32 {v(t2)}, {v(m2)}")
        I("s_nop 1")
        I(f"{swp} {v(m1)}, {v(t1)}")
        I(f"{swp} {v(m2)}, {v(t2)}")
        I("s_nop 0")
        I(f"v_max_u32 {v(t2)}, {v(m2)}, {v(t2)}")
        I(f"v_med3_u32 {v(m2)}, {v(m1)}, {v(t1)}, {v(t2)}")
        I(f"v_max_u32 {v(m1)}, {v(m1)}, {v(t1)}")

def top2_combine(a, t1):
    for k in (1, 2, 3):
        I(f"v_max_u32 {v(t1)}, {v(a+1)}, {v(a+2*k+1)}")
        I(f"v_med3_u32 {v(a+1)}, {v(a)}, {v(a+2*k)}, {v(t1)}")
        I(f"v_max_u32 {v(a)}, {v(a)}, {v(a+2*k)}")

def unpack(dst, src):
    I(f"v_lshlrev_b32 {v(dst)}, 16, {v(src)}")
    I(f"v_and_b32 {v(dst+1)}, {s(S_MASK)}, {v(src)}")


def keys_poll(vaddr, GK, vtmp):
    l = lab("kpoll"); done = l + "_done"
    I(f"s_mov_b32 {s(S_CNT)}, 0")
    L(l)
    I(f"global_load_dwordx4 {v(GK,4)}, {v(vaddr)}, {s(P_WS,2)} sc1")
    I(f"global_load_dwordx4 {v(GK+4,4)}, {v(vaddr+1)}, {s(P_WS,2)} sc1")
    I("s_waitcnt vmcnt(0)")
    for k in range(4): I(f"v_xor_b32 {v(vtmp+k)}, {s(S_NONCE)}, {v(GK+2*k+1)}")
    I(f"v_or3_b32 {v(vtmp)}, {v(vtmp)}, {v(vtmp+2)}, {v(vtmp+3)}")
    I(f"v_or_b32 {v(vtmp)}, {v(vtmp)}, {v(vtmp+1)}")
    I(f"v_cmp_ne_u32 vcc, 0, {v(vtmp)}")
    I(f"s_add_u32 {s(S_CNT)}, {s(S_CNT)}, 1")
    I(f"s_cmp_eq_u64 vcc, 0")
    I(f"s_cbranch_scc1 {done}")
    I(f"s_sleep {KSLEEP}")
    I(f"s_cmp_lt_u32 {s(S_CNT)}, {POLL_LIMIT}")
    I(f"s_cbranch_scc1 {l}")
    L(done)

def keys_top2(GK, m1, m2, t1, t2):
    I(f"v_max_u32 {v(t2)}, {v(GK+2)}, {v(GK+6)}")
    I(f"v_med3_u32 {v(GK+2)}, {v(GK)}, {v(GK+4)}, {v(t2)}")
    I(f"v_max_u32 {v(GK)}, {v(GK)}, {v(GK+4)}")
    top2_wave(GK, m1, m2, t1, t2)
    I("s_nop 0")
    I(f"v_readfirstlane_b32 {s(S_K1)}, {v(m1)}")
    I(f"v_readfirstlane_b32 {s(S_K2)}, {v(m2)}")


def keys_issue(vaddr, GK):
    I(f"global_load_dwordx4 {v(GK,4)}, {v(vaddr)}, {s(P_WS,2)} sc1")
    I(f"global_load_dwordx4 {v(GK+4,4)}, {v(vaddr+1)}, {s(P_WS,2)} sc1")
def keys_check(GK, vtmp):
    for k in range(4): I(f"v_xor_b32 {v(vtmp+k)}, {s(S_NONCE)}, {v(GK+2*k+1)}")
    I(f"v_or3_b32 {v(vtmp)}, {v(vtmp)}, {v(vtmp+2)}, {v(vtmp+3)}")
    I(f"v_or_b32 {v(vtmp)}, {v(vtmp)}, {v(vtmp+1)}")
    I(f"v_cmp_ne_u32 vcc, 0, {v(vtmp)}")
    I(f"s_cmp_eq_u64 vcc, 0")

hdr = open("parallel_sum__ssm_conv_s4__moe_arch_mod__prompt.s.ref").read().split("; Override")[0]
out.append(hdr.rstrip())
out.append(f"; @launch grid=({NWG},1,1) block=(256,1,1) lds={LDS_BYTES}")
out.append('.amdgcn_target "amdgcn-amd-amdhsa--gfx950"')
out.append(".text")
out.append(f".globl {KNAME}")
out.append(".p2align 8")
out.append(f".type {KNAME},@function")
L(KNAME)
I(f"s_cmp_ge_u32 s2, {NWG}")
I("s_cbranch_scc1 L_end")
I(f"s_load_dwordx16 s[8:23], s[0:1], 0")
I(f"s_load_dwordx16 s[24:39], s[0:1], 64")
I(f"s_load_dwordx2 {s(P_WS,2)}, s[0:1], 128")
stamp()
VL, VZ, VJ, VKG = 1, 2, 5, 6
VO, VO2 = 10, 11
I(f"v_and_b32 {v(VL)}, 63, v0")
I(f"v_lshrrev_b32 v3, 6, v0")
I(f"v_mov_b32 {v(VZ)}, 0")
I(f"v_readfirstlane_b32 {s(S_WAVE)}, v3")
I(f"s_mov_b32 {s(S_MASK)}, 0xffff0000")
I(f"v_lshlrev_b32 {v(VO2)}, 4, {v(VL)}")
I(f"s_cmp_ge_u32 s2, {NLN}")
I("s_cbranch_scc1 L_notln")

C("==== LayerNorm role: 16 rows per workgroup, 4 per wave")
I("s_setprio 2")
NR = 4
X = [12 + 4*r for r in range(NR)]
WR = 28
F = [32 + 8*r for r in range(NR)]
D = [64 + 8*r for r in range(NR)]
T = [96 + 8*r for r in range(NR)]
S1 = [128 + r for r in range(NR)]
S2 = [132 + r for r in range(NR)]
S3 = [136 + r for r in range(NR)]
SW = 140
SX0 = [52 + 2*r for r in range(NR)]
VNON = 141
VTW, VTR2, VTS2 = 142, 143, 144
t1, t2 = 145, 146
VC, VONE = 147, 148
TX = 160
R_ = range(NR)
I(f"s_lshl_b32 {s(S_ROW0)}, s2, 4")
I(f"s_lshl_b32 {s(S_T0)}, {s(S_WAVE)}, 2")
I(f"s_add_u32 {s(S_ROW0)}, {s(S_ROW0)}, {s(S_T0)}")
I(f"s_lshl_b32 {s(S_T0)}, {s(S_ROW0)}, 10")
I(f"v_add_u32 {v(VO)}, {s(S_T0)}, {v(VO2)}")
I("s_waitcnt lgkmcnt(0)")
for r in R_:
    I(f"global_load_dwordx4 {v(X[r],4)}, {v(VO)}, {s(P_U,2)} offset:{1024*r}")
I(f"global_load_dwordx4 {v(WR,4)}, {v(VO2)}, {s(P_WR,2)}")
C("---- pull the kernel's own code into this die's L2 (instruction fetch then misses only to L2)")
NCP = int([a for a in sys.argv if a.startswith("--ncp=")][0][6:]) if any(a.startswith("--ncp=") for a in sys.argv) else 32
I(f"s_getpc_b64 {s(S_EXEC,2)}")
L("L_pc")
I(f"s_sub_u32 {s(S_EXEC)}, {s(S_EXEC)}, L_pc-{KNAME}")
I(f"s_subb_u32 {s(S_EXEC+1)}, {s(S_EXEC+1)}, 0")
I(f"v_lshlrev_b32 {v(t1)}, 6, v0")
I(f"v_min_u32 {v(t1)}, L_end-{KNAME}, {v(t1)}")
I(f"s_cmp_ge_u32 s2, {NCP}")
I("s_cbranch_scc1 L_nocp")
I(f"global_load_dword {v(159)}, {v(t1)}, {s(S_EXEC,2)}")
I("s_branch L_cpdone")
L("L_nocp")
I(f"global_load_dword {v(159)}, {v(VZ)}, {s(P_WR,2)}")
L("L_cpdone")
I(f"s_add_u32 {s(S_XT)}, {s(P_WS)}, {WS_XT}")
I(f"s_addc_u32 {s(S_XT+1)}, {s(P_WS+1)}, 0")
I(f"s_mul_i32 {s(S_T2)}, {s(S_WAVE)}, {4*TS}")
I(f"v_add_u32 {v(VTW)}, {s(S_T2)}, {v(VO2)}")
I(f"v_and_b32 {v(t1)}, 3, v0")
I(f"v_lshrrev_b32 {v(t2)}, 2, v0")
I(f"v_mul_u32_u24 {v(VTR2)}, {4*TS}, {v(t1)}")
I(f"v_lshl_add_u32 {v(VTR2)}, {v(t2)}, 2, {v(VTR2)}")
I(f"s_lshl_b32 {s(S_T2)}, s2, 6")
I(f"v_lshl_add_u32 {v(VTS2)}, {v(t1)}, 4, {s(S_T2)}")
I(f"v_lshl_add_u32 {v(VTS2)}, {v(t2)}, 13, {v(VTS2)}")
I(f"s_lshl_b32 {s(S_T2)}, {s(S_ROW0)}, 3")
I(f"v_add_u32 {v(VO)}, {s(S_T2)}, {v(VO2)}")
C("---- warm this die's L2 with FFN weight lines that its FFN workgroups read last (speed only)")
I(f"s_and_b32 {s(S_T0)}, s2, 7")
I(f"s_lshr_b32 {s(S_T1)}, s2, 3")
I(f"s_sub_u32 {s(S_T2)}, {s(S_WAVE)}, 1")
I(f"s_cmp_ge_u32 {s(S_T2)}, 2")
I("s_cbranch_scc1 L_pf_down")
I(f"s_mul_i32 {s(S_T2)}, {s(S_T0)}, 448")
I(f"s_mul_i32 {s(S_T3)}, {s(S_T1)}, {16*3584}")
I(f"s_add_u32 {s(S_T2)}, {s(S_T2)}, {s(S_T3)}")
I(f"s_add_u32 {s(S_T2)}, {s(S_T2)}, {256*3584}")
I(f"v_lshrrev_b32 {v(176)}, 2, {v(VL)}")
I(f"v_mul_u32_u24 {v(176)}, 3584, {v(176)}")
I(f"v_and_b32 {v(177)}, 3, {v(VL)}")
I(f"v_mul_u32_u24 {v(177)}, 148, {v(177)}")
I(f"v_add3_u32 {v(176)}, {v(176)}, {v(177)}, {s(S_T2)}")
I(f"s_cmp_eq_u32 {s(S_WAVE)}, 1")
I(f"s_cselect_b32 {s(S_EXEC)}, {s(P_WG)}, {s(P_WU)}")
I(f"s_cselect_b32 {s(S_EXEC+1)}, {s(P_WG+1)}, {s(P_WU+1)}")
I(f"v_add_u32 {v(177)}, 72, {v(176)}")
I(f"v_min_u32 {v(177)}, {512*3584-4}, {v(177)}")
I("s_branch L_pf_go")
L("L_pf_down")
I(f"s_mul_i32 {s(S_T2)}, {s(S_T0)}, {224*1024}")
I(f"s_mul_i32 {s(S_T3)}, {s(S_T1)}, {14*1024}")
I(f"s_add_u32 {s(S_T2)}, {s(S_T2)}, {s(S_T3)}")
I(f"s_and_b32 {s(S_T3)}, {s(S_WAVE)}, 1")
I(f"s_mul_i32 {s(S_T3)}, {s(S_T3)}, 7168")
I(f"s_add_u32 {s(S_T2)}, {s(S_T2)}, {s(S_T3)}")
I(f"v_min_u32 {v(176)}, 55, {v(VL)}")
I(f"v_lshl_add_u32 {v(176)}, {v(176)}, 6, {s(S_T2)}")
I(f"v_add_u32 {v(177)}, 3584, {v(176)}")
I(f"s_mov_b64 {s(S_EXEC,2)}, {s(P_WD,2)}")
L("L_pf_go")
I(f"v_mov_b32 {v(VC)}, {f2u(1.0/512):#x}")
I(f"v_mov_b32 {v(VONE)}, 0x3f803f80")
for r in R_: I(f"v_mov_b32 {v(S3[r])}, 0")
I(f"v_mov_b32 {v(SW)}, 0")
for r in R_:
    I(f"s_waitcnt vmcnt({NR + 1 - r})")
    if r == 0: stamp()
    I(f"ds_write_b128 {v(VTW)}, {v(X[r],4)} offset:{L_T2 + r*TS}")
    if r < NR - 1:
        for k in range(4): unpack(F[r]+2*k, X[r]+k)
I("s_waitcnt lgkmcnt(0)")
I("s_barrier")
for i in range(4):
    for e in range(4):
        I(f"ds_read_b32 {v(TX+4*i+e)}, {v(VTR2)} offset:{L_T2 + 256*i + e*TS}")
for k in range(4): unpack(F[NR-1]+2*k, X[NR-1]+k)
for r in R_: I(f"v_readfirstlane_b32 {s(SX0[r])}, {v(F[r])}")
for i in range(4):
    I(f"s_waitcnt lgkmcnt({12 - 4*i})")
    I(f"global_store_dwordx4 {v(VTS2)}, {v(TX+4*i,4)}, {s(S_XT,2)} sc1")
    if i < 3: I(f"v_add_u32 {v(VTS2)}, 0x80000, {v(VTS2)}")
nonce_issue(VZ, VNON)
I(f"global_load_dword {v(178)}, {v(176)}, {s(S_EXEC,2)}")
I(f"global_load_dword {v(179)}, {v(177)}, {s(S_EXEC,2)}")

stamp()
for k in range(4):
    for r in R_:
        I(f"v_pk_add_f32 {v(D[r]+2*k,2)}, {v(F[r]+2*k,2)}, {s(SX0[r],2)} op_sel_hi:[1,0] neg_lo:[0,1] neg_hi:[0,1]")
I("s_waitcnt vmcnt(8)")
for k in range(4):
    for r in R_: I(f"v_dot2c_f32_bf16 {v(S3[r])}, {v(X[r]+k)}, {v(WR+k)}")
    I(f"v_dot2c_f32_bf16 {v(SW)}, {v(VONE)}, {v(WR+k)}")
for r in R_: I(f"v_pk_add_f32 {v(T[r],2)}, {v(D[r],2)}, {v(D[r]+2,2)}")
for r in R_: I(f"v_pk_mul_f32 {v(T[r]+4,2)}, {v(D[r],2)}, {v(D[r],2)}")
for r in R_: I(f"v_pk_add_f32 {v(T[r]+2,2)}, {v(D[r]+4,2)}, {v(D[r]+6,2)}")
for r in R_: I(f"v_pk_fma_f32 {v(T[r]+4,2)}, {v(D[r]+2,2)}, {v(D[r]+2,2)}, {v(T[r]+4,2)}")
for r in R_: I(f"v_pk_add_f32 {v(T[r],2)}, {v(T[r],2)}, {v(T[r]+2,2)}")
for r in R_: I(f"v_pk_fma_f32 {v(T[r]+4,2)}, {v(D[r]+4,2)}, {v(D[r]+4,2)}, {v(T[r]+4,2)}")
for r in R_: I(f"v_add_f32 {v(S1[r])}, {v(T[r])}, {v(T[r]+1)}")
for r in R_: I(f"v_pk_fma_f32 {v(T[r]+4,2)}, {v(D[r]+6,2)}, {v(D[r]+6,2)}, {v(T[r]+4,2)}")
for r in R_: I(f"v_add_f32 {v(S2[r])}, {v(T[r]+4)}, {v(T[r]+5)}")
dpp_reduce(S1 + S3 + [SW] + S2)
for r in R_: I(f"v_mul_f32 {v(S1[r])}, {v(VC)}, {v(S1[r])}")
for r in R_: I(f"v_mul_f32 {v(S2[r])}, {v(VC)}, {v(S2[r])}")
for r in R_: I(f"v_fma_f32 {v(S2[r])}, -{v(S1[r])}, {v(S1[r])}, {v(S2[r])}")
for r in R_: I(f"v_add_f32 {v(S1[r])}, {s(SX0[r])}, {v(S1[r])}")
for r in R_: I(f"v_max_f32 {v(S2[r])}, 0, {v(S2[r])}")
MP = [T[0], T[0]+1]; VP = [T[0]+2, T[0]+3]
for h in range(2): I(f"v_cvt_pk_bf16_f32 {v(MP[h])}, {v(S1[2*h])}, {v(S1[2*h+1])}")
for h in range(2): I(f"v_cvt_pk_bf16_f32 {v(VP[h])}, {v(S2[2*h])}, {v(S2[2*h+1])}")
for h in range(2): unpack(S1[2*h], MP[h])
for h in range(2): unpack(S2[2*h], VP[h])
eps = f2u(1e-5)
for r in R_: I(f"v_add_f32 {v(S2[r])}, {eps:#x}, {v(S2[r])}")
for r in R_: I(f"v_fma_f32 {v(S3[r])}, -{v(S1[r])}, {v(SW)}, {v(S3[r])}")
for h in range(2): I(f"v_cvt_pk_bf16_f32 {v(VP[h])}, {v(S2[2*h])}, {v(S2[2*h+1])}")
for r in R_: I(f"v_lshrrev_b32 {v(S1[r])}, 16, {v(S1[r])}")
for h in range(2): unpack(S2[2*h], VP[h])
for r in R_: I(f"v_sqrt_f32 {v(S2[r])}, {v(S2[r])}")
I("s_nop 0")
for h in range(2): I(f"v_cvt_pk_bf16_f32 {v(VP[h])}, {v(S2[2*h])}, {v(S2[2*h+1])}")
for h in range(2): unpack(S2[2*h], VP[h])
RC = [T[1]+r for r in R_]
for r in R_: I(f"v_rcp_f32 {v(RC[r])}, {v(S2[r])}")
for r in R_: I(f"v_or_b32 {v(S1[r])}, {v(S1[r])}, {v(S2[r])}")
for r in R_: I(f"v_mul_f32 {v(S3[r])}, {v(S3[r])}, {v(RC[r])}")
SMS = [10, 11, 12, 13]
for r in R_: I(f"v_readlane_b32 {s(SMS[r])}, {v(S1[r])}, 63")
for h in range(2): I(f"v_cvt_pk_bf16_f32 {v(MP[h])}, {v(S3[2*h])}, {v(S3[2*h+1])}")
GP = 152
I(f"v_cmp_eq_u32 vcc, 0, {v(VL)}")
for h in range(2): I(f"v_readlane_b32 {s(S_R+h)}, {v(MP[h])}, 63")
I(f"v_mov_b32 {v(GP)}, {s(SMS[2])}")
I(f"v_mov_b32 {v(GP+2)}, {s(SMS[3])}")
I(f"v_mov_b32 {v(t1)}, {s(SMS[0])}")
I(f"v_mov_b32 {v(t2)}, {s(SMS[1])}")
I(f"v_cndmask_b32 {v(GP)}, {v(GP)}, {v(t1)}, vcc")
I(f"v_cndmask_b32 {v(GP+2)}, {v(GP+2)}, {v(t2)}, vcc")
I(f"s_sub_u32 {s(S_T3)}, 0xffff, {s(S_ROW0)}")
KK = [14, 15, 16, 17]
for h in range(2):
    I(f"s_and_b32 {s(S_T0)}, {s(S_R+h)}, 0x80008000")
    I(f"s_lshr_b32 {s(S_T1)}, {s(S_T0)}, 15")
    I(f"s_mul_i32 {s(S_T1)}, {s(S_T1)}, 0x7fff")
    I(f"s_or_b32 {s(S_T1)}, {s(S_T1)}, 0x80008000")
    I(f"s_xor_b32 {s(S_T2)}, {s(S_R+h)}, {s(S_T1)}")
    I(f"s_lshl_b32 {s(S_T0)}, {s(S_T2)}, 16")
    I(f"s_or_b32 {s(S_T0)}, {s(S_T0)}, {s(S_T3)}")
    I(f"s_sub_u32 {s(S_T3)}, {s(S_T3)}, 1")
    I(f"s_and_b32 {s(S_T1)}, {s(S_T2)}, 0xffff0000")
    I(f"s_or_b32 {s(S_T1)}, {s(S_T1)}, {s(S_T3)}")
    I(f"s_sub_u32 {s(S_T3)}, {s(S_T3)}, 1")
    I(f"s_max_u32 {s(KK[2*h])}, {s(S_T0)}, {s(S_T1)}")
    I(f"s_min_u32 {s(KK[2*h+1])}, {s(S_T0)}, {s(S_T1)}")
I(f"s_max_u32 {s(S_T0)}, {s(KK[0])}, {s(KK[2])}")
I(f"s_min_u32 {s(S_T1)}, {s(KK[0])}, {s(KK[2])}")
I(f"s_max_u32 {s(S_T2)}, {s(KK[1])}, {s(KK[3])}")
I(f"s_max_u32 {s(S_T1)}, {s(S_T1)}, {s(S_T2)}")
I(f"v_mov_b32 {v(156)}, {s(S_T0)}")
I(f"v_mov_b32 {v(157)}, {s(S_T1)}")
I(f"s_lshl_b32 {s(S_T0)}, {s(S_WAVE)}, 3")
I(f"v_mov_b32 {v(158)}, {s(S_T0)}")
I(f"ds_write_b64 {v(158)}, {v(156,2)} offset:{L_MISC + 64}")
stamp()
nonce_wait(VZ, VNON, first=2)
stamp()
I(f"v_mov_b32 {v(GP+1)}, {v(VNON)}")
I(f"v_mov_b32 {v(GP+3)}, {v(VNON)}")
I("s_mov_b64 exec, 3")
I(f"global_store_dwordx4 {v(VO)}, {v(GP,4)}, {s(P_WS,2)} sc1")
I("s_mov_b64 exec, -1")
I("s_waitcnt lgkmcnt(0)")
I("s_barrier")
I(f"s_cmp_lg_u32 {s(S_WAVE)}, 0")
I("s_cbranch_scc1 L_ln_pf" if "--nopf" not in sys.argv else "s_cbranch_scc1 L_fin")
I(f"ds_read_b128 {v(96,4)}, {v(VZ)} offset:{L_MISC+64}")
I(f"ds_read_b128 {v(100,4)}, {v(VZ)} offset:{L_MISC+80}")
I(f"s_lshl_b32 {s(S_T0)}, s2, 7")
I(f"s_add_u32 {s(S_T0)}, {s(S_T0)}, {WS_KEYS}")
I(f"v_mov_b32 {v(105)}, {s(S_T0)}")
I("s_waitcnt lgkmcnt(0)")
top2_combine(96, 104)
I(f"v_mov_b32 {v(98)}, {v(97)}")
I(f"v_mov_b32 {v(97)}, {v(VNON)}")
I(f"v_mov_b32 {v(99)}, {v(VNON)}")
I("s_mov_b64 exec, 1")
I(f"global_store_dwordx4 {v(105)}, {v(96,4)}, {s(P_WS,2)} sc1")
I("s_mov_b64 exec, -1")
stamp()
if "--nopf" in sys.argv: I("s_branch L_fin")
L("L_ln_pf")
I("s_branch L_fin")

L("L_notln")
nstamp[0] = 1
I(f"v_and_b32 {v(VJ)}, 15, {v(VL)}")
I(f"v_lshrrev_b32 {v(VKG)}, 4, {v(VL)}")
VKEY = 252
I(f"v_lshlrev_b32 {v(VKEY)}, 7, {v(VL)}")
I(f"v_add_u32 {v(VKEY+1)}, {WS_KEYS + 8192}, {v(VKEY)}")
I(f"v_add_u32 {v(VKEY)}, {WS_KEYS}, {v(VKEY)}")
I(f"s_cmp_ge_u32 s2, {NLN + NCONV}")
I("s_cbranch_scc1 L_ffn")

C("==== conv role")
S_C = 47
I(f"s_sub_u32 {s(S_C)}, s2, {NLN}")
PRM = 24
I(f"s_and_b32 {s(S_T0)}, {s(S_C)}, 7")
I(f"s_lshl_b32 {s(S_T0)}, {s(S_T0)}, 5")
I(f"s_lshr_b32 {s(S_T1)}, {s(S_C)}, 3")
I(f"s_add_u32 {s(S_DP)}, {s(S_T0)}, {s(S_T1)}")
I(f"s_lshl_b32 {s(S_T0)}, {s(S_DP)}, 9")
I(f"s_lshl_b32 {s(S_T1)}, {s(S_WAVE)}, 7")
I(f"s_add_u32 {s(S_T0)}, {s(S_T0)}, {s(S_T1)}")
VPO = 30
I(f"v_lshl_add_u32 {v(VPO)}, {v(VL)}, 1, {s(S_T0)}")
for k in range(6): I(f"v_mov_b32 {v(PRM+k)}, 0")
I(f"s_lshl_b32 {s(S_T1)}, {s(S_DP)}, 2")
I("s_waitcnt lgkmcnt(0)")
for k, p in enumerate((P_ARE, P_AIM, P_BRE, P_BIM, P_CRE, P_CIM)):
    I(f"global_load_short_d16_hi {v(PRM+k)}, {v(VPO)}, {s(p,2)}")
I(f"s_load_dword {s(S_LDT)}, {s(P_LDT,2)}, {s(S_T1)}")
I(f"s_load_dword {s(S_DSK)}, {s(P_DSK,2)}, {s(S_T1)}")
I(f"s_lshr_b32 {s(S_T0)}, {s(S_C)}, 3")
I(f"s_xor_b32 {s(S_T0)}, {s(S_T0)}, 31")
I(f"s_xor_b32 {s(S_T1)}, {s(S_WAVE)}, 3")
I(f"s_or_b32 {s(S_T0)}, {s(S_T0)}, {s(S_T1)}")
nonce_cas(VZ, 32)
I(f"s_add_u32 {s(S_PART)}, {s(P_WS)}, {WS_PART}")
I(f"s_addc_u32 {s(S_PART+1)}, {s(P_WS+1)}, 0")
I(f"s_lshl_b32 {s(S_T0)}, {s(S_DP)}, 13")
I(f"s_add_u32 {s(S_T0)}, {s(S_T0)}, {WS_XT}")
I(f"s_add_u32 {s(S_XNG)}, {s(P_WS)}, {s(S_T0)}")
I(f"s_addc_u32 {s(S_XNG+1)}, {s(P_WS+1)}, 0")

C("---- constants")
AL = 200
VBETA = 206
SC0, SC1A, SC1B, SC2 = 208, 209, 210, 211
GA = 212
VGX = 224
VA_, VB_ = 226, 227
VRW, VRR = 228, 229
VT0 = 230
VOUT = 232
VPAR = 234
VKCW = 235
VPW = 236
VT8 = 237
VT4 = 238
VFL = 239
M1, M2 = 240, 241
VEX, VEU = 242, 243
VTL = 245
VNON = 246
VSW = 248
t1, t2, t3, t4 = 12, 13, 14, 15
I(f"v_lshlrev_b32 {v(VKCW)}, 4, v0")
I(f"v_lshlrev_b32 {v(VT8)}, 3, v0")
I(f"v_lshlrev_b32 {v(VT4)}, 2, v0")
I(f"s_lshl_b32 {s(S_T2)}, {s(S_WAVE)}, 11")
I(f"s_add_u32 {s(S_T2)}, {s(S_T2)}, {L_PAR}")
I(f"v_lshl_add_u32 {v(VPAR)}, {v(VKG)}, 7, {s(S_T2)}")
I(f"v_lshl_add_u32 {v(VPW)}, {v(VL)}, 5, {s(S_T2)}")
for k in range(4):
    I(f"v_add_u32 {v(VSW+k)}, {4096*k}, {v(VKCW)}")
I(f"v_add_u32 {v(VFL)}, 4096, {v(VT8)}")
I(f"v_mov_b32 {v(t1)}, {v(VJ)}")
for i_, al in ((8, 512), (9, 516), (10, 1024), (11, 1536), (12, 2048), (13, 0), (14, 0), (15, 0)):
    I(f"v_cmp_eq_u32 vcc, {i_}, {v(VJ)}")
    I(f"v_mov_b32 {v(t2)}, {al}")
    I("s_nop 0")
    I(f"v_cndmask_b32 {v(t1)}, {v(t1)}, {v(t2)}, vcc")
I(f"v_cvt_f32_u32 {v(AL)}, {v(t1)}")
I(f"v_lshlrev_b32 {v(t1)}, 3, {v(VJ)}")
I(f"v_cvt_f32_u32 {v(VBETA)}, {v(t1)}")
SCB, SCS = 208, 202
I(f"s_lshr_b32 {s(S_T0)}, {s(S_WAVE)}, 1")
I(f"s_mul_i32 {s(S_T0)}, {s(S_T0)}, {KTAB_D}")
I(f"s_and_b32 {s(S_T1)}, {s(S_WAVE)}, 1")
I(f"s_lshl_b32 {s(S_T1)}, {s(S_T1)}, 2")
I(f"s_add_u32 {s(S_T0)}, {s(S_T0)}, {s(S_T1)}")
I(f"s_add_u32 {s(S_T0)}, {s(S_T0)}, {L_KTAB}")
I(f"v_mul_u32_u24 {v(t1)}, 9, {v(VJ)}")
I(f"v_lshl_add_u32 {v(t1)}, {v(VKG)}, 2, {v(t1)}")
I(f"v_cmp_eq_u32 {s(S_T2,2)}, 2, {v(VKG)}")
I(f"v_cmp_eq_u32 {s(S_X0,2)}, 3, {v(VKG)}")
I(f"v_cmp_eq_u32 {s(S_X0+2,2)}, 48, {v(VL)}")
for r in range(4):
    I(f"v_add_u32 {v(t2)}, {r}, {v(t1)}")
    if r < 2: I(f"v_lshl_add_u32 {v(t3)}, {v(VJ)}, 1, {v(VZ)}"); I(f"v_add_u32 {v(t3)}, {576 + r}, {v(t3)}")
    else:     I(f"v_add_u32 {v(t3)}, {704 + 64*(r-2)}, {v(VJ)}")
    I(f"v_cndmask_b32 {v(t2)}, {v(t2)}, {v(t3)}, {s(S_T2,2)}")
    I(f"v_add_u32 {v(t3)}, {TRASH + 16*r}, {v(VJ)}")
    I(f"v_cndmask_b32 {v(t2)}, {v(t2)}, {v(t3)}, {s(S_X0,2)}")
    if r == 0:
        I(f"v_mov_b32 {v(t3)}, 832")
        I(f"v_cndmask_b32 {v(t2)}, {v(t2)}, {v(t3)}, {s(S_X0+2,2)}")
    I(f"v_lshl_add_u32 {v(SCB+r)}, {v(t2)}, 3, {s(S_T0)}")
for hh, st2 in ((0, 32), (1, 16)):
    I(f"v_mov_b32 {v(t2)}, {144*8}")
    I(f"v_mov_b32 {v(t3)}, {st2*8}")
    I(f"v_cndmask_b32 {v(t2)}, {v(t2)}, {v(t3)}, {s(S_T2,2)}")
    I(f"v_cndmask_b32 {v(t2)}, {v(t2)}, {v(VZ)}, {s(S_X0,2)}")
    if hh == 0:
        I(f"v_mov_b32 {v(t3)}, {16*8}")
        I(f"v_cndmask_b32 {v(t2)}, {v(t2)}, {v(t3)}, {s(S_X0+2,2)}")
    I(f"v_mov_b32 {v(SCS+hh)}, {v(t2)}")
I(f"v_sub_u32 {v(t1)}, 2047, {v(VT8)}")
I(f"s_movk_i32 {s(S_T1)}, 0x4400")
I(f"v_mov_b32 {v(t4)}, {ZIDX}")
for k in range(11):
    I(f"v_subrev_u32 {v(t2)}, {k}, {v(t1)}")
    I(f"v_cvt_f32_i32 {v(t3)}, {v(t2)}")
    I(f"v_cvt_pk_bf16_f32 {v(t3)}, {v(t3)}, {v(VZ)}")
    I(f"v_lshlrev_b32 {v(16)}, 16, {v(t3)}")
    I(f"v_cmp_gt_u32 vcc, {s(S_T1)}, {v(t3)}")
    I(f"v_cvt_u32_f32 {v(16)}, {v(16)}")
    I(f"v_subrev_u32 {v(t3)}, {0x4400 - 576}, {v(t3)}")
    I(f"v_lshrrev_b32 {v(17)}, 3, {v(16)}")
    I(f"v_add_u32 {v(16)}, {v(16)}, {v(17)}")
    I(f"v_cndmask_b32 {v(t3)}, {v(t3)}, {v(16)}, vcc")
    if k >= 8:
        I(f"v_cmp_gt_i32 vcc, 0, {v(t2)}")
        I("s_nop 1")
        I(f"v_cndmask_b32 {v(t3)}, {v(t3)}, {v(t4)}, vcc")
    I(f"v_lshlrev_b32 {v(GA+k)}, 3, {v(t3)}")
I(f"s_lshr_b32 {s(S_T0)}, {s(S_WAVE)}, 1")
I(f"s_and_b32 {s(S_T1)}, {s(S_WAVE)}, 1")
I(f"s_mul_i32 {s(S_T2)}, {s(S_T0)}, {KC_D}")
I(f"s_lshl_b32 {s(S_T3)}, {s(S_T1)}, 8")
I(f"s_sub_u32 {s(S_T2)}, {s(S_T2)}, {s(S_T3)}")
I(f"s_add_u32 {s(S_T2)}, {s(S_T2)}, {L_KC + 3*KC_S + 72}")
I(f"v_and_b32 {v(t1)}, 3, {v(VJ)}")
I(f"v_mul_u32_u24 {v(t1)}, {KC_S}, {v(t1)}")
I(f"v_lshrrev_b32 {v(t2)}, 2, {v(VJ)}")
I(f"v_lshl_add_u32 {v(t1)}, {v(t2)}, 3, {v(t1)}")
I(f"v_lshl_add_u32 {v(t1)}, {v(VKG)}, 4, {v(t1)}")
I(f"v_sub_u32 {v(VA_)}, {s(S_T2)}, {v(t1)}")
I(f"s_mul_i32 {s(S_T2)}, {s(S_T0)}, {U_D}")
I(f"s_sub_u32 {s(S_T2)}, {s(S_T2)}, {s(S_T3)}")
I(f"s_add_u32 {s(S_T2)}, {s(S_T2)}, {L_U + 336}")
I(f"v_lshlrev_b32 {v(t1)}, 5, {v(VJ)}")
I(f"v_lshlrev_b32 {v(t2)}, 4, {v(VKG)}")
I(f"v_sub_u32 {v(t1)}, {v(t1)}, {v(t2)}")
I(f"v_add_u32 {v(VB_)}, {s(S_T2)}, {v(t1)}")
I(f"s_lshl_b32 {s(S_T2)}, {s(S_WAVE)}, 11")
I(f"v_add_u32 {v(VRW)}, {s(S_T2)}, {v(VO2)}")
I(f"s_lshr_b32 {s(S_T2)}, {s(S_WAVE)}, 1")
I(f"s_lshl_b32 {s(S_T2)}, {s(S_T2)}, 10")
I(f"s_and_b32 {s(S_T3)}, {s(S_WAVE)}, 1")
I(f"s_lshl_b32 {s(S_T3)}, {s(S_T3)}, 3")
I(f"s_add_u32 {s(S_T2)}, {s(S_T2)}, {s(S_T3)}")
I(f"v_add_u32 {v(VRR)}, {s(S_T2)}, {v(VO2)}")
I(f"s_lshr_b32 {s(S_T2)}, {s(S_T2)}, 2")
I(f"v_lshl_add_u32 {v(VT0)}, {v(VJ)}, 4, {s(S_T2)}")
I(f"v_lshl_add_u32 {v(VT0)}, {v(VKG)}, 2, {v(VT0)}")
I(f"v_lshlrev_b32 {v(VEX)}, 2, {v(VT0)}")
I(f"v_lshlrev_b32 {v(VEU)}, 1, {v(VT0)}")
I(f"s_lshl_b32 {s(S_T2)}, {s(S_DP)}, 2")
I(f"v_lshl_add_u32 {v(VOUT)}, {v(VT0)}, 10, {s(S_T2)}")
I(f"v_mov_b32 {v(38)}, 0")
I(f"v_mov_b32 {v(39)}, 0")
I(f"ds_write_b64 {v(VZ)}, {v(38,2)} offset:{L_KTAB + 8*ZIDX}")
I(f"ds_write_b64 {v(VZ)}, {v(38,2)} offset:{L_KTAB + KTAB_D + 8*ZIDX}")
I(f"v_lshlrev_b32 {v(t2)}, 1, v0")
I(f"ds_write_b16 {v(t2)}, {v(VZ)} offset:{L_U}")
I(f"ds_write_b16 {v(t2)}, {v(VZ)} offset:{L_U + U_D}")
I(f"v_lshrrev_b32 {v(t3)}, 5, v0")
I(f"v_mul_u32_u24 {v(t3)}, {KC_S}, {v(t3)}")
I(f"v_and_b32 {v(t4)}, 31, v0")
I(f"v_lshl_add_u32 {v(t3)}, {v(t4)}, 1, {v(t3)}")
I(f"ds_write_b16 {v(t3)}, {v(VZ)} offset:{L_KC + 4096}")

C("---- K-gen parameters")
I("s_waitcnt lgkmcnt(0)")
I(f"s_lshr_b32 {s(S_T0)}, {s(S_WAVE)}, 1")
I(f"s_lshl_b32 {s(S_T0)}, {s(S_T0)}, 4")
I(f"s_lshr_b32 {s(S_T1)}, {s(S_LDT)}, {s(S_T0)}")
I(f"s_lshl_b32 {s(S_T1)}, {s(S_T1)}, 16")
l2e_hi = struct.unpack("<f", struct.pack("<f", LOG2E))[0]
l2e_lo = LOG2E - l2e_hi
T0_, T1_, T2_, T3_, DT = 40, 41, 42, 43, 44
VDS = 8
I(f"s_lshl_b32 {s(S_DS2)}, {s(S_DSK)}, 16")
I(f"s_and_b32 {s(S_DS2+1)}, {s(S_DSK)}, 0xffff0000")
I(f"v_mov_b32 {v(T0_)}, {f2u(l2e_hi):#x}")
I(f"v_mov_b32 {v(T3_)}, {f2u(l2e_lo):#x}")
I(f"v_add_f32 {v(VDS)}, {s(S_DS2)}, 1.0")
I(f"v_add_f32 {v(VDS+1)}, {s(S_DS2+1)}, 1.0")
I(f"v_mul_f32 {v(T1_)}, {s(S_T1)}, {v(T0_)}")
I(f"v_fma_f32 {v(T2_)}, {s(S_T1)}, {v(T0_)}, -{v(T1_)}")
I(f"v_fma_f32 {v(T2_)}, {s(S_T1)}, {v(T3_)}, {v(T2_)}")
I(f"v_exp_f32 {v(T1_)}, {v(T1_)}")
I(f"v_mul_f32 {v(T2_)}, {f2u(math.log(2.0)):#x}, {v(T2_)}")
I(f"v_readfirstlane_b32 {s(S_DS2)}, {v(VDS)}")
I(f"v_readfirstlane_b32 {s(S_DS2+1)}, {v(VDS+1)}")
I(f"v_fma_f32 {v(T1_)}, {v(T1_)}, {v(T2_)}, {v(T1_)}")
I(f"v_cvt_pk_bf16_f32 {v(T1_)}, {v(T1_)}, {v(T1_)}")
I(f"v_lshlrev_b32 {v(DT)}, 16, {v(T1_)}")
PW = 48
I("s_waitcnt vmcnt(1)")
stamp()
I("s_waitcnt vmcnt(0)") if False else None
I(f"v_mul_f32 {v(T1_)}, {v(DT)}, {v(PRM+2)}")
I(f"v_mul_f32 {v(T2_)}, {v(DT)}, {v(PRM+3)}")
I(f"v_mul_f32 {v(PW)}, {v(DT)}, {v(PRM+0)}")
I(f"v_mul_f32 {v(PW+1)}, {v(DT)}, {v(PRM+1)}")
I(f"v_mul_f32 {v(PW+2)}, {v(PRM+4)}, {v(T1_)}")
I(f"v_mul_f32 {v(PW+3)}, {v(PRM+4)}, {v(T2_)}")
I(f"v_mul_f32 {v(PW)}, {v(T0_)}, {v(PW)}")
I(f"v_mul_f32 {v(PW+1)}, 0.15915494, {v(PW+1)}")
I(f"s_lshr_b32 {s(S_T0)}, {s(S_C)}, 3")
I(f"s_xor_b32 {s(S_T0)}, {s(S_T0)}, 31")
I(f"s_xor_b32 {s(S_T2)}, {s(S_WAVE)}, 3")
I(f"s_or_b32 {s(S_T0)}, {s(S_T0)}, {s(S_T2)}")
I(f"s_cmp_eq_u32 {s(S_T0)}, 0")
I("s_cbranch_scc1 L_p5b")
I("s_waitcnt vmcnt(0)")
L("L_p5b")
I(f"v_mul_f32 {v(56)}, 0x43000000, {v(PW)}")
I(f"v_mul_f32 {v(57)}, 0x43000000, {v(PW+1)}")
I(f"v_exp_f32 {v(56)}, {v(56)}")
I(f"v_fract_f32 {v(57)}, {v(57)}")
I(f"v_cos_f32 {v(PW+4)}, {v(57)}")
I(f"v_sin_f32 {v(PW+5)}, {v(57)}")
I(f"v_fma_f32 {v(PW+2)}, -{v(PRM+5)}, {v(T2_)}, {v(PW+2)}")
I(f"v_fma_f32 {v(PW+3)}, {v(PRM+5)}, {v(T1_)}, {v(PW+3)}")
I(f"v_max_f32 {v(T3_)}, |{v(PW+2)}|, |{v(PW+3)}|")
I(f"v_mul_f32 {v(PW+4)}, {v(PW+4)}, {v(56)}")
I(f"v_mul_f32 {v(PW+5)}, {v(PW+5)}, {v(56)}")
I(f"ds_write_b64 {v(VPW)}, {v(PW+4,2)} offset:16")
dpp_reduce([T3_], "v_max_f32")
I("s_nop 0")
I(f"v_readlane_b32 {s(S_T0)}, {v(T3_)}, 63")
I("s_nop 3")
I(f"s_bfe_u32 {s(S_T0)}, {s(S_T0)}, 0x80017")
I(f"s_max_u32 {s(S_T0)}, {s(S_T0)}, 1")
I(f"s_min_u32 {s(S_T0)}, {s(S_T0)}, 253")
I(f"s_lshl_b32 {s(S_UNS)}, {s(S_T0)}, 23")
I(f"s_sub_u32 {s(S_T0)}, 254, {s(S_T0)}")
I(f"s_lshl_b32 {s(S_T0)}, {s(S_T0)}, 23")
I(f"v_mul_f32 {v(PW+2)}, {s(S_T0)}, {v(PW+2)}")
I(f"v_mul_f32 {v(PW+3)}, {s(S_T0)}, {v(PW+3)}")
I(f"ds_write_b128 {v(VPW)}, {v(PW,4)}")
nonce_issue(VZ, VNON)
C("---- K-gen main loop: 4 super-groups of 16 n ; one A tile (rows) x four B tiles (columns)")
ACC = 100
PP = 56
OPA = 116
OPB = 120
TM = 136
for k in range(16): I(f"v_mov_b32 {v(ACC+k)}, 0")
I(f"s_mov_b32 {s(S_CNT)}, 0")
I("s_waitcnt lgkmcnt(0)")
stamp()
L("L_kgen")
for q in range(4):
    I(f"ds_read_b128 {v(PP+8*q,4)}, {v(VPAR)} offset:{32*q}")
    I(f"ds_read_b64 {v(PP+8*q+4,2)}, {v(VPAR)} offset:{32*q+16}")
PFIT = int([a for a in sys.argv if a.startswith("--pfit=")][0][7:]) if any(a.startswith("--pfit=") for a in sys.argv) else 1
I(f"v_add_u32 {v(VPAR)}, 512, {v(VPAR)}")
for qp in range(2):
    QS = (2*qp, 2*qp+1)
    I(f"s_waitcnt lgkmcnt({4 - 4*qp})")
    def tm(q, x): return TM + 16*(q & 1) + 4*x
    EV = [(q, x) for q in QS for x in range(2)]
    for q, x in EV: I(f"v_pk_mul_f32 {v(tm(q,x),2)}, {v(PP+8*q,2)}, {v(VBETA if x == 0 else AL,2)} op_sel_hi:[1,0]")
    for q, x in EV: I(f"v_fract_f32 {v(tm(q,x)+1)}, {v(tm(q,x)+1)}")
    for q, x in EV: I(f"v_exp_f32 {v(tm(q,x))}, {v(tm(q,x))}")
    for q, x in EV: I(f"v_cos_f32 {v(tm(q,x)+2)}, {v(tm(q,x)+1)}")
    for q, x in EV: I(f"v_sin_f32 {v(tm(q,x)+3)}, {v(tm(q,x)+1)}")
    def ep(q, x): return TM + 16*(q & 1) + 8 + 2*x
    def bc(q, alt): return TM + 16*(q & 1) + 12 + 2*alt
    for q, x in EV: I(f"v_pk_mul_f32 {v(ep(q,x),2)}, {v(tm(q,x)+2,2)}, {v(tm(q,x),2)} op_sel_hi:[1,0]")
    for q in QS: I(f"v_pk_mul_f32 {v(bc(q,0),2)}, {v(ep(q,0),2)}, {v(PP+8*q+2,2)} op_sel_hi:[0,1] neg_hi:[0,1]")
    for q in QS: I(f"v_cvt_pk_f16_f32 {v(OPA+q)}, {v(ep(q,1))}, {v(ep(q,1)+1)}")
    for q in QS: I(f"v_fma_f32 {v(bc(q,0))}, -{v(ep(q,0)+1)}, {v(PP+8*q+3)}, {v(bc(q,0))}")
    for q in QS: I(f"v_fma_f32 {v(bc(q,0)+1)}, -{v(ep(q,0)+1)}, {v(PP+8*q+2)}, {v(bc(q,0)+1)}")
    for k in range(4):
        cur_, nx = k & 1, 1 - (k & 1)
        if k < 3:
            for q in QS: I(f"v_pk_mul_f32 {v(bc(q,nx),2)}, {v(bc(q,cur_),2)}, {v(PP+8*q+4,2)} op_sel_hi:[1,0]")
        for q in QS: I(f"v_cvt_pk_f16_f32 {v(OPB+4*k+q)}, {v(bc(q,cur_))}, {v(bc(q,cur_)+1)}")
        if k < 3:
            for q in QS: I(f"v_fma_f32 {v(bc(q,nx))}, {v(bc(q,cur_)+1)}, {v(PP+8*q+5)}, {v(bc(q,nx))}")
            for q in QS: I(f"v_fma_f32 {v(bc(q,nx)+1)}, -{v(bc(q,cur_))}, {v(PP+8*q+5)}, {v(bc(q,nx)+1)}")
I(f"s_add_u32 {s(S_CNT)}, {s(S_CNT)}, 1")
I(f"s_cmp_lt_u32 {s(S_CNT)}, 4")
for k in range(4):
    I(f"v_mfma_f32_16x16x32_f16 {v(ACC+4*k,4)}, {v(OPA,4)}, {v(OPB+4*k,4)}, {v(ACC+4*k,4)}")
I("s_cbranch_scc1 L_kgen")
stamp()
GR, GK = 160, 176
nonce_wait(VZ, VNON)
for k in range(16): I(f"v_mul_f32 {v(ACC+k)}, {s(S_UNS)}, {v(ACC+k)}")
for k in range(4):
    for r in range(4):
        I(f"ds_write_b32 {v(SCB+r)}, {v(ACC+4*k+r)}")
        if k < 3: I(f"v_add_u32 {v(SCB+r)}, {v(SCB+r)}, {v(SCS + (r >> 1))}")
I("s_waitcnt lgkmcnt(0)")
I("s_barrier")
C("---- expand K into 4 shifted bf16 copies")
E0 = 40
CP = 96
XX = 144
def xs_issue():
    for k in range(4):
        I(f"global_load_dwordx2 {v(XX+2*k,2)}, {v(VT8 if k < 2 else VFL)}, {s(S_XNG,2)} offset:{2048*(k&1)} sc1")
    sweep_issue(VSW, GR, P_WS)
for d in range(2):
    Eb = E0 + 24*d
    for k in range(11):
        I(f"ds_read_b64 {v(Eb+2*k,2)}, {v(GA+k)} offset:{L_KTAB + d*KTAB_D}")
def expand(d):
    Eb = E0 + 24*d
    I(f"s_waitcnt lgkmcnt({11 if d == 0 else 4})")
    for k in range(11):
        I(f"v_add_f32 {v(Eb+2*k)}, {v(Eb+2*k)}, {v(Eb+2*k+1)}")
    for sg in range(4):
        Cb = CP + 16*d + 4*sg
        for m in range(4):
            I(f"v_cvt_pk_bf16_f32 {v(Cb+m)}, {v(Eb+2*(sg+2*m))}, {v(Eb+2*(sg+2*m+1))}")
        I(f"ds_write_b128 {v(VKCW)}, {v(Cb,4)} offset:{L_KC + d*KC_D + sg*KC_S}")
expand(0)
expand(1)
stamp()
I(f"s_cmp_lg_u32 {s(S_WAVE)}, 0")
I("s_cbranch_scc1 L_k_wait")
keys_poll(VKEY, GK, 32)
L("L_k_wait")
I("s_barrier")
xs_issue()
stamp()
I(f"s_cmp_lg_u32 {s(S_WAVE)}, 0")
I("s_cbranch_scc1 L_k_not0")
keys_top2(GK, M1, M2, 44, 45)
I(f"ds_write_b64 {v(VZ)}, {v(M1,2)} offset:{L_MISC + 16}")
L("L_k_not0")
for k in range(4):
    I(f"s_waitcnt vmcnt({7-k})")
    I(f"ds_write_b64 {v(VT8)}, {v(XX+2*k,2)} offset:{L_XL + 2048*k}")
XF = 48
for k in range(8): unpack(XF+6*k+2, XX+k)
sweep(VSW, GR, 40, P_WS, issued=True, first_wait=0)
stamp()
RI = 128
for k in range(8):
    g = GR + 2*k
    I(f"v_and_b32 {v(RI+2*k)}, {s(S_MASK)}, {v(g)}")
    I(f"v_lshlrev_b32 {v(XF+6*k)}, 16, {v(g)}")
    I(f"v_rcp_f32 {v(RI+2*k)}, {v(RI+2*k)}")
for k in range(8):
    b = XF+6*k
    I(f"v_pk_add_f32 {v(b+2,2)}, {v(b+2,2)}, {v(b,2)} op_sel_hi:[1,0] neg_lo:[0,1] neg_hi:[0,1]")
for k in range(8):
    b = XF+6*k
    I(f"v_cvt_pk_bf16_f32 {v(b+4)}, {v(b+2)}, {v(b+3)}")
for k in range(8): unpack(XF+6*k+2, XF+6*k+4)
for k in range(8):
    b = XF+6*k
    I(f"v_pk_mul_f32 {v(b+2,2)}, {v(b+2,2)}, {v(RI+2*k,2)} op_sel_hi:[1,0]")
for k in range(4):
    for d in range(2):
        I(f"v_cvt_pk_bf16_f32 {v(XX+2*k+d)}, {v(XF+12*k+2+d)}, {v(XF+12*k+8+d)}")
        I(f"ds_write_b32 {v(VT4)}, {v(XX+2*k+d)} offset:{L_U + 512 + d*U_D + 1024*k}")
I("s_waitcnt lgkmcnt(0)")
I("s_barrier")
stamp()
C("---- convolution: 4 phases of 2 output tiles; K operands stay resident, finished tiles are stored under the next phase")
def AR(rl, k): return 32 + 32*rl + 4*k
def BR(buf, d): return 160 + 32*buf + 4*d
def ACCR(p, tt): return 8 + 8*(p & 1) + 4*tt
RDF, XQ, UQ, TE = 248, 24, 26, 28
def step_loads(p, rls, buf):
    ls = []
    nb = 2*p + 2
    for i, rl in enumerate(rls):
        bl = [f"ds_read_b128 {v(BR(buf, nb*i + d),4)}, {v(VB_)} offset:{512*d + 64*(3 - rl)}" for d in range(nb)]
        al = []
        for k in (2*p, 2*p+1):
            off = 64 * (63 - 8*k - rl)
            al.append(f"ds_read_b64 {v(AR(rl,k),2)}, {v(VA_)} offset:{off}")
            al.append(f"ds_read_b64 {v(AR(rl,k)+2,2)}, {v(VA_)} offset:{off+8}")
        ls += bl[:2] + al + bl[2:]
    return ["    " + x for x in ls]
def fin_reads(p):
    base = L_R1 + 8192*(p & 1)
    for w in range(4):
        I(f"ds_read_b64 {v(RDF+2*w,2)}, {v(VRR)} offset:{base + 2048*w}")
    I(f"ds_read_b64 {v(XQ,2)}, {v(VEX)} offset:{L_XL + 2048*p}")
    for d in range(2):
        I(f"ds_read_b32 {v(UQ+d)}, {v(VEU)} offset:{L_U + 512 + d*U_D + 1024*p}")
def fin_math(p):
    I(f"v_pk_add_f32 {v(RDF,2)}, {v(RDF,2)}, {v(RDF+2,2)}")
    I(f"v_pk_add_f32 {v(RDF+4,2)}, {v(RDF+4,2)}, {v(RDF+6,2)}")
    for e in range(2):
        a = TE if e == 0 else RDF + 2
        c = TE + 2 if e == 0 else RDF + 6
        unpack(a, XQ+e)
        for d in range(2):
            if e: I(f"v_and_b32 {v(c+d)}, {s(S_MASK)}, {v(UQ+d)}")
            else: I(f"v_lshlrev_b32 {v(c+d)}, 16, {v(UQ+d)}")
        I(f"v_add_f32 {v(a)}, {v(a)}, {v(RDF+e)}")
        I(f"v_add_f32 {v(a+1)}, {v(a+1)}, {v(RDF+4+e)}")
        I(f"v_pk_fma_f32 {v(a,2)}, {v(c,2)}, {s(S_DS2,2)}, {v(a,2)}")
        I(f"v_cvt_pk_bf16_f32 {v(XQ+e)}, {v(a)}, {v(a+1)}")
        I(f"global_store_dword {v(VOUT)}, {v(XQ+e)}, {s(P_OUT,2)} offset:{e*1024}")
    I(f"ds_write_b64 {v(VEX)}, {v(XQ,2)} offset:{L_XL + 2048*p}")
    if p < 3: I(f"v_add_u32 {v(VOUT)}, 0x80000, {v(VOUT)}")
steps = [(0, [0, 1, 2, 3]), (1, [0, 1]), (1, [2, 3])] + [(p, [rl]) for p in (2, 3) for rl in range(4)]
first_loads = step_loads(*steps[0], 0)
out.extend(first_loads)
for si, (p, rls) in enumerate(steps):
    buf = si & 1
    nxt = step_loads(*steps[si+1], 1-buf) if si + 1 < len(steps) else []
    fl = []
    if p > 0 and rls[0] == 0:
        with capture() as fl: fin_reads(p-1)
    if p > 0 and ((p == 1 and rls[0] == 2) or (p > 1 and rls[0] == 1)):
        with capture() as fl: fin_math(p-1)
    nb = 2*p + 2
    work = []
    for i, rl in enumerate(rls):
        pairs = [(ch, T-ch) for T in (2*p, 2*p+1) for ch in range(T+1)]
        pairs.sort(key=lambda q: (max(q[0] if q[0] >= 2*p else 0, q[1])))
        work += [(i, rl, ch, dl) for (ch, dl) in pairs]
    if si > 0: I("s_waitcnt lgkmcnt(0)")
    seen = set()
    pern = -(-len(nxt) // len(work)) if nxt else 0
    perf = -(-len(fl) // len(work)) if fl else 0
    ni = fi = 0
    lasti = -1
    for (i, rl, ch, dl) in work:
        if si == 0 and i != lasti:
            lasti = i
            I(f"s_waitcnt lgkmcnt({min(15, len(first_loads) - 6*(i+1) + ni)})")
        T = ch + dl
        acc = ACCR(p, T & 1)
        first = rl == 0 and T not in seen; seen.add(T)
        I(f"v_mfma_f32_16x16x32_bf16 {v(acc,4)}, {v(AR(rl,ch),4)}, {v(BR(buf,nb*i+dl),4)}, {'0' if first else v(acc,4)}")
        out.extend(nxt[ni:ni+pern]); ni += len(nxt[ni:ni+pern])
        out.extend(fl[fi:fi+perf]); fi += perf
    out.extend(nxt[ni:]); out.extend(fl[fi:])
    if rls[-1] == 3:
        I("s_nop 7")
        for tt in range(2):
            I(f"ds_write_b128 {v(VRW)}, {v(ACCR(p,tt),4)} offset:{L_R1 + 8192*(p & 1) + 1024*tt}")
        I("s_waitcnt lgkmcnt(0)")
        I("s_barrier")
        if p in (1, 3): stamp()
fin_reads(3)
I("s_waitcnt lgkmcnt(0)")
fin_math(3)
stamp()
C("---- routed rows fix-up")
I(f"ds_read_b64 {v(64,2)}, {v(VZ)} offset:{L_MISC + 16}")
I("s_waitcnt lgkmcnt(0)")
I(f"v_readfirstlane_b32 {s(S_K1)}, {v(64)}")
I(f"v_readfirstlane_b32 {s(S_K2)}, {v(65)}")
I(f"s_mov_b32 {s(S_X0)}, 0")
L("L_fix")
I(f"s_and_b32 {s(S_T0)}, {s(S_K1)}, 0xffff")
I(f"s_sub_u32 {s(S_T0)}, 0xffff, {s(S_T0)}")
I(f"s_lshr_b32 {s(S_T1)}, {s(S_T0)}, 8")
I(f"s_cmp_ge_u32 {s(S_T1)}, 8")
I("s_cbranch_scc1 L_fix_skip")
I(f"s_and_b32 {s(S_T1)}, {s(S_T1)}, 1")
I(f"s_lshl_b32 {s(S_T1)}, {s(S_T1)}, 1")
I(f"s_bfe_u32 {s(S_T2)}, {s(S_T0)}, 0x10001")
I(f"s_or_b32 {s(S_T1)}, {s(S_T1)}, {s(S_T2)}")
I(f"s_cmp_lg_u32 {s(S_T1)}, {s(S_WAVE)}")
I("s_cbranch_scc1 L_fix_skip")
I(f"s_lshl_b32 {s(S_T1)}, {s(S_DP)}, 4")
I(f"s_lshl_b32 {s(S_T2)}, {s(S_X0)}, 19")
I(f"s_add_u32 {s(S_T1)}, {s(S_T1)}, {s(S_T2)}")
I(f"v_lshl_add_u32 {v(76)}, {v(VL)}, 12, {s(S_T1)}")
I(f"v_add_u32 {v(78)}, 0x40000, {v(76)}")
I(f"s_lshl_b32 {s(S_T2)}, {s(S_T0)}, 2")
I(f"v_mov_b32 {v(77)}, {s(S_T2)}")
I(f"ds_read_b32 {v(79)}, {v(77)} offset:{L_XL}")
I(f"s_lshr_b32 {s(S_T2)}, {s(S_K1)}, 16")
I(f"s_lshr_b32 {s(S_T3)}, {s(S_T2)}, 15")
I(f"s_cmp_eq_u32 {s(S_T3)}, 1")
I(f"s_mov_b32 {s(S_T3)}, 0xffff")
I(f"s_cselect_b32 {s(S_T3)}, 0x8000, {s(S_T3)}")
I(f"s_xor_b32 {s(S_T2)}, {s(S_T2)}, {s(S_T3)}")
I(f"s_lshl_b32 {s(S_T2)}, {s(S_T2)}, 16")
I(f"v_mov_b32 {v(92)}, {f2u(-LOG2E):#x}")
I(f"v_mul_f32 {v(92)}, {s(S_T2)}, {v(92)}")
I(f"v_exp_f32 {v(92)}, {v(92)}")
I("s_nop 0")
I(f"v_add_f32 {v(92)}, 1.0, {v(92)}")
I(f"v_rcp_f32 {v(92)}, {v(92)}")
I("s_nop 0")
I(f"v_cvt_pk_bf16_f32 {v(92)}, {v(92)}, {v(92)}")
I(f"v_lshlrev_b32 {v(92)}, 16, {v(92)}")
I(f"s_mov_b32 {s(S_CNT)}, 0")
I(f"v_mov_b32 {v(84)}, 0")
I(f"v_mov_b32 {v(85)}, {s(S_NONCE)}")
I(f"v_mov_b32 {v(86)}, 0")
I(f"v_mov_b32 {v(87)}, {s(S_NONCE)}")
L("L_fixpoll")
I(f"global_load_dwordx4 {v(80,4)}, {v(76)}, {s(S_PART,2)} sc1")
I(f"s_bfm_b64 exec, {G-64}, 0")
I(f"global_load_dwordx4 {v(84,4)}, {v(78)}, {s(S_PART,2)} sc1")
I("s_mov_b64 exec, -1")
I("s_waitcnt vmcnt(0)")
I(f"v_xor_b32 {v(88)}, {s(S_NONCE)}, {v(81)}")
I(f"v_xor_b32 {v(89)}, {s(S_NONCE)}, {v(83)}")
I(f"v_xor_b32 {v(93)}, {s(S_NONCE)}, {v(85)}")
I(f"v_xor_b32 {v(94)}, {s(S_NONCE)}, {v(87)}")
I(f"v_or3_b32 {v(88)}, {v(88)}, {v(89)}, {v(93)}")
I(f"v_or_b32 {v(88)}, {v(88)}, {v(94)}")
I(f"v_cmp_ne_u32 vcc, 0, {v(88)}")
I(f"s_add_u32 {s(S_CNT)}, {s(S_CNT)}, 1")
I(f"s_cmp_eq_u64 vcc, 0")
I(f"s_cbranch_scc1 L_fixpoll_done")
I("s_sleep 2")
I(f"s_cmp_lt_u32 {s(S_CNT)}, {POLL_LIMIT}")
I(f"s_cbranch_scc1 L_fixpoll")
L("L_fixpoll_done")
I(f"v_add_f32 {v(80)}, {v(80)}, {v(84)}")
I(f"v_add_f32 {v(82)}, {v(82)}, {v(86)}")
I("s_nop 0")
dpp_reduce([80, 82])
I("s_nop 0")
I(f"v_cvt_pk_bf16_f32 {v(84)}, {v(80)}, {v(82)}")
unpack(80, 84)
I("s_waitcnt lgkmcnt(0)")
unpack(82, 79)
I(f"v_pk_fma_f32 {v(80,2)}, {v(80,2)}, {v(92,2)}, {v(82,2)} op_sel_hi:[1,0,1]")
I(f"v_cvt_pk_bf16_f32 {v(84)}, {v(80)}, {v(81)}")
I(f"s_lshl_b32 {s(S_T1)}, {s(S_T0)}, 10")
I(f"s_lshl_b32 {s(S_T2)}, {s(S_DP)}, 2")
I(f"s_add_u32 {s(S_T1)}, {s(S_T1)}, {s(S_T2)}")
I(f"v_mov_b32 {v(85)}, {s(S_T1)}")
I("s_lshl_b64 exec, 1, 63")
I(f"global_store_dword {v(85)}, {v(84)}, {s(P_OUT,2)}")
I("s_mov_b64 exec, -1")
L("L_fix_skip")
I(f"s_mov_b32 {s(S_K1)}, {s(S_K2)}")
I(f"s_add_u32 {s(S_X0)}, {s(S_X0)}, 1")
I(f"s_cmp_lt_u32 {s(S_X0)}, 2")
I("s_cbranch_scc1 L_fix")
I("s_branch L_fin")

L("L_ffn")
nstamp[0] = 1
C("==== FFN role")
S_G = 47
I(f"s_sub_u32 {s(S_T0)}, s2, {NLN + NCONV}")
I(f"s_and_b32 {s(S_T1)}, {s(S_T0)}, 7")
I(f"s_mul_i32 {s(S_T1)}, {s(S_T1)}, 14")
I(f"s_lshr_b32 {s(S_T0)}, {s(S_T0)}, 3")
I(f"s_add_u32 {s(S_G)}, {s(S_T0)}, {s(S_T1)}")
WL = 32
t1, t2, t3, t4 = 12, 13, 14, 15
I(f"v_lshlrev_b32 {v(t4)}, 4, v0")
I(f"v_lshrrev_b32 {v(t1)}, 2, v0")
I(f"v_mul_u32_u24 {v(t1)}, 3584, {v(t1)}")
I(f"v_and_b32 {v(t2)}, 1, v0")
I(f"v_lshl_add_u32 {v(t1)}, {v(t2)}, 4, {v(t1)}")
I(f"s_lshl_b32 {s(S_T0)}, {s(S_G)}, 5")
I(f"v_add_u32 {v(t1)}, {s(S_T0)}, {v(t1)}")
I(f"v_and_b32 {v(t2)}, 2, v0")
I(f"v_cmp_eq_u32 vcc, 0, {v(t2)}")
I("s_waitcnt lgkmcnt(0)")
I(f"v_mov_b32 {v(16)}, {s(P_WU)}")
I(f"v_mov_b32 {v(17)}, {s(P_WU+1)}")
I(f"v_mov_b32 {v(18)}, {s(P_WG)}")
I(f"v_mov_b32 {v(19)}, {s(P_WG+1)}")
I(f"v_cndmask_b32 {v(16)}, {v(16)}, {v(18)}, vcc")
I(f"v_cndmask_b32 {v(17)}, {v(17)}, {v(19)}, vcc")
I(f"v_add_co_u32 {v(16)}, vcc, {v(16)}, {v(t1)}")
I("s_nop 1")
I(f"v_addc_co_u32 {v(17)}, vcc, {v(17)}, {v(VZ)}, vcc")
I(f"s_add_u32 {s(S_PART)}, {s(P_WS)}, {WS_PART}")
I(f"s_addc_u32 {s(S_PART+1)}, {s(P_WS+1)}, 0")
stamp()
I(f"s_mov_b32 {s(S_T1)}, {64*3584}")
WD = 96
I(f"s_lshl_b32 {s(S_T0)}, {s(S_G)}, 14")
I(f"v_lshl_add_u32 {v(t3)}, v0, 2, {s(S_T0)}")
for p in range(8):
    I(f"global_load_dwordx4 {v(WL+4*p,4)}, {v(16,2)}, off")
    if p < 7:
        I(f"v_add_co_u32 {v(16)}, vcc, {s(S_T1)}, {v(16)}")
        I("s_nop 1")
        I(f"v_addc_co_u32 {v(17)}, vcc, {v(17)}, {v(VZ)}, vcc")
for f in range(16):
    if f and f % 4 == 0:
        I(f"v_add_u32 {v(t3)}, 4096, {v(t3)}")
    I(f"global_load_dword {v(WD+f)}, {v(t3)}, {s(P_WD,2)} offset:{(f&3)*1024}")
nonce_issue(VZ, 22)
for p in range(8):
    I(f"s_waitcnt vmcnt({17 + 7 - p})")
    I(f"ds_write_b128 {v(t4)}, {v(WL+4*p,4)} offset:{F_W + 4096*p}")
stamp()
I(f"v_lshrrev_b32 {v(t1)}, 2, {v(VJ)}")
I(f"v_lshl_add_u32 {v(t1)}, {v(VKG)}, 3, {v(t1)}")
I(f"v_lshlrev_b32 {v(t1)}, 6, {v(t1)}")
I(f"v_and_b32 {v(t2)}, 1, {v(VL)}")
I(f"v_lshl_add_u32 {v(t1)}, {v(t2)}, 3, {v(t1)}")
I(f"v_and_b32 {v(t2)}, 2, {v(VL)}")
I(f"v_lshl_add_u32 {v(t1)}, {v(t2)}, 4, {v(t1)}")
I(f"s_and_b32 {s(S_T0)}, {s(S_WAVE)}, 1")
I(f"s_lshl_b32 {s(S_T0)}, {s(S_T0)}, 4")
I(f"v_add_u32 {v(t1)}, {s(S_T0)}, {v(t1)}")
I("s_waitcnt lgkmcnt(0)")
I("s_barrier")
for st in range(16):
    I(f"ds_read_b64_tr_b16 {v(WL+4*st,2)}, {v(t1)} offset:{F_W + 2048*st}")
    I(f"ds_read_b64_tr_b16 {v(WL+4*st+2,2)}, {v(t1)} offset:{F_W + 2048*st + 256}")
WF = 128
nonce_wait(VZ, 22)
for f in range(16): unpack(WF+2*f, WD+f)
I(f"v_bfe_u32 {v(t2)}, {v(VJ)}, 2, 1")
I(f"v_lshlrev_b32 {v(t2)}, 10, {v(t2)}")
I(f"v_lshl_add_u32 {v(t2)}, {v(VKG)}, 4, {v(t2)}")
I(f"s_and_b32 {s(S_T1)}, {s(S_WAVE)}, 1")
I(f"s_lshl_b32 {s(S_T1)}, {s(S_T1)}, 9")
I(f"v_lshl_add_u32 {v(24)}, {v(VL)}, 3, {s(S_T1)}")
I(f"s_lshr_b32 {s(S_T0)}, {s(S_WAVE)}, 1")
I(f"s_lshl_b32 {s(S_T1)}, {s(S_T0)}, 10")
I(f"v_add_u32 {v(25)}, {s(S_T1)}, {v(24)}")
I("s_waitcnt lgkmcnt(0)")
stamp()
GK = 192
I("s_setprio 3")
I(f"s_cmp_lg_u32 {s(S_WAVE)}, 0")
I("s_cbranch_scc1 L_fk_wait")
keys_poll(VKEY, GK, 20)
keys_top2(GK, 224, 225, 21, 22)
I(f"ds_write_b64 {v(VZ)}, {v(224,2)} offset:{L_MISC + 16}")
I("s_waitcnt lgkmcnt(0)")
L("L_fk_wait")
I("s_barrier")
stamp()
I(f"ds_read_b64 {v(224,2)}, {v(VZ)} offset:{L_MISC + 16}")
I("s_waitcnt lgkmcnt(0)")
I(f"v_readfirstlane_b32 {s(S_K1)}, {v(224)}")
I(f"v_readfirstlane_b32 {s(S_K2)}, {v(225)}")
I(f"s_cmp_lt_u32 {s(S_WAVE)}, 2")
I("s_nop 2")
I(f"s_cselect_b32 {s(S_T0)}, {s(S_K1)}, {s(S_K2)}")
I(f"s_and_b32 {s(S_T0)}, {s(S_T0)}, 0xffff")
I(f"s_sub_u32 {s(S_T0)}, 0xffff, {s(S_T0)}")
I(f"s_min_u32 {s(S_T0)}, {s(S_T0)}, 2047")
I(f"s_lshl_b32 {s(S_T1)}, {s(S_T0)}, 10")
I(f"v_add_u32 {v(97)}, {s(S_T1)}, {v(24)}")
I(f"s_lshl_b32 {s(S_T1)}, {s(S_T0)}, 3")
I(f"v_mov_b32 {v(99)}, {s(S_T1)}")
I(f"global_load_dwordx2 {v(100,2)}, {v(97)}, {s(P_U,2)}")
I(f"s_mov_b32 {s(S_CNT)}, 0")
L("L_f_stat")
I(f"global_load_dwordx2 {v(104,2)}, {v(99)}, {s(P_WS,2)} sc1")
I("s_waitcnt vmcnt(0)")
I(f"v_cmp_ne_u32 vcc, {s(S_NONCE)}, {v(105)}")
I(f"s_add_u32 {s(S_CNT)}, {s(S_CNT)}, 1")
I(f"s_cmp_eq_u64 vcc, 0")
I(f"s_cbranch_scc1 L_f_stat_done")
I("s_sleep 1")
I(f"s_cmp_lt_u32 {s(S_CNT)}, {POLL_LIMIT}")
I(f"s_cbranch_scc1 L_f_stat")
L("L_f_stat_done")
stamp()
I(f"v_and_b32 {v(106)}, {s(S_MASK)}, {v(104)}")
I(f"v_lshlrev_b32 {v(104)}, 16, {v(104)}")
I(f"v_rcp_f32 {v(106)}, {v(106)}")
for k in range(2): unpack(108+2*k, 100+k)
for k in range(2): I(f"v_pk_add_f32 {v(108+2*k,2)}, {v(108+2*k,2)}, {v(104,2)} op_sel_hi:[1,0] neg_lo:[0,1] neg_hi:[0,1]")
for k in range(2): I(f"v_cvt_pk_bf16_f32 {v(100+k)}, {v(108+2*k)}, {v(109+2*k)}")
for k in range(2): unpack(108+2*k, 100+k)
for k in range(2): I(f"v_pk_mul_f32 {v(108+2*k,2)}, {v(108+2*k,2)}, {v(106,2)} op_sel_hi:[1,0]")
for k in range(2): I(f"v_cvt_pk_bf16_f32 {v(100+k)}, {v(108+2*k)}, {v(109+2*k)}")
I(f"ds_write_b64 {v(25)}, {v(100,2)} offset:{F_XS}")
I("s_waitcnt lgkmcnt(0)")
I("s_barrier")
I(f"s_cmp_ge_u32 {s(S_WAVE)}, 2")
I("s_cbranch_scc1 L_f_nogu")
AX = 160
for st in range(16):
    I(f"ds_read_b128 {v(AX+4*st,4)}, {v(t2)} offset:{F_XS + 64*st}")
AC = 96
for st in range(16):
    I(f"s_waitcnt lgkmcnt({15-st})")
    a = AC + 4*(st & 1)
    I(f"v_mfma_f32_16x16x32_bf16 {v(a,4)}, {v(AX+4*st,4)}, {v(WL+4*st,4)}, {'0' if st < 2 else v(a,4)}")
I(f"v_lshlrev_b32 {v(107)}, 7, {v(VKG)}")
I(f"v_lshl_add_u32 {v(107)}, {v(VJ)}, 3, {v(107)}")
I(f"s_lshl_b32 {s(S_T0)}, {s(S_WAVE)}, 6")
I(f"v_add_u32 {v(107)}, {s(S_T0)}, {v(107)}")
I("s_nop 4")
I(f"v_add_f32 {v(104)}, {v(AC)}, {v(AC+4)}")
I(f"v_cvt_pk_bf16_f32 {v(104)}, {v(104)}, {v(104)}")
I(f"v_lshlrev_b32 {v(104)}, 16, {v(104)}")
I(f"v_mul_f32 {v(105)}, {f2u(-LOG2E):#x}, {v(104)}")
I(f"v_exp_f32 {v(105)}, {v(105)}")
I(f"v_mov_b32_dpp {v(106)}, {v(104)} row_ror:8 row_mask:0xf bank_mask:0xf")
I(f"v_add_f32 {v(105)}, 1.0, {v(105)}")
I(f"v_rcp_f32 {v(105)}, {v(105)}")
I("s_nop 0")
I(f"v_mul_f32 {v(105)}, {v(104)}, {v(105)}")
I(f"v_cvt_pk_bf16_f32 {v(105)}, {v(105)}, {v(105)}")
I(f"v_lshlrev_b32 {v(105)}, 16, {v(105)}")
I(f"v_mul_f32 {v(105)}, {v(105)}, {v(106)}")
I(f"v_cvt_pk_bf16_f32 {v(105)}, {v(105)}, {v(105)}")
I(f"v_lshlrev_b32 {v(105)}, 16, {v(105)}")
I("s_mov_b64 exec, 0x00ff00ff")
I(f"ds_write2_b32 {v(107)}, {v(105)}, {v(105)} offset0:{F_H//4} offset1:{F_H//4+1}")
I("s_mov_b64 exec, -1")
I("s_waitcnt lgkmcnt(0)")
L("L_f_nogu")
I("s_barrier")
HB = 160
for q in range(16):
    I(f"ds_read_b128 {v(HB+4*q,4)}, {v(VZ)} offset:{F_H + 16*q}")
Y0, Y1 = 96, 100
I(f"s_lshl_b32 {s(S_T0)}, {s(S_G)}, 12")
I(f"v_lshl_add_u32 {v(112)}, v0, 4, {s(S_T0)}")
I(f"v_add_u32 {v(113)}, 0x80000, {v(112)}")
for Y in (Y0, Y1):
    I(f"v_mov_b32 {v(Y+1)}, {s(S_NONCE)}")
    I(f"v_mov_b32 {v(Y+3)}, {s(S_NONCE)}")
for q in range(16):
    tok = q >> 3
    I(f"s_waitcnt lgkmcnt({15-q})")
    for e in range(2):
        f = 2*(q & 7) + e
        acc = 104 + 4*tok + 2*e
        hp = HB + 4*q + 2*e
        if f < 2:
            I(f"v_pk_mul_f32 {v(acc,2)}, {v(WF+2*f,2)}, {v(hp,2)}")
        else:
            I(f"v_pk_fma_f32 {v(acc,2)}, {v(WF+2*f,2)}, {v(hp,2)}, {v(acc,2)}")
    if q == 7 or q == 15:
        Y = Y0 if q == 7 else Y1
        I(f"v_add_f32 {v(Y)}, {v(104+4*tok)}, {v(106+4*tok)}")
        I(f"v_add_f32 {v(Y+2)}, {v(105+4*tok)}, {v(107+4*tok)}")
        I(f"global_store_dwordx4 {v(112+tok)}, {v(Y,4)}, {s(S_PART,2)} sc1")
stamp()
L("L_fin")
if STAMP:
    I("s_waitcnt vmcnt(0) lgkmcnt(0)")
    I(f"s_memtime {s(S_ST + 22, 2)}")
    I(f"s_memrealtime {s(S_T2, 2)}")
    I(f"s_add_u32 {s(S_STB)}, {s(P_WS)}, {WS_STAMP}")
    I(f"s_addc_u32 {s(S_STB+1)}, {s(P_WS+1)}, 0")
    I(f"s_lshl_b32 {s(S_T0)}, s2, 2")
    I(f"s_add_u32 {s(S_T0)}, {s(S_T0)}, {s(S_WAVE)}")
    I(f"s_lshl_b32 {s(S_T0)}, {s(S_T0)}, 7")
    I("s_waitcnt lgkmcnt(0)")
    I(f"v_mov_b32 v10, {s(S_T0)}")
    I("s_mov_b64 exec, 1")
    for k in range(12):
        I(f"v_mov_b32 v12, {s(S_ST+2*k)}")
        I(f"v_mov_b32 v13, {s(S_ST+2*k+1)}")
        I(f"global_store_dwordx2 v10, v[12:13], {s(S_STB,2)} offset:{8*k}")
        I("s_nop 1")
    I(f"v_mov_b32 v12, {s(S_T2)}")
    I(f"v_mov_b32 v13, {s(S_T3)}")
    I(f"global_store_dwordx2 v10, v[12:13], {s(S_STB,2)} offset:96")
L("L_end")
I("s_endpgm")
out.append('.section .rodata,"a"')
out.append(".p2align 6")
out.append(f".amdhsa_kernel {KNAME}")
out.append("  .amdhsa_next_free_vgpr 256")
out.append("  .amdhsa_next_free_sgpr 102")
out.append("  .amdhsa_accum_offset 256")
out.append("  .amdhsa_group_segment_fixed_size 0")
out.append("  .amdhsa_kernarg_size 136")
out.append("  .amdhsa_user_sgpr_count 2")
out.append("  .amdhsa_user_sgpr_kernarg_segment_ptr 1")
out.append("  .amdhsa_system_sgpr_workgroup_id_x 1")
out.append("  .amdhsa_float_denorm_mode_32 3")
out.append(".end_amdhsa_kernel")
dst = [a for a in sys.argv[1:] if not a.startswith("--")]
open(dst[0] if dst else "k.s", "w").write("\n".join(x for x in out if x is not None) + "\n")
```

```python
import sys, struct, math

KNAME = "parallel_sum__ssm_conv_s4__moe_arch_mod__prompt_kernel"
NLN = 128
NCONV = 256
G = 112
NWG = NLN + NCONV + G
STAMP = "--stamp" in sys.argv

WS_STATS = 0
WS_KEYS = 16384
WS_FLAG = 32768
WS_PART = 65536
WS_STAMP = 2 << 20
WS_XNG = 4 << 20
WS_XT = 8 << 20

L_MISC = 0
L_KC = 256
KC_S = 4160
KC_D = 4 * KC_S
L_U = L_KC + 2 * KC_D
U_D = 4608
L_XL = L_U + 2 * U_D
L_R1 = L_XL + 8192
L_KTAB = L_R1
KTAB_D = 7680
L_PAR = L_XL
L_R2 = L_R1
LDS_BYTES = L_R1 + 16384
ZIDX = 840
TRASH = 848
TS = 1040
L_T1 = L_KC
L_T2 = L_T1 + 16 * TS
F_H = 256
F_XS = 512
F_W = F_XS + 2048
assert F_W + 32768 <= LDS_BYTES
assert LDS_BYTES <= 81920
POLL_LIMIT = 40000
def opt(name, dflt):
    m = [a for a in sys.argv if a.startswith(f"--{name}=")]
    return int(m[0].split("=")[1]) if m else dflt
LNPRIO = opt("lnprio", 2)
FPRIO = opt("fprio", 3)
KSLEEP = int([a for a in sys.argv if a.startswith("--ksleep=")][0][9:]) if any(a.startswith("--ksleep=") for a in sys.argv) else 3

out = []
cur = [out]
def I(s): cur[0].append("    " + s)
def L(s): cur[0].append(s + ":")
def C(s): cur[0].append("    ; " + s)
class capture:
    def __enter__(self):
        self.prev = cur[0]; self.lst = []; cur[0] = self.lst; return self.lst
    def __exit__(self, *a): cur[0] = self.prev
def f2u(x): return struct.unpack("<I", struct.pack("<f", x))[0]
def v(a, n=1): return f"v{a}" if n == 1 else f"v[{a}:{a+n-1}]"
def s(a, n=1): return f"s{a}" if n == 1 else f"s[{a}:{a+n-1}]"
uid = [0]
def lab(p):
    uid[0] += 1
    return f"L_{p}_{uid[0]}"

P_U, P_ARE, P_AIM, P_BRE, P_BIM, P_CRE, P_CIM, P_LDT = 8, 10, 12, 14, 16, 18, 20, 22
P_DSK, P_BX, P_WR, P_WG, P_WU, P_WD, P_OUT, P_DBG = 24, 26, 28, 30, 32, 34, 36, 38
P_WS = 40
S_WAVE, S_DP, S_NONCE, S_LDT, S_DSK, S_ROW0 = 42, 43, 44, 45, 46, 47
S_T0, S_T1, S_T2, S_T3 = 48, 49, 50, 51
S_X0 = 52
S_R = 56
S_DS2 = 60
S_UNS = 62
S_M0 = 63
S_CNT = 64
S_EXEC = 66
S_PART = 70
S_K1, S_K2 = 72, 73
S_XNG = 68
S_XT = 4
S_XNB = 6
S_MASK = 74
S_ST = 76
S_STB = 100
LOG2E = math.log2(math.e)

nstamp = [0]
def stamp():
    if not STAMP: return
    k = nstamp[0]; nstamp[0] += 1
    assert k < 11
    I(f"s_memtime {s(S_ST + 2*k, 2)}")

DPP4 = ("quad_perm:[1,0,3,2] row_mask:0xf bank_mask:0xf",
        "quad_perm:[2,3,0,1] row_mask:0xf bank_mask:0xf",
        "row_half_mirror row_mask:0xf bank_mask:0xf",
        "row_mirror row_mask:0xf bank_mask:0xf")
DPP6 = DPP4 + ("row_bcast:15 row_mask:0xa bank_mask:0xf", "row_bcast:31 row_mask:0xc bank_mask:0xf")
def dpp_reduce(regs, op="v_add_f32"):
    for mode in DPP6:
        pad = max(0, 3 - len(regs))
        if pad: I(f"s_nop {pad-1}")
        for r in regs:
            I(f"{op}_dpp {v(r)}, {v(r)}, {v(r)} {mode}")

def nonce_cas(vz, vt):
    l = lab("nocas")
    I(f"s_cmp_lg_u32 {s(S_T0)}, 0")
    I(f"s_cbranch_scc1 {l}")
    I(f"s_memrealtime {s(S_T2,2)}")
    I("s_waitcnt lgkmcnt(0)")
    I(f"s_or_b32 {s(S_T2)}, {s(S_T2)}, 1")
    I(f"v_mov_b32 {v(vt)}, {s(S_T2)}")
    I(f"v_mov_b32 {v(vt+1)}, 0")
    I("s_mov_b64 exec, 1")
    I(f"global_atomic_cmpswap {v(vz)}, {v(vt,2)}, {s(P_DBG,2)} sc1")
    I("s_mov_b64 exec, -1")
    L(l)

def nonce_issue(vz, vt):
    I(f"global_load_dword {v(vt)}, {v(vz)}, {s(P_DBG,2)} sc1")

def nonce_wait(vz, vt, first=0):
    l = lab("npoll"); done = l + "_done"
    I(f"s_mov_b32 {s(S_CNT)}, 0")
    if first:
        I(f"s_waitcnt vmcnt({first})")
        I(f"s_branch {l}_chk")
    L(l)
    I("s_waitcnt vmcnt(0)")
    L(l + "_chk")
    I(f"v_readfirstlane_b32 {s(S_NONCE)}, {v(vt)}")
    I(f"s_add_u32 {s(S_CNT)}, {s(S_CNT)}, 1")
    I(f"s_cmp_lg_u32 {s(S_NONCE)}, 0")
    I(f"s_cbranch_scc1 {done}")
    I(f"s_cmp_ge_u32 {s(S_CNT)}, {POLL_LIMIT}")
    I(f"s_cbranch_scc1 {done}")
    I("s_sleep 1")
    nonce_issue(vz, vt)
    I(f"s_branch {l}")
    L(done)

def sweep_issue(vaddr, GR, base):
    for k in range(4):
        I(f"global_load_dwordx4 {v(GR+4*k,4)}, {v(vaddr+k)}, {s(base,2)} sc1")

def sweep_check(GR, vtmp):
    I(f"v_xor_b32 {v(vtmp)}, {s(S_NONCE)}, {v(GR+1)}")
    I(f"v_xor_b32 {v(vtmp+1)}, {s(S_NONCE)}, {v(GR+3)}")
    for k in range(1, 4):
        I(f"v_xor_b32 {v(vtmp+2)}, {s(S_NONCE)}, {v(GR+4*k+1)}")
        I(f"v_xor_b32 {v(vtmp+3)}, {s(S_NONCE)}, {v(GR+4*k+3)}")
        I(f"v_or3_b32 {v(vtmp)}, {v(vtmp)}, {v(vtmp+2)}, {v(vtmp+3)}")
    I(f"v_or_b32 {v(vtmp)}, {v(vtmp)}, {v(vtmp+1)}")
    I(f"v_cmp_ne_u32 vcc, 0, {v(vtmp)}")

def sweep(vaddr, GR, vtmp, base, issued=False, first_wait=0):
    l = lab("sweep"); done = l + "_done"; chk = l + "_chk"
    I(f"s_mov_b32 {s(S_CNT)}, 0")
    if issued:
        I(f"s_waitcnt vmcnt({first_wait})")
        I(f"s_branch {chk}")
    L(l)
    sweep_issue(vaddr, GR, base)
    I("s_waitcnt vmcnt(0)")
    L(chk)
    sweep_check(GR, vtmp)
    I(f"s_add_u32 {s(S_CNT)}, {s(S_CNT)}, 1")
    I(f"s_cmp_eq_u64 vcc, 0")
    I(f"s_cbranch_scc1 {done}")
    I("s_sleep 4")
    I(f"s_cmp_lt_u32 {s(S_CNT)}, {POLL_LIMIT}")
    I(f"s_cbranch_scc1 {l}")
    L(done)

def poll4(vaddr, GR, tagpos, vtmp, issued=False, first_wait=0, sleep=2):
    l = lab("poll"); done = l + "_done"; chk = l + "_chk"
    I(f"s_mov_b32 {s(S_CNT)}, 0")
    if issued:
        I(f"s_waitcnt vmcnt({first_wait})")
        I(f"s_branch {chk}")
    L(l)
    I(f"global_load_dwordx4 {v(GR,4)}, {v(vaddr)}, {s(P_WS,2)} sc1")
    I("s_waitcnt vmcnt(0)")
    L(chk)
    for k, tp in enumerate(tagpos): I(f"v_xor_b32 {v(vtmp+k)}, {s(S_NONCE)}, {v(GR+tp)}")
    if len(tagpos) == 4:
        I(f"v_or3_b32 {v(vtmp)}, {v(vtmp)}, {v(vtmp+2)}, {v(vtmp+3)}")
    I(f"v_or_b32 {v(vtmp)}, {v(vtmp)}, {v(vtmp+1)}")
    I(f"v_cmp_ne_u32 vcc, 0, {v(vtmp)}")
    I(f"s_add_u32 {s(S_CNT)}, {s(S_CNT)}, 1")
    I(f"s_cmp_eq_u64 vcc, 0")
    I(f"s_cbranch_scc1 {done}")
    I(f"s_sleep {sleep}")
    I(f"s_cmp_lt_u32 {s(S_CNT)}, {POLL_LIMIT}")
    I(f"s_cbranch_scc1 {l}")
    L(done)

def top2_wave(GR, m1, m2, t1, t2):
    I(f"v_mov_b32 {v(m1)}, {v(GR)}")
    I(f"v_mov_b32 {v(m2)}, {v(GR+2)}")
    for mode in DPP4:
        I("s_nop 1")
        I(f"v_mov_b32_dpp {v(t1)}, {v(m1)} {mode}")
        I(f"v_max_u32_dpp {v(t2)}, {v(m2)}, {v(m2)} {mode}")
        I(f"v_med3_u32 {v(m2)}, {v(m1)}, {v(t1)}, {v(t2)}")
        I(f"v_max_u32 {v(m1)}, {v(m1)}, {v(t1)}")
    for swp in ("v_permlane16_swap_b32", "v_permlane32_swap_b32"):
        I(f"v_mov_b32 {v(t1)}, {v(m1)}")
        I(f"v_mov_b32 {v(t2)}, {v(m2)}")
        I("s_nop 1")
        I(f"{swp} {v(m1)}, {v(t1)}")
        I(f"{swp} {v(m2)}, {v(t2)}")
        I("s_nop 0")
        I(f"v_max_u32 {v(t2)}, {v(m2)}, {v(t2)}")
        I(f"v_med3_u32 {v(m2)}, {v(m1)}, {v(t1)}, {v(t2)}")
        I(f"v_max_u32 {v(m1)}, {v(m1)}, {v(t1)}")

def top2_combine(a, t1):
    for k in (1, 2, 3):
        I(f"v_max_u32 {v(t1)}, {v(a+1)}, {v(a+2*k+1)}")
        I(f"v_med3_u32 {v(a+1)}, {v(a)}, {v(a+2*k)}, {v(t1)}")
        I(f"v_max_u32 {v(a)}, {v(a)}, {v(a+2*k)}")

def unpack(dst, src):
    I(f"v_lshlrev_b32 {v(dst)}, 16, {v(src)}")
    I(f"v_and_b32 {v(dst+1)}, {s(S_MASK)}, {v(src)}")


def keys_poll(vaddr, GK, vtmp):
    l = lab("kpoll"); done = l + "_done"
    I(f"s_mov_b32 {s(S_CNT)}, 0")
    L(l)
    I(f"global_load_dwordx4 {v(GK,4)}, {v(vaddr)}, {s(P_WS,2)} sc1")
    I(f"global_load_dwordx4 {v(GK+4,4)}, {v(vaddr+1)}, {s(P_WS,2)} sc1")
    I("s_waitcnt vmcnt(0)")
    for k in range(4): I(f"v_xor_b32 {v(vtmp+k)}, {s(S_NONCE)}, {v(GK+2*k+1)}")
    I(f"v_or3_b32 {v(vtmp)}, {v(vtmp)}, {v(vtmp+2)}, {v(vtmp+3)}")
    I(f"v_or_b32 {v(vtmp)}, {v(vtmp)}, {v(vtmp+1)}")
    I(f"v_cmp_ne_u32 vcc, 0, {v(vtmp)}")
    I(f"s_add_u32 {s(S_CNT)}, {s(S_CNT)}, 1")
    I(f"s_cmp_eq_u64 vcc, 0")
    I(f"s_cbranch_scc1 {done}")
    I(f"s_sleep {KSLEEP}")
    I(f"s_cmp_lt_u32 {s(S_CNT)}, {POLL_LIMIT}")
    I(f"s_cbranch_scc1 {l}")
    L(done)

def keys_top2(GK, m1, m2, t1, t2):
    I(f"v_max_u32 {v(t2)}, {v(GK+2)}, {v(GK+6)}")
    I(f"v_med3_u32 {v(GK+2)}, {v(GK)}, {v(GK+4)}, {v(t2)}")
    I(f"v_max_u32 {v(GK)}, {v(GK)}, {v(GK+4)}")
    top2_wave(GK, m1, m2, t1, t2)
    I("s_nop 0")
    I(f"v_readfirstlane_b32 {s(S_K1)}, {v(m1)}")
    I(f"v_readfirstlane_b32 {s(S_K2)}, {v(m2)}")


def keys_issue(vaddr, GK):
    I(f"global_load_dwordx4 {v(GK,4)}, {v(vaddr)}, {s(P_WS,2)} sc1")
    I(f"global_load_dwordx4 {v(GK+4,4)}, {v(vaddr+1)}, {s(P_WS,2)} sc1")
def keys_check(GK, vtmp):
    for k in range(4): I(f"v_xor_b32 {v(vtmp+k)}, {s(S_NONCE)}, {v(GK+2*k+1)}")
    I(f"v_or3_b32 {v(vtmp)}, {v(vtmp)}, {v(vtmp+2)}, {v(vtmp+3)}")
    I(f"v_or_b32 {v(vtmp)}, {v(vtmp)}, {v(vtmp+1)}")
    I(f"v_cmp_ne_u32 vcc, 0, {v(vtmp)}")
    I(f"s_cmp_eq_u64 vcc, 0")

hdr = open("parallel_sum__ssm_conv_s4__moe_arch_mod__prompt.s.ref").read().split("; Override")[0]
out.append(hdr.rstrip())
out.append(f"; @launch grid=({NWG},1,1) block=(256,1,1) lds={LDS_BYTES}")
out.append('.amdgcn_target "amdgcn-amd-amdhsa--gfx950"')
out.append(".text")
out.append(f".globl {KNAME}")
out.append(".p2align 8")
out.append(f".type {KNAME},@function")
L(KNAME)
I(f"s_cmp_ge_u32 s2, {NWG}")
I("s_cbranch_scc1 L_end")
I(f"s_load_dwordx16 s[8:23], s[0:1], 0")
I(f"s_load_dwordx16 s[24:39], s[0:1], 64")
I(f"s_load_dwordx2 {s(P_WS,2)}, s[0:1], 128")
stamp()
VL, VZ, VJ, VKG = 1, 2, 5, 6
VO, VO2 = 10, 11
I(f"v_and_b32 {v(VL)}, 63, v0")
I(f"v_lshrrev_b32 v3, 6, v0")
I(f"v_mov_b32 {v(VZ)}, 0")
I(f"v_readfirstlane_b32 {s(S_WAVE)}, v3")
I(f"s_mov_b32 {s(S_MASK)}, 0xffff0000")
I(f"v_lshlrev_b32 {v(VO2)}, 4, {v(VL)}")
I(f"s_cmp_ge_u32 s2, {NLN}")
I("s_cbranch_scc1 L_notln")

C("==== LayerNorm role: 16 rows per workgroup, 4 per wave")
I(f"s_setprio {LNPRIO}")
NR = 4
X = [12 + 4*r for r in range(NR)]
WR = 28
F = [32 + 8*r for r in range(NR)]
D = [64 + 8*r for r in range(NR)]
T = [96 + 8*r for r in range(NR)]
S1 = [128 + r for r in range(NR)]
S2 = [132 + r for r in range(NR)]
S3 = [136 + r for r in range(NR)]
SW = 140
SX0 = [52 + 2*r for r in range(NR)]
VNON = 141
VTW, VTR2, VTS2 = 142, 143, 144
t1, t2 = 145, 146
VC, VONE = 147, 148
TX = 160
R_ = range(NR)
I(f"s_lshl_b32 {s(S_ROW0)}, s2, 4")
I(f"s_lshl_b32 {s(S_T0)}, {s(S_WAVE)}, 2")
I(f"s_add_u32 {s(S_ROW0)}, {s(S_ROW0)}, {s(S_T0)}")
I(f"s_lshl_b32 {s(S_T0)}, {s(S_ROW0)}, 10")
I(f"v_add_u32 {v(VO)}, {s(S_T0)}, {v(VO2)}")
I("s_waitcnt lgkmcnt(0)")
for r in R_:
    I(f"global_load_dwordx4 {v(X[r],4)}, {v(VO)}, {s(P_U,2)} offset:{1024*r}")
I(f"global_load_dwordx4 {v(WR,4)}, {v(VO2)}, {s(P_WR,2)}")
C("---- pull the kernel's own code into this die's L2 (instruction fetch then misses only to L2)")
NCP = int([a for a in sys.argv if a.startswith("--ncp=")][0][6:]) if any(a.startswith("--ncp=") for a in sys.argv) else 32
I(f"s_getpc_b64 {s(S_EXEC,2)}")
L("L_pc")
I(f"s_sub_u32 {s(S_EXEC)}, {s(S_EXEC)}, L_pc-{KNAME}")
I(f"s_subb_u32 {s(S_EXEC+1)}, {s(S_EXEC+1)}, 0")
I(f"v_lshlrev_b32 {v(t1)}, 6, v0")
I(f"v_min_u32 {v(t1)}, L_end-{KNAME}, {v(t1)}")
I(f"s_cmp_ge_u32 s2, {NCP}")
I("s_cbranch_scc1 L_nocp")
I(f"global_load_dword {v(159)}, {v(t1)}, {s(S_EXEC,2)}")
I("s_branch L_cpdone")
L("L_nocp")
I(f"global_load_dword {v(159)}, {v(VZ)}, {s(P_WR,2)}")
L("L_cpdone")
I(f"s_add_u32 {s(S_XT)}, {s(P_WS)}, {WS_XT}")
I(f"s_addc_u32 {s(S_XT+1)}, {s(P_WS+1)}, 0")
I(f"s_mul_i32 {s(S_T2)}, {s(S_WAVE)}, {4*TS}")
I(f"v_add_u32 {v(VTW)}, {s(S_T2)}, {v(VO2)}")
I(f"v_and_b32 {v(t1)}, 3, v0")
I(f"v_lshrrev_b32 {v(t2)}, 2, v0")
I(f"v_mul_u32_u24 {v(VTR2)}, {4*TS}, {v(t1)}")
I(f"v_lshl_add_u32 {v(VTR2)}, {v(t2)}, 2, {v(VTR2)}")
I(f"s_lshl_b32 {s(S_T2)}, s2, 6")
I(f"v_lshl_add_u32 {v(VTS2)}, {v(t1)}, 4, {s(S_T2)}")
I(f"v_lshl_add_u32 {v(VTS2)}, {v(t2)}, 13, {v(VTS2)}")
I(f"s_lshl_b32 {s(S_T2)}, {s(S_ROW0)}, 3")
I(f"v_add_u32 {v(VO)}, {s(S_T2)}, {v(VO2)}")
C("---- warm this die's L2 with FFN weight lines that its FFN workgroups read last (speed only)")
I(f"s_and_b32 {s(S_T0)}, s2, 7")
I(f"s_lshr_b32 {s(S_T1)}, s2, 3")
I(f"s_sub_u32 {s(S_T2)}, {s(S_WAVE)}, 1")
I(f"s_cmp_ge_u32 {s(S_T2)}, 2")
I("s_cbranch_scc1 L_pf_down")
I(f"s_mul_i32 {s(S_T2)}, {s(S_T0)}, 448")
I(f"s_mul_i32 {s(S_T3)}, {s(S_T1)}, {16*3584}")
I(f"s_add_u32 {s(S_T2)}, {s(S_T2)}, {s(S_T3)}")
I(f"s_add_u32 {s(S_T2)}, {s(S_T2)}, {256*3584}")
I(f"v_lshrrev_b32 {v(176)}, 2, {v(VL)}")
I(f"v_mul_u32_u24 {v(176)}, 3584, {v(176)}")
I(f"v_and_b32 {v(177)}, 3, {v(VL)}")
I(f"v_mul_u32_u24 {v(177)}, 148, {v(177)}")
I(f"v_add3_u32 {v(176)}, {v(176)}, {v(177)}, {s(S_T2)}")
I(f"s_cmp_eq_u32 {s(S_WAVE)}, 1")
I(f"s_cselect_b32 {s(S_EXEC)}, {s(P_WG)}, {s(P_WU)}")
I(f"s_cselect_b32 {s(S_EXEC+1)}, {s(P_WG+1)}, {s(P_WU+1)}")
I(f"v_add_u32 {v(177)}, 72, {v(176)}")
I(f"v_min_u32 {v(177)}, {512*3584-4}, {v(177)}")
I("s_branch L_pf_go")
L("L_pf_down")
I(f"s_mul_i32 {s(S_T2)}, {s(S_T0)}, {224*1024}")
I(f"s_mul_i32 {s(S_T3)}, {s(S_T1)}, {14*1024}")
I(f"s_add_u32 {s(S_T2)}, {s(S_T2)}, {s(S_T3)}")
I(f"s_and_b32 {s(S_T3)}, {s(S_WAVE)}, 1")
I(f"s_mul_i32 {s(S_T3)}, {s(S_T3)}, 7168")
I(f"s_add_u32 {s(S_T2)}, {s(S_T2)}, {s(S_T3)}")
I(f"v_min_u32 {v(176)}, 55, {v(VL)}")
I(f"v_lshl_add_u32 {v(176)}, {v(176)}, 6, {s(S_T2)}")
I(f"v_add_u32 {v(177)}, 3584, {v(176)}")
I(f"s_mov_b64 {s(S_EXEC,2)}, {s(P_WD,2)}")
L("L_pf_go")
I(f"v_mov_b32 {v(VC)}, {f2u(1.0/512):#x}")
I(f"v_mov_b32 {v(VONE)}, 0x3f803f80")
for r in R_: I(f"v_mov_b32 {v(S3[r])}, 0")
I(f"v_mov_b32 {v(SW)}, 0")
for r in R_:
    I(f"s_waitcnt vmcnt({NR + 1 - r})")
    if r == 0: stamp()
    I(f"ds_write_b128 {v(VTW)}, {v(X[r],4)} offset:{L_T2 + r*TS}")
    if r < NR - 1:
        for k in range(4): unpack(F[r]+2*k, X[r]+k)
I("s_waitcnt lgkmcnt(0)")
I("s_barrier")
for i in range(4):
    for e in range(4):
        I(f"ds_read_b32 {v(TX+4*i+e)}, {v(VTR2)} offset:{L_T2 + 256*i + e*TS}")
for k in range(4): unpack(F[NR-1]+2*k, X[NR-1]+k)
for r in R_: I(f"v_readfirstlane_b32 {s(SX0[r])}, {v(F[r])}")
for i in range(4):
    I(f"s_waitcnt lgkmcnt({12 - 4*i})")
    I(f"global_store_dwordx4 {v(VTS2)}, {v(TX+4*i,4)}, {s(S_XT,2)} sc1")
    if i < 3: I(f"v_add_u32 {v(VTS2)}, 0x80000, {v(VTS2)}")
nonce_issue(VZ, VNON)
I(f"global_load_dword {v(178)}, {v(176)}, {s(S_EXEC,2)}")
I(f"global_load_dword {v(179)}, {v(177)}, {s(S_EXEC,2)}")

stamp()
for k in range(4):
    for r in R_:
        I(f"v_pk_add_f32 {v(D[r]+2*k,2)}, {v(F[r]+2*k,2)}, {s(SX0[r],2)} op_sel_hi:[1,0] neg_lo:[0,1] neg_hi:[0,1]")
I("s_waitcnt vmcnt(8)")
for k in range(4):
    for r in R_: I(f"v_dot2c_f32_bf16 {v(S3[r])}, {v(X[r]+k)}, {v(WR+k)}")
    I(f"v_dot2c_f32_bf16 {v(SW)}, {v(VONE)}, {v(WR+k)}")
for r in R_: I(f"v_pk_add_f32 {v(T[r],2)}, {v(D[r],2)}, {v(D[r]+2,2)}")
for r in R_: I(f"v_pk_mul_f32 {v(T[r]+4,2)}, {v(D[r],2)}, {v(D[r],2)}")
for r in R_: I(f"v_pk_add_f32 {v(T[r]+2,2)}, {v(D[r]+4,2)}, {v(D[r]+6,2)}")
for r in R_: I(f"v_pk_fma_f32 {v(T[r]+4,2)}, {v(D[r]+2,2)}, {v(D[r]+2,2)}, {v(T[r]+4,2)}")
for r in R_: I(f"v_pk_add_f32 {v(T[r],2)}, {v(T[r],2)}, {v(T[r]+2,2)}")
for r in R_: I(f"v_pk_fma_f32 {v(T[r]+4,2)}, {v(D[r]+4,2)}, {v(D[r]+4,2)}, {v(T[r]+4,2)}")
for r in R_: I(f"v_add_f32 {v(S1[r])}, {v(T[r])}, {v(T[r]+1)}")
for r in R_: I(f"v_pk_fma_f32 {v(T[r]+4,2)}, {v(D[r]+6,2)}, {v(D[r]+6,2)}, {v(T[r]+4,2)}")
for r in R_: I(f"v_add_f32 {v(S2[r])}, {v(T[r]+4)}, {v(T[r]+5)}")
dpp_reduce(S1 + S3 + [SW] + S2)
for r in R_: I(f"v_mul_f32 {v(S1[r])}, {v(VC)}, {v(S1[r])}")
for r in R_: I(f"v_mul_f32 {v(S2[r])}, {v(VC)}, {v(S2[r])}")
for r in R_: I(f"v_fma_f32 {v(S2[r])}, -{v(S1[r])}, {v(S1[r])}, {v(S2[r])}")
for r in R_: I(f"v_add_f32 {v(S1[r])}, {s(SX0[r])}, {v(S1[r])}")
for r in R_: I(f"v_max_f32 {v(S2[r])}, 0, {v(S2[r])}")
MP = [T[0], T[0]+1]; VP = [T[0]+2, T[0]+3]
for h in range(2): I(f"v_cvt_pk_bf16_f32 {v(MP[h])}, {v(S1[2*h])}, {v(S1[2*h+1])}")
for h in range(2): I(f"v_cvt_pk_bf16_f32 {v(VP[h])}, {v(S2[2*h])}, {v(S2[2*h+1])}")
for h in range(2): unpack(S1[2*h], MP[h])
for h in range(2): unpack(S2[2*h], VP[h])
eps = f2u(1e-5)
for r in R_: I(f"v_add_f32 {v(S2[r])}, {eps:#x}, {v(S2[r])}")
for r in R_: I(f"v_fma_f32 {v(S3[r])}, -{v(S1[r])}, {v(SW)}, {v(S3[r])}")
for h in range(2): I(f"v_cvt_pk_bf16_f32 {v(VP[h])}, {v(S2[2*h])}, {v(S2[2*h+1])}")
for r in R_: I(f"v_lshrrev_b32 {v(S1[r])}, 16, {v(S1[r])}")
for h in range(2): unpack(S2[2*h], VP[h])
for r in R_: I(f"v_sqrt_f32 {v(S2[r])}, {v(S2[r])}")
I("s_nop 0")
for h in range(2): I(f"v_cvt_pk_bf16_f32 {v(VP[h])}, {v(S2[2*h])}, {v(S2[2*h+1])}")
for h in range(2): unpack(S2[2*h], VP[h])
RC = [T[1]+r for r in R_]
for r in R_: I(f"v_rcp_f32 {v(RC[r])}, {v(S2[r])}")
for r in R_: I(f"v_or_b32 {v(S1[r])}, {v(S1[r])}, {v(S2[r])}")
for r in R_: I(f"v_mul_f32 {v(S3[r])}, {v(S3[r])}, {v(RC[r])}")
SMS = [10, 11, 12, 13]
for r in R_: I(f"v_readlane_b32 {s(SMS[r])}, {v(S1[r])}, 63")
for h in range(2): I(f"v_cvt_pk_bf16_f32 {v(MP[h])}, {v(S3[2*h])}, {v(S3[2*h+1])}")
GP = 152
I(f"v_cmp_eq_u32 vcc, 0, {v(VL)}")
for h in range(2): I(f"v_readlane_b32 {s(S_R+h)}, {v(MP[h])}, 63")
I(f"v_mov_b32 {v(GP)}, {s(SMS[2])}")
I(f"v_mov_b32 {v(GP+2)}, {s(SMS[3])}")
I(f"v_mov_b32 {v(t1)}, {s(SMS[0])}")
I(f"v_mov_b32 {v(t2)}, {s(SMS[1])}")
I(f"v_cndmask_b32 {v(GP)}, {v(GP)}, {v(t1)}, vcc")
I(f"v_cndmask_b32 {v(GP+2)}, {v(GP+2)}, {v(t2)}, vcc")
I(f"s_sub_u32 {s(S_T3)}, 0xffff, {s(S_ROW0)}")
KK = [14, 15, 16, 17]
for h in range(2):
    I(f"s_and_b32 {s(S_T0)}, {s(S_R+h)}, 0x80008000")
    I(f"s_lshr_b32 {s(S_T1)}, {s(S_T0)}, 15")
    I(f"s_mul_i32 {s(S_T1)}, {s(S_T1)}, 0x7fff")
    I(f"s_or_b32 {s(S_T1)}, {s(S_T1)}, 0x80008000")
    I(f"s_xor_b32 {s(S_T2)}, {s(S_R+h)}, {s(S_T1)}")
    I(f"s_lshl_b32 {s(S_T0)}, {s(S_T2)}, 16")
    I(f"s_or_b32 {s(S_T0)}, {s(S_T0)}, {s(S_T3)}")
    I(f"s_sub_u32 {s(S_T3)}, {s(S_T3)}, 1")
    I(f"s_and_b32 {s(S_T1)}, {s(S_T2)}, 0xffff0000")
    I(f"s_or_b32 {s(S_T1)}, {s(S_T1)}, {s(S_T3)}")
    I(f"s_sub_u32 {s(S_T3)}, {s(S_T3)}, 1")
    I(f"s_max_u32 {s(KK[2*h])}, {s(S_T0)}, {s(S_T1)}")
    I(f"s_min_u32 {s(KK[2*h+1])}, {s(S_T0)}, {s(S_T1)}")
I(f"s_max_u32 {s(S_T0)}, {s(KK[0])}, {s(KK[2])}")
I(f"s_min_u32 {s(S_T1)}, {s(KK[0])}, {s(KK[2])}")
I(f"s_max_u32 {s(S_T2)}, {s(KK[1])}, {s(KK[3])}")
I(f"s_max_u32 {s(S_T1)}, {s(S_T1)}, {s(S_T2)}")
I(f"v_mov_b32 {v(156)}, {s(S_T0)}")
I(f"v_mov_b32 {v(157)}, {s(S_T1)}")
I(f"s_lshl_b32 {s(S_T0)}, {s(S_WAVE)}, 3")
I(f"v_mov_b32 {v(158)}, {s(S_T0)}")
I(f"ds_write_b64 {v(158)}, {v(156,2)} offset:{L_MISC + 64}")
stamp()
nonce_wait(VZ, VNON, first=2)
stamp()
I(f"v_mov_b32 {v(GP+1)}, {v(VNON)}")
I(f"v_mov_b32 {v(GP+3)}, {v(VNON)}")
I("s_mov_b64 exec, 3")
I(f"global_store_dwordx4 {v(VO)}, {v(GP,4)}, {s(P_WS,2)} sc1")
I("s_mov_b64 exec, -1")
I("s_waitcnt lgkmcnt(0)")
I("s_barrier")
I(f"s_cmp_lg_u32 {s(S_WAVE)}, 0")
I("s_cbranch_scc1 L_ln_pf" if "--nopf" not in sys.argv else "s_cbranch_scc1 L_fin")
I(f"ds_read_b128 {v(96,4)}, {v(VZ)} offset:{L_MISC+64}")
I(f"ds_read_b128 {v(100,4)}, {v(VZ)} offset:{L_MISC+80}")
I(f"s_lshl_b32 {s(S_T0)}, s2, 7")
I(f"s_add_u32 {s(S_T0)}, {s(S_T0)}, {WS_KEYS}")
I(f"v_mov_b32 {v(105)}, {s(S_T0)}")
I("s_waitcnt lgkmcnt(0)")
top2_combine(96, 104)
I(f"v_mov_b32 {v(98)}, {v(97)}")
I(f"v_mov_b32 {v(97)}, {v(VNON)}")
I(f"v_mov_b32 {v(99)}, {v(VNON)}")
I("s_mov_b64 exec, 1")
I(f"global_store_dwordx4 {v(105)}, {v(96,4)}, {s(P_WS,2)} sc1")
I("s_mov_b64 exec, -1")
stamp()
if "--nopf" in sys.argv: I("s_branch L_fin")
L("L_ln_pf")
I("s_branch L_fin")

L("L_notln")
nstamp[0] = 1
I(f"v_and_b32 {v(VJ)}, 15, {v(VL)}")
I(f"v_lshrrev_b32 {v(VKG)}, 4, {v(VL)}")
VKEY = 252
I(f"v_lshlrev_b32 {v(VKEY)}, 7, {v(VL)}")
I(f"v_add_u32 {v(VKEY+1)}, {WS_KEYS + 8192}, {v(VKEY)}")
I(f"v_add_u32 {v(VKEY)}, {WS_KEYS}, {v(VKEY)}")
I(f"s_cmp_ge_u32 s2, {NLN + NCONV}")
I("s_cbranch_scc1 L_ffn")

C("==== conv role")
S_C = 47
I(f"s_sub_u32 {s(S_C)}, s2, {NLN}")
PRM = 24
I(f"s_and_b32 {s(S_T0)}, {s(S_C)}, 7")
I(f"s_lshl_b32 {s(S_T0)}, {s(S_T0)}, 5")
I(f"s_lshr_b32 {s(S_T1)}, {s(S_C)}, 3")
I(f"s_add_u32 {s(S_DP)}, {s(S_T0)}, {s(S_T1)}")
I(f"s_lshl_b32 {s(S_T0)}, {s(S_DP)}, 9")
I(f"s_lshl_b32 {s(S_T1)}, {s(S_WAVE)}, 7")
I(f"s_add_u32 {s(S_T0)}, {s(S_T0)}, {s(S_T1)}")
VPO = 30
I(f"v_lshl_add_u32 {v(VPO)}, {v(VL)}, 1, {s(S_T0)}")
for k in range(6): I(f"v_mov_b32 {v(PRM+k)}, 0")
I(f"s_lshl_b32 {s(S_T1)}, {s(S_DP)}, 2")
I("s_waitcnt lgkmcnt(0)")
for k, p in enumerate((P_ARE, P_AIM, P_BRE, P_BIM, P_CRE, P_CIM)):
    I(f"global_load_short_d16_hi {v(PRM+k)}, {v(VPO)}, {s(p,2)}")
I(f"s_load_dword {s(S_LDT)}, {s(P_LDT,2)}, {s(S_T1)}")
I(f"s_load_dword {s(S_DSK)}, {s(P_DSK,2)}, {s(S_T1)}")
I(f"s_lshr_b32 {s(S_T0)}, {s(S_C)}, 3")
I(f"s_xor_b32 {s(S_T0)}, {s(S_T0)}, 31")
I(f"s_xor_b32 {s(S_T1)}, {s(S_WAVE)}, 3")
I(f"s_or_b32 {s(S_T0)}, {s(S_T0)}, {s(S_T1)}")
nonce_cas(VZ, 32)
I(f"s_add_u32 {s(S_PART)}, {s(P_WS)}, {WS_PART}")
I(f"s_addc_u32 {s(S_PART+1)}, {s(P_WS+1)}, 0")
I(f"s_lshl_b32 {s(S_T0)}, {s(S_DP)}, 13")
I(f"s_add_u32 {s(S_T0)}, {s(S_T0)}, {WS_XT}")
I(f"s_add_u32 {s(S_XNG)}, {s(P_WS)}, {s(S_T0)}")
I(f"s_addc_u32 {s(S_XNG+1)}, {s(P_WS+1)}, 0")

C("---- constants")
AL = 200
VBETA = 206
SC0, SC1A, SC1B, SC2 = 208, 209, 210, 211
GA = 212
VGX = 224
VA_, VB_ = 226, 227
VRW, VRR = 228, 229
VT0 = 230
VOUT = 232
VPAR = 234
VKCW = 235
VPW = 236
VT8 = 237
VT4 = 238
VFL = 239
M1, M2 = 240, 241
VEX, VEU = 242, 243
VTL = 245
VNON = 246
VSW = 248
t1, t2, t3, t4 = 12, 13, 14, 15
I(f"v_lshlrev_b32 {v(VKCW)}, 4, v0")
I(f"v_lshlrev_b32 {v(VT8)}, 3, v0")
I(f"v_lshlrev_b32 {v(VT4)}, 2, v0")
I(f"s_lshl_b32 {s(S_T2)}, {s(S_WAVE)}, 11")
I(f"s_add_u32 {s(S_T2)}, {s(S_T2)}, {L_PAR}")
I(f"v_lshl_add_u32 {v(VPAR)}, {v(VKG)}, 7, {s(S_T2)}")
I(f"v_lshl_add_u32 {v(VPW)}, {v(VL)}, 5, {s(S_T2)}")
for k in range(4):
    I(f"v_add_u32 {v(VSW+k)}, {4096*k}, {v(VKCW)}")
I(f"v_add_u32 {v(VFL)}, 4096, {v(VT8)}")
I(f"v_mov_b32 {v(t1)}, {v(VJ)}")
for i_, al in ((8, 512), (9, 516), (10, 1024), (11, 1536), (12, 2048), (13, 0), (14, 0), (15, 0)):
    I(f"v_cmp_eq_u32 vcc, {i_}, {v(VJ)}")
    I(f"v_mov_b32 {v(t2)}, {al}")
    I("s_nop 0")
    I(f"v_cndmask_b32 {v(t1)}, {v(t1)}, {v(t2)}, vcc")
I(f"v_cvt_f32_u32 {v(AL)}, {v(t1)}")
I(f"v_lshlrev_b32 {v(t1)}, 3, {v(VJ)}")
I(f"v_cvt_f32_u32 {v(VBETA)}, {v(t1)}")
SCB, SCS = 208, 202
I(f"s_lshr_b32 {s(S_T0)}, {s(S_WAVE)}, 1")
I(f"s_mul_i32 {s(S_T0)}, {s(S_T0)}, {KTAB_D}")
I(f"s_and_b32 {s(S_T1)}, {s(S_WAVE)}, 1")
I(f"s_lshl_b32 {s(S_T1)}, {s(S_T1)}, 2")
I(f"s_add_u32 {s(S_T0)}, {s(S_T0)}, {s(S_T1)}")
I(f"s_add_u32 {s(S_T0)}, {s(S_T0)}, {L_KTAB}")
I(f"v_mul_u32_u24 {v(t1)}, 9, {v(VJ)}")
I(f"v_lshl_add_u32 {v(t1)}, {v(VKG)}, 2, {v(t1)}")
I(f"v_cmp_eq_u32 {s(S_T2,2)}, 2, {v(VKG)}")
I(f"v_cmp_eq_u32 {s(S_X0,2)}, 3, {v(VKG)}")
I(f"v_cmp_eq_u32 {s(S_X0+2,2)}, 48, {v(VL)}")
for r in range(4):
    I(f"v_add_u32 {v(t2)}, {r}, {v(t1)}")
    if r < 2: I(f"v_lshl_add_u32 {v(t3)}, {v(VJ)}, 1, {v(VZ)}"); I(f"v_add_u32 {v(t3)}, {576 + r}, {v(t3)}")
    else:     I(f"v_add_u32 {v(t3)}, {704 + 64*(r-2)}, {v(VJ)}")
    I(f"v_cndmask_b32 {v(t2)}, {v(t2)}, {v(t3)}, {s(S_T2,2)}")
    I(f"v_add_u32 {v(t3)}, {TRASH + 16*r}, {v(VJ)}")
    I(f"v_cndmask_b32 {v(t2)}, {v(t2)}, {v(t3)}, {s(S_X0,2)}")
    if r == 0:
        I(f"v_mov_b32 {v(t3)}, 832")
        I(f"v_cndmask_b32 {v(t2)}, {v(t2)}, {v(t3)}, {s(S_X0+2,2)}")
    I(f"v_lshl_add_u32 {v(SCB+r)}, {v(t2)}, 3, {s(S_T0)}")
for hh, st2 in ((0, 32), (1, 16)):
    I(f"v_mov_b32 {v(t2)}, {144*8}")
    I(f"v_mov_b32 {v(t3)}, {st2*8}")
    I(f"v_cndmask_b32 {v(t2)}, {v(t2)}, {v(t3)}, {s(S_T2,2)}")
    I(f"v_cndmask_b32 {v(t2)}, {v(t2)}, {v(VZ)}, {s(S_X0,2)}")
    if hh == 0:
        I(f"v_mov_b32 {v(t3)}, {16*8}")
        I(f"v_cndmask_b32 {v(t2)}, {v(t2)}, {v(t3)}, {s(S_X0+2,2)}")
    I(f"v_mov_b32 {v(SCS+hh)}, {v(t2)}")
I(f"v_sub_u32 {v(t1)}, 2047, {v(VT8)}")
I(f"s_movk_i32 {s(S_T1)}, 0x4400")
I(f"v_mov_b32 {v(t4)}, {ZIDX}")
for k in range(11):
    I(f"v_subrev_u32 {v(t2)}, {k}, {v(t1)}")
    I(f"v_cvt_f32_i32 {v(t3)}, {v(t2)}")
    I(f"v_cvt_pk_bf16_f32 {v(t3)}, {v(t3)}, {v(VZ)}")
    I(f"v_lshlrev_b32 {v(16)}, 16, {v(t3)}")
    I(f"v_cmp_gt_u32 vcc, {s(S_T1)}, {v(t3)}")
    I(f"v_cvt_u32_f32 {v(16)}, {v(16)}")
    I(f"v_subrev_u32 {v(t3)}, {0x4400 - 576}, {v(t3)}")
    I(f"v_lshrrev_b32 {v(17)}, 3, {v(16)}")
    I(f"v_add_u32 {v(16)}, {v(16)}, {v(17)}")
    I(f"v_cndmask_b32 {v(t3)}, {v(t3)}, {v(16)}, vcc")
    if k >= 8:
        I(f"v_cmp_gt_i32 vcc, 0, {v(t2)}")
        I("s_nop 1")
        I(f"v_cndmask_b32 {v(t3)}, {v(t3)}, {v(t4)}, vcc")
    I(f"v_lshlrev_b32 {v(GA+k)}, 3, {v(t3)}")
I(f"s_lshr_b32 {s(S_T0)}, {s(S_WAVE)}, 1")
I(f"s_and_b32 {s(S_T1)}, {s(S_WAVE)}, 1")
I(f"s_mul_i32 {s(S_T2)}, {s(S_T0)}, {KC_D}")
I(f"s_lshl_b32 {s(S_T3)}, {s(S_T1)}, 8")
I(f"s_sub_u32 {s(S_T2)}, {s(S_T2)}, {s(S_T3)}")
I(f"s_add_u32 {s(S_T2)}, {s(S_T2)}, {L_KC + 3*KC_S + 72}")
I(f"v_and_b32 {v(t1)}, 3, {v(VJ)}")
I(f"v_mul_u32_u24 {v(t1)}, {KC_S}, {v(t1)}")
I(f"v_lshrrev_b32 {v(t2)}, 2, {v(VJ)}")
I(f"v_lshl_add_u32 {v(t1)}, {v(t2)}, 3, {v(t1)}")
I(f"v_lshl_add_u32 {v(t1)}, {v(VKG)}, 4, {v(t1)}")
I(f"v_sub_u32 {v(VA_)}, {s(S_T2)}, {v(t1)}")
I(f"s_mul_i32 {s(S_T2)}, {s(S_T0)}, {U_D}")
I(f"s_sub_u32 {s(S_T2)}, {s(S_T2)}, {s(S_T3)}")
I(f"s_add_u32 {s(S_T2)}, {s(S_T2)}, {L_U + 336}")
I(f"v_lshlrev_b32 {v(t1)}, 5, {v(VJ)}")
I(f"v_lshlrev_b32 {v(t2)}, 4, {v(VKG)}")
I(f"v_sub_u32 {v(t1)}, {v(t1)}, {v(t2)}")
I(f"v_add_u32 {v(VB_)}, {s(S_T2)}, {v(t1)}")
I(f"s_lshl_b32 {s(S_T2)}, {s(S_WAVE)}, 11")
I(f"v_add_u32 {v(VRW)}, {s(S_T2)}, {v(VO2)}")
I(f"s_lshr_b32 {s(S_T2)}, {s(S_WAVE)}, 1")
I(f"s_lshl_b32 {s(S_T2)}, {s(S_T2)}, 10")
I(f"s_and_b32 {s(S_T3)}, {s(S_WAVE)}, 1")
I(f"s_lshl_b32 {s(S_T3)}, {s(S_T3)}, 3")
I(f"s_add_u32 {s(S_T2)}, {s(S_T2)}, {s(S_T3)}")
I(f"v_add_u32 {v(VRR)}, {s(S_T2)}, {v(VO2)}")
I(f"s_lshr_b32 {s(S_T2)}, {s(S_T2)}, 2")
I(f"v_lshl_add_u32 {v(VT0)}, {v(VJ)}, 4, {s(S_T2)}")
I(f"v_lshl_add_u32 {v(VT0)}, {v(VKG)}, 2, {v(VT0)}")
I(f"v_lshlrev_b32 {v(VEX)}, 2, {v(VT0)}")
I(f"v_lshlrev_b32 {v(VEU)}, 1, {v(VT0)}")
I(f"s_lshl_b32 {s(S_T2)}, {s(S_DP)}, 2")
I(f"v_lshl_add_u32 {v(VOUT)}, {v(VT0)}, 10, {s(S_T2)}")
I(f"v_mov_b32 {v(38)}, 0")
I(f"v_mov_b32 {v(39)}, 0")
I(f"ds_write_b64 {v(VZ)}, {v(38,2)} offset:{L_KTAB + 8*ZIDX}")
I(f"ds_write_b64 {v(VZ)}, {v(38,2)} offset:{L_KTAB + KTAB_D + 8*ZIDX}")
I(f"v_lshlrev_b32 {v(t2)}, 1, v0")
I(f"ds_write_b16 {v(t2)}, {v(VZ)} offset:{L_U}")
I(f"ds_write_b16 {v(t2)}, {v(VZ)} offset:{L_U + U_D}")
I(f"v_lshrrev_b32 {v(t3)}, 5, v0")
I(f"v_mul_u32_u24 {v(t3)}, {KC_S}, {v(t3)}")
I(f"v_and_b32 {v(t4)}, 31, v0")
I(f"v_lshl_add_u32 {v(t3)}, {v(t4)}, 1, {v(t3)}")
I(f"ds_write_b16 {v(t3)}, {v(VZ)} offset:{L_KC + 4096}")

C("---- K-gen parameters")
I("s_waitcnt lgkmcnt(0)")
I(f"s_lshr_b32 {s(S_T0)}, {s(S_WAVE)}, 1")
I(f"s_lshl_b32 {s(S_T0)}, {s(S_T0)}, 4")
I(f"s_lshr_b32 {s(S_T1)}, {s(S_LDT)}, {s(S_T0)}")
I(f"s_lshl_b32 {s(S_T1)}, {s(S_T1)}, 16")
l2e_hi = struct.unpack("<f", struct.pack("<f", LOG2E))[0]
l2e_lo = LOG2E - l2e_hi
T0_, T1_, T2_, T3_, DT = 40, 41, 42, 43, 44
VDS = 8
I(f"s_lshl_b32 {s(S_DS2)}, {s(S_DSK)}, 16")
I(f"s_and_b32 {s(S_DS2+1)}, {s(S_DSK)}, 0xffff0000")
I(f"v_mov_b32 {v(T0_)}, {f2u(l2e_hi):#x}")
I(f"v_mov_b32 {v(T3_)}, {f2u(l2e_lo):#x}")
I(f"v_add_f32 {v(VDS)}, {s(S_DS2)}, 1.0")
I(f"v_add_f32 {v(VDS+1)}, {s(S_DS2+1)}, 1.0")
I(f"v_mul_f32 {v(T1_)}, {s(S_T1)}, {v(T0_)}")
I(f"v_fma_f32 {v(T2_)}, {s(S_T1)}, {v(T0_)}, -{v(T1_)}")
I(f"v_fma_f32 {v(T2_)}, {s(S_T1)}, {v(T3_)}, {v(T2_)}")
I(f"v_exp_f32 {v(T1_)}, {v(T1_)}")
I(f"v_mul_f32 {v(T2_)}, {f2u(math.log(2.0)):#x}, {v(T2_)}")
I(f"v_readfirstlane_b32 {s(S_DS2)}, {v(VDS)}")
I(f"v_readfirstlane_b32 {s(S_DS2+1)}, {v(VDS+1)}")
I(f"v_fma_f32 {v(T1_)}, {v(T1_)}, {v(T2_)}, {v(T1_)}")
I(f"v_cvt_pk_bf16_f32 {v(T1_)}, {v(T1_)}, {v(T1_)}")
I(f"v_lshlrev_b32 {v(DT)}, 16, {v(T1_)}")
PW = 48
I("s_waitcnt vmcnt(1)")
stamp()
I("s_waitcnt vmcnt(0)") if False else None
I(f"v_mul_f32 {v(T1_)}, {v(DT)}, {v(PRM+2)}")
I(f"v_mul_f32 {v(T2_)}, {v(DT)}, {v(PRM+3)}")
I(f"v_mul_f32 {v(PW)}, {v(DT)}, {v(PRM+0)}")
I(f"v_mul_f32 {v(PW+1)}, {v(DT)}, {v(PRM+1)}")
I(f"v_mul_f32 {v(PW+2)}, {v(PRM+4)}, {v(T1_)}")
I(f"v_mul_f32 {v(PW+3)}, {v(PRM+4)}, {v(T2_)}")
I(f"v_mul_f32 {v(PW)}, {v(T0_)}, {v(PW)}")
I(f"v_mul_f32 {v(PW+1)}, 0.15915494, {v(PW+1)}")
I(f"s_lshr_b32 {s(S_T0)}, {s(S_C)}, 3")
I(f"s_xor_b32 {s(S_T0)}, {s(S_T0)}, 31")
I(f"s_xor_b32 {s(S_T2)}, {s(S_WAVE)}, 3")
I(f"s_or_b32 {s(S_T0)}, {s(S_T0)}, {s(S_T2)}")
I(f"s_cmp_eq_u32 {s(S_T0)}, 0")
I("s_cbranch_scc1 L_p5b")
I("s_waitcnt vmcnt(0)")
L("L_p5b")
I(f"v_mul_f32 {v(56)}, 0x43000000, {v(PW)}")
I(f"v_mul_f32 {v(57)}, 0x43000000, {v(PW+1)}")
I(f"v_exp_f32 {v(56)}, {v(56)}")
I(f"v_fract_f32 {v(57)}, {v(57)}")
I(f"v_cos_f32 {v(PW+4)}, {v(57)}")
I(f"v_sin_f32 {v(PW+5)}, {v(57)}")
I(f"v_fma_f32 {v(PW+2)}, -{v(PRM+5)}, {v(T2_)}, {v(PW+2)}")
I(f"v_fma_f32 {v(PW+3)}, {v(PRM+5)}, {v(T1_)}, {v(PW+3)}")
I(f"v_max_f32 {v(T3_)}, |{v(PW+2)}|, |{v(PW+3)}|")
I(f"v_mul_f32 {v(PW+4)}, {v(PW+4)}, {v(56)}")
I(f"v_mul_f32 {v(PW+5)}, {v(PW+5)}, {v(56)}")
I(f"ds_write_b64 {v(VPW)}, {v(PW+4,2)} offset:16")
dpp_reduce([T3_], "v_max_f32")
I("s_nop 0")
I(f"v_readlane_b32 {s(S_T0)}, {v(T3_)}, 63")
I("s_nop 3")
I(f"s_bfe_u32 {s(S_T0)}, {s(S_T0)}, 0x80017")
I(f"s_max_u32 {s(S_T0)}, {s(S_T0)}, 1")
I(f"s_min_u32 {s(S_T0)}, {s(S_T0)}, 253")
I(f"s_lshl_b32 {s(S_UNS)}, {s(S_T0)}, 23")
I(f"s_sub_u32 {s(S_T0)}, 254, {s(S_T0)}")
I(f"s_lshl_b32 {s(S_T0)}, {s(S_T0)}, 23")
I(f"v_mul_f32 {v(PW+2)}, {s(S_T0)}, {v(PW+2)}")
I(f"v_mul_f32 {v(PW+3)}, {s(S_T0)}, {v(PW+3)}")
I(f"ds_write_b128 {v(VPW)}, {v(PW,4)}")
nonce_issue(VZ, VNON)
C("---- K-gen main loop: 4 super-groups of 16 n ; one A tile (rows) x four B tiles (columns)")
ACC = 100
PP = 56
OPA = 116
OPB = 120
TM = 136
for k in range(16): I(f"v_mov_b32 {v(ACC+k)}, 0")
I(f"s_mov_b32 {s(S_CNT)}, 0")
I("s_waitcnt lgkmcnt(0)")
stamp()
L("L_kgen")
for q in range(4):
    I(f"ds_read_b128 {v(PP+8*q,4)}, {v(VPAR)} offset:{32*q}")
    I(f"ds_read_b64 {v(PP+8*q+4,2)}, {v(VPAR)} offset:{32*q+16}")
PFIT = int([a for a in sys.argv if a.startswith("--pfit=")][0][7:]) if any(a.startswith("--pfit=") for a in sys.argv) else 1
I(f"v_add_u32 {v(VPAR)}, 512, {v(VPAR)}")
for qp in range(2):
    QS = (2*qp, 2*qp+1)
    I(f"s_waitcnt lgkmcnt({4 - 4*qp})")
    def tm(q, x): return TM + 16*(q & 1) + 4*x
    EV = [(q, x) for q in QS for x in range(2)]
    for q, x in EV: I(f"v_pk_mul_f32 {v(tm(q,x),2)}, {v(PP+8*q,2)}, {v(VBETA if x == 0 else AL,2)} op_sel_hi:[1,0]")
    for q, x in EV: I(f"v_fract_f32 {v(tm(q,x)+1)}, {v(tm(q,x)+1)}")
    for q, x in EV: I(f"v_exp_f32 {v(tm(q,x))}, {v(tm(q,x))}")
    for q, x in EV: I(f"v_cos_f32 {v(tm(q,x)+2)}, {v(tm(q,x)+1)}")
    for q, x in EV: I(f"v_sin_f32 {v(tm(q,x)+3)}, {v(tm(q,x)+1)}")
    def ep(q, x): return TM + 16*(q & 1) + 8 + 2*x
    def bc(q, alt): return TM + 16*(q & 1) + 12 + 2*alt
    for q, x in EV: I(f"v_pk_mul_f32 {v(ep(q,x),2)}, {v(tm(q,x)+2,2)}, {v(tm(q,x),2)} op_sel_hi:[1,0]")
    for q in QS: I(f"v_pk_mul_f32 {v(bc(q,0),2)}, {v(ep(q,0),2)}, {v(PP+8*q+2,2)} op_sel_hi:[0,1] neg_hi:[0,1]")
    for q in QS: I(f"v_cvt_pk_f16_f32 {v(OPA+q)}, {v(ep(q,1))}, {v(ep(q,1)+1)}")
    for q in QS: I(f"v_fma_f32 {v(bc(q,0))}, -{v(ep(q,0)+1)}, {v(PP+8*q+3)}, {v(bc(q,0))}")
    for q in QS: I(f"v_fma_f32 {v(bc(q,0)+1)}, -{v(ep(q,0)+1)}, {v(PP+8*q+2)}, {v(bc(q,0)+1)}")
    for k in range(4):
        cur_, nx = k & 1, 1 - (k & 1)
        if k < 3:
            for q in QS: I(f"v_pk_mul_f32 {v(bc(q,nx),2)}, {v(bc(q,cur_),2)}, {v(PP+8*q+4,2)} op_sel_hi:[1,0]")
        for q in QS: I(f"v_cvt_pk_f16_f32 {v(OPB+4*k+q)}, {v(bc(q,cur_))}, {v(bc(q,cur_)+1)}")
        if k < 3:
            for q in QS: I(f"v_fma_f32 {v(bc(q,nx))}, {v(bc(q,cur_)+1)}, {v(PP+8*q+5)}, {v(bc(q,nx))}")
            for q in QS: I(f"v_fma_f32 {v(bc(q,nx)+1)}, -{v(bc(q,cur_))}, {v(PP+8*q+5)}, {v(bc(q,nx)+1)}")
I(f"s_add_u32 {s(S_CNT)}, {s(S_CNT)}, 1")
I(f"s_cmp_lt_u32 {s(S_CNT)}, 4")
for k in range(4):
    I(f"v_mfma_f32_16x16x32_f16 {v(ACC+4*k,4)}, {v(OPA,4)}, {v(OPB+4*k,4)}, {v(ACC+4*k,4)}")
I("s_cbranch_scc1 L_kgen")
stamp()
GR, GK = 160, 176
nonce_wait(VZ, VNON)
for k in range(16): I(f"v_mul_f32 {v(ACC+k)}, {s(S_UNS)}, {v(ACC+k)}")
for k in range(4):
    for r in range(4):
        I(f"ds_write_b32 {v(SCB+r)}, {v(ACC+4*k+r)}")
        if k < 3: I(f"v_add_u32 {v(SCB+r)}, {v(SCB+r)}, {v(SCS + (r >> 1))}")
I("s_waitcnt lgkmcnt(0)")
I("s_barrier")
C("---- expand K into 4 shifted bf16 copies")
E0 = 40
CP = 96
XX = 144
def xs_issue():
    for k in range(4):
        I(f"global_load_dwordx2 {v(XX+2*k,2)}, {v(VT8 if k < 2 else VFL)}, {s(S_XNG,2)} offset:{2048*(k&1)} sc1")
    sweep_issue(VSW, GR, P_WS)
for d in range(2):
    Eb = E0 + 24*d
    for k in range(11):
        I(f"ds_read_b64 {v(Eb+2*k,2)}, {v(GA+k)} offset:{L_KTAB + d*KTAB_D}")
def expand(d):
    Eb = E0 + 24*d
    I(f"s_waitcnt lgkmcnt({11 if d == 0 else 4})")
    for k in range(11):
        I(f"v_add_f32 {v(Eb+2*k)}, {v(Eb+2*k)}, {v(Eb+2*k+1)}")
    for sg in range(4):
        Cb = CP + 16*d + 4*sg
        for m in range(4):
            I(f"v_cvt_pk_bf16_f32 {v(Cb+m)}, {v(Eb+2*(sg+2*m))}, {v(Eb+2*(sg+2*m+1))}")
        I(f"ds_write_b128 {v(VKCW)}, {v(Cb,4)} offset:{L_KC + d*KC_D + sg*KC_S}")
expand(0)
expand(1)
stamp()
I(f"s_cmp_lg_u32 {s(S_WAVE)}, 0")
I("s_cbranch_scc1 L_k_wait")
keys_poll(VKEY, GK, 32)
L("L_k_wait")
I("s_barrier")
xs_issue()
stamp()
I(f"s_cmp_lg_u32 {s(S_WAVE)}, 0")
I("s_cbranch_scc1 L_k_not0")
keys_top2(GK, M1, M2, 44, 45)
I(f"ds_write_b64 {v(VZ)}, {v(M1,2)} offset:{L_MISC + 16}")
L("L_k_not0")
for k in range(4):
    I(f"s_waitcnt vmcnt({7-k})")
    I(f"ds_write_b64 {v(VT8)}, {v(XX+2*k,2)} offset:{L_XL + 2048*k}")
XF = 48
for k in range(8): unpack(XF+6*k+2, XX+k)
sweep(VSW, GR, 40, P_WS, issued=True, first_wait=0)
stamp()
RI = 128
for k in range(8):
    g = GR + 2*k
    I(f"v_and_b32 {v(RI+2*k)}, {s(S_MASK)}, {v(g)}")
    I(f"v_lshlrev_b32 {v(XF+6*k)}, 16, {v(g)}")
    I(f"v_rcp_f32 {v(RI+2*k)}, {v(RI+2*k)}")
for k in range(8):
    b = XF+6*k
    I(f"v_pk_add_f32 {v(b+2,2)}, {v(b+2,2)}, {v(b,2)} op_sel_hi:[1,0] neg_lo:[0,1] neg_hi:[0,1]")
for k in range(8):
    b = XF+6*k
    I(f"v_cvt_pk_bf16_f32 {v(b+4)}, {v(b+2)}, {v(b+3)}")
for k in range(8): unpack(XF+6*k+2, XF+6*k+4)
for k in range(8):
    b = XF+6*k
    I(f"v_pk_mul_f32 {v(b+2,2)}, {v(b+2,2)}, {v(RI+2*k,2)} op_sel_hi:[1,0]")
for k in range(4):
    for d in range(2):
        I(f"v_cvt_pk_bf16_f32 {v(XX+2*k+d)}, {v(XF+12*k+2+d)}, {v(XF+12*k+8+d)}")
        I(f"ds_write_b32 {v(VT4)}, {v(XX+2*k+d)} offset:{L_U + 512 + d*U_D + 1024*k}")
I("s_waitcnt lgkmcnt(0)")
I("s_barrier")
stamp()
C("---- convolution: 4 phases of 2 output tiles; K operands stay resident, finished tiles are stored under the next phase")
def AR(rl, k): return 32 + 32*rl + 4*k
def BR(buf, d): return 160 + 32*buf + 4*d
def ACCR(p, tt): return 8 + 8*(p & 1) + 4*tt
RDF, XQ, UQ, TE = 248, 24, 26, 28
def step_loads(p, rls, buf):
    ls = []
    nb = 2*p + 2
    for i, rl in enumerate(rls):
        bl = [f"ds_read_b128 {v(BR(buf, nb*i + d),4)}, {v(VB_)} offset:{512*d + 64*(3 - rl)}" for d in range(nb)]
        al = []
        for k in (2*p, 2*p+1):
            off = 64 * (63 - 8*k - rl)
            al.append(f"ds_read_b64 {v(AR(rl,k),2)}, {v(VA_)} offset:{off}")
            al.append(f"ds_read_b64 {v(AR(rl,k)+2,2)}, {v(VA_)} offset:{off+8}")
        ls += bl[:2] + al + bl[2:]
    return ["    " + x for x in ls]
def fin_reads(p):
    base = L_R1 + 8192*(p & 1)
    for w in range(4):
        I(f"ds_read_b64 {v(RDF+2*w,2)}, {v(VRR)} offset:{base + 2048*w}")
    I(f"ds_read_b64 {v(XQ,2)}, {v(VEX)} offset:{L_XL + 2048*p}")
    for d in range(2):
        I(f"ds_read_b32 {v(UQ+d)}, {v(VEU)} offset:{L_U + 512 + d*U_D + 1024*p}")
def fin_math(p):
    I(f"v_pk_add_f32 {v(RDF,2)}, {v(RDF,2)}, {v(RDF+2,2)}")
    I(f"v_pk_add_f32 {v(RDF+4,2)}, {v(RDF+4,2)}, {v(RDF+6,2)}")
    for e in range(2):
        a = TE if e == 0 else RDF + 2
        c = TE + 2 if e == 0 else RDF + 6
        unpack(a, XQ+e)
        for d in range(2):
            if e: I(f"v_and_b32 {v(c+d)}, {s(S_MASK)}, {v(UQ+d)}")
            else: I(f"v_lshlrev_b32 {v(c+d)}, 16, {v(UQ+d)}")
        I(f"v_add_f32 {v(a)}, {v(a)}, {v(RDF+e)}")
        I(f"v_add_f32 {v(a+1)}, {v(a+1)}, {v(RDF+4+e)}")
        I(f"v_pk_fma_f32 {v(a,2)}, {v(c,2)}, {s(S_DS2,2)}, {v(a,2)}")
        I(f"v_cvt_pk_bf16_f32 {v(XQ+e)}, {v(a)}, {v(a+1)}")
        I(f"global_store_dword {v(VOUT)}, {v(XQ+e)}, {s(P_OUT,2)} offset:{e*1024}")
    I(f"ds_write_b64 {v(VEX)}, {v(XQ,2)} offset:{L_XL + 2048*p}")
    if p < 3: I(f"v_add_u32 {v(VOUT)}, 0x80000, {v(VOUT)}")
steps = [(0, [0, 1, 2, 3]), (1, [0, 1]), (1, [2, 3])] + [(p, [rl]) for p in (2, 3) for rl in range(4)]
first_loads = step_loads(*steps[0], 0)
out.extend(first_loads)
for si, (p, rls) in enumerate(steps):
    buf = si & 1
    nxt = step_loads(*steps[si+1], 1-buf) if si + 1 < len(steps) else []
    fl = []
    if p > 0 and rls[0] == 0:
        with capture() as fl: fin_reads(p-1)
    if p > 0 and ((p == 1 and rls[0] == 2) or (p > 1 and rls[0] == 1)):
        with capture() as fl: fin_math(p-1)
    nb = 2*p + 2
    work = []
    for i, rl in enumerate(rls):
        pairs = [(ch, T-ch) for T in (2*p, 2*p+1) for ch in range(T+1)]
        pairs.sort(key=lambda q: (max(q[0] if q[0] >= 2*p else 0, q[1])))
        work += [(i, rl, ch, dl) for (ch, dl) in pairs]
    if si > 0: I("s_waitcnt lgkmcnt(0)")
    seen = set()
    pern = -(-len(nxt) // len(work)) if nxt else 0
    perf = -(-len(fl) // len(work)) if fl else 0
    ni = fi = 0
    lasti = -1
    for (i, rl, ch, dl) in work:
        if si == 0 and i != lasti:
            lasti = i
            I(f"s_waitcnt lgkmcnt({min(15, len(first_loads) - 6*(i+1) + ni)})")
        T = ch + dl
        acc = ACCR(p, T & 1)
        first = rl == 0 and T not in seen; seen.add(T)
        I(f"v_mfma_f32_16x16x32_bf16 {v(acc,4)}, {v(AR(rl,ch),4)}, {v(BR(buf,nb*i+dl),4)}, {'0' if first else v(acc,4)}")
        out.extend(nxt[ni:ni+pern]); ni += len(nxt[ni:ni+pern])
        out.extend(fl[fi:fi+perf]); fi += perf
    out.extend(nxt[ni:]); out.extend(fl[fi:])
    if rls[-1] == 3:
        I("s_nop 7")
        for tt in range(2):
            I(f"ds_write_b128 {v(VRW)}, {v(ACCR(p,tt),4)} offset:{L_R1 + 8192*(p & 1) + 1024*tt}")
        I("s_waitcnt lgkmcnt(0)")
        I("s_barrier")
        if p in (1, 3): stamp()
fin_reads(3)
I("s_waitcnt lgkmcnt(0)")
fin_math(3)
stamp()
C("---- routed rows fix-up")
I(f"ds_read_b64 {v(64,2)}, {v(VZ)} offset:{L_MISC + 16}")
I("s_waitcnt lgkmcnt(0)")
I(f"v_readfirstlane_b32 {s(S_K1)}, {v(64)}")
I(f"v_readfirstlane_b32 {s(S_K2)}, {v(65)}")
I(f"s_mov_b32 {s(S_X0)}, 0")
L("L_fix")
I(f"s_and_b32 {s(S_T0)}, {s(S_K1)}, 0xffff")
I(f"s_sub_u32 {s(S_T0)}, 0xffff, {s(S_T0)}")
I(f"s_lshr_b32 {s(S_T1)}, {s(S_T0)}, 8")
I(f"s_cmp_ge_u32 {s(S_T1)}, 8")
I("s_cbranch_scc1 L_fix_skip")
I(f"s_and_b32 {s(S_T1)}, {s(S_T1)}, 1")
I(f"s_lshl_b32 {s(S_T1)}, {s(S_T1)}, 1")
I(f"s_bfe_u32 {s(S_T2)}, {s(S_T0)}, 0x10001")
I(f"s_or_b32 {s(S_T1)}, {s(S_T1)}, {s(S_T2)}")
I(f"s_cmp_lg_u32 {s(S_T1)}, {s(S_WAVE)}")
I("s_cbranch_scc1 L_fix_skip")
I(f"s_lshl_b32 {s(S_T1)}, {s(S_DP)}, 4")
I(f"s_lshl_b32 {s(S_T2)}, {s(S_X0)}, 19")
I(f"s_add_u32 {s(S_T1)}, {s(S_T1)}, {s(S_T2)}")
I(f"v_lshl_add_u32 {v(76)}, {v(VL)}, 12, {s(S_T1)}")
I(f"v_add_u32 {v(78)}, 0x40000, {v(76)}")
I(f"s_lshl_b32 {s(S_T2)}, {s(S_T0)}, 2")
I(f"v_mov_b32 {v(77)}, {s(S_T2)}")
I(f"ds_read_b32 {v(79)}, {v(77)} offset:{L_XL}")
I(f"s_lshr_b32 {s(S_T2)}, {s(S_K1)}, 16")
I(f"s_lshr_b32 {s(S_T3)}, {s(S_T2)}, 15")
I(f"s_cmp_eq_u32 {s(S_T3)}, 1")
I(f"s_mov_b32 {s(S_T3)}, 0xffff")
I(f"s_cselect_b32 {s(S_T3)}, 0x8000, {s(S_T3)}")
I(f"s_xor_b32 {s(S_T2)}, {s(S_T2)}, {s(S_T3)}")
I(f"s_lshl_b32 {s(S_T2)}, {s(S_T2)}, 16")
I(f"v_mov_b32 {v(92)}, {f2u(-LOG2E):#x}")
I(f"v_mul_f32 {v(92)}, {s(S_T2)}, {v(92)}")
I(f"v_exp_f32 {v(92)}, {v(92)}")
I("s_nop 0")
I(f"v_add_f32 {v(92)}, 1.0, {v(92)}")
I(f"v_rcp_f32 {v(92)}, {v(92)}")
I("s_nop 0")
I(f"v_cvt_pk_bf16_f32 {v(92)}, {v(92)}, {v(92)}")
I(f"v_lshlrev_b32 {v(92)}, 16, {v(92)}")
I(f"s_mov_b32 {s(S_CNT)}, 0")
I(f"v_mov_b32 {v(84)}, 0")
I(f"v_mov_b32 {v(85)}, {s(S_NONCE)}")
I(f"v_mov_b32 {v(86)}, 0")
I(f"v_mov_b32 {v(87)}, {s(S_NONCE)}")
L("L_fixpoll")
I(f"global_load_dwordx4 {v(80,4)}, {v(76)}, {s(S_PART,2)} sc1")
I(f"s_bfm_b64 exec, {G-64}, 0")
I(f"global_load_dwordx4 {v(84,4)}, {v(78)}, {s(S_PART,2)} sc1")
I("s_mov_b64 exec, -1")
I("s_waitcnt vmcnt(0)")
I(f"v_xor_b32 {v(88)}, {s(S_NONCE)}, {v(81)}")
I(f"v_xor_b32 {v(89)}, {s(S_NONCE)}, {v(83)}")
I(f"v_xor_b32 {v(93)}, {s(S_NONCE)}, {v(85)}")
I(f"v_xor_b32 {v(94)}, {s(S_NONCE)}, {v(87)}")
I(f"v_or3_b32 {v(88)}, {v(88)}, {v(89)}, {v(93)}")
I(f"v_or_b32 {v(88)}, {v(88)}, {v(94)}")
I(f"v_cmp_ne_u32 vcc, 0, {v(88)}")
I(f"s_add_u32 {s(S_CNT)}, {s(S_CNT)}, 1")
I(f"s_cmp_eq_u64 vcc, 0")
I(f"s_cbranch_scc1 L_fixpoll_done")
I("s_sleep 2")
I(f"s_cmp_lt_u32 {s(S_CNT)}, {POLL_LIMIT}")
I(f"s_cbranch_scc1 L_fixpoll")
L("L_fixpoll_done")
I(f"v_add_f32 {v(80)}, {v(80)}, {v(84)}")
I(f"v_add_f32 {v(82)}, {v(82)}, {v(86)}")
I("s_nop 0")
dpp_reduce([80, 82])
I("s_nop 0")
I(f"v_cvt_pk_bf16_f32 {v(84)}, {v(80)}, {v(82)}")
unpack(80, 84)
I("s_waitcnt lgkmcnt(0)")
unpack(82, 79)
I(f"v_pk_fma_f32 {v(80,2)}, {v(80,2)}, {v(92,2)}, {v(82,2)} op_sel_hi:[1,0,1]")
I(f"v_cvt_pk_bf16_f32 {v(84)}, {v(80)}, {v(81)}")
I(f"s_lshl_b32 {s(S_T1)}, {s(S_T0)}, 10")
I(f"s_lshl_b32 {s(S_T2)}, {s(S_DP)}, 2")
I(f"s_add_u32 {s(S_T1)}, {s(S_T1)}, {s(S_T2)}")
I(f"v_mov_b32 {v(85)}, {s(S_T1)}")
I("s_lshl_b64 exec, 1, 63")
I(f"global_store_dword {v(85)}, {v(84)}, {s(P_OUT,2)}")
I("s_mov_b64 exec, -1")
L("L_fix_skip")
I(f"s_mov_b32 {s(S_K1)}, {s(S_K2)}")
I(f"s_add_u32 {s(S_X0)}, {s(S_X0)}, 1")
I(f"s_cmp_lt_u32 {s(S_X0)}, 2")
I("s_cbranch_scc1 L_fix")
I("s_branch L_fin")

L("L_ffn")
nstamp[0] = 1
C("==== FFN role")
S_G = 47
I(f"s_sub_u32 {s(S_T0)}, s2, {NLN + NCONV}")
I(f"s_and_b32 {s(S_T1)}, {s(S_T0)}, 7")
I(f"s_mul_i32 {s(S_T1)}, {s(S_T1)}, 14")
I(f"s_lshr_b32 {s(S_T0)}, {s(S_T0)}, 3")
I(f"s_add_u32 {s(S_G)}, {s(S_T0)}, {s(S_T1)}")
WL = 32
t1, t2, t3, t4 = 12, 13, 14, 15
I(f"v_lshlrev_b32 {v(t4)}, 4, v0")
I(f"v_lshrrev_b32 {v(t1)}, 2, v0")
I(f"v_mul_u32_u24 {v(t1)}, 3584, {v(t1)}")
I(f"v_and_b32 {v(t2)}, 1, v0")
I(f"v_lshl_add_u32 {v(t1)}, {v(t2)}, 4, {v(t1)}")
I(f"s_lshl_b32 {s(S_T0)}, {s(S_G)}, 5")
I(f"v_add_u32 {v(t1)}, {s(S_T0)}, {v(t1)}")
I(f"v_and_b32 {v(t2)}, 2, v0")
I(f"v_cmp_eq_u32 vcc, 0, {v(t2)}")
I("s_waitcnt lgkmcnt(0)")
I(f"v_mov_b32 {v(16)}, {s(P_WU)}")
I(f"v_mov_b32 {v(17)}, {s(P_WU+1)}")
I(f"v_mov_b32 {v(18)}, {s(P_WG)}")
I(f"v_mov_b32 {v(19)}, {s(P_WG+1)}")
I(f"v_cndmask_b32 {v(16)}, {v(16)}, {v(18)}, vcc")
I(f"v_cndmask_b32 {v(17)}, {v(17)}, {v(19)}, vcc")
I(f"v_add_co_u32 {v(16)}, vcc, {v(16)}, {v(t1)}")
I("s_nop 1")
I(f"v_addc_co_u32 {v(17)}, vcc, {v(17)}, {v(VZ)}, vcc")
I(f"s_add_u32 {s(S_PART)}, {s(P_WS)}, {WS_PART}")
I(f"s_addc_u32 {s(S_PART+1)}, {s(P_WS+1)}, 0")
stamp()
I(f"s_mov_b32 {s(S_T1)}, {64*3584}")
WD = 96
I(f"s_lshl_b32 {s(S_T0)}, {s(S_G)}, 14")
I(f"v_lshl_add_u32 {v(t3)}, v0, 2, {s(S_T0)}")
for p in range(8):
    I(f"global_load_dwordx4 {v(WL+4*p,4)}, {v(16,2)}, off")
    if p < 7:
        I(f"v_add_co_u32 {v(16)}, vcc, {s(S_T1)}, {v(16)}")
        I("s_nop 1")
        I(f"v_addc_co_u32 {v(17)}, vcc, {v(17)}, {v(VZ)}, vcc")
for f in range(16):
    if f and f % 4 == 0:
        I(f"v_add_u32 {v(t3)}, 4096, {v(t3)}")
    I(f"global_load_dword {v(WD+f)}, {v(t3)}, {s(P_WD,2)} offset:{(f&3)*1024}")
nonce_issue(VZ, 22)
for p in range(8):
    I(f"s_waitcnt vmcnt({17 + 7 - p})")
    I(f"ds_write_b128 {v(t4)}, {v(WL+4*p,4)} offset:{F_W + 4096*p}")
stamp()
I(f"v_lshrrev_b32 {v(t1)}, 2, {v(VJ)}")
I(f"v_lshl_add_u32 {v(t1)}, {v(VKG)}, 3, {v(t1)}")
I(f"v_lshlrev_b32 {v(t1)}, 6, {v(t1)}")
I(f"v_and_b32 {v(t2)}, 1, {v(VL)}")
I(f"v_lshl_add_u32 {v(t1)}, {v(t2)}, 3, {v(t1)}")
I(f"v_and_b32 {v(t2)}, 2, {v(VL)}")
I(f"v_lshl_add_u32 {v(t1)}, {v(t2)}, 4, {v(t1)}")
I(f"s_and_b32 {s(S_T0)}, {s(S_WAVE)}, 1")
I(f"s_lshl_b32 {s(S_T0)}, {s(S_T0)}, 4")
I(f"v_add_u32 {v(t1)}, {s(S_T0)}, {v(t1)}")
I("s_waitcnt lgkmcnt(0)")
I("s_barrier")
for st in range(16):
    I(f"ds_read_b64_tr_b16 {v(WL+4*st,2)}, {v(t1)} offset:{F_W + 2048*st}")
    I(f"ds_read_b64_tr_b16 {v(WL+4*st+2,2)}, {v(t1)} offset:{F_W + 2048*st + 256}")
WF = 128
nonce_wait(VZ, 22)
for f in range(16): unpack(WF+2*f, WD+f)
I(f"v_bfe_u32 {v(t2)}, {v(VJ)}, 2, 1")
I(f"v_lshlrev_b32 {v(t2)}, 10, {v(t2)}")
I(f"v_lshl_add_u32 {v(t2)}, {v(VKG)}, 4, {v(t2)}")
I(f"s_and_b32 {s(S_T1)}, {s(S_WAVE)}, 1")
I(f"s_lshl_b32 {s(S_T1)}, {s(S_T1)}, 9")
I(f"v_lshl_add_u32 {v(24)}, {v(VL)}, 3, {s(S_T1)}")
I(f"s_lshr_b32 {s(S_T0)}, {s(S_WAVE)}, 1")
I(f"s_lshl_b32 {s(S_T1)}, {s(S_T0)}, 10")
I(f"v_add_u32 {v(25)}, {s(S_T1)}, {v(24)}")
I("s_waitcnt lgkmcnt(0)")
stamp()
GK = 192
I(f"s_setprio {FPRIO}")
I(f"s_cmp_lg_u32 {s(S_WAVE)}, 0")
I("s_cbranch_scc1 L_fk_wait")
keys_poll(VKEY, GK, 20)
keys_top2(GK, 224, 225, 21, 22)
I(f"ds_write_b64 {v(VZ)}, {v(224,2)} offset:{L_MISC + 16}")
I("s_waitcnt lgkmcnt(0)")
L("L_fk_wait")
I("s_barrier")
stamp()
I(f"ds_read_b64 {v(224,2)}, {v(VZ)} offset:{L_MISC + 16}")
I("s_waitcnt lgkmcnt(0)")
I(f"v_readfirstlane_b32 {s(S_K1)}, {v(224)}")
I(f"v_readfirstlane_b32 {s(S_K2)}, {v(225)}")
I(f"s_cmp_lt_u32 {s(S_WAVE)}, 2")
I("s_nop 2")
I(f"s_cselect_b32 {s(S_T0)}, {s(S_K1)}, {s(S_K2)}")
I(f"s_and_b32 {s(S_T0)}, {s(S_T0)}, 0xffff")
I(f"s_sub_u32 {s(S_T0)}, 0xffff, {s(S_T0)}")
I(f"s_min_u32 {s(S_T0)}, {s(S_T0)}, 2047")
I(f"s_lshl_b32 {s(S_T1)}, {s(S_T0)}, 10")
I(f"v_add_u32 {v(97)}, {s(S_T1)}, {v(24)}")
I(f"s_lshl_b32 {s(S_T1)}, {s(S_T0)}, 3")
I(f"v_mov_b32 {v(99)}, {s(S_T1)}")
I(f"global_load_dwordx2 {v(100,2)}, {v(97)}, {s(P_U,2)}")
I(f"s_mov_b32 {s(S_CNT)}, 0")
L("L_f_stat")
I(f"global_load_dwordx2 {v(104,2)}, {v(99)}, {s(P_WS,2)} sc1")
I("s_waitcnt vmcnt(0)")
I(f"v_cmp_ne_u32 vcc, {s(S_NONCE)}, {v(105)}")
I(f"s_add_u32 {s(S_CNT)}, {s(S_CNT)}, 1")
I(f"s_cmp_eq_u64 vcc, 0")
I(f"s_cbranch_scc1 L_f_stat_done")
I("s_sleep 1")
I(f"s_cmp_lt_u32 {s(S_CNT)}, {POLL_LIMIT}")
I(f"s_cbranch_scc1 L_f_stat")
L("L_f_stat_done")
stamp()
I(f"v_and_b32 {v(106)}, {s(S_MASK)}, {v(104)}")
I(f"v_lshlrev_b32 {v(104)}, 16, {v(104)}")
I(f"v_rcp_f32 {v(106)}, {v(106)}")
for k in range(2): unpack(108+2*k, 100+k)
for k in range(2): I(f"v_pk_add_f32 {v(108+2*k,2)}, {v(108+2*k,2)}, {v(104,2)} op_sel_hi:[1,0] neg_lo:[0,1] neg_hi:[0,1]")
for k in range(2): I(f"v_cvt_pk_bf16_f32 {v(100+k)}, {v(108+2*k)}, {v(109+2*k)}")
for k in range(2): unpack(108+2*k, 100+k)
for k in range(2): I(f"v_pk_mul_f32 {v(108+2*k,2)}, {v(108+2*k,2)}, {v(106,2)} op_sel_hi:[1,0]")
for k in range(2): I(f"v_cvt_pk_bf16_f32 {v(100+k)}, {v(108+2*k)}, {v(109+2*k)}")
I(f"ds_write_b64 {v(25)}, {v(100,2)} offset:{F_XS}")
I("s_waitcnt lgkmcnt(0)")
I("s_barrier")
I(f"s_cmp_ge_u32 {s(S_WAVE)}, 2")
I("s_cbranch_scc1 L_f_nogu")
AX = 160
for st in range(16):
    I(f"ds_read_b128 {v(AX+4*st,4)}, {v(t2)} offset:{F_XS + 64*st}")
AC = 96
for st in range(16):
    I(f"s_waitcnt lgkmcnt({15-st})")
    a = AC + 4*(st & 1)
    I(f"v_mfma_f32_16x16x32_bf16 {v(a,4)}, {v(AX+4*st,4)}, {v(WL+4*st,4)}, {'0' if st < 2 else v(a,4)}")
I(f"v_lshlrev_b32 {v(107)}, 7, {v(VKG)}")
I(f"v_lshl_add_u32 {v(107)}, {v(VJ)}, 3, {v(107)}")
I(f"s_lshl_b32 {s(S_T0)}, {s(S_WAVE)}, 6")
I(f"v_add_u32 {v(107)}, {s(S_T0)}, {v(107)}")
I("s_nop 4")
I(f"v_add_f32 {v(104)}, {v(AC)}, {v(AC+4)}")
I(f"v_cvt_pk_bf16_f32 {v(104)}, {v(104)}, {v(104)}")
I(f"v_lshlrev_b32 {v(104)}, 16, {v(104)}")
I(f"v_mul_f32 {v(105)}, {f2u(-LOG2E):#x}, {v(104)}")
I(f"v_exp_f32 {v(105)}, {v(105)}")
I(f"v_mov_b32_dpp {v(106)}, {v(104)} row_ror:8 row_mask:0xf bank_mask:0xf")
I(f"v_add_f32 {v(105)}, 1.0, {v(105)}")
I(f"v_rcp_f32 {v(105)}, {v(105)}")
I("s_nop 0")
I(f"v_mul_f32 {v(105)}, {v(104)}, {v(105)}")
I(f"v_cvt_pk_bf16_f32 {v(105)}, {v(105)}, {v(105)}")
I(f"v_lshlrev_b32 {v(105)}, 16, {v(105)}")
I(f"v_mul_f32 {v(105)}, {v(105)}, {v(106)}")
I(f"v_cvt_pk_bf16_f32 {v(105)}, {v(105)}, {v(105)}")
I(f"v_lshlrev_b32 {v(105)}, 16, {v(105)}")
I("s_mov_b64 exec, 0x00ff00ff")
I(f"ds_write2_b32 {v(107)}, {v(105)}, {v(105)} offset0:{F_H//4} offset1:{F_H//4+1}")
I("s_mov_b64 exec, -1")
I("s_waitcnt lgkmcnt(0)")
L("L_f_nogu")
I("s_barrier")
HB = 160
for q in range(16):
    I(f"ds_read_b128 {v(HB+4*q,4)}, {v(VZ)} offset:{F_H + 16*q}")
Y0, Y1 = 96, 100
I(f"s_lshl_b32 {s(S_T0)}, {s(S_G)}, 12")
I(f"v_lshl_add_u32 {v(112)}, v0, 4, {s(S_T0)}")
I(f"v_add_u32 {v(113)}, 0x80000, {v(112)}")
for Y in (Y0, Y1):
    I(f"v_mov_b32 {v(Y+1)}, {s(S_NONCE)}")
    I(f"v_mov_b32 {v(Y+3)}, {s(S_NONCE)}")
for q in range(16):
    tok = q >> 3
    I(f"s_waitcnt lgkmcnt({15-q})")
    for e in range(2):
        f = 2*(q & 7) + e
        acc = 104 + 4*tok + 2*e
        hp = HB + 4*q + 2*e
        if f < 2:
            I(f"v_pk_mul_f32 {v(acc,2)}, {v(WF+2*f,2)}, {v(hp,2)}")
        else:
            I(f"v_pk_fma_f32 {v(acc,2)}, {v(WF+2*f,2)}, {v(hp,2)}, {v(acc,2)}")
    if q == 7 or q == 15:
        Y = Y0 if q == 7 else Y1
        I(f"v_add_f32 {v(Y)}, {v(104+4*tok)}, {v(106+4*tok)}")
        I(f"v_add_f32 {v(Y+2)}, {v(105+4*tok)}, {v(107+4*tok)}")
        I(f"global_store_dwordx4 {v(112+tok)}, {v(Y,4)}, {s(S_PART,2)} sc1")
stamp()
L("L_fin")
if STAMP:
    I("s_waitcnt vmcnt(0) lgkmcnt(0)")
    I(f"s_memtime {s(S_ST + 22, 2)}")
    I(f"s_memrealtime {s(S_T2, 2)}")
    I(f"s_add_u32 {s(S_STB)}, {s(P_WS)}, {WS_STAMP}")
    I(f"s_addc_u32 {s(S_STB+1)}, {s(P_WS+1)}, 0")
    I(f"s_lshl_b32 {s(S_T0)}, s2, 2")
    I(f"s_add_u32 {s(S_T0)}, {s(S_T0)}, {s(S_WAVE)}")
    I(f"s_lshl_b32 {s(S_T0)}, {s(S_T0)}, 7")
    I("s_waitcnt lgkmcnt(0)")
    I(f"v_mov_b32 v10, {s(S_T0)}")
    I("s_mov_b64 exec, 1")
    for k in range(12):
        I(f"v_mov_b32 v12, {s(S_ST+2*k)}")
        I(f"v_mov_b32 v13, {s(S_ST+2*k+1)}")
        I(f"global_store_dwordx2 v10, v[12:13], {s(S_STB,2)} offset:{8*k}")
        I("s_nop 1")
    I(f"v_mov_b32 v12, {s(S_T2)}")
    I(f"v_mov_b32 v13, {s(S_T3)}")
    I(f"global_store_dwordx2 v10, v[12:13], {s(S_STB,2)} offset:96")
L("L_end")
I("s_endpgm")
out.append('.section .rodata,"a"')
out.append(".p2align 6")
out.append(f".amdhsa_kernel {KNAME}")
out.append("  .amdhsa_next_free_vgpr 256")
out.append("  .amdhsa_next_free_sgpr 102")
out.append("  .amdhsa_accum_offset 256")
out.append("  .amdhsa_group_segment_fixed_size 0")
out.append("  .amdhsa_kernarg_size 136")
out.append("  .amdhsa_user_sgpr_count 2")
out.append("  .amdhsa_user_sgpr_kernarg_segment_ptr 1")
out.append("  .amdhsa_system_sgpr_workgroup_id_x 1")
out.append("  .amdhsa_float_denorm_mode_32 3")
out.append(".end_amdhsa_kernel")
dst = [a for a in sys.argv[1:] if not a.startswith("--")]
open(dst[0] if dst else "k.s", "w").write("\n".join(x for x in out if x is not None) + "\n")
```

```python
import sys, struct, math

KNAME = "parallel_sum__ssm_conv_s4__moe_arch_mod__prompt_kernel"
NLN = 128
NCONV = 256
G = 112
NWG = NLN + NCONV + G
STAMP = "--stamp" in sys.argv

WS_STATS = 0
WS_KEYS = 16384
WS_FLAG = 32768
WS_PART = 65536
WS_STAMP = 2 << 20
WS_XNG = 4 << 20
WS_XT = 8 << 20

L_MISC = 0
L_KC = 256
KC_S = 4160
KC_D = 4 * KC_S
L_U = L_KC + 2 * KC_D
U_D = 4608
L_XL = L_U + 2 * U_D
L_R1 = L_XL + 8192
L_KTAB = L_R1
KTAB_D = 7680
L_PAR = L_XL
L_R2 = L_R1
LDS_BYTES = L_R1 + 16384
ZIDX = 840
TRASH = 848
TS = 1040
L_T1 = L_KC
L_T2 = L_T1 + 16 * TS
F_H = 256
F_XS = 512
F_W = F_XS + 2048
assert F_W + 32768 <= LDS_BYTES
assert LDS_BYTES <= 81920
POLL_LIMIT = 40000
def opt(name, dflt):
    m = [a for a in sys.argv if a.startswith(f"--{name}=")]
    return int(m[0].split("=")[1]) if m else dflt
LNPRIO = opt("lnprio", 2)
FPRIO = opt("fprio", 3)
KSLEEP = int([a for a in sys.argv if a.startswith("--ksleep=")][0][9:]) if any(a.startswith("--ksleep=") for a in sys.argv) else 3

out = []
cur = [out]
def I(s): cur[0].append("    " + s)
def L(s): cur[0].append(s + ":")
def C(s): cur[0].append("    ; " + s)
class capture:
    def __enter__(self):
        self.prev = cur[0]; self.lst = []; cur[0] = self.lst; return self.lst
    def __exit__(self, *a): cur[0] = self.prev
def f2u(x): return struct.unpack("<I", struct.pack("<f", x))[0]
def v(a, n=1): return f"v{a}" if n == 1 else f"v[{a}:{a+n-1}]"
def s(a, n=1): return f"s{a}" if n == 1 else f"s[{a}:{a+n-1}]"
uid = [0]
def lab(p):
    uid[0] += 1
    return f"L_{p}_{uid[0]}"

P_U, P_ARE, P_AIM, P_BRE, P_BIM, P_CRE, P_CIM, P_LDT = 8, 10, 12, 14, 16, 18, 20, 22
P_DSK, P_BX, P_WR, P_WG, P_WU, P_WD, P_OUT, P_DBG = 24, 26, 28, 30, 32, 34, 36, 38
P_WS = 40
S_WAVE, S_DP, S_NONCE, S_LDT, S_DSK, S_ROW0 = 42, 43, 44, 45, 46, 47
S_T0, S_T1, S_T2, S_T3 = 48, 49, 50, 51
S_X0 = 52
S_R = 56
S_DS2 = 60
S_UNS = 62
S_M0 = 63
S_CNT = 64
S_EXEC = 66
S_PART = 70
S_K1, S_K2 = 72, 73
S_XNG = 68
S_XT = 4
S_XNB = 6
S_MASK = 74
S_ST = 76
S_STB = 100
LOG2E = math.log2(math.e)

nstamp = [0]
def stamp():
    if not STAMP: return
    k = nstamp[0]; nstamp[0] += 1
    assert k < 11
    I(f"s_memtime {s(S_ST + 2*k, 2)}")

DPP4 = ("quad_perm:[1,0,3,2] row_mask:0xf bank_mask:0xf",
        "quad_perm:[2,3,0,1] row_mask:0xf bank_mask:0xf",
        "row_half_mirror row_mask:0xf bank_mask:0xf",
        "row_mirror row_mask:0xf bank_mask:0xf")
DPP6 = DPP4 + ("row_bcast:15 row_mask:0xa bank_mask:0xf", "row_bcast:31 row_mask:0xc bank_mask:0xf")
def dpp_reduce(regs, op="v_add_f32"):
    for mode in DPP6:
        pad = max(0, 3 - len(regs))
        if pad: I(f"s_nop {pad-1}")
        for r in regs:
            I(f"{op}_dpp {v(r)}, {v(r)}, {v(r)} {mode}")

def nonce_cas(vz, vt):
    l = lab("nocas")
    I(f"s_cmp_lg_u32 {s(S_T0)}, 0")
    I(f"s_cbranch_scc1 {l}")
    I(f"s_memrealtime {s(S_T2,2)}")
    I("s_waitcnt lgkmcnt(0)")
    I(f"s_or_b32 {s(S_T2)}, {s(S_T2)}, 1")
    I(f"v_mov_b32 {v(vt)}, {s(S_T2)}")
    I(f"v_mov_b32 {v(vt+1)}, 0")
    I("s_mov_b64 exec, 1")
    I(f"global_atomic_cmpswap {v(vz)}, {v(vt,2)}, {s(P_DBG,2)} sc1")
    I("s_mov_b64 exec, -1")
    L(l)

def nonce_issue(vz, vt):
    I(f"global_load_dword {v(vt)}, {v(vz)}, {s(P_DBG,2)} sc1")

def nonce_wait(vz, vt, first=0):
    l = lab("npoll"); done = l + "_done"
    I(f"s_mov_b32 {s(S_CNT)}, 0")
    if first:
        I(f"s_waitcnt vmcnt({first})")
        I(f"s_branch {l}_chk")
    L(l)
    I("s_waitcnt vmcnt(0)")
    L(l + "_chk")
    I(f"v_readfirstlane_b32 {s(S_NONCE)}, {v(vt)}")
    I(f"s_add_u32 {s(S_CNT)}, {s(S_CNT)}, 1")
    I(f"s_cmp_lg_u32 {s(S_NONCE)}, 0")
    I(f"s_cbranch_scc1 {done}")
    I(f"s_cmp_ge_u32 {s(S_CNT)}, {POLL_LIMIT}")
    I(f"s_cbranch_scc1 {done}")
    I("s_sleep 1")
    nonce_issue(vz, vt)
    I(f"s_branch {l}")
    L(done)

def sweep_issue(vaddr, GR, base):
    for k in range(4):
        I(f"global_load_dwordx4 {v(GR+4*k,4)}, {v(vaddr+k)}, {s(base,2)} sc1")

def sweep_check(GR, vtmp):
    I(f"v_xor_b32 {v(vtmp)}, {s(S_NONCE)}, {v(GR+1)}")
    I(f"v_xor_b32 {v(vtmp+1)}, {s(S_NONCE)}, {v(GR+3)}")
    for k in range(1, 4):
        I(f"v_xor_b32 {v(vtmp+2)}, {s(S_NONCE)}, {v(GR+4*k+1)}")
        I(f"v_xor_b32 {v(vtmp+3)}, {s(S_NONCE)}, {v(GR+4*k+3)}")
        I(f"v_or3_b32 {v(vtmp)}, {v(vtmp)}, {v(vtmp+2)}, {v(vtmp+3)}")
    I(f"v_or_b32 {v(vtmp)}, {v(vtmp)}, {v(vtmp+1)}")
    I(f"v_cmp_ne_u32 vcc, 0, {v(vtmp)}")

def sweep(vaddr, GR, vtmp, base, issued=False, first_wait=0):
    l = lab("sweep"); done = l + "_done"; chk = l + "_chk"
    I(f"s_mov_b32 {s(S_CNT)}, 0")
    if issued:
        I(f"s_waitcnt vmcnt({first_wait})")
        I(f"s_branch {chk}")
    L(l)
    sweep_issue(vaddr, GR, base)
    I("s_waitcnt vmcnt(0)")
    L(chk)
    sweep_check(GR, vtmp)
    I(f"s_add_u32 {s(S_CNT)}, {s(S_CNT)}, 1")
    I(f"s_cmp_eq_u64 vcc, 0")
    I(f"s_cbranch_scc1 {done}")
    I("s_sleep 4")
    I(f"s_cmp_lt_u32 {s(S_CNT)}, {POLL_LIMIT}")
    I(f"s_cbranch_scc1 {l}")
    L(done)

def poll4(vaddr, GR, tagpos, vtmp, issued=False, first_wait=0, sleep=2):
    l = lab("poll"); done = l + "_done"; chk = l + "_chk"
    I(f"s_mov_b32 {s(S_CNT)}, 0")
    if issued:
        I(f"s_waitcnt vmcnt({first_wait})")
        I(f"s_branch {chk}")
    L(l)
    I(f"global_load_dwordx4 {v(GR,4)}, {v(vaddr)}, {s(P_WS,2)} sc1")
    I("s_waitcnt vmcnt(0)")
    L(chk)
    for k, tp in enumerate(tagpos): I(f"v_xor_b32 {v(vtmp+k)}, {s(S_NONCE)}, {v(GR+tp)}")
    if len(tagpos) == 4:
        I(f"v_or3_b32 {v(vtmp)}, {v(vtmp)}, {v(vtmp+2)}, {v(vtmp+3)}")
    I(f"v_or_b32 {v(vtmp)}, {v(vtmp)}, {v(vtmp+1)}")
    I(f"v_cmp_ne_u32 vcc, 0, {v(vtmp)}")
    I(f"s_add_u32 {s(S_CNT)}, {s(S_CNT)}, 1")
    I(f"s_cmp_eq_u64 vcc, 0")
    I(f"s_cbranch_scc1 {done}")
    I(f"s_sleep {sleep}")
    I(f"s_cmp_lt_u32 {s(S_CNT)}, {POLL_LIMIT}")
    I(f"s_cbranch_scc1 {l}")
    L(done)

def top2_wave(GR, m1, m2, t1, t2):
    I(f"v_mov_b32 {v(m1)}, {v(GR)}")
    I(f"v_mov_b32 {v(m2)}, {v(GR+2)}")
    for mode in DPP4:
        I("s_nop 1")
        I(f"v_mov_b32_dpp {v(t1)}, {v(m1)} {mode}")
        I(f"v_max_u32_dpp {v(t2)}, {v(m2)}, {v(m2)} {mode}")
        I(f"v_med3_u32 {v(m2)}, {v(m1)}, {v(t1)}, {v(t2)}")
        I(f"v_max_u32 {v(m1)}, {v(m1)}, {v(t1)}")
    for swp in ("v_permlane16_swap_b32", "v_permlane32_swap_b32"):
        I(f"v_mov_b32 {v(t1)}, {v(m1)}")
        I(f"v_mov_b32 {v(t2)}, {v(m2)}")
        I("s_nop 1")
        I(f"{swp} {v(m1)}, {v(t1)}")
        I(f"{swp} {v(m2)}, {v(t2)}")
        I("s_nop 0")
        I(f"v_max_u32 {v(t2)}, {v(m2)}, {v(t2)}")
        I(f"v_med3_u32 {v(m2)}, {v(m1)}, {v(t1)}, {v(t2)}")
        I(f"v_max_u32 {v(m1)}, {v(m1)}, {v(t1)}")

def top2_combine(a, t1):
    for k in (1, 2, 3):
        I(f"v_max_u32 {v(t1)}, {v(a+1)}, {v(a+2*k+1)}")
        I(f"v_med3_u32 {v(a+1)}, {v(a)}, {v(a+2*k)}, {v(t1)}")
        I(f"v_max_u32 {v(a)}, {v(a)}, {v(a+2*k)}")

def unpack(dst, src):
    I(f"v_lshlrev_b32 {v(dst)}, 16, {v(src)}")
    I(f"v_and_b32 {v(dst+1)}, {s(S_MASK)}, {v(src)}")


def keys_poll(vaddr, GK, vtmp):
    l = lab("kpoll"); done = l + "_done"
    I(f"s_mov_b32 {s(S_CNT)}, 0")
    L(l)
    I(f"global_load_dwordx4 {v(GK,4)}, {v(vaddr)}, {s(P_WS,2)} sc1")
    I(f"global_load_dwordx4 {v(GK+4,4)}, {v(vaddr+1)}, {s(P_WS,2)} sc1")
    I("s_waitcnt vmcnt(0)")
    for k in range(4): I(f"v_xor_b32 {v(vtmp+k)}, {s(S_NONCE)}, {v(GK+2*k+1)}")
    I(f"v_or3_b32 {v(vtmp)}, {v(vtmp)}, {v(vtmp+2)}, {v(vtmp+3)}")
    I(f"v_or_b32 {v(vtmp)}, {v(vtmp)}, {v(vtmp+1)}")
    I(f"v_cmp_ne_u32 vcc, 0, {v(vtmp)}")
    I(f"s_add_u32 {s(S_CNT)}, {s(S_CNT)}, 1")
    I(f"s_cmp_eq_u64 vcc, 0")
    I(f"s_cbranch_scc1 {done}")
    I(f"s_sleep {KSLEEP}")
    I(f"s_cmp_lt_u32 {s(S_CNT)}, {POLL_LIMIT}")
    I(f"s_cbranch_scc1 {l}")
    L(done)

def keys_top2(GK, m1, m2, t1, t2):
    I(f"v_max_u32 {v(t2)}, {v(GK+2)}, {v(GK+6)}")
    I(f"v_med3_u32 {v(GK+2)}, {v(GK)}, {v(GK+4)}, {v(t2)}")
    I(f"v_max_u32 {v(GK)}, {v(GK)}, {v(GK+4)}")
    top2_wave(GK, m1, m2, t1, t2)
    I("s_nop 0")
    I(f"v_readfirstlane_b32 {s(S_K1)}, {v(m1)}")
    I(f"v_readfirstlane_b32 {s(S_K2)}, {v(m2)}")


def keys_issue(vaddr, GK):
    I(f"global_load_dwordx4 {v(GK,4)}, {v(vaddr)}, {s(P_WS,2)} sc1")
    I(f"global_load_dwordx4 {v(GK+4,4)}, {v(vaddr+1)}, {s(P_WS,2)} sc1")
def keys_check(GK, vtmp):
    for k in range(4): I(f"v_xor_b32 {v(vtmp+k)}, {s(S_NONCE)}, {v(GK+2*k+1)}")
    I(f"v_or3_b32 {v(vtmp)}, {v(vtmp)}, {v(vtmp+2)}, {v(vtmp+3)}")
    I(f"v_or_b32 {v(vtmp)}, {v(vtmp)}, {v(vtmp+1)}")
    I(f"v_cmp_ne_u32 vcc, 0, {v(vtmp)}")
    I(f"s_cmp_eq_u64 vcc, 0")

hdr = open("parallel_sum__ssm_conv_s4__moe_arch_mod__prompt.s.ref").read().split("; Override")[0]
out.append(hdr.rstrip())
out.append(f"; @launch grid=({NWG},1,1) block=(256,1,1) lds={LDS_BYTES}")
out.append('.amdgcn_target "amdgcn-amd-amdhsa--gfx950"')
out.append(".text")
out.append(f".globl {KNAME}")
out.append(".p2align 8")
out.append(f".type {KNAME},@function")
L(KNAME)
I(f"s_cmp_ge_u32 s2, {NWG}")
I("s_cbranch_scc1 L_end")
I(f"s_load_dwordx16 s[8:23], s[0:1], 0")
I(f"s_load_dwordx16 s[24:39], s[0:1], 64")
I(f"s_load_dwordx2 {s(P_WS,2)}, s[0:1], 128")
stamp()
VL, VZ, VJ, VKG = 1, 2, 5, 6
VO, VO2 = 10, 11
I(f"v_and_b32 {v(VL)}, 63, v0")
I(f"v_lshrrev_b32 v3, 6, v0")
I(f"v_mov_b32 {v(VZ)}, 0")
I(f"v_readfirstlane_b32 {s(S_WAVE)}, v3")
I(f"s_mov_b32 {s(S_MASK)}, 0xffff0000")
I(f"v_lshlrev_b32 {v(VO2)}, 4, {v(VL)}")
I(f"s_cmp_ge_u32 s2, {NLN}")
I("s_cbranch_scc1 L_notln")

C("==== LayerNorm role: 16 rows per workgroup, 4 per wave")
I(f"s_setprio {LNPRIO}")
NR = 4
X = [12 + 4*r for r in range(NR)]
WR = 28
F = [32 + 8*r for r in range(NR)]
D = [64 + 8*r for r in range(NR)]
T = [96 + 8*r for r in range(NR)]
S1 = [128 + r for r in range(NR)]
S2 = [132 + r for r in range(NR)]
S3 = [136 + r for r in range(NR)]
SW = 140
SX0 = [52 + 2*r for r in range(NR)]
VNON = 141
VTW, VTR2, VTS2 = 142, 143, 144
t1, t2 = 145, 146
VC, VONE = 147, 148
TX = 160
R_ = range(NR)
I(f"s_lshl_b32 {s(S_ROW0)}, s2, 4")
I(f"s_lshl_b32 {s(S_T0)}, {s(S_WAVE)}, 2")
I(f"s_add_u32 {s(S_ROW0)}, {s(S_ROW0)}, {s(S_T0)}")
I(f"s_lshl_b32 {s(S_T0)}, {s(S_ROW0)}, 10")
I(f"v_add_u32 {v(VO)}, {s(S_T0)}, {v(VO2)}")
I("s_waitcnt lgkmcnt(0)")
for r in R_:
    I(f"global_load_dwordx4 {v(X[r],4)}, {v(VO)}, {s(P_U,2)} offset:{1024*r}")
I(f"global_load_dwordx4 {v(WR,4)}, {v(VO2)}, {s(P_WR,2)}")
C("---- pull the kernel's own code into this die's L2 (instruction fetch then misses only to L2)")
NCP = int([a for a in sys.argv if a.startswith("--ncp=")][0][6:]) if any(a.startswith("--ncp=") for a in sys.argv) else 32
I(f"s_getpc_b64 {s(S_EXEC,2)}")
L("L_pc")
I(f"s_sub_u32 {s(S_EXEC)}, {s(S_EXEC)}, L_pc-{KNAME}")
I(f"s_subb_u32 {s(S_EXEC+1)}, {s(S_EXEC+1)}, 0")
I(f"v_lshlrev_b32 {v(t1)}, 6, v0")
I(f"v_min_u32 {v(t1)}, L_end-{KNAME}, {v(t1)}")
I(f"s_cmp_ge_u32 s2, {NCP}")
I("s_cbranch_scc1 L_nocp")
I(f"global_load_dword {v(159)}, {v(t1)}, {s(S_EXEC,2)}")
I("s_branch L_cpdone")
L("L_nocp")
I(f"global_load_dword {v(159)}, {v(VZ)}, {s(P_WR,2)}")
L("L_cpdone")
I(f"s_add_u32 {s(S_XT)}, {s(P_WS)}, {WS_XT}")
I(f"s_addc_u32 {s(S_XT+1)}, {s(P_WS+1)}, 0")
I(f"s_mul_i32 {s(S_T2)}, {s(S_WAVE)}, {4*TS}")
I(f"v_add_u32 {v(VTW)}, {s(S_T2)}, {v(VO2)}")
I(f"v_and_b32 {v(t1)}, 3, v0")
I(f"v_lshrrev_b32 {v(t2)}, 2, v0")
I(f"v_mul_u32_u24 {v(VTR2)}, {4*TS}, {v(t1)}")
I(f"v_lshl_add_u32 {v(VTR2)}, {v(t2)}, 2, {v(VTR2)}")
I(f"s_lshl_b32 {s(S_T2)}, s2, 6")
I(f"v_lshl_add_u32 {v(VTS2)}, {v(t1)}, 4, {s(S_T2)}")
I(f"v_lshl_add_u32 {v(VTS2)}, {v(t2)}, 13, {v(VTS2)}")
I(f"s_lshl_b32 {s(S_T2)}, {s(S_ROW0)}, 3")
I(f"v_add_u32 {v(VO)}, {s(S_T2)}, {v(VO2)}")
C("---- warm this die's L2 with FFN weight lines that its FFN workgroups read last (speed only)")
I(f"s_and_b32 {s(S_T0)}, s2, 7")
I(f"s_lshr_b32 {s(S_T1)}, s2, 3")
I(f"s_sub_u32 {s(S_T2)}, {s(S_WAVE)}, 1")
I(f"s_cmp_ge_u32 {s(S_T2)}, 2")
I("s_cbranch_scc1 L_pf_down")
I(f"s_mul_i32 {s(S_T2)}, {s(S_T0)}, 448")
I(f"s_mul_i32 {s(S_T3)}, {s(S_T1)}, {16*3584}")
I(f"s_add_u32 {s(S_T2)}, {s(S_T2)}, {s(S_T3)}")
I(f"s_add_u32 {s(S_T2)}, {s(S_T2)}, {256*3584}")
I(f"v_lshrrev_b32 {v(176)}, 2, {v(VL)}")
I(f"v_mul_u32_u24 {v(176)}, 3584, {v(176)}")
I(f"v_and_b32 {v(177)}, 3, {v(VL)}")
I(f"v_mul_u32_u24 {v(177)}, 148, {v(177)}")
I(f"v_add3_u32 {v(176)}, {v(176)}, {v(177)}, {s(S_T2)}")
I(f"s_cmp_eq_u32 {s(S_WAVE)}, 1")
I(f"s_cselect_b32 {s(S_EXEC)}, {s(P_WG)}, {s(P_WU)}")
I(f"s_cselect_b32 {s(S_EXEC+1)}, {s(P_WG+1)}, {s(P_WU+1)}")
I(f"v_add_u32 {v(177)}, 72, {v(176)}")
I(f"v_min_u32 {v(177)}, {512*3584-4}, {v(177)}")
I("s_branch L_pf_go")
L("L_pf_down")
I(f"s_mul_i32 {s(S_T2)}, {s(S_T0)}, {224*1024}")
I(f"s_mul_i32 {s(S_T3)}, {s(S_T1)}, {14*1024}")
I(f"s_add_u32 {s(S_T2)}, {s(S_T2)}, {s(S_T3)}")
I(f"s_and_b32 {s(S_T3)}, {s(S_WAVE)}, 1")
I(f"s_mul_i32 {s(S_T3)}, {s(S_T3)}, 7168")
I(f"s_add_u32 {s(S_T2)}, {s(S_T2)}, {s(S_T3)}")
I(f"v_min_u32 {v(176)}, 55, {v(VL)}")
I(f"v_lshl_add_u32 {v(176)}, {v(176)}, 6, {s(S_T2)}")
I(f"v_add_u32 {v(177)}, 3584, {v(176)}")
I(f"s_mov_b64 {s(S_EXEC,2)}, {s(P_WD,2)}")
L("L_pf_go")
I(f"v_mov_b32 {v(VC)}, {f2u(1.0/512):#x}")
I(f"v_mov_b32 {v(VONE)}, 0x3f803f80")
for r in R_: I(f"v_mov_b32 {v(S3[r])}, 0")
I(f"v_mov_b32 {v(SW)}, 0")
for r in R_:
    I(f"s_waitcnt vmcnt({NR + 1 - r})")
    if r == 0: stamp()
    I(f"ds_write_b128 {v(VTW)}, {v(X[r],4)} offset:{L_T2 + r*TS}")
    if r < NR - 1:
        for k in range(4): unpack(F[r]+2*k, X[r]+k)
I("s_waitcnt lgkmcnt(0)")
I("s_barrier")
for i in range(4):
    for e in range(4):
        I(f"ds_read_b32 {v(TX+4*i+e)}, {v(VTR2)} offset:{L_T2 + 256*i + e*TS}")
for k in range(4): unpack(F[NR-1]+2*k, X[NR-1]+k)
for r in R_: I(f"v_readfirstlane_b32 {s(SX0[r])}, {v(F[r])}")
for i in range(4):
    I(f"s_waitcnt lgkmcnt({12 - 4*i})")
    I(f"global_store_dwordx4 {v(VTS2)}, {v(TX+4*i,4)}, {s(S_XT,2)} sc1")
    if i < 3: I(f"v_add_u32 {v(VTS2)}, 0x80000, {v(VTS2)}")
nonce_issue(VZ, VNON)
I(f"global_load_dword {v(178)}, {v(176)}, {s(S_EXEC,2)}")
I(f"global_load_dword {v(179)}, {v(177)}, {s(S_EXEC,2)}")

stamp()
for k in range(4):
    for r in R_:
        I(f"v_pk_add_f32 {v(D[r]+2*k,2)}, {v(F[r]+2*k,2)}, {s(SX0[r],2)} op_sel_hi:[1,0] neg_lo:[0,1] neg_hi:[0,1]")
I("s_waitcnt vmcnt(8)")
for k in range(4):
    for r in R_: I(f"v_dot2c_f32_bf16 {v(S3[r])}, {v(X[r]+k)}, {v(WR+k)}")
    I(f"v_dot2c_f32_bf16 {v(SW)}, {v(VONE)}, {v(WR+k)}")
for r in R_: I(f"v_pk_add_f32 {v(T[r],2)}, {v(D[r],2)}, {v(D[r]+2,2)}")
for r in R_: I(f"v_pk_mul_f32 {v(T[r]+4,2)}, {v(D[r],2)}, {v(D[r],2)}")
for r in R_: I(f"v_pk_add_f32 {v(T[r]+2,2)}, {v(D[r]+4,2)}, {v(D[r]+6,2)}")
for r in R_: I(f"v_pk_fma_f32 {v(T[r]+4,2)}, {v(D[r]+2,2)}, {v(D[r]+2,2)}, {v(T[r]+4,2)}")
for r in R_: I(f"v_pk_add_f32 {v(T[r],2)}, {v(T[r],2)}, {v(T[r]+2,2)}")
for r in R_: I(f"v_pk_fma_f32 {v(T[r]+4,2)}, {v(D[r]+4,2)}, {v(D[r]+4,2)}, {v(T[r]+4,2)}")
for r in R_: I(f"v_add_f32 {v(S1[r])}, {v(T[r])}, {v(T[r]+1)}")
for r in R_: I(f"v_pk_fma_f32 {v(T[r]+4,2)}, {v(D[r]+6,2)}, {v(D[r]+6,2)}, {v(T[r]+4,2)}")
for r in R_: I(f"v_add_f32 {v(S2[r])}, {v(T[r]+4)}, {v(T[r]+5)}")
dpp_reduce(S1 + S3 + [SW] + S2)
for r in R_: I(f"v_mul_f32 {v(S1[r])}, {v(VC)}, {v(S1[r])}")
for r in R_: I(f"v_mul_f32 {v(S2[r])}, {v(VC)}, {v(S2[r])}")
for r in R_: I(f"v_fma_f32 {v(S2[r])}, -{v(S1[r])}, {v(S1[r])}, {v(S2[r])}")
for r in R_: I(f"v_add_f32 {v(S1[r])}, {s(SX0[r])}, {v(S1[r])}")
for r in R_: I(f"v_max_f32 {v(S2[r])}, 0, {v(S2[r])}")
MP = [T[0], T[0]+1]; VP = [T[0]+2, T[0]+3]
for h in range(2): I(f"v_cvt_pk_bf16_f32 {v(MP[h])}, {v(S1[2*h])}, {v(S1[2*h+1])}")
for h in range(2): I(f"v_cvt_pk_bf16_f32 {v(VP[h])}, {v(S2[2*h])}, {v(S2[2*h+1])}")
for h in range(2): unpack(S1[2*h], MP[h])
for h in range(2): unpack(S2[2*h], VP[h])
eps = f2u(1e-5)
for r in R_: I(f"v_add_f32 {v(S2[r])}, {eps:#x}, {v(S2[r])}")
for r in R_: I(f"v_fma_f32 {v(S3[r])}, -{v(S1[r])}, {v(SW)}, {v(S3[r])}")
for h in range(2): I(f"v_cvt_pk_bf16_f32 {v(VP[h])}, {v(S2[2*h])}, {v(S2[2*h+1])}")
for r in R_: I(f"v_lshrrev_b32 {v(S1[r])}, 16, {v(S1[r])}")
for h in range(2): unpack(S2[2*h], VP[h])
for r in R_: I(f"v_sqrt_f32 {v(S2[r])}, {v(S2[r])}")
I("s_nop 0")
for h in range(2): I(f"v_cvt_pk_bf16_f32 {v(VP[h])}, {v(S2[2*h])}, {v(S2[2*h+1])}")
for h in range(2): unpack(S2[2*h], VP[h])
RC = [T[1]+r for r in R_]
for r in R_: I(f"v_rcp_f32 {v(RC[r])}, {v(S2[r])}")
for r in R_: I(f"v_or_b32 {v(S1[r])}, {v(S1[r])}, {v(S2[r])}")
for r in R_: I(f"v_mul_f32 {v(S3[r])}, {v(S3[r])}, {v(RC[r])}")
SMS = [10, 11, 12, 13]
for r in R_: I(f"v_readlane_b32 {s(SMS[r])}, {v(S1[r])}, 63")
for h in range(2): I(f"v_cvt_pk_bf16_f32 {v(MP[h])}, {v(S3[2*h])}, {v(S3[2*h+1])}")
GP = 152
I(f"v_cmp_eq_u32 vcc, 0, {v(VL)}")
for h in range(2): I(f"v_readlane_b32 {s(S_R+h)}, {v(MP[h])}, 63")
I(f"v_mov_b32 {v(GP)}, {s(SMS[2])}")
I(f"v_mov_b32 {v(GP+2)}, {s(SMS[3])}")
I(f"v_mov_b32 {v(t1)}, {s(SMS[0])}")
I(f"v_mov_b32 {v(t2)}, {s(SMS[1])}")
I(f"v_cndmask_b32 {v(GP)}, {v(GP)}, {v(t1)}, vcc")
I(f"v_cndmask_b32 {v(GP+2)}, {v(GP+2)}, {v(t2)}, vcc")
I(f"s_sub_u32 {s(S_T3)}, 0xffff, {s(S_ROW0)}")
KK = [14, 15, 16, 17]
for h in range(2):
    I(f"s_and_b32 {s(S_T0)}, {s(S_R+h)}, 0x80008000")
    I(f"s_lshr_b32 {s(S_T1)}, {s(S_T0)}, 15")
    I(f"s_mul_i32 {s(S_T1)}, {s(S_T1)}, 0x7fff")
    I(f"s_or_b32 {s(S_T1)}, {s(S_T1)}, 0x80008000")
    I(f"s_xor_b32 {s(S_T2)}, {s(S_R+h)}, {s(S_T1)}")
    I(f"s_lshl_b32 {s(S_T0)}, {s(S_T2)}, 16")
    I(f"s_or_b32 {s(S_T0)}, {s(S_T0)}, {s(S_T3)}")
    I(f"s_sub_u32 {s(S_T3)}, {s(S_T3)}, 1")
    I(f"s_and_b32 {s(S_T1)}, {s(S_T2)}, 0xffff0000")
    I(f"s_or_b32 {s(S_T1)}, {s(S_T1)}, {s(S_T3)}")
    I(f"s_sub_u32 {s(S_T3)}, {s(S_T3)}, 1")
    I(f"s_max_u32 {s(KK[2*h])}, {s(S_T0)}, {s(S_T1)}")
    I(f"s_min_u32 {s(KK[2*h+1])}, {s(S_T0)}, {s(S_T1)}")
I(f"s_max_u32 {s(S_T0)}, {s(KK[0])}, {s(KK[2])}")
I(f"s_min_u32 {s(S_T1)}, {s(KK[0])}, {s(KK[2])}")
I(f"s_max_u32 {s(S_T2)}, {s(KK[1])}, {s(KK[3])}")
I(f"s_max_u32 {s(S_T1)}, {s(S_T1)}, {s(S_T2)}")
I(f"v_mov_b32 {v(156)}, {s(S_T0)}")
I(f"v_mov_b32 {v(157)}, {s(S_T1)}")
I(f"s_lshl_b32 {s(S_T0)}, {s(S_WAVE)}, 3")
I(f"v_mov_b32 {v(158)}, {s(S_T0)}")
I(f"ds_write_b64 {v(158)}, {v(156,2)} offset:{L_MISC + 64}")
stamp()
nonce_wait(VZ, VNON, first=2)
stamp()
I(f"v_mov_b32 {v(GP+1)}, {v(VNON)}")
I(f"v_mov_b32 {v(GP+3)}, {v(VNON)}")
I("s_mov_b64 exec, 3")
I(f"global_store_dwordx4 {v(VO)}, {v(GP,4)}, {s(P_WS,2)} sc1")
I("s_mov_b64 exec, -1")
I("s_waitcnt lgkmcnt(0)")
I("s_barrier")
I(f"s_cmp_lg_u32 {s(S_WAVE)}, 0")
I("s_cbranch_scc1 L_ln_pf" if "--nopf" not in sys.argv else "s_cbranch_scc1 L_fin")
I(f"ds_read_b128 {v(96,4)}, {v(VZ)} offset:{L_MISC+64}")
I(f"ds_read_b128 {v(100,4)}, {v(VZ)} offset:{L_MISC+80}")
I(f"s_lshl_b32 {s(S_T0)}, s2, 7")
I(f"s_add_u32 {s(S_T0)}, {s(S_T0)}, {WS_KEYS}")
I(f"v_mov_b32 {v(105)}, {s(S_T0)}")
I("s_waitcnt lgkmcnt(0)")
top2_combine(96, 104)
I(f"v_mov_b32 {v(98)}, {v(97)}")
I(f"v_mov_b32 {v(97)}, {v(VNON)}")
I(f"v_mov_b32 {v(99)}, {v(VNON)}")
I("s_mov_b64 exec, 1")
I(f"global_store_dwordx4 {v(105)}, {v(96,4)}, {s(P_WS,2)} sc1")
I("s_mov_b64 exec, -1")
stamp()
if "--nopf" in sys.argv: I("s_branch L_fin")
L("L_ln_pf")
I("s_branch L_fin")

L("L_notln")
nstamp[0] = 1
I(f"v_and_b32 {v(VJ)}, 15, {v(VL)}")
I(f"v_lshrrev_b32 {v(VKG)}, 4, {v(VL)}")
VKEY = 252
I(f"v_lshlrev_b32 {v(VKEY)}, 7, {v(VL)}")
I(f"v_add_u32 {v(VKEY+1)}, {WS_KEYS + 8192}, {v(VKEY)}")
I(f"v_add_u32 {v(VKEY)}, {WS_KEYS}, {v(VKEY)}")
I(f"s_cmp_ge_u32 s2, {NLN + NCONV}")
I("s_cbranch_scc1 L_ffn")

C("==== conv role")
S_C = 47
I(f"s_sub_u32 {s(S_C)}, s2, {NLN}")
PRM = 24
I(f"s_and_b32 {s(S_T0)}, {s(S_C)}, 7")
I(f"s_lshl_b32 {s(S_T0)}, {s(S_T0)}, 5")
I(f"s_lshr_b32 {s(S_T1)}, {s(S_C)}, 3")
I(f"s_add_u32 {s(S_DP)}, {s(S_T0)}, {s(S_T1)}")
I(f"s_lshl_b32 {s(S_T0)}, {s(S_DP)}, 9")
I(f"s_lshl_b32 {s(S_T1)}, {s(S_WAVE)}, 7")
I(f"s_add_u32 {s(S_T0)}, {s(S_T0)}, {s(S_T1)}")
VPO = 30
I(f"v_lshl_add_u32 {v(VPO)}, {v(VL)}, 1, {s(S_T0)}")
for k in range(6): I(f"v_mov_b32 {v(PRM+k)}, 0")
I(f"s_lshl_b32 {s(S_T1)}, {s(S_DP)}, 2")
I("s_waitcnt lgkmcnt(0)")
for k, p in enumerate((P_ARE, P_AIM, P_BRE, P_BIM, P_CRE, P_CIM)):
    I(f"global_load_short_d16_hi {v(PRM+k)}, {v(VPO)}, {s(p,2)}")
I(f"s_load_dword {s(S_LDT)}, {s(P_LDT,2)}, {s(S_T1)}")
I(f"s_load_dword {s(S_DSK)}, {s(P_DSK,2)}, {s(S_T1)}")
I(f"s_lshr_b32 {s(S_T0)}, {s(S_C)}, 3")
I(f"s_xor_b32 {s(S_T0)}, {s(S_T0)}, 31")
I(f"s_xor_b32 {s(S_T1)}, {s(S_WAVE)}, 3")
I(f"s_or_b32 {s(S_T0)}, {s(S_T0)}, {s(S_T1)}")
nonce_cas(VZ, 32)
I(f"s_add_u32 {s(S_PART)}, {s(P_WS)}, {WS_PART}")
I(f"s_addc_u32 {s(S_PART+1)}, {s(P_WS+1)}, 0")
I(f"s_lshl_b32 {s(S_T0)}, {s(S_DP)}, 13")
I(f"s_add_u32 {s(S_T0)}, {s(S_T0)}, {WS_XT}")
I(f"s_add_u32 {s(S_XNG)}, {s(P_WS)}, {s(S_T0)}")
I(f"s_addc_u32 {s(S_XNG+1)}, {s(P_WS+1)}, 0")

C("---- constants")
AL = 200
VBETA = 206
SC0, SC1A, SC1B, SC2 = 208, 209, 210, 211
GA = 212
VGX = 224
VA_, VB_ = 226, 227
VRW, VRR = 228, 229
VT0 = 230
VOUT = 232
VPAR = 234
VKCW = 235
VPW = 236
VT8 = 237
VT4 = 238
VFL = 239
M1, M2 = 240, 241
VEX, VEU = 242, 243
VTL = 245
VNON = 246
VSW = 248
t1, t2, t3, t4 = 12, 13, 14, 15
I(f"v_lshlrev_b32 {v(VKCW)}, 4, v0")
I(f"v_lshlrev_b32 {v(VT8)}, 3, v0")
I(f"v_lshlrev_b32 {v(VT4)}, 2, v0")
I(f"s_lshl_b32 {s(S_T2)}, {s(S_WAVE)}, 11")
I(f"s_add_u32 {s(S_T2)}, {s(S_T2)}, {L_PAR}")
I(f"v_lshl_add_u32 {v(VPAR)}, {v(VKG)}, 7, {s(S_T2)}")
I(f"v_lshl_add_u32 {v(VPW)}, {v(VL)}, 5, {s(S_T2)}")
for k in range(4):
    I(f"v_add_u32 {v(VSW+k)}, {4096*k}, {v(VKCW)}")
I(f"v_add_u32 {v(VFL)}, 4096, {v(VT8)}")
I(f"v_mov_b32 {v(t1)}, {v(VJ)}")
for i_, al in ((8, 512), (9, 516), (10, 1024), (11, 1536), (12, 2048), (13, 0), (14, 0), (15, 0)):
    I(f"v_cmp_eq_u32 vcc, {i_}, {v(VJ)}")
    I(f"v_mov_b32 {v(t2)}, {al}")
    I("s_nop 0")
    I(f"v_cndmask_b32 {v(t1)}, {v(t1)}, {v(t2)}, vcc")
I(f"v_cvt_f32_u32 {v(AL)}, {v(t1)}")
I(f"v_lshlrev_b32 {v(t1)}, 3, {v(VJ)}")
I(f"v_cvt_f32_u32 {v(VBETA)}, {v(t1)}")
SCB, SCS = 208, 202
I(f"s_lshr_b32 {s(S_T0)}, {s(S_WAVE)}, 1")
I(f"s_mul_i32 {s(S_T0)}, {s(S_T0)}, {KTAB_D}")
I(f"s_and_b32 {s(S_T1)}, {s(S_WAVE)}, 1")
I(f"s_lshl_b32 {s(S_T1)}, {s(S_T1)}, 2")
I(f"s_add_u32 {s(S_T0)}, {s(S_T0)}, {s(S_T1)}")
I(f"s_add_u32 {s(S_T0)}, {s(S_T0)}, {L_KTAB}")
I(f"v_mul_u32_u24 {v(t1)}, 9, {v(VJ)}")
I(f"v_lshl_add_u32 {v(t1)}, {v(VKG)}, 2, {v(t1)}")
I(f"v_cmp_eq_u32 {s(S_T2,2)}, 2, {v(VKG)}")
I(f"v_cmp_eq_u32 {s(S_X0,2)}, 3, {v(VKG)}")
I(f"v_cmp_eq_u32 {s(S_X0+2,2)}, 48, {v(VL)}")
for r in range(4):
    I(f"v_add_u32 {v(t2)}, {r}, {v(t1)}")
    if r < 2: I(f"v_lshl_add_u32 {v(t3)}, {v(VJ)}, 1, {v(VZ)}"); I(f"v_add_u32 {v(t3)}, {576 + r}, {v(t3)}")
    else:     I(f"v_add_u32 {v(t3)}, {704 + 64*(r-2)}, {v(VJ)}")
    I(f"v_cndmask_b32 {v(t2)}, {v(t2)}, {v(t3)}, {s(S_T2,2)}")
    I(f"v_add_u32 {v(t3)}, {TRASH + 16*r}, {v(VJ)}")
    I(f"v_cndmask_b32 {v(t2)}, {v(t2)}, {v(t3)}, {s(S_X0,2)}")
    if r == 0:
        I(f"v_mov_b32 {v(t3)}, 832")
        I(f"v_cndmask_b32 {v(t2)}, {v(t2)}, {v(t3)}, {s(S_X0+2,2)}")
    I(f"v_lshl_add_u32 {v(SCB+r)}, {v(t2)}, 3, {s(S_T0)}")
for hh, st2 in ((0, 32), (1, 16)):
    I(f"v_mov_b32 {v(t2)}, {144*8}")
    I(f"v_mov_b32 {v(t3)}, {st2*8}")
    I(f"v_cndmask_b32 {v(t2)}, {v(t2)}, {v(t3)}, {s(S_T2,2)}")
    I(f"v_cndmask_b32 {v(t2)}, {v(t2)}, {v(VZ)}, {s(S_X0,2)}")
    if hh == 0:
        I(f"v_mov_b32 {v(t3)}, {16*8}")
        I(f"v_cndmask_b32 {v(t2)}, {v(t2)}, {v(t3)}, {s(S_X0+2,2)}")
    I(f"v_mov_b32 {v(SCS+hh)}, {v(t2)}")
I(f"v_sub_u32 {v(t1)}, 2047, {v(VT8)}")
I(f"s_movk_i32 {s(S_T1)}, 0x4400")
I(f"v_mov_b32 {v(t4)}, {ZIDX}")
for k in range(11):
    I(f"v_subrev_u32 {v(t2)}, {k}, {v(t1)}")
    I(f"v_cvt_f32_i32 {v(t3)}, {v(t2)}")
    I(f"v_cvt_pk_bf16_f32 {v(t3)}, {v(t3)}, {v(VZ)}")
    I(f"v_lshlrev_b32 {v(16)}, 16, {v(t3)}")
    I(f"v_cmp_gt_u32 vcc, {s(S_T1)}, {v(t3)}")
    I(f"v_cvt_u32_f32 {v(16)}, {v(16)}")
    I(f"v_subrev_u32 {v(t3)}, {0x4400 - 576}, {v(t3)}")
    I(f"v_lshrrev_b32 {v(17)}, 3, {v(16)}")
    I(f"v_add_u32 {v(16)}, {v(16)}, {v(17)}")
    I(f"v_cndmask_b32 {v(t3)}, {v(t3)}, {v(16)}, vcc")
    if k >= 8:
        I(f"v_cmp_gt_i32 vcc, 0, {v(t2)}")
        I("s_nop 1")
        I(f"v_cndmask_b32 {v(t3)}, {v(t3)}, {v(t4)}, vcc")
    I(f"v_lshlrev_b32 {v(GA+k)}, 3, {v(t3)}")
I(f"s_lshr_b32 {s(S_T0)}, {s(S_WAVE)}, 1")
I(f"s_and_b32 {s(S_T1)}, {s(S_WAVE)}, 1")
I(f"s_mul_i32 {s(S_T2)}, {s(S_T0)}, {KC_D}")
I(f"s_lshl_b32 {s(S_T3)}, {s(S_T1)}, 8")
I(f"s_sub_u32 {s(S_T2)}, {s(S_T2)}, {s(S_T3)}")
I(f"s_add_u32 {s(S_T2)}, {s(S_T2)}, {L_KC + 3*KC_S + 72}")
I(f"v_and_b32 {v(t1)}, 3, {v(VJ)}")
I(f"v_mul_u32_u24 {v(t1)}, {KC_S}, {v(t1)}")
I(f"v_lshrrev_b32 {v(t2)}, 2, {v(VJ)}")
I(f"v_lshl_add_u32 {v(t1)}, {v(t2)}, 3, {v(t1)}")
I(f"v_lshl_add_u32 {v(t1)}, {v(VKG)}, 4, {v(t1)}")
I(f"v_sub_u32 {v(VA_)}, {s(S_T2)}, {v(t1)}")
I(f"s_mul_i32 {s(S_T2)}, {s(S_T0)}, {U_D}")
I(f"s_sub_u32 {s(S_T2)}, {s(S_T2)}, {s(S_T3)}")
I(f"s_add_u32 {s(S_T2)}, {s(S_T2)}, {L_U + 336}")
I(f"v_lshlrev_b32 {v(t1)}, 5, {v(VJ)}")
I(f"v_lshlrev_b32 {v(t2)}, 4, {v(VKG)}")
I(f"v_sub_u32 {v(t1)}, {v(t1)}, {v(t2)}")
I(f"v_add_u32 {v(VB_)}, {s(S_T2)}, {v(t1)}")
I(f"s_lshl_b32 {s(S_T2)}, {s(S_WAVE)}, 11")
I(f"v_add_u32 {v(VRW)}, {s(S_T2)}, {v(VO2)}")
I(f"s_lshr_b32 {s(S_T2)}, {s(S_WAVE)}, 1")
I(f"s_lshl_b32 {s(S_T2)}, {s(S_T2)}, 10")
I(f"s_and_b32 {s(S_T3)}, {s(S_WAVE)}, 1")
I(f"s_lshl_b32 {s(S_T3)}, {s(S_T3)}, 3")
I(f"s_add_u32 {s(S_T2)}, {s(S_T2)}, {s(S_T3)}")
I(f"v_add_u32 {v(VRR)}, {s(S_T2)}, {v(VO2)}")
I(f"s_lshr_b32 {s(S_T2)}, {s(S_T2)}, 2")
I(f"v_lshl_add_u32 {v(VT0)}, {v(VJ)}, 4, {s(S_T2)}")
I(f"v_lshl_add_u32 {v(VT0)}, {v(VKG)}, 2, {v(VT0)}")
I(f"v_lshlrev_b32 {v(VEX)}, 2, {v(VT0)}")
I(f"v_lshlrev_b32 {v(VEU)}, 1, {v(VT0)}")
I(f"s_lshl_b32 {s(S_T2)}, {s(S_DP)}, 2")
I(f"v_lshl_add_u32 {v(VOUT)}, {v(VT0)}, 10, {s(S_T2)}")
I(f"v_mov_b32 {v(38)}, 0")
I(f"v_mov_b32 {v(39)}, 0")
I(f"ds_write_b64 {v(VZ)}, {v(38,2)} offset:{L_KTAB + 8*ZIDX}")
I(f"ds_write_b64 {v(VZ)}, {v(38,2)} offset:{L_KTAB + KTAB_D + 8*ZIDX}")
I(f"v_lshlrev_b32 {v(t2)}, 1, v0")
I(f"ds_write_b16 {v(t2)}, {v(VZ)} offset:{L_U}")
I(f"ds_write_b16 {v(t2)}, {v(VZ)} offset:{L_U + U_D}")
I(f"v_lshrrev_b32 {v(t3)}, 5, v0")
I(f"v_mul_u32_u24 {v(t3)}, {KC_S}, {v(t3)}")
I(f"v_and_b32 {v(t4)}, 31, v0")
I(f"v_lshl_add_u32 {v(t3)}, {v(t4)}, 1, {v(t3)}")
I(f"ds_write_b16 {v(t3)}, {v(VZ)} offset:{L_KC + 4096}")

C("---- K-gen parameters")
I("s_waitcnt lgkmcnt(0)")
I(f"s_lshr_b32 {s(S_T0)}, {s(S_WAVE)}, 1")
I(f"s_lshl_b32 {s(S_T0)}, {s(S_T0)}, 4")
I(f"s_lshr_b32 {s(S_T1)}, {s(S_LDT)}, {s(S_T0)}")
I(f"s_lshl_b32 {s(S_T1)}, {s(S_T1)}, 16")
l2e_hi = struct.unpack("<f", struct.pack("<f", LOG2E))[0]
l2e_lo = LOG2E - l2e_hi
T0_, T1_, T2_, T3_, DT = 40, 41, 42, 43, 44
VDS = 8
I(f"s_lshl_b32 {s(S_DS2)}, {s(S_DSK)}, 16")
I(f"s_and_b32 {s(S_DS2+1)}, {s(S_DSK)}, 0xffff0000")
I(f"v_mov_b32 {v(T0_)}, {f2u(l2e_hi):#x}")
I(f"v_mov_b32 {v(T3_)}, {f2u(l2e_lo):#x}")
I(f"v_add_f32 {v(VDS)}, {s(S_DS2)}, 1.0")
I(f"v_add_f32 {v(VDS+1)}, {s(S_DS2+1)}, 1.0")
I(f"v_mul_f32 {v(T1_)}, {s(S_T1)}, {v(T0_)}")
I(f"v_fma_f32 {v(T2_)}, {s(S_T1)}, {v(T0_)}, -{v(T1_)}")
I(f"v_fma_f32 {v(T2_)}, {s(S_T1)}, {v(T3_)}, {v(T2_)}")
I(f"v_exp_f32 {v(T1_)}, {v(T1_)}")
I(f"v_mul_f32 {v(T2_)}, {f2u(math.log(2.0)):#x}, {v(T2_)}")
I(f"v_readfirstlane_b32 {s(S_DS2)}, {v(VDS)}")
I(f"v_readfirstlane_b32 {s(S_DS2+1)}, {v(VDS+1)}")
I(f"v_fma_f32 {v(T1_)}, {v(T1_)}, {v(T2_)}, {v(T1_)}")
I(f"v_cvt_pk_bf16_f32 {v(T1_)}, {v(T1_)}, {v(T1_)}")
I(f"v_lshlrev_b32 {v(DT)}, 16, {v(T1_)}")
PW = 48
I("s_waitcnt vmcnt(1)")
stamp()
I("s_waitcnt vmcnt(0)") if False else None
I(f"v_mul_f32 {v(T1_)}, {v(DT)}, {v(PRM+2)}")
I(f"v_mul_f32 {v(T2_)}, {v(DT)}, {v(PRM+3)}")
I(f"v_mul_f32 {v(PW)}, {v(DT)}, {v(PRM+0)}")
I(f"v_mul_f32 {v(PW+1)}, {v(DT)}, {v(PRM+1)}")
I(f"v_mul_f32 {v(PW+2)}, {v(PRM+4)}, {v(T1_)}")
I(f"v_mul_f32 {v(PW+3)}, {v(PRM+4)}, {v(T2_)}")
I(f"v_mul_f32 {v(PW)}, {v(T0_)}, {v(PW)}")
I(f"v_mul_f32 {v(PW+1)}, 0.15915494, {v(PW+1)}")
I(f"s_lshr_b32 {s(S_T0)}, {s(S_C)}, 3")
I(f"s_xor_b32 {s(S_T0)}, {s(S_T0)}, 31")
I(f"s_xor_b32 {s(S_T2)}, {s(S_WAVE)}, 3")
I(f"s_or_b32 {s(S_T0)}, {s(S_T0)}, {s(S_T2)}")
I(f"s_cmp_eq_u32 {s(S_T0)}, 0")
I("s_cbranch_scc1 L_p5b")
I("s_waitcnt vmcnt(0)")
L("L_p5b")
I(f"v_mul_f32 {v(56)}, 0x43000000, {v(PW)}")
I(f"v_mul_f32 {v(57)}, 0x43000000, {v(PW+1)}")
I(f"v_exp_f32 {v(56)}, {v(56)}")
I(f"v_fract_f32 {v(57)}, {v(57)}")
I(f"v_cos_f32 {v(PW+4)}, {v(57)}")
I(f"v_sin_f32 {v(PW+5)}, {v(57)}")
I(f"v_fma_f32 {v(PW+2)}, -{v(PRM+5)}, {v(T2_)}, {v(PW+2)}")
I(f"v_fma_f32 {v(PW+3)}, {v(PRM+5)}, {v(T1_)}, {v(PW+3)}")
I(f"v_max_f32 {v(T3_)}, |{v(PW+2)}|, |{v(PW+3)}|")
I(f"v_mul_f32 {v(PW+4)}, {v(PW+4)}, {v(56)}")
I(f"v_mul_f32 {v(PW+5)}, {v(PW+5)}, {v(56)}")
I(f"ds_write_b64 {v(VPW)}, {v(PW+4,2)} offset:16")
dpp_reduce([T3_], "v_max_f32")
I("s_nop 0")
I(f"v_readlane_b32 {s(S_T0)}, {v(T3_)}, 63")
I("s_nop 3")
I(f"s_bfe_u32 {s(S_T0)}, {s(S_T0)}, 0x80017")
I(f"s_max_u32 {s(S_T0)}, {s(S_T0)}, 1")
I(f"s_min_u32 {s(S_T0)}, {s(S_T0)}, 253")
I(f"s_lshl_b32 {s(S_UNS)}, {s(S_T0)}, 23")
I(f"s_sub_u32 {s(S_T0)}, 254, {s(S_T0)}")
I(f"s_lshl_b32 {s(S_T0)}, {s(S_T0)}, 23")
I(f"v_mul_f32 {v(PW+2)}, {s(S_T0)}, {v(PW+2)}")
I(f"v_mul_f32 {v(PW+3)}, {s(S_T0)}, {v(PW+3)}")
I(f"ds_write_b128 {v(VPW)}, {v(PW,4)}")
nonce_issue(VZ, VNON)
C("---- K-gen main loop: 4 super-groups of 16 n ; one A tile (rows) x four B tiles (columns)")
ACC = 100
PP = 56
OPA = 116
OPB = 120
TM = 136
for k in range(16): I(f"v_mov_b32 {v(ACC+k)}, 0")
I(f"s_mov_b32 {s(S_CNT)}, 0")
I("s_waitcnt lgkmcnt(0)")
stamp()
L("L_kgen")
for q in range(4):
    I(f"ds_read_b128 {v(PP+8*q,4)}, {v(VPAR)} offset:{32*q}")
    I(f"ds_read_b64 {v(PP+8*q+4,2)}, {v(VPAR)} offset:{32*q+16}")
PFIT = int([a for a in sys.argv if a.startswith("--pfit=")][0][7:]) if any(a.startswith("--pfit=") for a in sys.argv) else 1
I(f"v_add_u32 {v(VPAR)}, 512, {v(VPAR)}")
for qp in range(2):
    QS = (2*qp, 2*qp+1)
    I(f"s_waitcnt lgkmcnt({4 - 4*qp})")
    def tm(q, x): return TM + 16*(q & 1) + 4*x
    EV = [(q, x) for q in QS for x in range(2)]
    for q, x in EV: I(f"v_pk_mul_f32 {v(tm(q,x),2)}, {v(PP+8*q,2)}, {v(VBETA if x == 0 else AL,2)} op_sel_hi:[1,0]")
    for q, x in EV: I(f"v_fract_f32 {v(tm(q,x)+1)}, {v(tm(q,x)+1)}")
    for q, x in EV: I(f"v_exp_f32 {v(tm(q,x))}, {v(tm(q,x))}")
    for q, x in EV: I(f"v_cos_f32 {v(tm(q,x)+2)}, {v(tm(q,x)+1)}")
    for q, x in EV: I(f"v_sin_f32 {v(tm(q,x)+3)}, {v(tm(q,x)+1)}")
    def ep(q, x): return TM + 16*(q & 1) + 8 + 2*x
    def bc(q, alt): return TM + 16*(q & 1) + 12 + 2*alt
    for q, x in EV: I(f"v_pk_mul_f32 {v(ep(q,x),2)}, {v(tm(q,x)+2,2)}, {v(tm(q,x),2)} op_sel_hi:[1,0]")
    for q in QS: I(f"v_pk_mul_f32 {v(bc(q,0),2)}, {v(ep(q,0),2)}, {v(PP+8*q+2,2)} op_sel_hi:[0,1] neg_hi:[0,1]")
    for q in QS: I(f"v_cvt_pk_f16_f32 {v(OPA+q)}, {v(ep(q,1))}, {v(ep(q,1)+1)}")
    for q in QS: I(f"v_fma_f32 {v(bc(q,0))}, -{v(ep(q,0)+1)}, {v(PP+8*q+3)}, {v(bc(q,0))}")
    for q in QS: I(f"v_fma_f32 {v(bc(q,0)+1)}, -{v(ep(q,0)+1)}, {v(PP+8*q+2)}, {v(bc(q,0)+1)}")
    for k in range(4):
        cur_, nx = k & 1, 1 - (k & 1)
        if k < 3:
            for q in QS: I(f"v_pk_mul_f32 {v(bc(q,nx),2)}, {v(bc(q,cur_),2)}, {v(PP+8*q+4,2)} op_sel_hi:[1,0]")
        for q in QS: I(f"v_cvt_pk_f16_f32 {v(OPB+4*k+q)}, {v(bc(q,cur_))}, {v(bc(q,cur_)+1)}")
        if k < 3:
            for q in QS: I(f"v_fma_f32 {v(bc(q,nx))}, {v(bc(q,cur_)+1)}, {v(PP+8*q+5)}, {v(bc(q,nx))}")
            for q in QS: I(f"v_fma_f32 {v(bc(q,nx)+1)}, -{v(bc(q,cur_))}, {v(PP+8*q+5)}, {v(bc(q,nx)+1)}")
I(f"s_add_u32 {s(S_CNT)}, {s(S_CNT)}, 1")
I(f"s_cmp_lt_u32 {s(S_CNT)}, 4")
for k in range(4):
    I(f"v_mfma_f32_16x16x32_f16 {v(ACC+4*k,4)}, {v(OPA,4)}, {v(OPB+4*k,4)}, {v(ACC+4*k,4)}")
I("s_cbranch_scc1 L_kgen")
stamp()
GR, GK = 160, 176
nonce_wait(VZ, VNON)
for k in range(16): I(f"v_mul_f32 {v(ACC+k)}, {s(S_UNS)}, {v(ACC+k)}")
for k in range(4):
    for r in range(4):
        I(f"ds_write_b32 {v(SCB+r)}, {v(ACC+4*k+r)}")
        if k < 3: I(f"v_add_u32 {v(SCB+r)}, {v(SCB+r)}, {v(SCS + (r >> 1))}")
I("s_waitcnt lgkmcnt(0)")
I("s_barrier")
C("---- expand K into 4 shifted bf16 copies")
E0 = 40
CP = 96
XX = 144
def xs_issue():
    for k in range(4):
        I(f"global_load_dwordx2 {v(XX+2*k,2)}, {v(VT8 if k < 2 else VFL)}, {s(S_XNG,2)} offset:{2048*(k&1)} sc1")
    sweep_issue(VSW, GR, P_WS)
for d in range(2):
    Eb = E0 + 24*d
    for k in range(11):
        I(f"ds_read_b64 {v(Eb+2*k,2)}, {v(GA+k)} offset:{L_KTAB + d*KTAB_D}")
def expand(d):
    Eb = E0 + 24*d
    I(f"s_waitcnt lgkmcnt({11 if d == 0 else 4})")
    for k in range(11):
        I(f"v_add_f32 {v(Eb+2*k)}, {v(Eb+2*k)}, {v(Eb+2*k+1)}")
    for sg in range(4):
        Cb = CP + 16*d + 4*sg
        for m in range(4):
            I(f"v_cvt_pk_bf16_f32 {v(Cb+m)}, {v(Eb+2*(sg+2*m))}, {v(Eb+2*(sg+2*m+1))}")
        I(f"ds_write_b128 {v(VKCW)}, {v(Cb,4)} offset:{L_KC + d*KC_D + sg*KC_S}")
expand(0)
expand(1)
stamp()
I(f"s_cmp_lg_u32 {s(S_WAVE)}, 0")
I("s_cbranch_scc1 L_k_wait")
keys_poll(VKEY, GK, 32)
L("L_k_wait")
I("s_barrier")
xs_issue()
stamp()
I(f"s_cmp_lg_u32 {s(S_WAVE)}, 0")
I("s_cbranch_scc1 L_k_not0")
keys_top2(GK, M1, M2, 44, 45)
I(f"ds_write_b64 {v(VZ)}, {v(M1,2)} offset:{L_MISC + 16}")
L("L_k_not0")
for k in range(4):
    I(f"s_waitcnt vmcnt({7-k})")
    I(f"ds_write_b64 {v(VT8)}, {v(XX+2*k,2)} offset:{L_XL + 2048*k}")
XF = 48
for k in range(8): unpack(XF+6*k+2, XX+k)
sweep(VSW, GR, 40, P_WS, issued=True, first_wait=0)
stamp()
RI = 128
for k in range(8):
    g = GR + 2*k
    I(f"v_and_b32 {v(RI+2*k)}, {s(S_MASK)}, {v(g)}")
    I(f"v_lshlrev_b32 {v(XF+6*k)}, 16, {v(g)}")
    I(f"v_rcp_f32 {v(RI+2*k)}, {v(RI+2*k)}")
for k in range(8):
    b = XF+6*k
    I(f"v_pk_add_f32 {v(b+2,2)}, {v(b+2,2)}, {v(b,2)} op_sel_hi:[1,0] neg_lo:[0,1] neg_hi:[0,1]")
for k in range(8):
    b = XF+6*k
    I(f"v_cvt_pk_bf16_f32 {v(b+4)}, {v(b+2)}, {v(b+3)}")
for k in range(8): unpack(XF+6*k+2, XF+6*k+4)
for k in range(8):
    b = XF+6*k
    I(f"v_pk_mul_f32 {v(b+2,2)}, {v(b+2,2)}, {v(RI+2*k,2)} op_sel_hi:[1,0]")
for k in range(4):
    for d in range(2):
        I(f"v_cvt_pk_bf16_f32 {v(XX+2*k+d)}, {v(XF+12*k+2+d)}, {v(XF+12*k+8+d)}")
        I(f"ds_write_b32 {v(VT4)}, {v(XX+2*k+d)} offset:{L_U + 512 + d*U_D + 1024*k}")
I("s_waitcnt lgkmcnt(0)")
I("s_barrier")
stamp()
S_TK = [52, 53]
S_OW = [54, 55]
I(f"ds_read_b64 {v(24,2)}, {v(VZ)} offset:{L_MISC + 16}")
C("---- convolution: 4 phases of 2 output tiles; K operands stay resident, finished tiles are stored under the next phase")
def AR(rl, k): return 32 + 32*rl + 4*k
def BR(buf, d): return 160 + 32*buf + 4*d
def ACCR(p, tt): return 8 + 8*(p & 1) + 4*tt
RDF, XQ, UQ, TE = 248, 24, 26, 28
def step_loads(p, rls, buf):
    ls = []
    nb = 2*p + 2
    for i, rl in enumerate(rls):
        bl = [f"ds_read_b128 {v(BR(buf, nb*i + d),4)}, {v(VB_)} offset:{512*d + 64*(3 - rl)}" for d in range(nb)]
        al = []
        for k in (2*p, 2*p+1):
            off = 64 * (63 - 8*k - rl)
            al.append(f"ds_read_b64 {v(AR(rl,k),2)}, {v(VA_)} offset:{off}")
            al.append(f"ds_read_b64 {v(AR(rl,k)+2,2)}, {v(VA_)} offset:{off+8}")
        ls += bl[:2] + al + bl[2:]
    return ["    " + x for x in ls]
def fin_reads(p):
    base = L_R1 + 8192*(p & 1)
    for w in range(4):
        I(f"ds_read_b64 {v(RDF+2*w,2)}, {v(VRR)} offset:{base + 2048*w}")
    I(f"ds_read_b64 {v(XQ,2)}, {v(VEX)} offset:{L_XL + 2048*p}")
    for d in range(2):
        I(f"ds_read_b32 {v(UQ+d)}, {v(VEU)} offset:{L_U + 512 + d*U_D + 1024*p}")
def fin_math(p):
    I(f"v_pk_add_f32 {v(RDF,2)}, {v(RDF,2)}, {v(RDF+2,2)}")
    I(f"v_pk_add_f32 {v(RDF+4,2)}, {v(RDF+4,2)}, {v(RDF+6,2)}")
    for e in range(2):
        a = TE if e == 0 else RDF + 2
        c = TE + 2 if e == 0 else RDF + 6
        unpack(a, XQ+e)
        for d in range(2):
            if e: I(f"v_and_b32 {v(c+d)}, {s(S_MASK)}, {v(UQ+d)}")
            else: I(f"v_lshlrev_b32 {v(c+d)}, 16, {v(UQ+d)}")
        I(f"v_add_f32 {v(a)}, {v(a)}, {v(RDF+e)}")
        I(f"v_add_f32 {v(a+1)}, {v(a+1)}, {v(RDF+4+e)}")
        I(f"v_pk_fma_f32 {v(a,2)}, {v(c,2)}, {s(S_DS2,2)}, {v(a,2)}")
        I(f"v_cvt_pk_bf16_f32 {v(XQ+e)}, {v(a)}, {v(a+1)}")
        I(f"s_sub_u32 {s(S_T0)}, {s(S_TK[0])}, {512*p + e}")
        I(f"s_sub_u32 {s(S_T1)}, {s(S_TK[1])}, {512*p + e}")
        I(f"v_cmp_ne_u32 vcc, {s(S_T0)}, {v(VT0)}")
        I(f"v_cmp_ne_u32 {s(S_T2,2)}, {s(S_T1)}, {v(VT0)}")
        I(f"s_and_b64 exec, vcc, {s(S_T2,2)}\n    global_store_dword {v(VOUT)}, {v(XQ+e)}, {s(P_OUT,2)} offset:{e*1024}\n    s_mov_b64 exec, -1")
    I(f"ds_write_b64 {v(VEX)}, {v(XQ,2)} offset:{L_XL + 2048*p}")
    if p < 3: I(f"v_add_u32 {v(VOUT)}, 0x80000, {v(VOUT)}")
steps = [(0, [0, 1, 2, 3]), (1, [0, 1]), (1, [2, 3])] + [(p, [rl]) for p in (2, 3) for rl in range(4)]
first_loads = step_loads(*steps[0], 0)
out.extend(first_loads)
I(f"s_waitcnt lgkmcnt(15)")
I(f"v_readfirstlane_b32 {s(S_K1)}, {v(24)}")
I(f"v_readfirstlane_b32 {s(S_K2)}, {v(25)}")
for k_, SKK in enumerate((S_K1, S_K2)):
    I(f"s_and_b32 {s(S_T0)}, {s(SKK)}, 0xffff")
    I(f"s_sub_u32 {s(S_TK[k_])}, 0xffff, {s(S_T0)}")
    I(f"s_bfe_u32 {s(S_T1)}, {s(S_TK[k_])}, 0x10008")
    I(f"s_lshl_b32 {s(S_T1)}, {s(S_T1)}, 1")
    I(f"s_bfe_u32 {s(S_T2)}, {s(S_TK[k_])}, 0x10001")
    I(f"s_or_b32 {s(S_T1)}, {s(S_T1)}, {s(S_T2)}")
    I(f"s_cmp_eq_u32 {s(S_T1)}, {s(S_WAVE)}")
    I(f"s_cselect_b32 {s(S_OW[k_])}, 1, 0")
    I(f"s_cmp_lt_u32 {s(S_TK[k_])}, 2048")
    I(f"s_cselect_b32 {s(S_OW[k_])}, {s(S_OW[k_])}, 0")
for si, (p, rls) in enumerate(steps):
    buf = si & 1
    nxt = step_loads(*steps[si+1], 1-buf) if si + 1 < len(steps) else []
    fl = []
    if p > 0 and rls[0] == 0:
        with capture() as fl: fin_reads(p-1)
    if p > 0 and ((p == 1 and rls[0] == 2) or (p > 1 and rls[0] == 1)):
        with capture() as fl: fin_math(p-1)
    if si == len(steps) - 1:
        PB = BR(1-buf, 0)
        PA = BR(1-buf, 4)
        def part_issue(k_):
            I(f"global_load_dwordx4 {v(PB+8*k_,4)}, {v(PA+2*k_)}, {s(S_PART,2)} sc1")
            I(f"s_bfm_b64 exec, {G-64}, 0")
            I(f"global_load_dwordx4 {v(PB+8*k_+4,4)}, {v(PA+2*k_+1)}, {s(S_PART,2)} sc1")
            I("s_mov_b64 exec, -1")
        for k_ in range(2):
            I(f"s_cmp_eq_u32 {s(S_OW[k_])}, 0")
            I(f"s_cbranch_scc1 L_np{k_}")
            I(f"s_lshl_b32 {s(S_T1)}, {s(S_DP)}, 4")
            I(f"s_add_u32 {s(S_T1)}, {s(S_T1)}, {k_ << 19}")
            I(f"v_lshl_add_u32 {v(PA+2*k_)}, {v(VL)}, 12, {s(S_T1)}")
            I(f"v_add_u32 {v(PA+2*k_+1)}, 0x40000, {v(PA+2*k_)}")
            I(f"v_mov_b32 {v(PB+8*k_+4)}, 0")
            I(f"v_mov_b32 {v(PB+8*k_+5)}, {s(S_NONCE)}")
            I(f"v_mov_b32 {v(PB+8*k_+6)}, 0")
            I(f"v_mov_b32 {v(PB+8*k_+7)}, {s(S_NONCE)}")
            part_issue(k_)
            L(f"L_np{k_}")
        I("s_nop 3")
    nb = 2*p + 2
    work = []
    for i, rl in enumerate(rls):
        pairs = [(ch, T-ch) for T in (2*p, 2*p+1) for ch in range(T+1)]
        pairs.sort(key=lambda q: (max(q[0] if q[0] >= 2*p else 0, q[1])))
        work += [(i, rl, ch, dl) for (ch, dl) in pairs]
    if si > 0: I("s_waitcnt lgkmcnt(0)")
    seen = set()
    pern = -(-len(nxt) // len(work)) if nxt else 0
    perf = -(-len(fl) // len(work)) if fl else 0
    ni = fi = 0
    lasti = -1
    for (i, rl, ch, dl) in work:
        if si == 0 and i != lasti:
            lasti = i
            I(f"s_waitcnt lgkmcnt({min(15, len(first_loads) - 6*(i+1) + ni)})")
        T = ch + dl
        acc = ACCR(p, T & 1)
        first = rl == 0 and T not in seen; seen.add(T)
        I(f"v_mfma_f32_16x16x32_bf16 {v(acc,4)}, {v(AR(rl,ch),4)}, {v(BR(buf,nb*i+dl),4)}, {'0' if first else v(acc,4)}")
        out.extend(nxt[ni:ni+pern]); ni += len(nxt[ni:ni+pern])
        out.extend(fl[fi:fi+perf]); fi += perf
    out.extend(nxt[ni:]); out.extend(fl[fi:])
    if rls[-1] == 3:
        I("s_nop 7")
        for tt in range(2):
            I(f"ds_write_b128 {v(VRW)}, {v(ACCR(p,tt),4)} offset:{L_R1 + 8192*(p & 1) + 1024*tt}")
        I("s_waitcnt lgkmcnt(0)")
        I("s_barrier")
        if p in (1, 3): stamp()
fin_reads(3)
I("s_waitcnt lgkmcnt(0)")
fin_math(3)
stamp()
C("---- routed rows: out = base row + sigmoid(r) * FFN(row)")
I("s_waitcnt lgkmcnt(0)")
for k_, SKK in enumerate((S_K1, S_K2)):
    B_ = PB + 8*k_
    I(f"s_cmp_eq_u32 {s(S_OW[k_])}, 0")
    I(f"s_cbranch_scc1 L_fix_skip{k_}")
    I(f"s_lshl_b32 {s(S_T2)}, {s(S_TK[k_])}, 2")
    I(f"v_mov_b32 {v(77)}, {s(S_T2)}")
    I(f"ds_read_b32 {v(79)}, {v(77)} offset:{L_XL}")
    I(f"s_lshr_b32 {s(S_T2)}, {s(SKK)}, 16")
    I(f"s_lshr_b32 {s(S_T3)}, {s(S_T2)}, 15")
    I(f"s_cmp_eq_u32 {s(S_T3)}, 1")
    I(f"s_mov_b32 {s(S_T3)}, 0xffff")
    I(f"s_cselect_b32 {s(S_T3)}, 0x8000, {s(S_T3)}")
    I(f"s_xor_b32 {s(S_T2)}, {s(S_T2)}, {s(S_T3)}")
    I(f"s_lshl_b32 {s(S_T2)}, {s(S_T2)}, 16")
    I(f"v_mov_b32 {v(92)}, {f2u(-LOG2E):#x}")
    I(f"v_mul_f32 {v(92)}, {s(S_T2)}, {v(92)}")
    I(f"v_exp_f32 {v(92)}, {v(92)}")
    I("s_nop 0")
    I(f"v_add_f32 {v(92)}, 1.0, {v(92)}")
    I(f"v_rcp_f32 {v(92)}, {v(92)}")
    I("s_nop 0")
    I(f"v_cvt_pk_bf16_f32 {v(92)}, {v(92)}, {v(92)}")
    I(f"v_lshlrev_b32 {v(92)}, 16, {v(92)}")
    I(f"s_mov_b32 {s(S_CNT)}, 0")
    I("s_waitcnt vmcnt(2)")
    I(f"s_branch L_fixchk{k_}")
    L(f"L_fixpoll{k_}")
    I("s_sleep 2")
    part_issue(k_)
    I("s_waitcnt vmcnt(0)")
    L(f"L_fixchk{k_}")
    I(f"v_xor_b32 {v(88)}, {s(S_NONCE)}, {v(B_+1)}")
    I(f"v_xor_b32 {v(89)}, {s(S_NONCE)}, {v(B_+3)}")
    I(f"v_xor_b32 {v(93)}, {s(S_NONCE)}, {v(B_+5)}")
    I(f"v_xor_b32 {v(94)}, {s(S_NONCE)}, {v(B_+7)}")
    I(f"v_or3_b32 {v(88)}, {v(88)}, {v(89)}, {v(93)}")
    I(f"v_or_b32 {v(88)}, {v(88)}, {v(94)}")
    I(f"v_cmp_ne_u32 vcc, 0, {v(88)}")
    I(f"s_add_u32 {s(S_CNT)}, {s(S_CNT)}, 1")
    I(f"s_cmp_eq_u64 vcc, 0")
    I(f"s_cbranch_scc1 L_fixdone{k_}")
    I(f"s_cmp_lt_u32 {s(S_CNT)}, {POLL_LIMIT}")
    I(f"s_cbranch_scc1 L_fixpoll{k_}")
    L(f"L_fixdone{k_}")
    I(f"v_add_f32 {v(80)}, {v(B_)}, {v(B_+4)}")
    I(f"v_add_f32 {v(82)}, {v(B_+2)}, {v(B_+6)}")
    I("s_nop 0")
    dpp_reduce([80, 82])
    I("s_nop 0")
    I(f"v_cvt_pk_bf16_f32 {v(84)}, {v(80)}, {v(82)}")
    unpack(80, 84)
    I("s_waitcnt lgkmcnt(0)")
    unpack(82, 79)
    I(f"v_pk_fma_f32 {v(80,2)}, {v(80,2)}, {v(92,2)}, {v(82,2)} op_sel_hi:[1,0,1]")
    I(f"v_cvt_pk_bf16_f32 {v(84+k_)}, {v(80)}, {v(81)}")
    I(f"s_lshl_b32 {s(S_T1)}, {s(S_TK[k_])}, 10")
    I(f"s_lshl_b32 {s(S_T2)}, {s(S_DP)}, 2")
    I(f"s_add_u32 {s(S_T1)}, {s(S_T1)}, {s(S_T2)}")
    I(f"v_mov_b32 {v(86+k_)}, {s(S_T1)}")
    I("s_lshl_b64 exec, 1, 63")
    I(f"global_store_dword {v(86+k_)}, {v(84+k_)}, {s(P_OUT,2)}")
    I("s_mov_b64 exec, -1")
    L(f"L_fix_skip{k_}")
I("s_branch L_fin")

L("L_ffn")
nstamp[0] = 1
C("==== FFN role")
S_G = 47
I(f"s_sub_u32 {s(S_T0)}, s2, {NLN + NCONV}")
I(f"s_and_b32 {s(S_T1)}, {s(S_T0)}, 7")
I(f"s_mul_i32 {s(S_T1)}, {s(S_T1)}, 14")
I(f"s_lshr_b32 {s(S_T0)}, {s(S_T0)}, 3")
I(f"s_add_u32 {s(S_G)}, {s(S_T0)}, {s(S_T1)}")
WL = 32
t1, t2, t3, t4 = 12, 13, 14, 15
I(f"v_lshlrev_b32 {v(t4)}, 4, v0")
I(f"v_lshrrev_b32 {v(t1)}, 2, v0")
I(f"v_mul_u32_u24 {v(t1)}, 3584, {v(t1)}")
I(f"v_and_b32 {v(t2)}, 1, v0")
I(f"v_lshl_add_u32 {v(t1)}, {v(t2)}, 4, {v(t1)}")
I(f"s_lshl_b32 {s(S_T0)}, {s(S_G)}, 5")
I(f"v_add_u32 {v(t1)}, {s(S_T0)}, {v(t1)}")
I(f"v_and_b32 {v(t2)}, 2, v0")
I(f"v_cmp_eq_u32 vcc, 0, {v(t2)}")
I("s_waitcnt lgkmcnt(0)")
I(f"v_mov_b32 {v(16)}, {s(P_WU)}")
I(f"v_mov_b32 {v(17)}, {s(P_WU+1)}")
I(f"v_mov_b32 {v(18)}, {s(P_WG)}")
I(f"v_mov_b32 {v(19)}, {s(P_WG+1)}")
I(f"v_cndmask_b32 {v(16)}, {v(16)}, {v(18)}, vcc")
I(f"v_cndmask_b32 {v(17)}, {v(17)}, {v(19)}, vcc")
I(f"v_add_co_u32 {v(16)}, vcc, {v(16)}, {v(t1)}")
I("s_nop 1")
I(f"v_addc_co_u32 {v(17)}, vcc, {v(17)}, {v(VZ)}, vcc")
I(f"s_add_u32 {s(S_PART)}, {s(P_WS)}, {WS_PART}")
I(f"s_addc_u32 {s(S_PART+1)}, {s(P_WS+1)}, 0")
stamp()
I(f"s_mov_b32 {s(S_T1)}, {64*3584}")
WD = 96
I(f"s_lshl_b32 {s(S_T0)}, {s(S_G)}, 14")
I(f"v_lshl_add_u32 {v(t3)}, v0, 2, {s(S_T0)}")
for p in range(8):
    I(f"global_load_dwordx4 {v(WL+4*p,4)}, {v(16,2)}, off")
    if p < 7:
        I(f"v_add_co_u32 {v(16)}, vcc, {s(S_T1)}, {v(16)}")
        I("s_nop 1")
        I(f"v_addc_co_u32 {v(17)}, vcc, {v(17)}, {v(VZ)}, vcc")
for f in range(16):
    if f and f % 4 == 0:
        I(f"v_add_u32 {v(t3)}, 4096, {v(t3)}")
    I(f"global_load_dword {v(WD+f)}, {v(t3)}, {s(P_WD,2)} offset:{(f&3)*1024}")
nonce_issue(VZ, 22)
for p in range(8):
    I(f"s_waitcnt vmcnt({17 + 7 - p})")
    I(f"ds_write_b128 {v(t4)}, {v(WL+4*p,4)} offset:{F_W + 4096*p}")
stamp()
I(f"v_lshrrev_b32 {v(t1)}, 2, {v(VJ)}")
I(f"v_lshl_add_u32 {v(t1)}, {v(VKG)}, 3, {v(t1)}")
I(f"v_lshlrev_b32 {v(t1)}, 6, {v(t1)}")
I(f"v_and_b32 {v(t2)}, 1, {v(VL)}")
I(f"v_lshl_add_u32 {v(t1)}, {v(t2)}, 3, {v(t1)}")
I(f"v_and_b32 {v(t2)}, 2, {v(VL)}")
I(f"v_lshl_add_u32 {v(t1)}, {v(t2)}, 4, {v(t1)}")
I(f"s_and_b32 {s(S_T0)}, {s(S_WAVE)}, 1")
I(f"s_lshl_b32 {s(S_T0)}, {s(S_T0)}, 4")
I(f"v_add_u32 {v(t1)}, {s(S_T0)}, {v(t1)}")
I("s_waitcnt lgkmcnt(0)")
I("s_barrier")
for st in range(16):
    I(f"ds_read_b64_tr_b16 {v(WL+4*st,2)}, {v(t1)} offset:{F_W + 2048*st}")
    I(f"ds_read_b64_tr_b16 {v(WL+4*st+2,2)}, {v(t1)} offset:{F_W + 2048*st + 256}")
WF = 128
nonce_wait(VZ, 22)
for f in range(16): unpack(WF+2*f, WD+f)
I(f"v_bfe_u32 {v(t2)}, {v(VJ)}, 2, 1")
I(f"v_lshlrev_b32 {v(t2)}, 10, {v(t2)}")
I(f"v_lshl_add_u32 {v(t2)}, {v(VKG)}, 4, {v(t2)}")
I(f"s_and_b32 {s(S_T1)}, {s(S_WAVE)}, 1")
I(f"s_lshl_b32 {s(S_T1)}, {s(S_T1)}, 9")
I(f"v_lshl_add_u32 {v(24)}, {v(VL)}, 3, {s(S_T1)}")
I(f"s_lshr_b32 {s(S_T0)}, {s(S_WAVE)}, 1")
I(f"s_lshl_b32 {s(S_T1)}, {s(S_T0)}, 10")
I(f"v_add_u32 {v(25)}, {s(S_T1)}, {v(24)}")
I("s_waitcnt lgkmcnt(0)")
stamp()
GK = 192
I(f"s_setprio {FPRIO}")
I(f"s_cmp_lg_u32 {s(S_WAVE)}, 0")
I("s_cbranch_scc1 L_fk_wait")
keys_poll(VKEY, GK, 20)
keys_top2(GK, 224, 225, 21, 22)
I(f"ds_write_b64 {v(VZ)}, {v(224,2)} offset:{L_MISC + 16}")
I("s_waitcnt lgkmcnt(0)")
L("L_fk_wait")
I("s_barrier")
stamp()
I(f"ds_read_b64 {v(224,2)}, {v(VZ)} offset:{L_MISC + 16}")
I("s_waitcnt lgkmcnt(0)")
I(f"v_readfirstlane_b32 {s(S_K1)}, {v(224)}")
I(f"v_readfirstlane_b32 {s(S_K2)}, {v(225)}")
I(f"s_cmp_lt_u32 {s(S_WAVE)}, 2")
I("s_nop 2")
I(f"s_cselect_b32 {s(S_T0)}, {s(S_K1)}, {s(S_K2)}")
I(f"s_and_b32 {s(S_T0)}, {s(S_T0)}, 0xffff")
I(f"s_sub_u32 {s(S_T0)}, 0xffff, {s(S_T0)}")
I(f"s_min_u32 {s(S_T0)}, {s(S_T0)}, 2047")
I(f"s_lshl_b32 {s(S_T1)}, {s(S_T0)}, 10")
I(f"v_add_u32 {v(97)}, {s(S_T1)}, {v(24)}")
I(f"s_lshl_b32 {s(S_T1)}, {s(S_T0)}, 3")
I(f"v_mov_b32 {v(99)}, {s(S_T1)}")
I(f"global_load_dwordx2 {v(100,2)}, {v(97)}, {s(P_U,2)}")
I(f"s_mov_b32 {s(S_CNT)}, 0")
L("L_f_stat")
I(f"global_load_dwordx2 {v(104,2)}, {v(99)}, {s(P_WS,2)} sc1")
I("s_waitcnt vmcnt(0)")
I(f"v_cmp_ne_u32 vcc, {s(S_NONCE)}, {v(105)}")
I(f"s_add_u32 {s(S_CNT)}, {s(S_CNT)}, 1")
I(f"s_cmp_eq_u64 vcc, 0")
I(f"s_cbranch_scc1 L_f_stat_done")
I("s_sleep 1")
I(f"s_cmp_lt_u32 {s(S_CNT)}, {POLL_LIMIT}")
I(f"s_cbranch_scc1 L_f_stat")
L("L_f_stat_done")
stamp()
I(f"v_and_b32 {v(106)}, {s(S_MASK)}, {v(104)}")
I(f"v_lshlrev_b32 {v(104)}, 16, {v(104)}")
I(f"v_rcp_f32 {v(106)}, {v(106)}")
for k in range(2): unpack(108+2*k, 100+k)
for k in range(2): I(f"v_pk_add_f32 {v(108+2*k,2)}, {v(108+2*k,2)}, {v(104,2)} op_sel_hi:[1,0] neg_lo:[0,1] neg_hi:[0,1]")
for k in range(2): I(f"v_cvt_pk_bf16_f32 {v(100+k)}, {v(108+2*k)}, {v(109+2*k)}")
for k in range(2): unpack(108+2*k, 100+k)
for k in range(2): I(f"v_pk_mul_f32 {v(108+2*k,2)}, {v(108+2*k,2)}, {v(106,2)} op_sel_hi:[1,0]")
for k in range(2): I(f"v_cvt_pk_bf16_f32 {v(100+k)}, {v(108+2*k)}, {v(109+2*k)}")
I(f"ds_write_b64 {v(25)}, {v(100,2)} offset:{F_XS}")
I("s_waitcnt lgkmcnt(0)")
I("s_barrier")
I(f"s_cmp_ge_u32 {s(S_WAVE)}, 2")
I("s_cbranch_scc1 L_f_nogu")
AX = 160
for st in range(16):
    I(f"ds_read_b128 {v(AX+4*st,4)}, {v(t2)} offset:{F_XS + 64*st}")
AC = 96
for st in range(16):
    I(f"s_waitcnt lgkmcnt({15-st})")
    a = AC + 4*(st & 1)
    I(f"v_mfma_f32_16x16x32_bf16 {v(a,4)}, {v(AX+4*st,4)}, {v(WL+4*st,4)}, {'0' if st < 2 else v(a,4)}")
I(f"v_lshlrev_b32 {v(107)}, 7, {v(VKG)}")
I(f"v_lshl_add_u32 {v(107)}, {v(VJ)}, 3, {v(107)}")
I(f"s_lshl_b32 {s(S_T0)}, {s(S_WAVE)}, 6")
I(f"v_add_u32 {v(107)}, {s(S_T0)}, {v(107)}")
I("s_nop 4")
I(f"v_add_f32 {v(104)}, {v(AC)}, {v(AC+4)}")
I(f"v_cvt_pk_bf16_f32 {v(104)}, {v(104)}, {v(104)}")
I(f"v_lshlrev_b32 {v(104)}, 16, {v(104)}")
I(f"v_mul_f32 {v(105)}, {f2u(-LOG2E):#x}, {v(104)}")
I(f"v_exp_f32 {v(105)}, {v(105)}")
I(f"v_mov_b32_dpp {v(106)}, {v(104)} row_ror:8 row_mask:0xf bank_mask:0xf")
I(f"v_add_f32 {v(105)}, 1.0, {v(105)}")
I(f"v_rcp_f32 {v(105)}, {v(105)}")
I("s_nop 0")
I(f"v_mul_f32 {v(105)}, {v(104)}, {v(105)}")
I(f"v_cvt_pk_bf16_f32 {v(105)}, {v(105)}, {v(105)}")
I(f"v_lshlrev_b32 {v(105)}, 16, {v(105)}")
I(f"v_mul_f32 {v(105)}, {v(105)}, {v(106)}")
I(f"v_cvt_pk_bf16_f32 {v(105)}, {v(105)}, {v(105)}")
I(f"v_lshlrev_b32 {v(105)}, 16, {v(105)}")
I("s_mov_b64 exec, 0x00ff00ff")
I(f"ds_write2_b32 {v(107)}, {v(105)}, {v(105)} offset0:{F_H//4} offset1:{F_H//4+1}")
I("s_mov_b64 exec, -1")
I("s_waitcnt lgkmcnt(0)")
L("L_f_nogu")
I("s_barrier")
HB = 160
for q in range(16):
    I(f"ds_read_b128 {v(HB+4*q,4)}, {v(VZ)} offset:{F_H + 16*q}")
Y0, Y1 = 96, 100
I(f"s_lshl_b32 {s(S_T0)}, {s(S_G)}, 12")
I(f"v_lshl_add_u32 {v(112)}, v0, 4, {s(S_T0)}")
I(f"v_add_u32 {v(113)}, 0x80000, {v(112)}")
for Y in (Y0, Y1):
    I(f"v_mov_b32 {v(Y+1)}, {s(S_NONCE)}")
    I(f"v_mov_b32 {v(Y+3)}, {s(S_NONCE)}")
for q in range(16):
    tok = q >> 3
    I(f"s_waitcnt lgkmcnt({15-q})")
    for e in range(2):
        f = 2*(q & 7) + e
        acc = 104 + 4*tok + 2*e
        hp = HB + 4*q + 2*e
        if f < 2:
            I(f"v_pk_mul_f32 {v(acc,2)}, {v(WF+2*f,2)}, {v(hp,2)}")
        else:
            I(f"v_pk_fma_f32 {v(acc,2)}, {v(WF+2*f,2)}, {v(hp,2)}, {v(acc,2)}")
    if q == 7 or q == 15:
        Y = Y0 if q == 7 else Y1
        I(f"v_add_f32 {v(Y)}, {v(104+4*tok)}, {v(106+4*tok)}")
        I(f"v_add_f32 {v(Y+2)}, {v(105+4*tok)}, {v(107+4*tok)}")
        I(f"global_store_dwordx4 {v(112+tok)}, {v(Y,4)}, {s(S_PART,2)} sc1")
stamp()
L("L_fin")
if STAMP:
    I("s_waitcnt vmcnt(0) lgkmcnt(0)")
    I(f"s_memtime {s(S_ST + 22, 2)}")
    I(f"s_memrealtime {s(S_T2, 2)}")
    I(f"s_add_u32 {s(S_STB)}, {s(P_WS)}, {WS_STAMP}")
    I(f"s_addc_u32 {s(S_STB+1)}, {s(P_WS+1)}, 0")
    I(f"s_lshl_b32 {s(S_T0)}, s2, 2")
    I(f"s_add_u32 {s(S_T0)}, {s(S_T0)}, {s(S_WAVE)}")
    I(f"s_lshl_b32 {s(S_T0)}, {s(S_T0)}, 7")
    I("s_waitcnt lgkmcnt(0)")
    I(f"v_mov_b32 v10, {s(S_T0)}")
    I("s_mov_b64 exec, 1")
    for k in range(12):
        I(f"v_mov_b32 v12, {s(S_ST+2*k)}")
        I(f"v_mov_b32 v13, {s(S_ST+2*k+1)}")
        I(f"global_store_dwordx2 v10, v[12:13], {s(S_STB,2)} offset:{8*k}")
        I("s_nop 1")
    I(f"v_mov_b32 v12, {s(S_T2)}")
    I(f"v_mov_b32 v13, {s(S_T3)}")
    I(f"global_store_dwordx2 v10, v[12:13], {s(S_STB,2)} offset:96")
L("L_end")
I("s_endpgm")
out.append('.section .rodata,"a"')
out.append(".p2align 6")
out.append(f".amdhsa_kernel {KNAME}")
out.append("  .amdhsa_next_free_vgpr 256")
out.append("  .amdhsa_next_free_sgpr 102")
out.append("  .amdhsa_accum_offset 256")
out.append("  .amdhsa_group_segment_fixed_size 0")
out.append("  .amdhsa_kernarg_size 136")
out.append("  .amdhsa_user_sgpr_count 2")
out.append("  .amdhsa_user_sgpr_kernarg_segment_ptr 1")
out.append("  .amdhsa_system_sgpr_workgroup_id_x 1")
out.append("  .amdhsa_float_denorm_mode_32 3")
out.append(".end_amdhsa_kernel")
dst = [a for a in sys.argv[1:] if not a.startswith("--")]
open(dst[0] if dst else "k.s", "w").write("\n".join(x for x in out if x is not None) + "\n")
```

```python
import sys, struct, math

KNAME = "parallel_sum__ssm_conv_s4__moe_arch_mod__prompt_kernel"
NLN = 128
NCONV = 256
G = 112
NWG = NLN + NCONV + G
STAMP = "--stamp" in sys.argv

WS_STATS = 0
WS_KEYS = 16384
WS_FLAG = 32768
WS_PART = 65536
WS_STAMP = 2 << 20
WS_XNG = 4 << 20
WS_XT = 8 << 20

L_MISC = 0
L_KC = 256
KC_S = 4160
KC_D = 4 * KC_S
L_U = L_KC + 2 * KC_D
U_D = 4608
L_XL = L_U + 2 * U_D
L_R1 = L_XL + 8192
L_KTAB = L_R1
KTAB_D = 7680
L_PAR = L_XL
L_R2 = L_R1
LDS_BYTES = L_R1 + 16384
ZIDX = 840
TRASH = 848
TS = 1040
L_T1 = L_KC
L_T2 = L_T1 + 16 * TS
F_H = 256
F_XS = 512
F_W = F_XS + 2048
assert F_W + 32768 <= LDS_BYTES
assert LDS_BYTES <= 81920
POLL_LIMIT = 40000
def opt(name, dflt):
    m = [a for a in sys.argv if a.startswith(f"--{name}=")]
    return int(m[0].split("=")[1]) if m else dflt
LNPRIO = opt("lnprio", 2)
FPRIO = opt("fprio", 3)
PFPOS = opt("pfpos", 0)
PIPE = opt("pipe", 0)
KSLEEP = int([a for a in sys.argv if a.startswith("--ksleep=")][0][9:]) if any(a.startswith("--ksleep=") for a in sys.argv) else 3

out = []
cur = [out]
def I(s): cur[0].append("    " + s)
def L(s): cur[0].append(s + ":")
def C(s): cur[0].append("    ; " + s)
class capture:
    def __enter__(self):
        self.prev = cur[0]; self.lst = []; cur[0] = self.lst; return self.lst
    def __exit__(self, *a): cur[0] = self.prev
def f2u(x): return struct.unpack("<I", struct.pack("<f", x))[0]
def v(a, n=1): return f"v{a}" if n == 1 else f"v[{a}:{a+n-1}]"
def s(a, n=1): return f"s{a}" if n == 1 else f"s[{a}:{a+n-1}]"
uid = [0]
def lab(p):
    uid[0] += 1
    return f"L_{p}_{uid[0]}"

P_U, P_ARE, P_AIM, P_BRE, P_BIM, P_CRE, P_CIM, P_LDT = 8, 10, 12, 14, 16, 18, 20, 22
P_DSK, P_BX, P_WR, P_WG, P_WU, P_WD, P_OUT, P_DBG = 24, 26, 28, 30, 32, 34, 36, 38
P_WS = 40
S_WAVE, S_DP, S_NONCE, S_LDT, S_DSK, S_ROW0 = 42, 43, 44, 45, 46, 47
S_T0, S_T1, S_T2, S_T3 = 48, 49, 50, 51
S_X0 = 52
S_R = 56
S_DS2 = 60
S_UNS = 62
S_M0 = 63
S_CNT = 64
S_EXEC = 66
S_PART = 70
S_K1, S_K2 = 72, 73
S_XNG = 68
S_XT = 4
S_XNB = 6
S_MASK = 74
S_ST = 76
S_STB = 100
LOG2E = math.log2(math.e)

nstamp = [0]
def stamp():
    if not STAMP: return
    k = nstamp[0]; nstamp[0] += 1
    assert k < 11
    I(f"s_memtime {s(S_ST + 2*k, 2)}")

DPP4 = ("quad_perm:[1,0,3,2] row_mask:0xf bank_mask:0xf",
        "quad_perm:[2,3,0,1] row_mask:0xf bank_mask:0xf",
        "row_half_mirror row_mask:0xf bank_mask:0xf",
        "row_mirror row_mask:0xf bank_mask:0xf")
DPP6 = DPP4 + ("row_bcast:15 row_mask:0xa bank_mask:0xf", "row_bcast:31 row_mask:0xc bank_mask:0xf")
def dpp_reduce(regs, op="v_add_f32"):
    for mode in DPP6:
        pad = max(0, 3 - len(regs))
        if pad: I(f"s_nop {pad-1}")
        for r in regs:
            I(f"{op}_dpp {v(r)}, {v(r)}, {v(r)} {mode}")

def nonce_cas(vz, vt):
    l = lab("nocas")
    I(f"s_cmp_lg_u32 {s(S_T0)}, 0")
    I(f"s_cbranch_scc1 {l}")
    I(f"s_memrealtime {s(S_T2,2)}")
    I("s_waitcnt lgkmcnt(0)")
    I(f"s_or_b32 {s(S_T2)}, {s(S_T2)}, 1")
    I(f"v_mov_b32 {v(vt)}, {s(S_T2)}")
    I(f"v_mov_b32 {v(vt+1)}, 0")
    I("s_mov_b64 exec, 1")
    I(f"global_atomic_cmpswap {v(vz)}, {v(vt,2)}, {s(P_DBG,2)} sc1")
    I("s_mov_b64 exec, -1")
    L(l)

def nonce_issue(vz, vt):
    I(f"global_load_dword {v(vt)}, {v(vz)}, {s(P_DBG,2)} sc1")

def nonce_wait(vz, vt, first=0):
    l = lab("npoll"); done = l + "_done"
    I(f"s_mov_b32 {s(S_CNT)}, 0")
    if first:
        I(f"s_waitcnt vmcnt({first})")
        I(f"s_branch {l}_chk")
    L(l)
    I("s_waitcnt vmcnt(0)")
    L(l + "_chk")
    I(f"v_readfirstlane_b32 {s(S_NONCE)}, {v(vt)}")
    I(f"s_add_u32 {s(S_CNT)}, {s(S_CNT)}, 1")
    I(f"s_cmp_lg_u32 {s(S_NONCE)}, 0")
    I(f"s_cbranch_scc1 {done}")
    I(f"s_cmp_ge_u32 {s(S_CNT)}, {POLL_LIMIT}")
    I(f"s_cbranch_scc1 {done}")
    I("s_sleep 1")
    nonce_issue(vz, vt)
    I(f"s_branch {l}")
    L(done)

def sweep_issue(vaddr, GR, base):
    for k in range(4):
        I(f"global_load_dwordx4 {v(GR+4*k,4)}, {v(vaddr+k)}, {s(base,2)} sc1")

def sweep_check(GR, vtmp):
    I(f"v_xor_b32 {v(vtmp)}, {s(S_NONCE)}, {v(GR+1)}")
    I(f"v_xor_b32 {v(vtmp+1)}, {s(S_NONCE)}, {v(GR+3)}")
    for k in range(1, 4):
        I(f"v_xor_b32 {v(vtmp+2)}, {s(S_NONCE)}, {v(GR+4*k+1)}")
        I(f"v_xor_b32 {v(vtmp+3)}, {s(S_NONCE)}, {v(GR+4*k+3)}")
        I(f"v_or3_b32 {v(vtmp)}, {v(vtmp)}, {v(vtmp+2)}, {v(vtmp+3)}")
    I(f"v_or_b32 {v(vtmp)}, {v(vtmp)}, {v(vtmp+1)}")
    I(f"v_cmp_ne_u32 vcc, 0, {v(vtmp)}")

def sweep(vaddr, GR, vtmp, base, issued=False, first_wait=0):
    l = lab("sweep"); done = l + "_done"; chk = l + "_chk"
    I(f"s_mov_b32 {s(S_CNT)}, 0")
    if issued:
        I(f"s_waitcnt vmcnt({first_wait})")
        I(f"s_branch {chk}")
    L(l)
    sweep_issue(vaddr, GR, base)
    I("s_waitcnt vmcnt(0)")
    L(chk)
    sweep_check(GR, vtmp)
    I(f"s_add_u32 {s(S_CNT)}, {s(S_CNT)}, 1")
    I(f"s_cmp_eq_u64 vcc, 0")
    I(f"s_cbranch_scc1 {done}")
    I("s_sleep 4")
    I(f"s_cmp_lt_u32 {s(S_CNT)}, {POLL_LIMIT}")
    I(f"s_cbranch_scc1 {l}")
    L(done)

def poll4(vaddr, GR, tagpos, vtmp, issued=False, first_wait=0, sleep=2):
    l = lab("poll"); done = l + "_done"; chk = l + "_chk"
    I(f"s_mov_b32 {s(S_CNT)}, 0")
    if issued:
        I(f"s_waitcnt vmcnt({first_wait})")
        I(f"s_branch {chk}")
    L(l)
    I(f"global_load_dwordx4 {v(GR,4)}, {v(vaddr)}, {s(P_WS,2)} sc1")
    I("s_waitcnt vmcnt(0)")
    L(chk)
    for k, tp in enumerate(tagpos): I(f"v_xor_b32 {v(vtmp+k)}, {s(S_NONCE)}, {v(GR+tp)}")
    if len(tagpos) == 4:
        I(f"v_or3_b32 {v(vtmp)}, {v(vtmp)}, {v(vtmp+2)}, {v(vtmp+3)}")
    I(f"v_or_b32 {v(vtmp)}, {v(vtmp)}, {v(vtmp+1)}")
    I(f"v_cmp_ne_u32 vcc, 0, {v(vtmp)}")
    I(f"s_add_u32 {s(S_CNT)}, {s(S_CNT)}, 1")
    I(f"s_cmp_eq_u64 vcc, 0")
    I(f"s_cbranch_scc1 {done}")
    I(f"s_sleep {sleep}")
    I(f"s_cmp_lt_u32 {s(S_CNT)}, {POLL_LIMIT}")
    I(f"s_cbranch_scc1 {l}")
    L(done)

def top2_wave(GR, m1, m2, t1, t2):
    I(f"v_mov_b32 {v(m1)}, {v(GR)}")
    I(f"v_mov_b32 {v(m2)}, {v(GR+2)}")
    for mode in DPP4:
        I("s_nop 1")
        I(f"v_mov_b32_dpp {v(t1)}, {v(m1)} {mode}")
        I(f"v_max_u32_dpp {v(t2)}, {v(m2)}, {v(m2)} {mode}")
        I(f"v_med3_u32 {v(m2)}, {v(m1)}, {v(t1)}, {v(t2)}")
        I(f"v_max_u32 {v(m1)}, {v(m1)}, {v(t1)}")
    for swp in ("v_permlane16_swap_b32", "v_permlane32_swap_b32"):
        I(f"v_mov_b32 {v(t1)}, {v(m1)}")
        I(f"v_mov_b32 {v(t2)}, {v(m2)}")
        I("s_nop 1")
        I(f"{swp} {v(m1)}, {v(t1)}")
        I(f"{swp} {v(m2)}, {v(t2)}")
        I("s_nop 0")
        I(f"v_max_u32 {v(t2)}, {v(m2)}, {v(t2)}")
        I(f"v_med3_u32 {v(m2)}, {v(m1)}, {v(t1)}, {v(t2)}")
        I(f"v_max_u32 {v(m1)}, {v(m1)}, {v(t1)}")

def top2_combine(a, t1):
    for k in (1, 2, 3):
        I(f"v_max_u32 {v(t1)}, {v(a+1)}, {v(a+2*k+1)}")
        I(f"v_med3_u32 {v(a+1)}, {v(a)}, {v(a+2*k)}, {v(t1)}")
        I(f"v_max_u32 {v(a)}, {v(a)}, {v(a+2*k)}")

def unpack(dst, src):
    I(f"v_lshlrev_b32 {v(dst)}, 16, {v(src)}")
    I(f"v_and_b32 {v(dst+1)}, {s(S_MASK)}, {v(src)}")


def keys_poll(vaddr, GK, vtmp):
    l = lab("kpoll"); done = l + "_done"
    I(f"s_mov_b32 {s(S_CNT)}, 0")
    L(l)
    I(f"global_load_dwordx4 {v(GK,4)}, {v(vaddr)}, {s(P_WS,2)} sc1")
    I(f"global_load_dwordx4 {v(GK+4,4)}, {v(vaddr+1)}, {s(P_WS,2)} sc1")
    I("s_waitcnt vmcnt(0)")
    for k in range(4): I(f"v_xor_b32 {v(vtmp+k)}, {s(S_NONCE)}, {v(GK+2*k+1)}")
    I(f"v_or3_b32 {v(vtmp)}, {v(vtmp)}, {v(vtmp+2)}, {v(vtmp+3)}")
    I(f"v_or_b32 {v(vtmp)}, {v(vtmp)}, {v(vtmp+1)}")
    I(f"v_cmp_ne_u32 vcc, 0, {v(vtmp)}")
    I(f"s_add_u32 {s(S_CNT)}, {s(S_CNT)}, 1")
    I(f"s_cmp_eq_u64 vcc, 0")
    I(f"s_cbranch_scc1 {done}")
    I(f"s_sleep {KSLEEP}")
    I(f"s_cmp_lt_u32 {s(S_CNT)}, {POLL_LIMIT}")
    I(f"s_cbranch_scc1 {l}")
    L(done)

def keys_top2(GK, m1, m2, t1, t2):
    I(f"v_max_u32 {v(t2)}, {v(GK+2)}, {v(GK+6)}")
    I(f"v_med3_u32 {v(GK+2)}, {v(GK)}, {v(GK+4)}, {v(t2)}")
    I(f"v_max_u32 {v(GK)}, {v(GK)}, {v(GK+4)}")
    top2_wave(GK, m1, m2, t1, t2)
    I("s_nop 0")
    I(f"v_readfirstlane_b32 {s(S_K1)}, {v(m1)}")
    I(f"v_readfirstlane_b32 {s(S_K2)}, {v(m2)}")


def keys_issue(vaddr, GK):
    I(f"global_load_dwordx4 {v(GK,4)}, {v(vaddr)}, {s(P_WS,2)} sc1")
    I(f"global_load_dwordx4 {v(GK+4,4)}, {v(vaddr+1)}, {s(P_WS,2)} sc1")
def keys_check(GK, vtmp):
    for k in range(4): I(f"v_xor_b32 {v(vtmp+k)}, {s(S_NONCE)}, {v(GK+2*k+1)}")
    I(f"v_or3_b32 {v(vtmp)}, {v(vtmp)}, {v(vtmp+2)}, {v(vtmp+3)}")
    I(f"v_or_b32 {v(vtmp)}, {v(vtmp)}, {v(vtmp+1)}")
    I(f"v_cmp_ne_u32 vcc, 0, {v(vtmp)}")
    I(f"s_cmp_eq_u64 vcc, 0")

def keys_poll2(vaddr, GK, GK2, vtmp):
    l = lab("kp2"); doneA = l + "_a"; doneB = l + "_b"
    I(f"s_mov_b32 {s(S_CNT)}, 0")
    keys_issue(vaddr, GK)
    L(l)
    I(f"s_sleep {PIPE}")
    keys_issue(vaddr, GK2)
    I("s_waitcnt vmcnt(2)")
    keys_check(GK, vtmp)
    I(f"s_cbranch_scc1 {doneA}")
    I(f"s_sleep {PIPE}")
    keys_issue(vaddr, GK)
    I("s_waitcnt vmcnt(2)")
    keys_check(GK2, vtmp)
    I(f"s_cbranch_scc1 {doneB}")
    I(f"s_add_u32 {s(S_CNT)}, {s(S_CNT)}, 1")
    I(f"s_cmp_lt_u32 {s(S_CNT)}, {POLL_LIMIT}")
    I(f"s_cbranch_scc1 {l}")
    L(doneB)
    L(doneA)

hdr = open("parallel_sum__ssm_conv_s4__moe_arch_mod__prompt.s.ref").read().split("; Override")[0]
out.append(hdr.rstrip())
out.append(f"; @launch grid=({NWG},1,1) block=(256,1,1) lds={LDS_BYTES}")
out.append('.amdgcn_target "amdgcn-amd-amdhsa--gfx950"')
out.append(".text")
out.append(f".globl {KNAME}")
out.append(".p2align 8")
out.append(f".type {KNAME},@function")
L(KNAME)
I(f"s_cmp_ge_u32 s2, {NWG}")
I("s_cbranch_scc1 L_end")
I(f"s_load_dwordx16 s[8:23], s[0:1], 0")
I(f"s_load_dwordx16 s[24:39], s[0:1], 64")
I(f"s_load_dwordx2 {s(P_WS,2)}, s[0:1], 128")
stamp()
VL, VZ, VJ, VKG = 1, 2, 5, 6
VO, VO2 = 10, 11
I(f"v_and_b32 {v(VL)}, 63, v0")
I(f"v_lshrrev_b32 v3, 6, v0")
I(f"v_mov_b32 {v(VZ)}, 0")
I(f"v_readfirstlane_b32 {s(S_WAVE)}, v3")
I(f"s_mov_b32 {s(S_MASK)}, 0xffff0000")
I(f"v_lshlrev_b32 {v(VO2)}, 4, {v(VL)}")
I(f"s_cmp_ge_u32 s2, {NLN}")
I("s_cbranch_scc1 L_notln")

C("==== LayerNorm role: 16 rows per workgroup, 4 per wave")
I(f"s_setprio {LNPRIO}")
NR = 4
X = [12 + 4*r for r in range(NR)]
WR = 28
F = [32 + 8*r for r in range(NR)]
D = [64 + 8*r for r in range(NR)]
T = [96 + 8*r for r in range(NR)]
S1 = [128 + r for r in range(NR)]
S2 = [132 + r for r in range(NR)]
S3 = [136 + r for r in range(NR)]
SW = 140
SX0 = [52 + 2*r for r in range(NR)]
VNON = 141
VTW, VTR2, VTS2 = 142, 143, 144
t1, t2 = 145, 146
VC, VONE = 147, 148
TX = 160
R_ = range(NR)
I(f"s_lshl_b32 {s(S_ROW0)}, s2, 4")
I(f"s_lshl_b32 {s(S_T0)}, {s(S_WAVE)}, 2")
I(f"s_add_u32 {s(S_ROW0)}, {s(S_ROW0)}, {s(S_T0)}")
I(f"s_lshl_b32 {s(S_T0)}, {s(S_ROW0)}, 10")
I(f"v_add_u32 {v(VO)}, {s(S_T0)}, {v(VO2)}")
I("s_waitcnt lgkmcnt(0)")
for r in R_:
    I(f"global_load_dwordx4 {v(X[r],4)}, {v(VO)}, {s(P_U,2)} offset:{1024*r}")
I(f"global_load_dwordx4 {v(WR,4)}, {v(VO2)}, {s(P_WR,2)}")
C("---- pull the kernel's own code into this die's L2 (instruction fetch then misses only to L2)")
NCP = int([a for a in sys.argv if a.startswith("--ncp=")][0][6:]) if any(a.startswith("--ncp=") for a in sys.argv) else 32
I(f"s_getpc_b64 {s(S_EXEC,2)}")
L("L_pc")
I(f"s_sub_u32 {s(S_EXEC)}, {s(S_EXEC)}, L_pc-{KNAME}")
I(f"s_subb_u32 {s(S_EXEC+1)}, {s(S_EXEC+1)}, 0")
I(f"v_lshlrev_b32 {v(t1)}, 6, v0")
I(f"v_min_u32 {v(t1)}, L_end-{KNAME}, {v(t1)}")
I(f"s_cmp_ge_u32 s2, {NCP}")
I("s_cbranch_scc1 L_nocp")
I(f"global_load_dword {v(159)}, {v(t1)}, {s(S_EXEC,2)}")
I("s_branch L_cpdone")
L("L_nocp")
I(f"global_load_dword {v(159)}, {v(VZ)}, {s(P_WR,2)}")
L("L_cpdone")
I(f"s_add_u32 {s(S_XT)}, {s(P_WS)}, {WS_XT}")
I(f"s_addc_u32 {s(S_XT+1)}, {s(P_WS+1)}, 0")
I(f"s_mul_i32 {s(S_T2)}, {s(S_WAVE)}, {4*TS}")
I(f"v_add_u32 {v(VTW)}, {s(S_T2)}, {v(VO2)}")
I(f"v_and_b32 {v(t1)}, 3, v0")
I(f"v_lshrrev_b32 {v(t2)}, 2, v0")
I(f"v_mul_u32_u24 {v(VTR2)}, {4*TS}, {v(t1)}")
I(f"v_lshl_add_u32 {v(VTR2)}, {v(t2)}, 2, {v(VTR2)}")
I(f"s_lshl_b32 {s(S_T2)}, s2, 6")
I(f"v_lshl_add_u32 {v(VTS2)}, {v(t1)}, 4, {s(S_T2)}")
I(f"v_lshl_add_u32 {v(VTS2)}, {v(t2)}, 13, {v(VTS2)}")
I(f"s_lshl_b32 {s(S_T2)}, {s(S_ROW0)}, 3")
I(f"v_add_u32 {v(VO)}, {s(S_T2)}, {v(VO2)}")
C("---- warm this die's L2 with FFN weight lines that its FFN workgroups read last (speed only)")
I(f"s_and_b32 {s(S_T0)}, s2, 7")
I(f"s_lshr_b32 {s(S_T1)}, s2, 3")
I(f"s_sub_u32 {s(S_T2)}, {s(S_WAVE)}, 1")
I(f"s_cmp_ge_u32 {s(S_T2)}, 2")
I("s_cbranch_scc1 L_pf_down")
I(f"s_mul_i32 {s(S_T2)}, {s(S_T0)}, 448")
I(f"s_mul_i32 {s(S_T3)}, {s(S_T1)}, {16*3584}")
I(f"s_add_u32 {s(S_T2)}, {s(S_T2)}, {s(S_T3)}")
I(f"s_add_u32 {s(S_T2)}, {s(S_T2)}, {256*3584}")
I(f"v_lshrrev_b32 {v(176)}, 2, {v(VL)}")
I(f"v_mul_u32_u24 {v(176)}, 3584, {v(176)}")
I(f"v_and_b32 {v(177)}, 3, {v(VL)}")
I(f"v_mul_u32_u24 {v(177)}, 148, {v(177)}")
I(f"v_add3_u32 {v(176)}, {v(176)}, {v(177)}, {s(S_T2)}")
I(f"s_cmp_eq_u32 {s(S_WAVE)}, 1")
I(f"s_cselect_b32 {s(S_EXEC)}, {s(P_WG)}, {s(P_WU)}")
I(f"s_cselect_b32 {s(S_EXEC+1)}, {s(P_WG+1)}, {s(P_WU+1)}")
I(f"v_add_u32 {v(177)}, 72, {v(176)}")
I(f"v_min_u32 {v(177)}, {512*3584-4}, {v(177)}")
I("s_branch L_pf_go")
L("L_pf_down")
I(f"s_mul_i32 {s(S_T2)}, {s(S_T0)}, {224*1024}")
I(f"s_mul_i32 {s(S_T3)}, {s(S_T1)}, {14*1024}")
I(f"s_add_u32 {s(S_T2)}, {s(S_T2)}, {s(S_T3)}")
I(f"s_and_b32 {s(S_T3)}, {s(S_WAVE)}, 1")
I(f"s_mul_i32 {s(S_T3)}, {s(S_T3)}, 7168")
I(f"s_add_u32 {s(S_T2)}, {s(S_T2)}, {s(S_T3)}")
I(f"v_min_u32 {v(176)}, 55, {v(VL)}")
I(f"v_lshl_add_u32 {v(176)}, {v(176)}, 6, {s(S_T2)}")
I(f"v_add_u32 {v(177)}, 3584, {v(176)}")
I(f"s_mov_b64 {s(S_EXEC,2)}, {s(P_WD,2)}")
L("L_pf_go")
I(f"v_mov_b32 {v(VC)}, {f2u(1.0/512):#x}")
I(f"v_mov_b32 {v(VONE)}, 0x3f803f80")
for r in R_: I(f"v_mov_b32 {v(S3[r])}, 0")
I(f"v_mov_b32 {v(SW)}, 0")
for r in R_:
    I(f"s_waitcnt vmcnt({NR + 1 - r})")
    if r == 0: stamp()
    I(f"ds_write_b128 {v(VTW)}, {v(X[r],4)} offset:{L_T2 + r*TS}")
    if r < NR - 1:
        for k in range(4): unpack(F[r]+2*k, X[r]+k)
I("s_waitcnt lgkmcnt(0)")
I("s_barrier")
for i in range(4):
    for e in range(4):
        I(f"ds_read_b32 {v(TX+4*i+e)}, {v(VTR2)} offset:{L_T2 + 256*i + e*TS}")
for k in range(4): unpack(F[NR-1]+2*k, X[NR-1]+k)
for r in R_: I(f"v_readfirstlane_b32 {s(SX0[r])}, {v(F[r])}")
for i in range(4):
    I(f"s_waitcnt lgkmcnt({12 - 4*i})")
    I(f"global_store_dwordx4 {v(VTS2)}, {v(TX+4*i,4)}, {s(S_XT,2)} sc1")
    if i < 3: I(f"v_add_u32 {v(VTS2)}, 0x80000, {v(VTS2)}")
nonce_issue(VZ, VNON)
if PFPOS == 0:
    I(f"global_load_dword {v(178)}, {v(176)}, {s(S_EXEC,2)}")
    I(f"global_load_dword {v(179)}, {v(177)}, {s(S_EXEC,2)}")

stamp()
for k in range(4):
    for r in R_:
        I(f"v_pk_add_f32 {v(D[r]+2*k,2)}, {v(F[r]+2*k,2)}, {s(SX0[r],2)} op_sel_hi:[1,0] neg_lo:[0,1] neg_hi:[0,1]")
I(f"s_waitcnt vmcnt({8 if PFPOS == 0 else 6})")
for k in range(4):
    for r in R_: I(f"v_dot2c_f32_bf16 {v(S3[r])}, {v(X[r]+k)}, {v(WR+k)}")
    I(f"v_dot2c_f32_bf16 {v(SW)}, {v(VONE)}, {v(WR+k)}")
for r in R_: I(f"v_pk_add_f32 {v(T[r],2)}, {v(D[r],2)}, {v(D[r]+2,2)}")
for r in R_: I(f"v_pk_mul_f32 {v(T[r]+4,2)}, {v(D[r],2)}, {v(D[r],2)}")
for r in R_: I(f"v_pk_add_f32 {v(T[r]+2,2)}, {v(D[r]+4,2)}, {v(D[r]+6,2)}")
for r in R_: I(f"v_pk_fma_f32 {v(T[r]+4,2)}, {v(D[r]+2,2)}, {v(D[r]+2,2)}, {v(T[r]+4,2)}")
for r in R_: I(f"v_pk_add_f32 {v(T[r],2)}, {v(T[r],2)}, {v(T[r]+2,2)}")
for r in R_: I(f"v_pk_fma_f32 {v(T[r]+4,2)}, {v(D[r]+4,2)}, {v(D[r]+4,2)}, {v(T[r]+4,2)}")
for r in R_: I(f"v_add_f32 {v(S1[r])}, {v(T[r])}, {v(T[r]+1)}")
for r in R_: I(f"v_pk_fma_f32 {v(T[r]+4,2)}, {v(D[r]+6,2)}, {v(D[r]+6,2)}, {v(T[r]+4,2)}")
for r in R_: I(f"v_add_f32 {v(S2[r])}, {v(T[r]+4)}, {v(T[r]+5)}")
dpp_reduce(S1 + S3 + [SW] + S2)
for r in R_: I(f"v_mul_f32 {v(S1[r])}, {v(VC)}, {v(S1[r])}")
for r in R_: I(f"v_mul_f32 {v(S2[r])}, {v(VC)}, {v(S2[r])}")
for r in R_: I(f"v_fma_f32 {v(S2[r])}, -{v(S1[r])}, {v(S1[r])}, {v(S2[r])}")
for r in R_: I(f"v_add_f32 {v(S1[r])}, {s(SX0[r])}, {v(S1[r])}")
for r in R_: I(f"v_max_f32 {v(S2[r])}, 0, {v(S2[r])}")
MP = [T[0], T[0]+1]; VP = [T[0]+2, T[0]+3]
for h in range(2): I(f"v_cvt_pk_bf16_f32 {v(MP[h])}, {v(S1[2*h])}, {v(S1[2*h+1])}")
for h in range(2): I(f"v_cvt_pk_bf16_f32 {v(VP[h])}, {v(S2[2*h])}, {v(S2[2*h+1])}")
for h in range(2): unpack(S1[2*h], MP[h])
for h in range(2): unpack(S2[2*h], VP[h])
eps = f2u(1e-5)
for r in R_: I(f"v_add_f32 {v(S2[r])}, {eps:#x}, {v(S2[r])}")
for r in R_: I(f"v_fma_f32 {v(S3[r])}, -{v(S1[r])}, {v(SW)}, {v(S3[r])}")
for h in range(2): I(f"v_cvt_pk_bf16_f32 {v(VP[h])}, {v(S2[2*h])}, {v(S2[2*h+1])}")
for r in R_: I(f"v_lshrrev_b32 {v(S1[r])}, 16, {v(S1[r])}")
for h in range(2): unpack(S2[2*h], VP[h])
for r in R_: I(f"v_sqrt_f32 {v(S2[r])}, {v(S2[r])}")
I("s_nop 0")
for h in range(2): I(f"v_cvt_pk_bf16_f32 {v(VP[h])}, {v(S2[2*h])}, {v(S2[2*h+1])}")
for h in range(2): unpack(S2[2*h], VP[h])
RC = [T[1]+r for r in R_]
for r in R_: I(f"v_rcp_f32 {v(RC[r])}, {v(S2[r])}")
for r in R_: I(f"v_or_b32 {v(S1[r])}, {v(S1[r])}, {v(S2[r])}")
for r in R_: I(f"v_mul_f32 {v(S3[r])}, {v(S3[r])}, {v(RC[r])}")
SMS = [10, 11, 12, 13]
for r in R_: I(f"v_readlane_b32 {s(SMS[r])}, {v(S1[r])}, 63")
for h in range(2): I(f"v_cvt_pk_bf16_f32 {v(MP[h])}, {v(S3[2*h])}, {v(S3[2*h+1])}")
GP = 152
I(f"v_cmp_eq_u32 vcc, 0, {v(VL)}")
for h in range(2): I(f"v_readlane_b32 {s(S_R+h)}, {v(MP[h])}, 63")
I(f"v_mov_b32 {v(GP)}, {s(SMS[2])}")
I(f"v_mov_b32 {v(GP+2)}, {s(SMS[3])}")
I(f"v_mov_b32 {v(t1)}, {s(SMS[0])}")
I(f"v_mov_b32 {v(t2)}, {s(SMS[1])}")
I(f"v_cndmask_b32 {v(GP)}, {v(GP)}, {v(t1)}, vcc")
I(f"v_cndmask_b32 {v(GP+2)}, {v(GP+2)}, {v(t2)}, vcc")
I(f"s_sub_u32 {s(S_T3)}, 0xffff, {s(S_ROW0)}")
KK = [14, 15, 16, 17]
for h in range(2):
    I(f"s_and_b32 {s(S_T0)}, {s(S_R+h)}, 0x80008000")
    I(f"s_lshr_b32 {s(S_T1)}, {s(S_T0)}, 15")
    I(f"s_mul_i32 {s(S_T1)}, {s(S_T1)}, 0x7fff")
    I(f"s_or_b32 {s(S_T1)}, {s(S_T1)}, 0x80008000")
    I(f"s_xor_b32 {s(S_T2)}, {s(S_R+h)}, {s(S_T1)}")
    I(f"s_lshl_b32 {s(S_T0)}, {s(S_T2)}, 16")
    I(f"s_or_b32 {s(S_T0)}, {s(S_T0)}, {s(S_T3)}")
    I(f"s_sub_u32 {s(S_T3)}, {s(S_T3)}, 1")
    I(f"s_and_b32 {s(S_T1)}, {s(S_T2)}, 0xffff0000")
    I(f"s_or_b32 {s(S_T1)}, {s(S_T1)}, {s(S_T3)}")
    I(f"s_sub_u32 {s(S_T3)}, {s(S_T3)}, 1")
    I(f"s_max_u32 {s(KK[2*h])}, {s(S_T0)}, {s(S_T1)}")
    I(f"s_min_u32 {s(KK[2*h+1])}, {s(S_T0)}, {s(S_T1)}")
I(f"s_max_u32 {s(S_T0)}, {s(KK[0])}, {s(KK[2])}")
I(f"s_min_u32 {s(S_T1)}, {s(KK[0])}, {s(KK[2])}")
I(f"s_max_u32 {s(S_T2)}, {s(KK[1])}, {s(KK[3])}")
I(f"s_max_u32 {s(S_T1)}, {s(S_T1)}, {s(S_T2)}")
I(f"v_mov_b32 {v(156)}, {s(S_T0)}")
I(f"v_mov_b32 {v(157)}, {s(S_T1)}")
I(f"s_lshl_b32 {s(S_T0)}, {s(S_WAVE)}, 3")
I(f"v_mov_b32 {v(158)}, {s(S_T0)}")
I(f"ds_write_b64 {v(158)}, {v(156,2)} offset:{L_MISC + 64}")
stamp()
if PFPOS == 2:
    I(f"global_load_dword {v(178)}, {v(176)}, {s(S_EXEC,2)}")
    I(f"global_load_dword {v(179)}, {v(177)}, {s(S_EXEC,2)}")
nonce_wait(VZ, VNON, first=(2 if PFPOS < 3 else 0))
stamp()
I(f"v_mov_b32 {v(GP+1)}, {v(VNON)}")
I(f"v_mov_b32 {v(GP+3)}, {v(VNON)}")
I("s_mov_b64 exec, 3")
I(f"global_store_dwordx4 {v(VO)}, {v(GP,4)}, {s(P_WS,2)} sc1")
I("s_mov_b64 exec, -1")
I("s_waitcnt lgkmcnt(0)")
I("s_barrier")
I(f"s_cmp_lg_u32 {s(S_WAVE)}, 0")
I("s_cbranch_scc1 L_ln_pf" if "--nopf" not in sys.argv else "s_cbranch_scc1 L_fin")
I(f"ds_read_b128 {v(96,4)}, {v(VZ)} offset:{L_MISC+64}")
I(f"ds_read_b128 {v(100,4)}, {v(VZ)} offset:{L_MISC+80}")
I(f"s_lshl_b32 {s(S_T0)}, s2, 7")
I(f"s_add_u32 {s(S_T0)}, {s(S_T0)}, {WS_KEYS}")
I(f"v_mov_b32 {v(105)}, {s(S_T0)}")
I("s_waitcnt lgkmcnt(0)")
top2_combine(96, 104)
I(f"v_mov_b32 {v(98)}, {v(97)}")
I(f"v_mov_b32 {v(97)}, {v(VNON)}")
I(f"v_mov_b32 {v(99)}, {v(VNON)}")
I("s_mov_b64 exec, 1")
I(f"global_store_dwordx4 {v(105)}, {v(96,4)}, {s(P_WS,2)} sc1")
I("s_mov_b64 exec, -1")
stamp()
if "--nopf" in sys.argv: I("s_branch L_fin")
L("L_ln_pf")
if PFPOS == 3:
    I("s_barrier")
    I(f"global_load_dword {v(178)}, {v(176)}, {s(S_EXEC,2)}")
    I(f"global_load_dword {v(179)}, {v(177)}, {s(S_EXEC,2)}")
    I("s_waitcnt vmcnt(0)")
I("s_branch L_fin")

L("L_notln")
nstamp[0] = 1
I(f"v_and_b32 {v(VJ)}, 15, {v(VL)}")
I(f"v_lshrrev_b32 {v(VKG)}, 4, {v(VL)}")
VKEY = 252
I(f"v_lshlrev_b32 {v(VKEY)}, 7, {v(VL)}")
I(f"v_add_u32 {v(VKEY+1)}, {WS_KEYS + 8192}, {v(VKEY)}")
I(f"v_add_u32 {v(VKEY)}, {WS_KEYS}, {v(VKEY)}")
I(f"s_cmp_ge_u32 s2, {NLN + NCONV}")
I("s_cbranch_scc1 L_ffn")

C("==== conv role")
S_C = 47
I(f"s_sub_u32 {s(S_C)}, s2, {NLN}")
PRM = 24
I(f"s_and_b32 {s(S_T0)}, {s(S_C)}, 7")
I(f"s_lshl_b32 {s(S_T0)}, {s(S_T0)}, 5")
I(f"s_lshr_b32 {s(S_T1)}, {s(S_C)}, 3")
I(f"s_add_u32 {s(S_DP)}, {s(S_T0)}, {s(S_T1)}")
I(f"s_lshl_b32 {s(S_T0)}, {s(S_DP)}, 9")
I(f"s_lshl_b32 {s(S_T1)}, {s(S_WAVE)}, 7")
I(f"s_add_u32 {s(S_T0)}, {s(S_T0)}, {s(S_T1)}")
VPO = 30
I(f"v_lshl_add_u32 {v(VPO)}, {v(VL)}, 1, {s(S_T0)}")
for k in range(6): I(f"v_mov_b32 {v(PRM+k)}, 0")
I(f"s_lshl_b32 {s(S_T1)}, {s(S_DP)}, 2")
I("s_waitcnt lgkmcnt(0)")
for k, p in enumerate((P_ARE, P_AIM, P_BRE, P_BIM, P_CRE, P_CIM)):
    I(f"global_load_short_d16_hi {v(PRM+k)}, {v(VPO)}, {s(p,2)}")
I(f"s_load_dword {s(S_LDT)}, {s(P_LDT,2)}, {s(S_T1)}")
I(f"s_load_dword {s(S_DSK)}, {s(P_DSK,2)}, {s(S_T1)}")
I(f"s_lshr_b32 {s(S_T0)}, {s(S_C)}, 3")
I(f"s_xor_b32 {s(S_T0)}, {s(S_T0)}, 31")
I(f"s_xor_b32 {s(S_T1)}, {s(S_WAVE)}, 3")
I(f"s_or_b32 {s(S_T0)}, {s(S_T0)}, {s(S_T1)}")
nonce_cas(VZ, 32)
I(f"s_add_u32 {s(S_PART)}, {s(P_WS)}, {WS_PART}")
I(f"s_addc_u32 {s(S_PART+1)}, {s(P_WS+1)}, 0")
I(f"s_lshl_b32 {s(S_T0)}, {s(S_DP)}, 13")
I(f"s_add_u32 {s(S_T0)}, {s(S_T0)}, {WS_XT}")
I(f"s_add_u32 {s(S_XNG)}, {s(P_WS)}, {s(S_T0)}")
I(f"s_addc_u32 {s(S_XNG+1)}, {s(P_WS+1)}, 0")

C("---- constants")
AL = 200
VBETA = 206
SC0, SC1A, SC1B, SC2 = 208, 209, 210, 211
GA = 212
VGX = 224
VA_, VB_ = 226, 227
VRW, VRR = 228, 229
VT0 = 230
VOUT = 232
VPAR = 234
VKCW = 235
VPW = 236
VT8 = 237
VT4 = 238
VFL = 239
M1, M2 = 240, 241
VEX, VEU = 242, 243
VTL = 245
VNON = 246
VSW = 248
t1, t2, t3, t4 = 12, 13, 14, 15
I(f"v_lshlrev_b32 {v(VKCW)}, 4, v0")
I(f"v_lshlrev_b32 {v(VT8)}, 3, v0")
I(f"v_lshlrev_b32 {v(VT4)}, 2, v0")
I(f"s_lshl_b32 {s(S_T2)}, {s(S_WAVE)}, 11")
I(f"s_add_u32 {s(S_T2)}, {s(S_T2)}, {L_PAR}")
I(f"v_lshl_add_u32 {v(VPAR)}, {v(VKG)}, 7, {s(S_T2)}")
I(f"v_lshl_add_u32 {v(VPW)}, {v(VL)}, 5, {s(S_T2)}")
for k in range(4):
    I(f"v_add_u32 {v(VSW+k)}, {4096*k}, {v(VKCW)}")
I(f"v_add_u32 {v(VFL)}, 4096, {v(VT8)}")
I(f"v_mov_b32 {v(t1)}, {v(VJ)}")
for i_, al in ((8, 512), (9, 516), (10, 1024), (11, 1536), (12, 2048), (13, 0), (14, 0), (15, 0)):
    I(f"v_cmp_eq_u32 vcc, {i_}, {v(VJ)}")
    I(f"v_mov_b32 {v(t2)}, {al}")
    I("s_nop 0")
    I(f"v_cndmask_b32 {v(t1)}, {v(t1)}, {v(t2)}, vcc")
I(f"v_cvt_f32_u32 {v(AL)}, {v(t1)}")
I(f"v_lshlrev_b32 {v(t1)}, 3, {v(VJ)}")
I(f"v_cvt_f32_u32 {v(VBETA)}, {v(t1)}")
SCB, SCS = 208, 202
I(f"s_lshr_b32 {s(S_T0)}, {s(S_WAVE)}, 1")
I(f"s_mul_i32 {s(S_T0)}, {s(S_T0)}, {KTAB_D}")
I(f"s_and_b32 {s(S_T1)}, {s(S_WAVE)}, 1")
I(f"s_lshl_b32 {s(S_T1)}, {s(S_T1)}, 2")
I(f"s_add_u32 {s(S_T0)}, {s(S_T0)}, {s(S_T1)}")
I(f"s_add_u32 {s(S_T0)}, {s(S_T0)}, {L_KTAB}")
I(f"v_mul_u32_u24 {v(t1)}, 9, {v(VJ)}")
I(f"v_lshl_add_u32 {v(t1)}, {v(VKG)}, 2, {v(t1)}")
I(f"v_cmp_eq_u32 {s(S_T2,2)}, 2, {v(VKG)}")
I(f"v_cmp_eq_u32 {s(S_X0,2)}, 3, {v(VKG)}")
I(f"v_cmp_eq_u32 {s(S_X0+2,2)}, 48, {v(VL)}")
for r in range(4):
    I(f"v_add_u32 {v(t2)}, {r}, {v(t1)}")
    if r < 2: I(f"v_lshl_add_u32 {v(t3)}, {v(VJ)}, 1, {v(VZ)}"); I(f"v_add_u32 {v(t3)}, {576 + r}, {v(t3)}")
    else:     I(f"v_add_u32 {v(t3)}, {704 + 64*(r-2)}, {v(VJ)}")
    I(f"v_cndmask_b32 {v(t2)}, {v(t2)}, {v(t3)}, {s(S_T2,2)}")
    I(f"v_add_u32 {v(t3)}, {TRASH + 16*r}, {v(VJ)}")
    I(f"v_cndmask_b32 {v(t2)}, {v(t2)}, {v(t3)}, {s(S_X0,2)}")
    if r == 0:
        I(f"v_mov_b32 {v(t3)}, 832")
        I(f"v_cndmask_b32 {v(t2)}, {v(t2)}, {v(t3)}, {s(S_X0+2,2)}")
    I(f"v_lshl_add_u32 {v(SCB+r)}, {v(t2)}, 3, {s(S_T0)}")
for hh, st2 in ((0, 32), (1, 16)):
    I(f"v_mov_b32 {v(t2)}, {144*8}")
    I(f"v_mov_b32 {v(t3)}, {st2*8}")
    I(f"v_cndmask_b32 {v(t2)}, {v(t2)}, {v(t3)}, {s(S_T2,2)}")
    I(f"v_cndmask_b32 {v(t2)}, {v(t2)}, {v(VZ)}, {s(S_X0,2)}")
    if hh == 0:
        I(f"v_mov_b32 {v(t3)}, {16*8}")
        I(f"v_cndmask_b32 {v(t2)}, {v(t2)}, {v(t3)}, {s(S_X0+2,2)}")
    I(f"v_mov_b32 {v(SCS+hh)}, {v(t2)}")
I(f"v_sub_u32 {v(t1)}, 2047, {v(VT8)}")
I(f"s_movk_i32 {s(S_T1)}, 0x4400")
I(f"v_mov_b32 {v(t4)}, {ZIDX}")
for k in range(11):
    I(f"v_subrev_u32 {v(t2)}, {k}, {v(t1)}")
    I(f"v_cvt_f32_i32 {v(t3)}, {v(t2)}")
    I(f"v_cvt_pk_bf16_f32 {v(t3)}, {v(t3)}, {v(VZ)}")
    I(f"v_lshlrev_b32 {v(16)}, 16, {v(t3)}")
    I(f"v_cmp_gt_u32 vcc, {s(S_T1)}, {v(t3)}")
    I(f"v_cvt_u32_f32 {v(16)}, {v(16)}")
    I(f"v_subrev_u32 {v(t3)}, {0x4400 - 576}, {v(t3)}")
    I(f"v_lshrrev_b32 {v(17)}, 3, {v(16)}")
    I(f"v_add_u32 {v(16)}, {v(16)}, {v(17)}")
    I(f"v_cndmask_b32 {v(t3)}, {v(t3)}, {v(16)}, vcc")
    if k >= 8:
        I(f"v_cmp_gt_i32 vcc, 0, {v(t2)}")
        I("s_nop 1")
        I(f"v_cndmask_b32 {v(t3)}, {v(t3)}, {v(t4)}, vcc")
    I(f"v_lshlrev_b32 {v(GA+k)}, 3, {v(t3)}")
I(f"s_lshr_b32 {s(S_T0)}, {s(S_WAVE)}, 1")
I(f"s_and_b32 {s(S_T1)}, {s(S_WAVE)}, 1")
I(f"s_mul_i32 {s(S_T2)}, {s(S_T0)}, {KC_D}")
I(f"s_lshl_b32 {s(S_T3)}, {s(S_T1)}, 8")
I(f"s_sub_u32 {s(S_T2)}, {s(S_T2)}, {s(S_T3)}")
I(f"s_add_u32 {s(S_T2)}, {s(S_T2)}, {L_KC + 3*KC_S + 72}")
I(f"v_and_b32 {v(t1)}, 3, {v(VJ)}")
I(f"v_mul_u32_u24 {v(t1)}, {KC_S}, {v(t1)}")
I(f"v_lshrrev_b32 {v(t2)}, 2, {v(VJ)}")
I(f"v_lshl_add_u32 {v(t1)}, {v(t2)}, 3, {v(t1)}")
I(f"v_lshl_add_u32 {v(t1)}, {v(VKG)}, 4, {v(t1)}")
I(f"v_sub_u32 {v(VA_)}, {s(S_T2)}, {v(t1)}")
I(f"s_mul_i32 {s(S_T2)}, {s(S_T0)}, {U_D}")
I(f"s_sub_u32 {s(S_T2)}, {s(S_T2)}, {s(S_T3)}")
I(f"s_add_u32 {s(S_T2)}, {s(S_T2)}, {L_U + 336}")
I(f"v_lshlrev_b32 {v(t1)}, 5, {v(VJ)}")
I(f"v_lshlrev_b32 {v(t2)}, 4, {v(VKG)}")
I(f"v_sub_u32 {v(t1)}, {v(t1)}, {v(t2)}")
I(f"v_add_u32 {v(VB_)}, {s(S_T2)}, {v(t1)}")
I(f"s_lshl_b32 {s(S_T2)}, {s(S_WAVE)}, 11")
I(f"v_add_u32 {v(VRW)}, {s(S_T2)}, {v(VO2)}")
I(f"s_lshr_b32 {s(S_T2)}, {s(S_WAVE)}, 1")
I(f"s_lshl_b32 {s(S_T2)}, {s(S_T2)}, 10")
I(f"s_and_b32 {s(S_T3)}, {s(S_WAVE)}, 1")
I(f"s_lshl_b32 {s(S_T3)}, {s(S_T3)}, 3")
I(f"s_add_u32 {s(S_T2)}, {s(S_T2)}, {s(S_T3)}")
I(f"v_add_u32 {v(VRR)}, {s(S_T2)}, {v(VO2)}")
I(f"s_lshr_b32 {s(S_T2)}, {s(S_T2)}, 2")
I(f"v_lshl_add_u32 {v(VT0)}, {v(VJ)}, 4, {s(S_T2)}")
I(f"v_lshl_add_u32 {v(VT0)}, {v(VKG)}, 2, {v(VT0)}")
I(f"v_lshlrev_b32 {v(VEX)}, 2, {v(VT0)}")
I(f"v_lshlrev_b32 {v(VEU)}, 1, {v(VT0)}")
I(f"s_lshl_b32 {s(S_T2)}, {s(S_DP)}, 2")
I(f"v_lshl_add_u32 {v(VOUT)}, {v(VT0)}, 10, {s(S_T2)}")
I(f"v_mov_b32 {v(38)}, 0")
I(f"v_mov_b32 {v(39)}, 0")
I(f"ds_write_b64 {v(VZ)}, {v(38,2)} offset:{L_KTAB + 8*ZIDX}")
I(f"ds_write_b64 {v(VZ)}, {v(38,2)} offset:{L_KTAB + KTAB_D + 8*ZIDX}")
I(f"v_lshlrev_b32 {v(t2)}, 1, v0")
I(f"ds_write_b16 {v(t2)}, {v(VZ)} offset:{L_U}")
I(f"ds_write_b16 {v(t2)}, {v(VZ)} offset:{L_U + U_D}")
I(f"v_lshrrev_b32 {v(t3)}, 5, v0")
I(f"v_mul_u32_u24 {v(t3)}, {KC_S}, {v(t3)}")
I(f"v_and_b32 {v(t4)}, 31, v0")
I(f"v_lshl_add_u32 {v(t3)}, {v(t4)}, 1, {v(t3)}")
I(f"ds_write_b16 {v(t3)}, {v(VZ)} offset:{L_KC + 4096}")

C("---- K-gen parameters")
I("s_waitcnt lgkmcnt(0)")
I(f"s_lshr_b32 {s(S_T0)}, {s(S_WAVE)}, 1")
I(f"s_lshl_b32 {s(S_T0)}, {s(S_T0)}, 4")
I(f"s_lshr_b32 {s(S_T1)}, {s(S_LDT)}, {s(S_T0)}")
I(f"s_lshl_b32 {s(S_T1)}, {s(S_T1)}, 16")
l2e_hi = struct.unpack("<f", struct.pack("<f", LOG2E))[0]
l2e_lo = LOG2E - l2e_hi
T0_, T1_, T2_, T3_, DT = 40, 41, 42, 43, 44
VDS = 8
I(f"s_lshl_b32 {s(S_DS2)}, {s(S_DSK)}, 16")
I(f"s_and_b32 {s(S_DS2+1)}, {s(S_DSK)}, 0xffff0000")
I(f"v_mov_b32 {v(T0_)}, {f2u(l2e_hi):#x}")
I(f"v_mov_b32 {v(T3_)}, {f2u(l2e_lo):#x}")
I(f"v_add_f32 {v(VDS)}, {s(S_DS2)}, 1.0")
I(f"v_add_f32 {v(VDS+1)}, {s(S_DS2+1)}, 1.0")
I(f"v_mul_f32 {v(T1_)}, {s(S_T1)}, {v(T0_)}")
I(f"v_fma_f32 {v(T2_)}, {s(S_T1)}, {v(T0_)}, -{v(T1_)}")
I(f"v_fma_f32 {v(T2_)}, {s(S_T1)}, {v(T3_)}, {v(T2_)}")
I(f"v_exp_f32 {v(T1_)}, {v(T1_)}")
I(f"v_mul_f32 {v(T2_)}, {f2u(math.log(2.0)):#x}, {v(T2_)}")
I(f"v_readfirstlane_b32 {s(S_DS2)}, {v(VDS)}")
I(f"v_readfirstlane_b32 {s(S_DS2+1)}, {v(VDS+1)}")
I(f"v_fma_f32 {v(T1_)}, {v(T1_)}, {v(T2_)}, {v(T1_)}")
I(f"v_cvt_pk_bf16_f32 {v(T1_)}, {v(T1_)}, {v(T1_)}")
I(f"v_lshlrev_b32 {v(DT)}, 16, {v(T1_)}")
PW = 48
I("s_waitcnt vmcnt(1)")
stamp()
I("s_waitcnt vmcnt(0)") if False else None
I(f"v_mul_f32 {v(T1_)}, {v(DT)}, {v(PRM+2)}")
I(f"v_mul_f32 {v(T2_)}, {v(DT)}, {v(PRM+3)}")
I(f"v_mul_f32 {v(PW)}, {v(DT)}, {v(PRM+0)}")
I(f"v_mul_f32 {v(PW+1)}, {v(DT)}, {v(PRM+1)}")
I(f"v_mul_f32 {v(PW+2)}, {v(PRM+4)}, {v(T1_)}")
I(f"v_mul_f32 {v(PW+3)}, {v(PRM+4)}, {v(T2_)}")
I(f"v_mul_f32 {v(PW)}, {v(T0_)}, {v(PW)}")
I(f"v_mul_f32 {v(PW+1)}, 0.15915494, {v(PW+1)}")
I(f"s_lshr_b32 {s(S_T0)}, {s(S_C)}, 3")
I(f"s_xor_b32 {s(S_T0)}, {s(S_T0)}, 31")
I(f"s_xor_b32 {s(S_T2)}, {s(S_WAVE)}, 3")
I(f"s_or_b32 {s(S_T0)}, {s(S_T0)}, {s(S_T2)}")
I(f"s_cmp_eq_u32 {s(S_T0)}, 0")
I("s_cbranch_scc1 L_p5b")
I("s_waitcnt vmcnt(0)")
L("L_p5b")
I(f"v_mul_f32 {v(56)}, 0x43000000, {v(PW)}")
I(f"v_mul_f32 {v(57)}, 0x43000000, {v(PW+1)}")
I(f"v_exp_f32 {v(56)}, {v(56)}")
I(f"v_fract_f32 {v(57)}, {v(57)}")
I(f"v_cos_f32 {v(PW+4)}, {v(57)}")
I(f"v_sin_f32 {v(PW+5)}, {v(57)}")
I(f"v_fma_f32 {v(PW+2)}, -{v(PRM+5)}, {v(T2_)}, {v(PW+2)}")
I(f"v_fma_f32 {v(PW+3)}, {v(PRM+5)}, {v(T1_)}, {v(PW+3)}")
I(f"v_max_f32 {v(T3_)}, |{v(PW+2)}|, |{v(PW+3)}|")
I(f"v_mul_f32 {v(PW+4)}, {v(PW+4)}, {v(56)}")
I(f"v_mul_f32 {v(PW+5)}, {v(PW+5)}, {v(56)}")
I(f"ds_write_b64 {v(VPW)}, {v(PW+4,2)} offset:16")
dpp_reduce([T3_], "v_max_f32")
I("s_nop 0")
I(f"v_readlane_b32 {s(S_T0)}, {v(T3_)}, 63")
I("s_nop 3")
I(f"s_bfe_u32 {s(S_T0)}, {s(S_T0)}, 0x80017")
I(f"s_max_u32 {s(S_T0)}, {s(S_T0)}, 1")
I(f"s_min_u32 {s(S_T0)}, {s(S_T0)}, 253")
I(f"s_lshl_b32 {s(S_UNS)}, {s(S_T0)}, 23")
I(f"s_sub_u32 {s(S_T0)}, 254, {s(S_T0)}")
I(f"s_lshl_b32 {s(S_T0)}, {s(S_T0)}, 23")
I(f"v_mul_f32 {v(PW+2)}, {s(S_T0)}, {v(PW+2)}")
I(f"v_mul_f32 {v(PW+3)}, {s(S_T0)}, {v(PW+3)}")
I(f"ds_write_b128 {v(VPW)}, {v(PW,4)}")
nonce_issue(VZ, VNON)
C("---- K-gen main loop: 4 super-groups of 16 n ; one A tile (rows) x four B tiles (columns)")
ACC = 100
PP = 56
OPA = 116
OPB = 120
TM = 136
for k in range(16): I(f"v_mov_b32 {v(ACC+k)}, 0")
I(f"s_mov_b32 {s(S_CNT)}, 0")
I("s_waitcnt lgkmcnt(0)")
stamp()
L("L_kgen")
for q in range(4):
    I(f"ds_read_b128 {v(PP+8*q,4)}, {v(VPAR)} offset:{32*q}")
    I(f"ds_read_b64 {v(PP+8*q+4,2)}, {v(VPAR)} offset:{32*q+16}")
PFIT = int([a for a in sys.argv if a.startswith("--pfit=")][0][7:]) if any(a.startswith("--pfit=") for a in sys.argv) else 1
I(f"v_add_u32 {v(VPAR)}, 512, {v(VPAR)}")
for qp in range(2):
    QS = (2*qp, 2*qp+1)
    I(f"s_waitcnt lgkmcnt({4 - 4*qp})")
    def tm(q, x): return TM + 16*(q & 1) + 4*x
    EV = [(q, x) for q in QS for x in range(2)]
    for q, x in EV: I(f"v_pk_mul_f32 {v(tm(q,x),2)}, {v(PP+8*q,2)}, {v(VBETA if x == 0 else AL,2)} op_sel_hi:[1,0]")
    for q, x in EV: I(f"v_fract_f32 {v(tm(q,x)+1)}, {v(tm(q,x)+1)}")
    for q, x in EV: I(f"v_exp_f32 {v(tm(q,x))}, {v(tm(q,x))}")
    for q, x in EV: I(f"v_cos_f32 {v(tm(q,x)+2)}, {v(tm(q,x)+1)}")
    for q, x in EV: I(f"v_sin_f32 {v(tm(q,x)+3)}, {v(tm(q,x)+1)}")
    def ep(q, x): return TM + 16*(q & 1) + 8 + 2*x
    def bc(q, alt): return TM + 16*(q & 1) + 12 + 2*alt
    for q, x in EV: I(f"v_pk_mul_f32 {v(ep(q,x),2)}, {v(tm(q,x)+2,2)}, {v(tm(q,x),2)} op_sel_hi:[1,0]")
    for q in QS: I(f"v_pk_mul_f32 {v(bc(q,0),2)}, {v(ep(q,0),2)}, {v(PP+8*q+2,2)} op_sel_hi:[0,1] neg_hi:[0,1]")
    for q in QS: I(f"v_cvt_pk_f16_f32 {v(OPA+q)}, {v(ep(q,1))}, {v(ep(q,1)+1)}")
    for q in QS: I(f"v_fma_f32 {v(bc(q,0))}, -{v(ep(q,0)+1)}, {v(PP+8*q+3)}, {v(bc(q,0))}")
    for q in QS: I(f"v_fma_f32 {v(bc(q,0)+1)}, -{v(ep(q,0)+1)}, {v(PP+8*q+2)}, {v(bc(q,0)+1)}")
    for k in range(4):
        cur_, nx = k & 1, 1 - (k & 1)
        if k < 3:
            for q in QS: I(f"v_pk_mul_f32 {v(bc(q,nx),2)}, {v(bc(q,cur_),2)}, {v(PP+8*q+4,2)} op_sel_hi:[1,0]")
        for q in QS: I(f"v_cvt_pk_f16_f32 {v(OPB+4*k+q)}, {v(bc(q,cur_))}, {v(bc(q,cur_)+1)}")
        if k < 3:
            for q in QS: I(f"v_fma_f32 {v(bc(q,nx))}, {v(bc(q,cur_)+1)}, {v(PP+8*q+5)}, {v(bc(q,nx))}")
            for q in QS: I(f"v_fma_f32 {v(bc(q,nx)+1)}, -{v(bc(q,cur_))}, {v(PP+8*q+5)}, {v(bc(q,nx)+1)}")
I(f"s_add_u32 {s(S_CNT)}, {s(S_CNT)}, 1")
I(f"s_cmp_lt_u32 {s(S_CNT)}, 4")
for k in range(4):
    I(f"v_mfma_f32_16x16x32_f16 {v(ACC+4*k,4)}, {v(OPA,4)}, {v(OPB+4*k,4)}, {v(ACC+4*k,4)}")
I("s_cbranch_scc1 L_kgen")
stamp()
GR, GK = 160, 176
nonce_wait(VZ, VNON)
for k in range(16): I(f"v_mul_f32 {v(ACC+k)}, {s(S_UNS)}, {v(ACC+k)}")
for k in range(4):
    for r in range(4):
        I(f"ds_write_b32 {v(SCB+r)}, {v(ACC+4*k+r)}")
        if k < 3: I(f"v_add_u32 {v(SCB+r)}, {v(SCB+r)}, {v(SCS + (r >> 1))}")
I("s_waitcnt lgkmcnt(0)")
I("s_barrier")
C("---- expand K into 4 shifted bf16 copies")
E0 = 40
CP = 96
XX = 144
def xs_issue():
    for k in range(4):
        I(f"global_load_dwordx2 {v(XX+2*k,2)}, {v(VT8 if k < 2 else VFL)}, {s(S_XNG,2)} offset:{2048*(k&1)} sc1")
    sweep_issue(VSW, GR, P_WS)
for d in range(2):
    Eb = E0 + 24*d
    for k in range(11):
        I(f"ds_read_b64 {v(Eb+2*k,2)}, {v(GA+k)} offset:{L_KTAB + d*KTAB_D}")
def expand(d):
    Eb = E0 + 24*d
    I(f"s_waitcnt lgkmcnt({11 if d == 0 else 4})")
    for k in range(11):
        I(f"v_add_f32 {v(Eb+2*k)}, {v(Eb+2*k)}, {v(Eb+2*k+1)}")
    for sg in range(4):
        Cb = CP + 16*d + 4*sg
        for m in range(4):
            I(f"v_cvt_pk_bf16_f32 {v(Cb+m)}, {v(Eb+2*(sg+2*m))}, {v(Eb+2*(sg+2*m+1))}")
        I(f"ds_write_b128 {v(VKCW)}, {v(Cb,4)} offset:{L_KC + d*KC_D + sg*KC_S}")
expand(0)
expand(1)
stamp()
I(f"s_cmp_lg_u32 {s(S_WAVE)}, 0")
I("s_cbranch_scc1 L_k_wait")
if PIPE: keys_poll2(VKEY, GK, 184, 32)
else: keys_poll(VKEY, GK, 32)
L("L_k_wait")
I("s_barrier")
xs_issue()
stamp()
I(f"s_cmp_lg_u32 {s(S_WAVE)}, 0")
I("s_cbranch_scc1 L_k_not0")
if PIPE:
    I("s_waitcnt vmcnt(8)")
    keys_check(GK, 32)
    I("s_cbranch_scc1 L_k_gk")
    for k in range(8): I(f"v_mov_b32 {v(GK+k)}, {v(184+k)}")
    L("L_k_gk")
keys_top2(GK, M1, M2, 44, 45)
I(f"ds_write_b64 {v(VZ)}, {v(M1,2)} offset:{L_MISC + 16}")
L("L_k_not0")
for k in range(4):
    I(f"s_waitcnt vmcnt({7-k})")
    I(f"ds_write_b64 {v(VT8)}, {v(XX+2*k,2)} offset:{L_XL + 2048*k}")
XF = 48
for k in range(8): unpack(XF+6*k+2, XX+k)
sweep(VSW, GR, 40, P_WS, issued=True, first_wait=0)
stamp()
RI = 128
for k in range(8):
    g = GR + 2*k
    I(f"v_and_b32 {v(RI+2*k)}, {s(S_MASK)}, {v(g)}")
    I(f"v_lshlrev_b32 {v(XF+6*k)}, 16, {v(g)}")
    I(f"v_rcp_f32 {v(RI+2*k)}, {v(RI+2*k)}")
for k in range(8):
    b = XF+6*k
    I(f"v_pk_add_f32 {v(b+2,2)}, {v(b+2,2)}, {v(b,2)} op_sel_hi:[1,0] neg_lo:[0,1] neg_hi:[0,1]")
for k in range(8):
    b = XF+6*k
    I(f"v_cvt_pk_bf16_f32 {v(b+4)}, {v(b+2)}, {v(b+3)}")
for k in range(8): unpack(XF+6*k+2, XF+6*k+4)
for k in range(8):
    b = XF+6*k
    I(f"v_pk_mul_f32 {v(b+2,2)}, {v(b+2,2)}, {v(RI+2*k,2)} op_sel_hi:[1,0]")
for k in range(4):
    for d in range(2):
        I(f"v_cvt_pk_bf16_f32 {v(XX+2*k+d)}, {v(XF+12*k+2+d)}, {v(XF+12*k+8+d)}")
        I(f"ds_write_b32 {v(VT4)}, {v(XX+2*k+d)} offset:{L_U + 512 + d*U_D + 1024*k}")
I("s_waitcnt lgkmcnt(0)")
I("s_barrier")
stamp()
S_TK = [52, 53]
S_OW = [54, 55]
I(f"ds_read_b64 {v(24,2)}, {v(VZ)} offset:{L_MISC + 16}")
C("---- convolution: 4 phases of 2 output tiles; K operands stay resident, finished tiles are stored under the next phase")
def AR(rl, k): return 32 + 32*rl + 4*k
def BR(buf, d): return 160 + 32*buf + 4*d
def ACCR(p, tt): return 8 + 8*(p & 1) + 4*tt
RDF, XQ, UQ, TE = 248, 24, 26, 28
def step_loads(p, rls, buf):
    ls = []
    nb = 2*p + 2
    for i, rl in enumerate(rls):
        bl = [f"ds_read_b128 {v(BR(buf, nb*i + d),4)}, {v(VB_)} offset:{512*d + 64*(3 - rl)}" for d in range(nb)]
        al = []
        for k in (2*p, 2*p+1):
            off = 64 * (63 - 8*k - rl)
            al.append(f"ds_read_b64 {v(AR(rl,k),2)}, {v(VA_)} offset:{off}")
            al.append(f"ds_read_b64 {v(AR(rl,k)+2,2)}, {v(VA_)} offset:{off+8}")
        ls += bl[:2] + al + bl[2:]
    return ["    " + x for x in ls]
def fin_reads(p):
    base = L_R1 + 8192*(p & 1)
    for w in range(4):
        I(f"ds_read_b64 {v(RDF+2*w,2)}, {v(VRR)} offset:{base + 2048*w}")
    I(f"ds_read_b64 {v(XQ,2)}, {v(VEX)} offset:{L_XL + 2048*p}")
    for d in range(2):
        I(f"ds_read_b32 {v(UQ+d)}, {v(VEU)} offset:{L_U + 512 + d*U_D + 1024*p}")
def fin_math(p):
    I(f"v_pk_add_f32 {v(RDF,2)}, {v(RDF,2)}, {v(RDF+2,2)}")
    I(f"v_pk_add_f32 {v(RDF+4,2)}, {v(RDF+4,2)}, {v(RDF+6,2)}")
    for e in range(2):
        a = TE if e == 0 else RDF + 2
        c = TE + 2 if e == 0 else RDF + 6
        unpack(a, XQ+e)
        for d in range(2):
            if e: I(f"v_and_b32 {v(c+d)}, {s(S_MASK)}, {v(UQ+d)}")
            else: I(f"v_lshlrev_b32 {v(c+d)}, 16, {v(UQ+d)}")
        I(f"v_add_f32 {v(a)}, {v(a)}, {v(RDF+e)}")
        I(f"v_add_f32 {v(a+1)}, {v(a+1)}, {v(RDF+4+e)}")
        I(f"v_pk_fma_f32 {v(a,2)}, {v(c,2)}, {s(S_DS2,2)}, {v(a,2)}")
        I(f"v_cvt_pk_bf16_f32 {v(XQ+e)}, {v(a)}, {v(a+1)}")
        I(f"s_sub_u32 {s(S_T0)}, {s(S_TK[0])}, {512*p + e}")
        I(f"s_sub_u32 {s(S_T1)}, {s(S_TK[1])}, {512*p + e}")
        I(f"v_cmp_ne_u32 vcc, {s(S_T0)}, {v(VT0)}")
        I(f"v_cmp_ne_u32 {s(S_T2,2)}, {s(S_T1)}, {v(VT0)}")
        I(f"s_and_b64 exec, vcc, {s(S_T2,2)}\n    global_store_dword {v(VOUT)}, {v(XQ+e)}, {s(P_OUT,2)} offset:{e*1024}\n    s_mov_b64 exec, -1")
    I(f"ds_write_b64 {v(VEX)}, {v(XQ,2)} offset:{L_XL + 2048*p}")
    if p < 3: I(f"v_add_u32 {v(VOUT)}, 0x80000, {v(VOUT)}")
steps = [(0, [0, 1, 2, 3]), (1, [0, 1]), (1, [2, 3])] + [(p, [rl]) for p in (2, 3) for rl in range(4)]
first_loads = step_loads(*steps[0], 0)
out.extend(first_loads)
I(f"s_waitcnt lgkmcnt(15)")
I(f"v_readfirstlane_b32 {s(S_K1)}, {v(24)}")
I(f"v_readfirstlane_b32 {s(S_K2)}, {v(25)}")
for k_, SKK in enumerate((S_K1, S_K2)):
    I(f"s_and_b32 {s(S_T0)}, {s(SKK)}, 0xffff")
    I(f"s_sub_u32 {s(S_TK[k_])}, 0xffff, {s(S_T0)}")
    I(f"s_bfe_u32 {s(S_T1)}, {s(S_TK[k_])}, 0x10008")
    I(f"s_lshl_b32 {s(S_T1)}, {s(S_T1)}, 1")
    I(f"s_bfe_u32 {s(S_T2)}, {s(S_TK[k_])}, 0x10001")
    I(f"s_or_b32 {s(S_T1)}, {s(S_T1)}, {s(S_T2)}")
    I(f"s_cmp_eq_u32 {s(S_T1)}, {s(S_WAVE)}")
    I(f"s_cselect_b32 {s(S_OW[k_])}, 1, 0")
    I(f"s_cmp_lt_u32 {s(S_TK[k_])}, 2048")
    I(f"s_cselect_b32 {s(S_OW[k_])}, {s(S_OW[k_])}, 0")
for si, (p, rls) in enumerate(steps):
    buf = si & 1
    nxt = step_loads(*steps[si+1], 1-buf) if si + 1 < len(steps) else []
    fl = []
    early = p > 0 and rls[0] == 0
    if early:
        with capture() as fl: fin_math(p-1)
    if si == len(steps) - 1:
        PB = BR(1-buf, 0)
        PA = BR(1-buf, 4)
        def part_issue(k_):
            I(f"global_load_dwordx4 {v(PB+8*k_,4)}, {v(PA+2*k_)}, {s(S_PART,2)} sc1")
            I(f"s_bfm_b64 exec, {G-64}, 0")
            I(f"global_load_dwordx4 {v(PB+8*k_+4,4)}, {v(PA+2*k_+1)}, {s(S_PART,2)} sc1")
            I("s_mov_b64 exec, -1")
        for k_ in range(2):
            I(f"s_cmp_eq_u32 {s(S_OW[k_])}, 0")
            I(f"s_cbranch_scc1 L_np{k_}")
            I(f"s_lshl_b32 {s(S_T1)}, {s(S_DP)}, 4")
            I(f"s_add_u32 {s(S_T1)}, {s(S_T1)}, {k_ << 19}")
            I(f"v_lshl_add_u32 {v(PA+2*k_)}, {v(VL)}, 12, {s(S_T1)}")
            I(f"v_add_u32 {v(PA+2*k_+1)}, 0x40000, {v(PA+2*k_)}")
            I(f"v_mov_b32 {v(PB+8*k_+4)}, 0")
            I(f"v_mov_b32 {v(PB+8*k_+5)}, {s(S_NONCE)}")
            I(f"v_mov_b32 {v(PB+8*k_+6)}, 0")
            I(f"v_mov_b32 {v(PB+8*k_+7)}, {s(S_NONCE)}")
            part_issue(k_)
            L(f"L_np{k_}")
        I("s_nop 3")
    nb = 2*p + 2
    work = []
    for i, rl in enumerate(rls):
        pairs = [(ch, T-ch) for T in (2*p, 2*p+1) for ch in range(T+1)]
        pairs.sort(key=lambda q: (max(q[0] if q[0] >= 2*p else 0, q[1])))
        work += [(i, rl, ch, dl) for (ch, dl) in pairs]
    if si > 0 and not early: I("s_waitcnt lgkmcnt(0)")
    if early: fin_reads(p-1)
    seen = set()
    skip = 3 if early else 0
    pern = -(-len(nxt) // len(work)) if nxt else 0
    perf = -(-len(fl) // (len(work) - skip)) if fl else 0
    ni = fi = 0
    lasti = -1
    for (i, rl, ch, dl) in work:
        if si == 0 and i != lasti:
            lasti = i
            I(f"s_waitcnt lgkmcnt({min(15, len(first_loads) - 6*(i+1) + ni)})")
        T = ch + dl
        acc = ACCR(p, T & 1)
        first = rl == 0 and T not in seen; seen.add(T)
        I(f"v_mfma_f32_16x16x32_bf16 {v(acc,4)}, {v(AR(rl,ch),4)}, {v(BR(buf,nb*i+dl),4)}, {'0' if first else v(acc,4)}")
        out.extend(nxt[ni:ni+pern]); ni += len(nxt[ni:ni+pern])
        if skip > 0:
            skip -= 1
            if skip == 0: I(f"s_waitcnt lgkmcnt({min(15, ni)})")
            continue
        out.extend(fl[fi:fi+perf]); fi += perf
    out.extend(nxt[ni:]); out.extend(fl[fi:])
    if rls[-1] == 3:
        I("s_nop 7")
        for tt in range(2):
            I(f"ds_write_b128 {v(VRW)}, {v(ACCR(p,tt),4)} offset:{L_R1 + 8192*(p & 1) + 1024*tt}")
        I("s_waitcnt lgkmcnt(0)")
        I("s_barrier")
        if p in (1, 3): stamp()
fin_reads(3)
I("s_waitcnt lgkmcnt(0)")
fin_math(3)
stamp()
C("---- routed rows: out = base row + sigmoid(r) * FFN(row)")
I("s_waitcnt lgkmcnt(0)")
for k_, SKK in enumerate((S_K1, S_K2)):
    B_ = PB + 8*k_
    I(f"s_cmp_eq_u32 {s(S_OW[k_])}, 0")
    I(f"s_cbranch_scc1 L_fix_skip{k_}")
    I(f"s_lshl_b32 {s(S_T2)}, {s(S_TK[k_])}, 2")
    I(f"v_mov_b32 {v(77)}, {s(S_T2)}")
    I(f"ds_read_b32 {v(79)}, {v(77)} offset:{L_XL}")
    I(f"s_lshr_b32 {s(S_T2)}, {s(SKK)}, 16")
    I(f"s_lshr_b32 {s(S_T3)}, {s(S_T2)}, 15")
    I(f"s_cmp_eq_u32 {s(S_T3)}, 1")
    I(f"s_mov_b32 {s(S_T3)}, 0xffff")
    I(f"s_cselect_b32 {s(S_T3)}, 0x8000, {s(S_T3)}")
    I(f"s_xor_b32 {s(S_T2)}, {s(S_T2)}, {s(S_T3)}")
    I(f"s_lshl_b32 {s(S_T2)}, {s(S_T2)}, 16")
    I(f"v_mov_b32 {v(92)}, {f2u(-LOG2E):#x}")
    I(f"v_mul_f32 {v(92)}, {s(S_T2)}, {v(92)}")
    I(f"v_exp_f32 {v(92)}, {v(92)}")
    I("s_nop 0")
    I(f"v_add_f32 {v(92)}, 1.0, {v(92)}")
    I(f"v_rcp_f32 {v(92)}, {v(92)}")
    I("s_nop 0")
    I(f"v_cvt_pk_bf16_f32 {v(92)}, {v(92)}, {v(92)}")
    I(f"v_lshlrev_b32 {v(92)}, 16, {v(92)}")
    I(f"s_mov_b32 {s(S_CNT)}, 0")
    I("s_waitcnt vmcnt(2)")
    I(f"s_branch L_fixchk{k_}")
    L(f"L_fixpoll{k_}")
    I("s_sleep 2")
    part_issue(k_)
    I("s_waitcnt vmcnt(0)")
    L(f"L_fixchk{k_}")
    I(f"v_xor_b32 {v(88)}, {s(S_NONCE)}, {v(B_+1)}")
    I(f"v_xor_b32 {v(89)}, {s(S_NONCE)}, {v(B_+3)}")
    I(f"v_xor_b32 {v(93)}, {s(S_NONCE)}, {v(B_+5)}")
    I(f"v_xor_b32 {v(94)}, {s(S_NONCE)}, {v(B_+7)}")
    I(f"v_or3_b32 {v(88)}, {v(88)}, {v(89)}, {v(93)}")
    I(f"v_or_b32 {v(88)}, {v(88)}, {v(94)}")
    I(f"v_cmp_ne_u32 vcc, 0, {v(88)}")
    I(f"s_add_u32 {s(S_CNT)}, {s(S_CNT)}, 1")
    I(f"s_cmp_eq_u64 vcc, 0")
    I(f"s_cbranch_scc1 L_fixdone{k_}")
    I(f"s_cmp_lt_u32 {s(S_CNT)}, {POLL_LIMIT}")
    I(f"s_cbranch_scc1 L_fixpoll{k_}")
    L(f"L_fixdone{k_}")
    I(f"v_add_f32 {v(80)}, {v(B_)}, {v(B_+4)}")
    I(f"v_add_f32 {v(82)}, {v(B_+2)}, {v(B_+6)}")
    I("s_nop 0")
    dpp_reduce([80, 82])
    I("s_nop 0")
    I(f"v_cvt_pk_bf16_f32 {v(84)}, {v(80)}, {v(82)}")
    unpack(80, 84)
    I("s_waitcnt lgkmcnt(0)")
    unpack(82, 79)
    I(f"v_pk_fma_f32 {v(80,2)}, {v(80,2)}, {v(92,2)}, {v(82,2)} op_sel_hi:[1,0,1]")
    I(f"v_cvt_pk_bf16_f32 {v(84+k_)}, {v(80)}, {v(81)}")
    I(f"s_lshl_b32 {s(S_T1)}, {s(S_TK[k_])}, 10")
    I(f"s_lshl_b32 {s(S_T2)}, {s(S_DP)}, 2")
    I(f"s_add_u32 {s(S_T1)}, {s(S_T1)}, {s(S_T2)}")
    I(f"v_mov_b32 {v(86+k_)}, {s(S_T1)}")
    I("s_lshl_b64 exec, 1, 63")
    I(f"global_store_dword {v(86+k_)}, {v(84+k_)}, {s(P_OUT,2)}")
    I("s_mov_b64 exec, -1")
    L(f"L_fix_skip{k_}")
I("s_branch L_fin")

L("L_ffn")
nstamp[0] = 1
C("==== FFN role")
S_G = 47
I(f"s_sub_u32 {s(S_T0)}, s2, {NLN + NCONV}")
I(f"s_and_b32 {s(S_T1)}, {s(S_T0)}, 7")
I(f"s_mul_i32 {s(S_T1)}, {s(S_T1)}, 14")
I(f"s_lshr_b32 {s(S_T0)}, {s(S_T0)}, 3")
I(f"s_add_u32 {s(S_G)}, {s(S_T0)}, {s(S_T1)}")
WL = 32
t1, t2, t3, t4 = 12, 13, 14, 15
I(f"v_lshlrev_b32 {v(t4)}, 4, v0")
I(f"v_lshrrev_b32 {v(t1)}, 2, v0")
I(f"v_mul_u32_u24 {v(t1)}, 3584, {v(t1)}")
I(f"v_and_b32 {v(t2)}, 1, v0")
I(f"v_lshl_add_u32 {v(t1)}, {v(t2)}, 4, {v(t1)}")
I(f"s_lshl_b32 {s(S_T0)}, {s(S_G)}, 5")
I(f"v_add_u32 {v(t1)}, {s(S_T0)}, {v(t1)}")
I(f"v_and_b32 {v(t2)}, 2, v0")
I(f"v_cmp_eq_u32 vcc, 0, {v(t2)}")
I("s_waitcnt lgkmcnt(0)")
I(f"v_mov_b32 {v(16)}, {s(P_WU)}")
I(f"v_mov_b32 {v(17)}, {s(P_WU+1)}")
I(f"v_mov_b32 {v(18)}, {s(P_WG)}")
I(f"v_mov_b32 {v(19)}, {s(P_WG+1)}")
I(f"v_cndmask_b32 {v(16)}, {v(16)}, {v(18)}, vcc")
I(f"v_cndmask_b32 {v(17)}, {v(17)}, {v(19)}, vcc")
I(f"v_add_co_u32 {v(16)}, vcc, {v(16)}, {v(t1)}")
I("s_nop 1")
I(f"v_addc_co_u32 {v(17)}, vcc, {v(17)}, {v(VZ)}, vcc")
I(f"s_add_u32 {s(S_PART)}, {s(P_WS)}, {WS_PART}")
I(f"s_addc_u32 {s(S_PART+1)}, {s(P_WS+1)}, 0")
stamp()
I(f"s_mov_b32 {s(S_T1)}, {64*3584}")
WD = 96
I(f"s_lshl_b32 {s(S_T0)}, {s(S_G)}, 14")
I(f"v_lshl_add_u32 {v(t3)}, v0, 2, {s(S_T0)}")
for p in range(8):
    I(f"global_load_dwordx4 {v(WL+4*p,4)}, {v(16,2)}, off")
    if p < 7:
        I(f"v_add_co_u32 {v(16)}, vcc, {s(S_T1)}, {v(16)}")
        I("s_nop 1")
        I(f"v_addc_co_u32 {v(17)}, vcc, {v(17)}, {v(VZ)}, vcc")
for f in range(16):
    if f and f % 4 == 0:
        I(f"v_add_u32 {v(t3)}, 4096, {v(t3)}")
    I(f"global_load_dword {v(WD+f)}, {v(t3)}, {s(P_WD,2)} offset:{(f&3)*1024}")
nonce_issue(VZ, 22)
for p in range(8):
    I(f"s_waitcnt vmcnt({17 + 7 - p})")
    I(f"ds_write_b128 {v(t4)}, {v(WL+4*p,4)} offset:{F_W + 4096*p}")
stamp()
I(f"v_lshrrev_b32 {v(t1)}, 2, {v(VJ)}")
I(f"v_lshl_add_u32 {v(t1)}, {v(VKG)}, 3, {v(t1)}")
I(f"v_lshlrev_b32 {v(t1)}, 6, {v(t1)}")
I(f"v_and_b32 {v(t2)}, 1, {v(VL)}")
I(f"v_lshl_add_u32 {v(t1)}, {v(t2)}, 3, {v(t1)}")
I(f"v_and_b32 {v(t2)}, 2, {v(VL)}")
I(f"v_lshl_add_u32 {v(t1)}, {v(t2)}, 4, {v(t1)}")
I(f"s_and_b32 {s(S_T0)}, {s(S_WAVE)}, 1")
I(f"s_lshl_b32 {s(S_T0)}, {s(S_T0)}, 4")
I(f"v_add_u32 {v(t1)}, {s(S_T0)}, {v(t1)}")
I("s_waitcnt lgkmcnt(0)")
I("s_barrier")
for st in range(16):
    I(f"ds_read_b64_tr_b16 {v(WL+4*st,2)}, {v(t1)} offset:{F_W + 2048*st}")
    I(f"ds_read_b64_tr_b16 {v(WL+4*st+2,2)}, {v(t1)} offset:{F_W + 2048*st + 256}")
WF = 128
nonce_wait(VZ, 22)
for f in range(16): unpack(WF+2*f, WD+f)
I(f"v_bfe_u32 {v(t2)}, {v(VJ)}, 2, 1")
I(f"v_lshlrev_b32 {v(t2)}, 10, {v(t2)}")
I(f"v_lshl_add_u32 {v(t2)}, {v(VKG)}, 4, {v(t2)}")
I(f"s_and_b32 {s(S_T1)}, {s(S_WAVE)}, 1")
I(f"s_lshl_b32 {s(S_T1)}, {s(S_T1)}, 9")
I(f"v_lshl_add_u32 {v(24)}, {v(VL)}, 3, {s(S_T1)}")
I(f"s_lshr_b32 {s(S_T0)}, {s(S_WAVE)}, 1")
I(f"s_lshl_b32 {s(S_T1)}, {s(S_T0)}, 10")
I(f"v_add_u32 {v(25)}, {s(S_T1)}, {v(24)}")
I("s_waitcnt lgkmcnt(0)")
stamp()
GK = 192
I(f"s_setprio {FPRIO}")
I(f"s_cmp_lg_u32 {s(S_WAVE)}, 0")
I("s_cbranch_scc1 L_fk_wait")
keys_poll(VKEY, GK, 20)
keys_top2(GK, 224, 225, 21, 22)
I(f"ds_write_b64 {v(VZ)}, {v(224,2)} offset:{L_MISC + 16}")
I("s_waitcnt lgkmcnt(0)")
L("L_fk_wait")
I("s_barrier")
stamp()
I(f"ds_read_b64 {v(224,2)}, {v(VZ)} offset:{L_MISC + 16}")
I("s_waitcnt lgkmcnt(0)")
I(f"v_readfirstlane_b32 {s(S_K1)}, {v(224)}")
I(f"v_readfirstlane_b32 {s(S_K2)}, {v(225)}")
I(f"s_cmp_lt_u32 {s(S_WAVE)}, 2")
I("s_nop 2")
I(f"s_cselect_b32 {s(S_T0)}, {s(S_K1)}, {s(S_K2)}")
I(f"s_and_b32 {s(S_T0)}, {s(S_T0)}, 0xffff")
I(f"s_sub_u32 {s(S_T0)}, 0xffff, {s(S_T0)}")
I(f"s_min_u32 {s(S_T0)}, {s(S_T0)}, 2047")
I(f"s_lshl_b32 {s(S_T1)}, {s(S_T0)}, 10")
I(f"v_add_u32 {v(97)}, {s(S_T1)}, {v(24)}")
I(f"s_lshl_b32 {s(S_T1)}, {s(S_T0)}, 3")
I(f"v_mov_b32 {v(99)}, {s(S_T1)}")
I(f"global_load_dwordx2 {v(100,2)}, {v(97)}, {s(P_U,2)}")
I(f"s_mov_b32 {s(S_CNT)}, 0")
L("L_f_stat")
I(f"global_load_dwordx2 {v(104,2)}, {v(99)}, {s(P_WS,2)} sc1")
I("s_waitcnt vmcnt(0)")
I(f"v_cmp_ne_u32 vcc, {s(S_NONCE)}, {v(105)}")
I(f"s_add_u32 {s(S_CNT)}, {s(S_CNT)}, 1")
I(f"s_cmp_eq_u64 vcc, 0")
I(f"s_cbranch_scc1 L_f_stat_done")
I("s_sleep 1")
I(f"s_cmp_lt_u32 {s(S_CNT)}, {POLL_LIMIT}")
I(f"s_cbranch_scc1 L_f_stat")
L("L_f_stat_done")
stamp()
I(f"v_and_b32 {v(106)}, {s(S_MASK)}, {v(104)}")
I(f"v_lshlrev_b32 {v(104)}, 16, {v(104)}")
I(f"v_rcp_f32 {v(106)}, {v(106)}")
for k in range(2): unpack(108+2*k, 100+k)
for k in range(2): I(f"v_pk_add_f32 {v(108+2*k,2)}, {v(108+2*k,2)}, {v(104,2)} op_sel_hi:[1,0] neg_lo:[0,1] neg_hi:[0,1]")
for k in range(2): I(f"v_cvt_pk_bf16_f32 {v(100+k)}, {v(108+2*k)}, {v(109+2*k)}")
for k in range(2): unpack(108+2*k, 100+k)
for k in range(2): I(f"v_pk_mul_f32 {v(108+2*k,2)}, {v(108+2*k,2)}, {v(106,2)} op_sel_hi:[1,0]")
for k in range(2): I(f"v_cvt_pk_bf16_f32 {v(100+k)}, {v(108+2*k)}, {v(109+2*k)}")
I(f"ds_write_b64 {v(25)}, {v(100,2)} offset:{F_XS}")
I("s_waitcnt lgkmcnt(0)")
I("s_barrier")
I(f"s_cmp_ge_u32 {s(S_WAVE)}, 2")
I("s_cbranch_scc1 L_f_nogu")
AX = 160
for st in range(16):
    I(f"ds_read_b128 {v(AX+4*st,4)}, {v(t2)} offset:{F_XS + 64*st}")
AC = 96
for st in range(16):
    I(f"s_waitcnt lgkmcnt({15-st})")
    a = AC + 4*(st & 1)
    I(f"v_mfma_f32_16x16x32_bf16 {v(a,4)}, {v(AX+4*st,4)}, {v(WL+4*st,4)}, {'0' if st < 2 else v(a,4)}")
I(f"v_lshlrev_b32 {v(107)}, 7, {v(VKG)}")
I(f"v_lshl_add_u32 {v(107)}, {v(VJ)}, 3, {v(107)}")
I(f"s_lshl_b32 {s(S_T0)}, {s(S_WAVE)}, 6")
I(f"v_add_u32 {v(107)}, {s(S_T0)}, {v(107)}")
I("s_nop 4")
I(f"v_add_f32 {v(104)}, {v(AC)}, {v(AC+4)}")
I(f"v_cvt_pk_bf16_f32 {v(104)}, {v(104)}, {v(104)}")
I(f"v_lshlrev_b32 {v(104)}, 16, {v(104)}")
I(f"v_mul_f32 {v(105)}, {f2u(-LOG2E):#x}, {v(104)}")
I(f"v_exp_f32 {v(105)}, {v(105)}")
I(f"v_mov_b32_dpp {v(106)}, {v(104)} row_ror:8 row_mask:0xf bank_mask:0xf")
I(f"v_add_f32 {v(105)}, 1.0, {v(105)}")
I(f"v_rcp_f32 {v(105)}, {v(105)}")
I("s_nop 0")
I(f"v_mul_f32 {v(105)}, {v(104)}, {v(105)}")
I(f"v_cvt_pk_bf16_f32 {v(105)}, {v(105)}, {v(105)}")
I(f"v_lshlrev_b32 {v(105)}, 16, {v(105)}")
I(f"v_mul_f32 {v(105)}, {v(105)}, {v(106)}")
I(f"v_cvt_pk_bf16_f32 {v(105)}, {v(105)}, {v(105)}")
I(f"v_lshlrev_b32 {v(105)}, 16, {v(105)}")
I("s_mov_b64 exec, 0x00ff00ff")
I(f"ds_write2_b32 {v(107)}, {v(105)}, {v(105)} offset0:{F_H//4} offset1:{F_H//4+1}")
I("s_mov_b64 exec, -1")
I("s_waitcnt lgkmcnt(0)")
L("L_f_nogu")
I("s_barrier")
HB = 160
for q in range(16):
    I(f"ds_read_b128 {v(HB+4*q,4)}, {v(VZ)} offset:{F_H + 16*q}")
Y0, Y1 = 96, 100
I(f"s_lshl_b32 {s(S_T0)}, {s(S_G)}, 12")
I(f"v_lshl_add_u32 {v(112)}, v0, 4, {s(S_T0)}")
I(f"v_add_u32 {v(113)}, 0x80000, {v(112)}")
for Y in (Y0, Y1):
    I(f"v_mov_b32 {v(Y+1)}, {s(S_NONCE)}")
    I(f"v_mov_b32 {v(Y+3)}, {s(S_NONCE)}")
for q in range(16):
    tok = q >> 3
    I(f"s_waitcnt lgkmcnt({15-q})")
    for e in range(2):
        f = 2*(q & 7) + e
        acc = 104 + 4*tok + 2*e
        hp = HB + 4*q + 2*e
        if f < 2:
            I(f"v_pk_mul_f32 {v(acc,2)}, {v(WF+2*f,2)}, {v(hp,2)}")
        else:
            I(f"v_pk_fma_f32 {v(acc,2)}, {v(WF+2*f,2)}, {v(hp,2)}, {v(acc,2)}")
    if q == 7 or q == 15:
        Y = Y0 if q == 7 else Y1
        I(f"v_add_f32 {v(Y)}, {v(104+4*tok)}, {v(106+4*tok)}")
        I(f"v_add_f32 {v(Y+2)}, {v(105+4*tok)}, {v(107+4*tok)}")
        I(f"global_store_dwordx4 {v(112+tok)}, {v(Y,4)}, {s(S_PART,2)} sc1")
stamp()
L("L_fin")
if STAMP:
    I("s_waitcnt vmcnt(0) lgkmcnt(0)")
    I(f"s_memtime {s(S_ST + 22, 2)}")
    I(f"s_memrealtime {s(S_T2, 2)}")
    I(f"s_add_u32 {s(S_STB)}, {s(P_WS)}, {WS_STAMP}")
    I(f"s_addc_u32 {s(S_STB+1)}, {s(P_WS+1)}, 0")
    I(f"s_lshl_b32 {s(S_T0)}, s2, 2")
    I(f"s_add_u32 {s(S_T0)}, {s(S_T0)}, {s(S_WAVE)}")
    I(f"s_lshl_b32 {s(S_T0)}, {s(S_T0)}, 7")
    I("s_waitcnt lgkmcnt(0)")
    I(f"v_mov_b32 v10, {s(S_T0)}")
    I("s_mov_b64 exec, 1")
    for k in range(12):
        I(f"v_mov_b32 v12, {s(S_ST+2*k)}")
        I(f"v_mov_b32 v13, {s(S_ST+2*k+1)}")
        I(f"global_store_dwordx2 v10, v[12:13], {s(S_STB,2)} offset:{8*k}")
        I("s_nop 1")
    I(f"v_mov_b32 v12, {s(S_T2)}")
    I(f"v_mov_b32 v13, {s(S_T3)}")
    I(f"global_store_dwordx2 v10, v[12:13], {s(S_STB,2)} offset:96")
L("L_end")
I("s_endpgm")
out.append('.section .rodata,"a"')
out.append(".p2align 6")
out.append(f".amdhsa_kernel {KNAME}")
out.append("  .amdhsa_next_free_vgpr 256")
out.append("  .amdhsa_next_free_sgpr 102")
out.append("  .amdhsa_accum_offset 256")
out.append("  .amdhsa_group_segment_fixed_size 0")
out.append("  .amdhsa_kernarg_size 136")
out.append("  .amdhsa_user_sgpr_count 2")
out.append("  .amdhsa_user_sgpr_kernarg_segment_ptr 1")
out.append("  .amdhsa_system_sgpr_workgroup_id_x 1")
out.append("  .amdhsa_float_denorm_mode_32 3")
out.append(".end_amdhsa_kernel")
dst = [a for a in sys.argv[1:] if not a.startswith("--")]
open(dst[0] if dst else "k.s", "w").write("\n".join(x for x in out if x is not None) + "\n")
```

```python
import sys, struct, math

KNAME = "parallel_sum__ssm_conv_s4__moe_arch_mod__prompt_kernel"
NLN = 128
NCONV = 256
G = 112
NWG = NLN + NCONV + G
STAMP = "--stamp" in sys.argv

WS_STATS = 0
WS_KEYS = 16384
WS_FLAG = 32768
WS_PART = 65536
WS_STAMP = 2 << 20
WS_XNG = 4 << 20
WS_XT = 8 << 20

L_MISC = 0
L_KC = 256
KC_S = 4160
KC_D = 4 * KC_S
L_U = L_KC + 2 * KC_D
U_D = 4608
L_XL = L_U + 2 * U_D
L_R1 = L_XL + 8192
L_KTAB = L_R1
KTAB_D = 7680
L_PAR = L_XL
L_R2 = L_R1
LDS_BYTES = L_R1 + 16384
ZIDX = 840
TRASH = 848
TS = 1040
L_T1 = L_KC
L_T2 = L_T1 + 16 * TS
F_H = 256
F_XS = 512
F_W = F_XS + 2048
assert F_W + 32768 <= LDS_BYTES
assert LDS_BYTES <= 81920
POLL_LIMIT = 40000
def opt(name, dflt):
    m = [a for a in sys.argv if a.startswith(f"--{name}=")]
    return int(m[0].split("=")[1]) if m else dflt
LNPRIO = opt("lnprio", 2)
FPRIO = opt("fprio", 3)
PFPOS = opt("pfpos", 0)
PIPE = opt("pipe", 0)
KSLEEP = int([a for a in sys.argv if a.startswith("--ksleep=")][0][9:]) if any(a.startswith("--ksleep=") for a in sys.argv) else 3

out = []
cur = [out]
def I(s): cur[0].append("    " + s)
def L(s): cur[0].append(s + ":")
def C(s): cur[0].append("    ; " + s)
class capture:
    def __enter__(self):
        self.prev = cur[0]; self.lst = []; cur[0] = self.lst; return self.lst
    def __exit__(self, *a): cur[0] = self.prev
def f2u(x): return struct.unpack("<I", struct.pack("<f", x))[0]
def v(a, n=1): return f"v{a}" if n == 1 else f"v[{a}:{a+n-1}]"
def s(a, n=1): return f"s{a}" if n == 1 else f"s[{a}:{a+n-1}]"
uid = [0]
def lab(p):
    uid[0] += 1
    return f"L_{p}_{uid[0]}"

P_U, P_ARE, P_AIM, P_BRE, P_BIM, P_CRE, P_CIM, P_LDT = 8, 10, 12, 14, 16, 18, 20, 22
P_DSK, P_BX, P_WR, P_WG, P_WU, P_WD, P_OUT, P_DBG = 24, 26, 28, 30, 32, 34, 36, 38
P_WS = 40
S_WAVE, S_DP, S_NONCE, S_LDT, S_DSK, S_ROW0 = 42, 43, 44, 45, 46, 47
S_T0, S_T1, S_T2, S_T3 = 48, 49, 50, 51
S_X0 = 52
S_R = 56
S_DS2 = 60
S_UNS = 62
S_M0 = 63
S_CNT = 64
S_EXEC = 66
S_PART = 70
S_K1, S_K2 = 72, 73
S_XNG = 68
S_XT = 4
S_XNB = 6
S_MASK = 74
S_ST = 76
S_STB = 100
LOG2E = math.log2(math.e)

nstamp = [0]
def stamp():
    if not STAMP: return
    k = nstamp[0]; nstamp[0] += 1
    assert k < 11
    I(f"s_memtime {s(S_ST + 2*k, 2)}")

DPP4 = ("quad_perm:[1,0,3,2] row_mask:0xf bank_mask:0xf",
        "quad_perm:[2,3,0,1] row_mask:0xf bank_mask:0xf",
        "row_half_mirror row_mask:0xf bank_mask:0xf",
        "row_mirror row_mask:0xf bank_mask:0xf")
DPP6 = DPP4 + ("row_bcast:15 row_mask:0xa bank_mask:0xf", "row_bcast:31 row_mask:0xc bank_mask:0xf")
def dpp_reduce(regs, op="v_add_f32"):
    for mode in DPP6:
        pad = max(0, 3 - len(regs))
        if pad: I(f"s_nop {pad-1}")
        for r in regs:
            I(f"{op}_dpp {v(r)}, {v(r)}, {v(r)} {mode}")

def nonce_cas(vz, vt):
    l = lab("nocas")
    I(f"s_cmp_lg_u32 {s(S_T0)}, 0")
    I(f"s_cbranch_scc1 {l}")
    I(f"s_memrealtime {s(S_T2,2)}")
    I("s_waitcnt lgkmcnt(0)")
    I(f"s_or_b32 {s(S_T2)}, {s(S_T2)}, 1")
    I(f"v_mov_b32 {v(vt)}, {s(S_T2)}")
    I(f"v_mov_b32 {v(vt+1)}, 0")
    I("s_mov_b64 exec, 1")
    I(f"global_atomic_cmpswap {v(vz)}, {v(vt,2)}, {s(P_DBG,2)} sc1")
    I("s_mov_b64 exec, -1")
    L(l)

def nonce_issue(vz, vt):
    I(f"global_load_dword {v(vt)}, {v(vz)}, {s(P_DBG,2)} sc1")

def nonce_wait(vz, vt, first=0):
    l = lab("npoll"); done = l + "_done"
    I(f"s_mov_b32 {s(S_CNT)}, 0")
    if first:
        I(f"s_waitcnt vmcnt({first})")
        I(f"s_branch {l}_chk")
    L(l)
    I("s_waitcnt vmcnt(0)")
    L(l + "_chk")
    I(f"v_readfirstlane_b32 {s(S_NONCE)}, {v(vt)}")
    I(f"s_add_u32 {s(S_CNT)}, {s(S_CNT)}, 1")
    I(f"s_cmp_lg_u32 {s(S_NONCE)}, 0")
    I(f"s_cbranch_scc1 {done}")
    I(f"s_cmp_ge_u32 {s(S_CNT)}, {POLL_LIMIT}")
    I(f"s_cbranch_scc1 {done}")
    I("s_sleep 1")
    nonce_issue(vz, vt)
    I(f"s_branch {l}")
    L(done)

def sweep_issue(vaddr, GR, base):
    for k in range(4):
        I(f"global_load_dwordx4 {v(GR+4*k,4)}, {v(vaddr+k)}, {s(base,2)} sc1")

def sweep_check(GR, vtmp):
    I(f"v_xor_b32 {v(vtmp)}, {s(S_NONCE)}, {v(GR+1)}")
    I(f"v_xor_b32 {v(vtmp+1)}, {s(S_NONCE)}, {v(GR+3)}")
    for k in range(1, 4):
        I(f"v_xor_b32 {v(vtmp+2)}, {s(S_NONCE)}, {v(GR+4*k+1)}")
        I(f"v_xor_b32 {v(vtmp+3)}, {s(S_NONCE)}, {v(GR+4*k+3)}")
        I(f"v_or3_b32 {v(vtmp)}, {v(vtmp)}, {v(vtmp+2)}, {v(vtmp+3)}")
    I(f"v_or_b32 {v(vtmp)}, {v(vtmp)}, {v(vtmp+1)}")
    I(f"v_cmp_ne_u32 vcc, 0, {v(vtmp)}")

def sweep(vaddr, GR, vtmp, base, issued=False, first_wait=0):
    l = lab("sweep"); done = l + "_done"; chk = l + "_chk"
    I(f"s_mov_b32 {s(S_CNT)}, 0")
    if issued:
        I(f"s_waitcnt vmcnt({first_wait})")
        I(f"s_branch {chk}")
    L(l)
    sweep_issue(vaddr, GR, base)
    I("s_waitcnt vmcnt(0)")
    L(chk)
    sweep_check(GR, vtmp)
    I(f"s_add_u32 {s(S_CNT)}, {s(S_CNT)}, 1")
    I(f"s_cmp_eq_u64 vcc, 0")
    I(f"s_cbranch_scc1 {done}")
    I("s_sleep 4")
    I(f"s_cmp_lt_u32 {s(S_CNT)}, {POLL_LIMIT}")
    I(f"s_cbranch_scc1 {l}")
    L(done)

def poll4(vaddr, GR, tagpos, vtmp, issued=False, first_wait=0, sleep=2):
    l = lab("poll"); done = l + "_done"; chk = l + "_chk"
    I(f"s_mov_b32 {s(S_CNT)}, 0")
    if issued:
        I(f"s_waitcnt vmcnt({first_wait})")
        I(f"s_branch {chk}")
    L(l)
    I(f"global_load_dwordx4 {v(GR,4)}, {v(vaddr)}, {s(P_WS,2)} sc1")
    I("s_waitcnt vmcnt(0)")
    L(chk)
    for k, tp in enumerate(tagpos): I(f"v_xor_b32 {v(vtmp+k)}, {s(S_NONCE)}, {v(GR+tp)}")
    if len(tagpos) == 4:
        I(f"v_or3_b32 {v(vtmp)}, {v(vtmp)}, {v(vtmp+2)}, {v(vtmp+3)}")
    I(f"v_or_b32 {v(vtmp)}, {v(vtmp)}, {v(vtmp+1)}")
    I(f"v_cmp_ne_u32 vcc, 0, {v(vtmp)}")
    I(f"s_add_u32 {s(S_CNT)}, {s(S_CNT)}, 1")
    I(f"s_cmp_eq_u64 vcc, 0")
    I(f"s_cbranch_scc1 {done}")
    I(f"s_sleep {sleep}")
    I(f"s_cmp_lt_u32 {s(S_CNT)}, {POLL_LIMIT}")
    I(f"s_cbranch_scc1 {l}")
    L(done)

def top2_wave(GR, m1, m2, t1, t2):
    I(f"v_mov_b32 {v(m1)}, {v(GR)}")
    I(f"v_mov_b32 {v(m2)}, {v(GR+2)}")
    for mode in DPP4:
        I("s_nop 1")
        I(f"v_mov_b32_dpp {v(t1)}, {v(m1)} {mode}")
        I(f"v_max_u32_dpp {v(t2)}, {v(m2)}, {v(m2)} {mode}")
        I(f"v_med3_u32 {v(m2)}, {v(m1)}, {v(t1)}, {v(t2)}")
        I(f"v_max_u32 {v(m1)}, {v(m1)}, {v(t1)}")
    for swp in ("v_permlane16_swap_b32", "v_permlane32_swap_b32"):
        I(f"v_mov_b32 {v(t1)}, {v(m1)}")
        I(f"v_mov_b32 {v(t2)}, {v(m2)}")
        I("s_nop 1")
        I(f"{swp} {v(m1)}, {v(t1)}")
        I(f"{swp} {v(m2)}, {v(t2)}")
        I("s_nop 0")
        I(f"v_max_u32 {v(t2)}, {v(m2)}, {v(t2)}")
        I(f"v_med3_u32 {v(m2)}, {v(m1)}, {v(t1)}, {v(t2)}")
        I(f"v_max_u32 {v(m1)}, {v(m1)}, {v(t1)}")

def top2_combine(a, t1):
    for k in (1, 2, 3):
        I(f"v_max_u32 {v(t1)}, {v(a+1)}, {v(a+2*k+1)}")
        I(f"v_med3_u32 {v(a+1)}, {v(a)}, {v(a+2*k)}, {v(t1)}")
        I(f"v_max_u32 {v(a)}, {v(a)}, {v(a+2*k)}")

def unpack(dst, src):
    I(f"v_lshlrev_b32 {v(dst)}, 16, {v(src)}")
    I(f"v_and_b32 {v(dst+1)}, {s(S_MASK)}, {v(src)}")


def keys_poll(vaddr, GK, vtmp):
    l = lab("kpoll"); done = l + "_done"
    I(f"s_mov_b32 {s(S_CNT)}, 0")
    L(l)
    I(f"global_load_dwordx4 {v(GK,4)}, {v(vaddr)}, {s(P_WS,2)} sc1")
    I(f"global_load_dwordx4 {v(GK+4,4)}, {v(vaddr+1)}, {s(P_WS,2)} sc1")
    I("s_waitcnt vmcnt(0)")
    for k in range(4): I(f"v_xor_b32 {v(vtmp+k)}, {s(S_NONCE)}, {v(GK+2*k+1)}")
    I(f"v_or3_b32 {v(vtmp)}, {v(vtmp)}, {v(vtmp+2)}, {v(vtmp+3)}")
    I(f"v_or_b32 {v(vtmp)}, {v(vtmp)}, {v(vtmp+1)}")
    I(f"v_cmp_ne_u32 vcc, 0, {v(vtmp)}")
    I(f"s_add_u32 {s(S_CNT)}, {s(S_CNT)}, 1")
    I(f"s_cmp_eq_u64 vcc, 0")
    I(f"s_cbranch_scc1 {done}")
    I(f"s_sleep {KSLEEP}")
    I(f"s_cmp_lt_u32 {s(S_CNT)}, {POLL_LIMIT}")
    I(f"s_cbranch_scc1 {l}")
    L(done)

def keys_top2(GK, m1, m2, t1, t2):
    I(f"v_max_u32 {v(t2)}, {v(GK+2)}, {v(GK+6)}")
    I(f"v_med3_u32 {v(GK+2)}, {v(GK)}, {v(GK+4)}, {v(t2)}")
    I(f"v_max_u32 {v(GK)}, {v(GK)}, {v(GK+4)}")
    top2_wave(GK, m1, m2, t1, t2)
    I("s_nop 0")
    I(f"v_readfirstlane_b32 {s(S_K1)}, {v(m1)}")
    I(f"v_readfirstlane_b32 {s(S_K2)}, {v(m2)}")


def keys_issue(vaddr, GK):
    I(f"global_load_dwordx4 {v(GK,4)}, {v(vaddr)}, {s(P_WS,2)} sc1")
    I(f"global_load_dwordx4 {v(GK+4,4)}, {v(vaddr+1)}, {s(P_WS,2)} sc1")
def keys_check(GK, vtmp):
    for k in range(4): I(f"v_xor_b32 {v(vtmp+k)}, {s(S_NONCE)}, {v(GK+2*k+1)}")
    I(f"v_or3_b32 {v(vtmp)}, {v(vtmp)}, {v(vtmp+2)}, {v(vtmp+3)}")
    I(f"v_or_b32 {v(vtmp)}, {v(vtmp)}, {v(vtmp+1)}")
    I(f"v_cmp_ne_u32 vcc, 0, {v(vtmp)}")
    I(f"s_cmp_eq_u64 vcc, 0")

def keys_poll2(vaddr, GK, GK2, vtmp):
    l = lab("kp2"); doneA = l + "_a"; doneB = l + "_b"
    I(f"s_mov_b32 {s(S_CNT)}, 0")
    keys_issue(vaddr, GK)
    L(l)
    I(f"s_sleep {PIPE}")
    keys_issue(vaddr, GK2)
    I("s_waitcnt vmcnt(2)")
    keys_check(GK, vtmp)
    I(f"s_cbranch_scc1 {doneA}")
    I(f"s_sleep {PIPE}")
    keys_issue(vaddr, GK)
    I("s_waitcnt vmcnt(2)")
    keys_check(GK2, vtmp)
    I(f"s_cbranch_scc1 {doneB}")
    I(f"s_add_u32 {s(S_CNT)}, {s(S_CNT)}, 1")
    I(f"s_cmp_lt_u32 {s(S_CNT)}, {POLL_LIMIT}")
    I(f"s_cbranch_scc1 {l}")
    L(doneB)
    L(doneA)

hdr = open("parallel_sum__ssm_conv_s4__moe_arch_mod__prompt.s.ref").read().split("; Override")[0]
out.append(hdr.rstrip())
out.append(f"; @launch grid=({NWG},1,1) block=(256,1,1) lds={LDS_BYTES}")
out.append('.amdgcn_target "amdgcn-amd-amdhsa--gfx950"')
out.append(".text")
out.append(f".globl {KNAME}")
out.append(".p2align 8")
out.append(f".type {KNAME},@function")
L(KNAME)
I(f"s_cmp_ge_u32 s2, {NWG}")
I("s_cbranch_scc1 L_end")
I(f"s_load_dwordx16 s[8:23], s[0:1], 0")
I(f"s_load_dwordx16 s[24:39], s[0:1], 64")
I(f"s_load_dwordx2 {s(P_WS,2)}, s[0:1], 128")
stamp()
VL, VZ, VJ, VKG = 1, 2, 5, 6
VO, VO2 = 10, 11
I(f"v_and_b32 {v(VL)}, 63, v0")
I(f"v_lshrrev_b32 v3, 6, v0")
I(f"v_mov_b32 {v(VZ)}, 0")
I(f"v_readfirstlane_b32 {s(S_WAVE)}, v3")
I(f"s_mov_b32 {s(S_MASK)}, 0xffff0000")
I(f"v_lshlrev_b32 {v(VO2)}, 4, {v(VL)}")
I(f"s_cmp_ge_u32 s2, {NLN}")
I("s_cbranch_scc1 L_stub")

C("==== LayerNorm role: 16 rows per workgroup, 4 per wave")
I(f"s_setprio {LNPRIO}")
NR = 4
X = [12 + 4*r for r in range(NR)]
WR = 28
F = [32 + 8*r for r in range(NR)]
D = [64 + 8*r for r in range(NR)]
T = [96 + 8*r for r in range(NR)]
S1 = [128 + r for r in range(NR)]
S2 = [132 + r for r in range(NR)]
S3 = [136 + r for r in range(NR)]
SW = 140
SX0 = [52 + 2*r for r in range(NR)]
VNON = 141
VTW, VTR2, VTS2 = 142, 143, 144
t1, t2 = 145, 146
VC, VONE = 147, 148
TX = 160
R_ = range(NR)
I(f"s_lshl_b32 {s(S_ROW0)}, s2, 4")
I(f"s_lshl_b32 {s(S_T0)}, {s(S_WAVE)}, 2")
I(f"s_add_u32 {s(S_ROW0)}, {s(S_ROW0)}, {s(S_T0)}")
I(f"s_lshl_b32 {s(S_T0)}, {s(S_ROW0)}, 10")
I(f"v_add_u32 {v(VO)}, {s(S_T0)}, {v(VO2)}")
I("s_waitcnt lgkmcnt(0)")
for r in R_:
    I(f"global_load_dwordx4 {v(X[r],4)}, {v(VO)}, {s(P_U,2)} offset:{1024*r}")
I(f"global_load_dwordx4 {v(WR,4)}, {v(VO2)}, {s(P_WR,2)}")
I("s_branch L_ln_main")
L("L_stub")
C("---- conv workgroups: parameter loads first (kept next to the entry so that they issue early from a cold I-cache)")
I(f"s_cmp_ge_u32 s2, {NLN + NCONV}")
I("s_cbranch_scc1 L_notln")
S_C = 47
I(f"s_sub_u32 {s(S_C)}, s2, {NLN}")
PRM = 24
I(f"s_and_b32 {s(S_T0)}, {s(S_C)}, 7")
I(f"s_lshl_b32 {s(S_T0)}, {s(S_T0)}, 5")
I(f"s_lshr_b32 {s(S_T1)}, {s(S_C)}, 3")
I(f"s_add_u32 {s(S_DP)}, {s(S_T0)}, {s(S_T1)}")
I(f"s_lshl_b32 {s(S_T0)}, {s(S_DP)}, 9")
I(f"s_lshl_b32 {s(S_T1)}, {s(S_WAVE)}, 7")
I(f"s_add_u32 {s(S_T0)}, {s(S_T0)}, {s(S_T1)}")
VPO = 30
I(f"v_lshl_add_u32 {v(VPO)}, {v(VL)}, 1, {s(S_T0)}")
for k in range(6): I(f"v_mov_b32 {v(PRM+k)}, 0")
I(f"s_lshl_b32 {s(S_T1)}, {s(S_DP)}, 2")
I("s_waitcnt lgkmcnt(0)")
for k, p in enumerate((P_ARE, P_AIM, P_BRE, P_BIM, P_CRE, P_CIM)):
    I(f"global_load_short_d16_hi {v(PRM+k)}, {v(VPO)}, {s(p,2)}")
I(f"s_load_dword {s(S_LDT)}, {s(P_LDT,2)}, {s(S_T1)}")
I(f"s_load_dword {s(S_DSK)}, {s(P_DSK,2)}, {s(S_T1)}")
I("s_branch L_notln")
L("L_ln_main")
C("---- pull the kernel's own code into this die's L2 (instruction fetch then misses only to L2)")
NCP = int([a for a in sys.argv if a.startswith("--ncp=")][0][6:]) if any(a.startswith("--ncp=") for a in sys.argv) else 32
I(f"s_getpc_b64 {s(S_EXEC,2)}")
L("L_pc")
I(f"s_sub_u32 {s(S_EXEC)}, {s(S_EXEC)}, L_pc-{KNAME}")
I(f"s_subb_u32 {s(S_EXEC+1)}, {s(S_EXEC+1)}, 0")
I(f"v_lshlrev_b32 {v(t1)}, 6, v0")
I(f"v_min_u32 {v(t1)}, L_end-{KNAME}, {v(t1)}")
I(f"s_cmp_ge_u32 s2, {NCP}")
I("s_cbranch_scc1 L_nocp")
I(f"global_load_dword {v(159)}, {v(t1)}, {s(S_EXEC,2)}")
I("s_branch L_cpdone")
L("L_nocp")
I(f"global_load_dword {v(159)}, {v(VZ)}, {s(P_WR,2)}")
L("L_cpdone")
I(f"s_add_u32 {s(S_XT)}, {s(P_WS)}, {WS_XT}")
I(f"s_addc_u32 {s(S_XT+1)}, {s(P_WS+1)}, 0")
I(f"s_mul_i32 {s(S_T2)}, {s(S_WAVE)}, {4*TS}")
I(f"v_add_u32 {v(VTW)}, {s(S_T2)}, {v(VO2)}")
I(f"v_and_b32 {v(t1)}, 3, v0")
I(f"v_lshrrev_b32 {v(t2)}, 2, v0")
I(f"v_mul_u32_u24 {v(VTR2)}, {4*TS}, {v(t1)}")
I(f"v_lshl_add_u32 {v(VTR2)}, {v(t2)}, 2, {v(VTR2)}")
I(f"s_lshl_b32 {s(S_T2)}, s2, 6")
I(f"v_lshl_add_u32 {v(VTS2)}, {v(t1)}, 4, {s(S_T2)}")
I(f"v_lshl_add_u32 {v(VTS2)}, {v(t2)}, 13, {v(VTS2)}")
I(f"s_lshl_b32 {s(S_T2)}, {s(S_ROW0)}, 3")
I(f"v_add_u32 {v(VO)}, {s(S_T2)}, {v(VO2)}")
C("---- warm this die's L2 with FFN weight lines that its FFN workgroups read last (speed only)")
I(f"s_and_b32 {s(S_T0)}, s2, 7")
I(f"s_lshr_b32 {s(S_T1)}, s2, 3")
I(f"s_sub_u32 {s(S_T2)}, {s(S_WAVE)}, 1")
I(f"s_cmp_ge_u32 {s(S_T2)}, 2")
I("s_cbranch_scc1 L_pf_down")
I(f"s_mul_i32 {s(S_T2)}, {s(S_T0)}, 448")
I(f"s_mul_i32 {s(S_T3)}, {s(S_T1)}, {16*3584}")
I(f"s_add_u32 {s(S_T2)}, {s(S_T2)}, {s(S_T3)}")
I(f"s_add_u32 {s(S_T2)}, {s(S_T2)}, {256*3584}")
I(f"v_lshrrev_b32 {v(176)}, 2, {v(VL)}")
I(f"v_mul_u32_u24 {v(176)}, 3584, {v(176)}")
I(f"v_and_b32 {v(177)}, 3, {v(VL)}")
I(f"v_mul_u32_u24 {v(177)}, 148, {v(177)}")
I(f"v_add3_u32 {v(176)}, {v(176)}, {v(177)}, {s(S_T2)}")
I(f"s_cmp_eq_u32 {s(S_WAVE)}, 1")
I(f"s_cselect_b32 {s(S_EXEC)}, {s(P_WG)}, {s(P_WU)}")
I(f"s_cselect_b32 {s(S_EXEC+1)}, {s(P_WG+1)}, {s(P_WU+1)}")
I(f"v_add_u32 {v(177)}, 72, {v(176)}")
I(f"v_min_u32 {v(177)}, {512*3584-4}, {v(177)}")
I("s_branch L_pf_go")
L("L_pf_down")
I(f"s_mul_i32 {s(S_T2)}, {s(S_T0)}, {224*1024}")
I(f"s_mul_i32 {s(S_T3)}, {s(S_T1)}, {14*1024}")
I(f"s_add_u32 {s(S_T2)}, {s(S_T2)}, {s(S_T3)}")
I(f"s_and_b32 {s(S_T3)}, {s(S_WAVE)}, 1")
I(f"s_mul_i32 {s(S_T3)}, {s(S_T3)}, 7168")
I(f"s_add_u32 {s(S_T2)}, {s(S_T2)}, {s(S_T3)}")
I(f"v_min_u32 {v(176)}, 55, {v(VL)}")
I(f"v_lshl_add_u32 {v(176)}, {v(176)}, 6, {s(S_T2)}")
I(f"v_add_u32 {v(177)}, 3584, {v(176)}")
I(f"s_mov_b64 {s(S_EXEC,2)}, {s(P_WD,2)}")
L("L_pf_go")
I(f"v_mov_b32 {v(VC)}, {f2u(1.0/512):#x}")
I(f"v_mov_b32 {v(VONE)}, 0x3f803f80")
for r in R_: I(f"v_mov_b32 {v(S3[r])}, 0")
I(f"v_mov_b32 {v(SW)}, 0")
for r in R_:
    I(f"s_waitcnt vmcnt({NR + 1 - r})")
    if r == 0: stamp()
    I(f"ds_write_b128 {v(VTW)}, {v(X[r],4)} offset:{L_T2 + r*TS}")
    if r < NR - 1:
        for k in range(4): unpack(F[r]+2*k, X[r]+k)
I("s_waitcnt lgkmcnt(0)")
I("s_barrier")
for i in range(4):
    for e in range(4):
        I(f"ds_read_b32 {v(TX+4*i+e)}, {v(VTR2)} offset:{L_T2 + 256*i + e*TS}")
for k in range(4): unpack(F[NR-1]+2*k, X[NR-1]+k)
for r in R_: I(f"v_readfirstlane_b32 {s(SX0[r])}, {v(F[r])}")
for i in range(4):
    I(f"s_waitcnt lgkmcnt({12 - 4*i})")
    I(f"global_store_dwordx4 {v(VTS2)}, {v(TX+4*i,4)}, {s(S_XT,2)} sc1")
    if i < 3: I(f"v_add_u32 {v(VTS2)}, 0x80000, {v(VTS2)}")
nonce_issue(VZ, VNON)
if PFPOS == 0:
    I(f"global_load_dword {v(178)}, {v(176)}, {s(S_EXEC,2)}")
    I(f"global_load_dword {v(179)}, {v(177)}, {s(S_EXEC,2)}")

stamp()
for k in range(4):
    for r in R_:
        I(f"v_pk_add_f32 {v(D[r]+2*k,2)}, {v(F[r]+2*k,2)}, {s(SX0[r],2)} op_sel_hi:[1,0] neg_lo:[0,1] neg_hi:[0,1]")
I(f"s_waitcnt vmcnt({8 if PFPOS == 0 else 6})")
for k in range(4):
    for r in R_: I(f"v_dot2c_f32_bf16 {v(S3[r])}, {v(X[r]+k)}, {v(WR+k)}")
    I(f"v_dot2c_f32_bf16 {v(SW)}, {v(VONE)}, {v(WR+k)}")
for r in R_: I(f"v_pk_add_f32 {v(T[r],2)}, {v(D[r],2)}, {v(D[r]+2,2)}")
for r in R_: I(f"v_pk_mul_f32 {v(T[r]+4,2)}, {v(D[r],2)}, {v(D[r],2)}")
for r in R_: I(f"v_pk_add_f32 {v(T[r]+2,2)}, {v(D[r]+4,2)}, {v(D[r]+6,2)}")
for r in R_: I(f"v_pk_fma_f32 {v(T[r]+4,2)}, {v(D[r]+2,2)}, {v(D[r]+2,2)}, {v(T[r]+4,2)}")
for r in R_: I(f"v_pk_add_f32 {v(T[r],2)}, {v(T[r],2)}, {v(T[r]+2,2)}")
for r in R_: I(f"v_pk_fma_f32 {v(T[r]+4,2)}, {v(D[r]+4,2)}, {v(D[r]+4,2)}, {v(T[r]+4,2)}")
for r in R_: I(f"v_add_f32 {v(S1[r])}, {v(T[r])}, {v(T[r]+1)}")
for r in R_: I(f"v_pk_fma_f32 {v(T[r]+4,2)}, {v(D[r]+6,2)}, {v(D[r]+6,2)}, {v(T[r]+4,2)}")
for r in R_: I(f"v_add_f32 {v(S2[r])}, {v(T[r]+4)}, {v(T[r]+5)}")
dpp_reduce(S1 + S3 + [SW] + S2)
for r in R_: I(f"v_mul_f32 {v(S1[r])}, {v(VC)}, {v(S1[r])}")
for r in R_: I(f"v_mul_f32 {v(S2[r])}, {v(VC)}, {v(S2[r])}")
for r in R_: I(f"v_fma_f32 {v(S2[r])}, -{v(S1[r])}, {v(S1[r])}, {v(S2[r])}")
for r in R_: I(f"v_add_f32 {v(S1[r])}, {s(SX0[r])}, {v(S1[r])}")
for r in R_: I(f"v_max_f32 {v(S2[r])}, 0, {v(S2[r])}")
MP = [T[0], T[0]+1]; VP = [T[0]+2, T[0]+3]
for h in range(2): I(f"v_cvt_pk_bf16_f32 {v(MP[h])}, {v(S1[2*h])}, {v(S1[2*h+1])}")
for h in range(2): I(f"v_cvt_pk_bf16_f32 {v(VP[h])}, {v(S2[2*h])}, {v(S2[2*h+1])}")
for h in range(2): unpack(S1[2*h], MP[h])
for h in range(2): unpack(S2[2*h], VP[h])
eps = f2u(1e-5)
for r in R_: I(f"v_add_f32 {v(S2[r])}, {eps:#x}, {v(S2[r])}")
for r in R_: I(f"v_fma_f32 {v(S3[r])}, -{v(S1[r])}, {v(SW)}, {v(S3[r])}")
for h in range(2): I(f"v_cvt_pk_bf16_f32 {v(VP[h])}, {v(S2[2*h])}, {v(S2[2*h+1])}")
for r in R_: I(f"v_lshrrev_b32 {v(S1[r])}, 16, {v(S1[r])}")
for h in range(2): unpack(S2[2*h], VP[h])
for r in R_: I(f"v_sqrt_f32 {v(S2[r])}, {v(S2[r])}")
I("s_nop 0")
for h in range(2): I(f"v_cvt_pk_bf16_f32 {v(VP[h])}, {v(S2[2*h])}, {v(S2[2*h+1])}")
for h in range(2): unpack(S2[2*h], VP[h])
RC = [T[1]+r for r in R_]
for r in R_: I(f"v_rcp_f32 {v(RC[r])}, {v(S2[r])}")
for r in R_: I(f"v_or_b32 {v(S1[r])}, {v(S1[r])}, {v(S2[r])}")
for r in R_: I(f"v_mul_f32 {v(S3[r])}, {v(S3[r])}, {v(RC[r])}")
SMS = [10, 11, 12, 13]
for r in R_: I(f"v_readlane_b32 {s(SMS[r])}, {v(S1[r])}, 63")
for h in range(2): I(f"v_cvt_pk_bf16_f32 {v(MP[h])}, {v(S3[2*h])}, {v(S3[2*h+1])}")
GP = 152
I(f"v_cmp_eq_u32 vcc, 0, {v(VL)}")
for h in range(2): I(f"v_readlane_b32 {s(S_R+h)}, {v(MP[h])}, 63")
I(f"v_mov_b32 {v(GP)}, {s(SMS[2])}")
I(f"v_mov_b32 {v(GP+2)}, {s(SMS[3])}")
I(f"v_mov_b32 {v(t1)}, {s(SMS[0])}")
I(f"v_mov_b32 {v(t2)}, {s(SMS[1])}")
I(f"v_cndmask_b32 {v(GP)}, {v(GP)}, {v(t1)}, vcc")
I(f"v_cndmask_b32 {v(GP+2)}, {v(GP+2)}, {v(t2)}, vcc")
I(f"s_sub_u32 {s(S_T3)}, 0xffff, {s(S_ROW0)}")
KK = [14, 15, 16, 17]
for h in range(2):
    I(f"s_and_b32 {s(S_T0)}, {s(S_R+h)}, 0x80008000")
    I(f"s_lshr_b32 {s(S_T1)}, {s(S_T0)}, 15")
    I(f"s_mul_i32 {s(S_T1)}, {s(S_T1)}, 0x7fff")
    I(f"s_or_b32 {s(S_T1)}, {s(S_T1)}, 0x80008000")
    I(f"s_xor_b32 {s(S_T2)}, {s(S_R+h)}, {s(S_T1)}")
    I(f"s_lshl_b32 {s(S_T0)}, {s(S_T2)}, 16")
    I(f"s_or_b32 {s(S_T0)}, {s(S_T0)}, {s(S_T3)}")
    I(f"s_sub_u32 {s(S_T3)}, {s(S_T3)}, 1")
    I(f"s_and_b32 {s(S_T1)}, {s(S_T2)}, 0xffff0000")
    I(f"s_or_b32 {s(S_T1)}, {s(S_T1)}, {s(S_T3)}")
    I(f"s_sub_u32 {s(S_T3)}, {s(S_T3)}, 1")
    I(f"s_max_u32 {s(KK[2*h])}, {s(S_T0)}, {s(S_T1)}")
    I(f"s_min_u32 {s(KK[2*h+1])}, {s(S_T0)}, {s(S_T1)}")
I(f"s_max_u32 {s(S_T0)}, {s(KK[0])}, {s(KK[2])}")
I(f"s_min_u32 {s(S_T1)}, {s(KK[0])}, {s(KK[2])}")
I(f"s_max_u32 {s(S_T2)}, {s(KK[1])}, {s(KK[3])}")
I(f"s_max_u32 {s(S_T1)}, {s(S_T1)}, {s(S_T2)}")
I(f"v_mov_b32 {v(156)}, {s(S_T0)}")
I(f"v_mov_b32 {v(157)}, {s(S_T1)}")
I(f"s_lshl_b32 {s(S_T0)}, {s(S_WAVE)}, 3")
I(f"v_mov_b32 {v(158)}, {s(S_T0)}")
I(f"ds_write_b64 {v(158)}, {v(156,2)} offset:{L_MISC + 64}")
stamp()
if PFPOS == 2:
    I(f"global_load_dword {v(178)}, {v(176)}, {s(S_EXEC,2)}")
    I(f"global_load_dword {v(179)}, {v(177)}, {s(S_EXEC,2)}")
nonce_wait(VZ, VNON, first=(2 if PFPOS < 3 else 0))
stamp()
I(f"v_mov_b32 {v(GP+1)}, {v(VNON)}")
I(f"v_mov_b32 {v(GP+3)}, {v(VNON)}")
I("s_mov_b64 exec, 3")
I(f"global_store_dwordx4 {v(VO)}, {v(GP,4)}, {s(P_WS,2)} sc1")
I("s_mov_b64 exec, -1")
I("s_waitcnt lgkmcnt(0)")
I("s_barrier")
I(f"s_cmp_lg_u32 {s(S_WAVE)}, 0")
I("s_cbranch_scc1 L_ln_pf" if "--nopf" not in sys.argv else "s_cbranch_scc1 L_fin")
I(f"ds_read_b128 {v(96,4)}, {v(VZ)} offset:{L_MISC+64}")
I(f"ds_read_b128 {v(100,4)}, {v(VZ)} offset:{L_MISC+80}")
I(f"s_lshl_b32 {s(S_T0)}, s2, 7")
I(f"s_add_u32 {s(S_T0)}, {s(S_T0)}, {WS_KEYS}")
I(f"v_mov_b32 {v(105)}, {s(S_T0)}")
I("s_waitcnt lgkmcnt(0)")
top2_combine(96, 104)
I(f"v_mov_b32 {v(98)}, {v(97)}")
I(f"v_mov_b32 {v(97)}, {v(VNON)}")
I(f"v_mov_b32 {v(99)}, {v(VNON)}")
I("s_mov_b64 exec, 1")
I(f"global_store_dwordx4 {v(105)}, {v(96,4)}, {s(P_WS,2)} sc1")
I("s_mov_b64 exec, -1")
stamp()
if "--nopf" in sys.argv: I("s_branch L_fin")
L("L_ln_pf")
if PFPOS == 3:
    I("s_barrier")
    I(f"global_load_dword {v(178)}, {v(176)}, {s(S_EXEC,2)}")
    I(f"global_load_dword {v(179)}, {v(177)}, {s(S_EXEC,2)}")
    I("s_waitcnt vmcnt(0)")
I("s_branch L_fin")

L("L_notln")
nstamp[0] = 1
I(f"v_and_b32 {v(VJ)}, 15, {v(VL)}")
I(f"v_lshrrev_b32 {v(VKG)}, 4, {v(VL)}")
VKEY = 252
I(f"v_lshlrev_b32 {v(VKEY)}, 7, {v(VL)}")
I(f"v_add_u32 {v(VKEY+1)}, {WS_KEYS + 8192}, {v(VKEY)}")
I(f"v_add_u32 {v(VKEY)}, {WS_KEYS}, {v(VKEY)}")
I(f"s_cmp_ge_u32 s2, {NLN + NCONV}")
I("s_cbranch_scc1 L_ffn")

C("==== conv role")
I(f"s_lshr_b32 {s(S_T0)}, {s(S_C)}, 3")
I(f"s_xor_b32 {s(S_T0)}, {s(S_T0)}, 31")
I(f"s_xor_b32 {s(S_T1)}, {s(S_WAVE)}, 3")
I(f"s_or_b32 {s(S_T0)}, {s(S_T0)}, {s(S_T1)}")
nonce_cas(VZ, 32)
I(f"s_add_u32 {s(S_PART)}, {s(P_WS)}, {WS_PART}")
I(f"s_addc_u32 {s(S_PART+1)}, {s(P_WS+1)}, 0")
I(f"s_lshl_b32 {s(S_T0)}, {s(S_DP)}, 13")
I(f"s_add_u32 {s(S_T0)}, {s(S_T0)}, {WS_XT}")
I(f"s_add_u32 {s(S_XNG)}, {s(P_WS)}, {s(S_T0)}")
I(f"s_addc_u32 {s(S_XNG+1)}, {s(P_WS+1)}, 0")

C("---- constants")
AL = 200
VBETA = 206
SC0, SC1A, SC1B, SC2 = 208, 209, 210, 211
GA = 212
VGX = 224
VA_, VB_ = 226, 227
VRW, VRR = 228, 229
VT0 = 230
VOUT = 232
VPAR = 234
VKCW = 235
VPW = 236
VT8 = 237
VT4 = 238
VFL = 239
M1, M2 = 240, 241
VEX, VEU = 242, 243
VTL = 245
VNON = 246
VSW = 248
t1, t2, t3, t4 = 12, 13, 14, 15
I(f"v_lshlrev_b32 {v(VKCW)}, 4, v0")
I(f"v_lshlrev_b32 {v(VT8)}, 3, v0")
I(f"v_lshlrev_b32 {v(VT4)}, 2, v0")
I(f"s_lshl_b32 {s(S_T2)}, {s(S_WAVE)}, 11")
I(f"s_add_u32 {s(S_T2)}, {s(S_T2)}, {L_PAR}")
I(f"v_lshl_add_u32 {v(VPAR)}, {v(VKG)}, 7, {s(S_T2)}")
I(f"v_lshl_add_u32 {v(VPW)}, {v(VL)}, 5, {s(S_T2)}")
for k in range(4):
    I(f"v_add_u32 {v(VSW+k)}, {4096*k}, {v(VKCW)}")
I(f"v_add_u32 {v(VFL)}, 4096, {v(VT8)}")
I(f"v_mov_b32 {v(t1)}, {v(VJ)}")
for i_, al in ((8, 512), (9, 516), (10, 1024), (11, 1536), (12, 2048), (13, 0), (14, 0), (15, 0)):
    I(f"v_cmp_eq_u32 vcc, {i_}, {v(VJ)}")
    I(f"v_mov_b32 {v(t2)}, {al}")
    I("s_nop 0")
    I(f"v_cndmask_b32 {v(t1)}, {v(t1)}, {v(t2)}, vcc")
I(f"v_cvt_f32_u32 {v(AL)}, {v(t1)}")
I(f"v_lshlrev_b32 {v(t1)}, 3, {v(VJ)}")
I(f"v_cvt_f32_u32 {v(VBETA)}, {v(t1)}")
SCB, SCS = 208, 202
I(f"s_lshr_b32 {s(S_T0)}, {s(S_WAVE)}, 1")
I(f"s_mul_i32 {s(S_T0)}, {s(S_T0)}, {KTAB_D}")
I(f"s_and_b32 {s(S_T1)}, {s(S_WAVE)}, 1")
I(f"s_lshl_b32 {s(S_T1)}, {s(S_T1)}, 2")
I(f"s_add_u32 {s(S_T0)}, {s(S_T0)}, {s(S_T1)}")
I(f"s_add_u32 {s(S_T0)}, {s(S_T0)}, {L_KTAB}")
I(f"v_mul_u32_u24 {v(t1)}, 9, {v(VJ)}")
I(f"v_lshl_add_u32 {v(t1)}, {v(VKG)}, 2, {v(t1)}")
I(f"v_cmp_eq_u32 {s(S_T2,2)}, 2, {v(VKG)}")
I(f"v_cmp_eq_u32 {s(S_X0,2)}, 3, {v(VKG)}")
I(f"v_cmp_eq_u32 {s(S_X0+2,2)}, 48, {v(VL)}")
for r in range(4):
    I(f"v_add_u32 {v(t2)}, {r}, {v(t1)}")
    if r < 2: I(f"v_lshl_add_u32 {v(t3)}, {v(VJ)}, 1, {v(VZ)}"); I(f"v_add_u32 {v(t3)}, {576 + r}, {v(t3)}")
    else:     I(f"v_add_u32 {v(t3)}, {704 + 64*(r-2)}, {v(VJ)}")
    I(f"v_cndmask_b32 {v(t2)}, {v(t2)}, {v(t3)}, {s(S_T2,2)}")
    I(f"v_add_u32 {v(t3)}, {TRASH + 16*r}, {v(VJ)}")
    I(f"v_cndmask_b32 {v(t2)}, {v(t2)}, {v(t3)}, {s(S_X0,2)}")
    if r == 0:
        I(f"v_mov_b32 {v(t3)}, 832")
        I(f"v_cndmask_b32 {v(t2)}, {v(t2)}, {v(t3)}, {s(S_X0+2,2)}")
    I(f"v_lshl_add_u32 {v(SCB+r)}, {v(t2)}, 3, {s(S_T0)}")
for hh, st2 in ((0, 32), (1, 16)):
    I(f"v_mov_b32 {v(t2)}, {144*8}")
    I(f"v_mov_b32 {v(t3)}, {st2*8}")
    I(f"v_cndmask_b32 {v(t2)}, {v(t2)}, {v(t3)}, {s(S_T2,2)}")
    I(f"v_cndmask_b32 {v(t2)}, {v(t2)}, {v(VZ)}, {s(S_X0,2)}")
    if hh == 0:
        I(f"v_mov_b32 {v(t3)}, {16*8}")
        I(f"v_cndmask_b32 {v(t2)}, {v(t2)}, {v(t3)}, {s(S_X0+2,2)}")
    I(f"v_mov_b32 {v(SCS+hh)}, {v(t2)}")
I(f"v_sub_u32 {v(t1)}, 2047, {v(VT8)}")
I(f"s_movk_i32 {s(S_T1)}, 0x4400")
I(f"v_mov_b32 {v(t4)}, {ZIDX}")
for k in range(11):
    I(f"v_subrev_u32 {v(t2)}, {k}, {v(t1)}")
    I(f"v_cvt_f32_i32 {v(t3)}, {v(t2)}")
    I(f"v_cvt_pk_bf16_f32 {v(t3)}, {v(t3)}, {v(VZ)}")
    I(f"v_lshlrev_b32 {v(16)}, 16, {v(t3)}")
    I(f"v_cmp_gt_u32 vcc, {s(S_T1)}, {v(t3)}")
    I(f"v_cvt_u32_f32 {v(16)}, {v(16)}")
    I(f"v_subrev_u32 {v(t3)}, {0x4400 - 576}, {v(t3)}")
    I(f"v_lshrrev_b32 {v(17)}, 3, {v(16)}")
    I(f"v_add_u32 {v(16)}, {v(16)}, {v(17)}")
    I(f"v_cndmask_b32 {v(t3)}, {v(t3)}, {v(16)}, vcc")
    if k >= 8:
        I(f"v_cmp_gt_i32 vcc, 0, {v(t2)}")
        I("s_nop 1")
        I(f"v_cndmask_b32 {v(t3)}, {v(t3)}, {v(t4)}, vcc")
    I(f"v_lshlrev_b32 {v(GA+k)}, 3, {v(t3)}")
I(f"s_lshr_b32 {s(S_T0)}, {s(S_WAVE)}, 1")
I(f"s_and_b32 {s(S_T1)}, {s(S_WAVE)}, 1")
I(f"s_mul_i32 {s(S_T2)}, {s(S_T0)}, {KC_D}")
I(f"s_lshl_b32 {s(S_T3)}, {s(S_T1)}, 8")
I(f"s_sub_u32 {s(S_T2)}, {s(S_T2)}, {s(S_T3)}")
I(f"s_add_u32 {s(S_T2)}, {s(S_T2)}, {L_KC + 3*KC_S + 72}")
I(f"v_and_b32 {v(t1)}, 3, {v(VJ)}")
I(f"v_mul_u32_u24 {v(t1)}, {KC_S}, {v(t1)}")
I(f"v_lshrrev_b32 {v(t2)}, 2, {v(VJ)}")
I(f"v_lshl_add_u32 {v(t1)}, {v(t2)}, 3, {v(t1)}")
I(f"v_lshl_add_u32 {v(t1)}, {v(VKG)}, 4, {v(t1)}")
I(f"v_sub_u32 {v(VA_)}, {s(S_T2)}, {v(t1)}")
I(f"s_mul_i32 {s(S_T2)}, {s(S_T0)}, {U_D}")
I(f"s_sub_u32 {s(S_T2)}, {s(S_T2)}, {s(S_T3)}")
I(f"s_add_u32 {s(S_T2)}, {s(S_T2)}, {L_U + 336}")
I(f"v_lshlrev_b32 {v(t1)}, 5, {v(VJ)}")
I(f"v_lshlrev_b32 {v(t2)}, 4, {v(VKG)}")
I(f"v_sub_u32 {v(t1)}, {v(t1)}, {v(t2)}")
I(f"v_add_u32 {v(VB_)}, {s(S_T2)}, {v(t1)}")
I(f"s_lshl_b32 {s(S_T2)}, {s(S_WAVE)}, 11")
I(f"v_add_u32 {v(VRW)}, {s(S_T2)}, {v(VO2)}")
I(f"s_lshr_b32 {s(S_T2)}, {s(S_WAVE)}, 1")
I(f"s_lshl_b32 {s(S_T2)}, {s(S_T2)}, 10")
I(f"s_and_b32 {s(S_T3)}, {s(S_WAVE)}, 1")
I(f"s_lshl_b32 {s(S_T3)}, {s(S_T3)}, 3")
I(f"s_add_u32 {s(S_T2)}, {s(S_T2)}, {s(S_T3)}")
I(f"v_add_u32 {v(VRR)}, {s(S_T2)}, {v(VO2)}")
I(f"s_lshr_b32 {s(S_T2)}, {s(S_T2)}, 2")
I(f"v_lshl_add_u32 {v(VT0)}, {v(VJ)}, 4, {s(S_T2)}")
I(f"v_lshl_add_u32 {v(VT0)}, {v(VKG)}, 2, {v(VT0)}")
I(f"v_lshlrev_b32 {v(VEX)}, 2, {v(VT0)}")
I(f"v_lshlrev_b32 {v(VEU)}, 1, {v(VT0)}")
I(f"s_lshl_b32 {s(S_T2)}, {s(S_DP)}, 2")
I(f"v_lshl_add_u32 {v(VOUT)}, {v(VT0)}, 10, {s(S_T2)}")
I(f"v_mov_b32 {v(38)}, 0")
I(f"v_mov_b32 {v(39)}, 0")
I(f"ds_write_b64 {v(VZ)}, {v(38,2)} offset:{L_KTAB + 8*ZIDX}")
I(f"ds_write_b64 {v(VZ)}, {v(38,2)} offset:{L_KTAB + KTAB_D + 8*ZIDX}")
I(f"v_lshlrev_b32 {v(t2)}, 1, v0")
I(f"ds_write_b16 {v(t2)}, {v(VZ)} offset:{L_U}")
I(f"ds_write_b16 {v(t2)}, {v(VZ)} offset:{L_U + U_D}")
I(f"v_lshrrev_b32 {v(t3)}, 5, v0")
I(f"v_mul_u32_u24 {v(t3)}, {KC_S}, {v(t3)}")
I(f"v_and_b32 {v(t4)}, 31, v0")
I(f"v_lshl_add_u32 {v(t3)}, {v(t4)}, 1, {v(t3)}")
I(f"ds_write_b16 {v(t3)}, {v(VZ)} offset:{L_KC + 4096}")

C("---- K-gen parameters")
I("s_waitcnt lgkmcnt(0)")
I(f"s_lshr_b32 {s(S_T0)}, {s(S_WAVE)}, 1")
I(f"s_lshl_b32 {s(S_T0)}, {s(S_T0)}, 4")
I(f"s_lshr_b32 {s(S_T1)}, {s(S_LDT)}, {s(S_T0)}")
I(f"s_lshl_b32 {s(S_T1)}, {s(S_T1)}, 16")
l2e_hi = struct.unpack("<f", struct.pack("<f", LOG2E))[0]
l2e_lo = LOG2E - l2e_hi
T0_, T1_, T2_, T3_, DT = 40, 41, 42, 43, 44
VDS = 8
I(f"s_lshl_b32 {s(S_DS2)}, {s(S_DSK)}, 16")
I(f"s_and_b32 {s(S_DS2+1)}, {s(S_DSK)}, 0xffff0000")
I(f"v_mov_b32 {v(T0_)}, {f2u(l2e_hi):#x}")
I(f"v_mov_b32 {v(T3_)}, {f2u(l2e_lo):#x}")
I(f"v_add_f32 {v(VDS)}, {s(S_DS2)}, 1.0")
I(f"v_add_f32 {v(VDS+1)}, {s(S_DS2+1)}, 1.0")
I(f"v_mul_f32 {v(T1_)}, {s(S_T1)}, {v(T0_)}")
I(f"v_fma_f32 {v(T2_)}, {s(S_T1)}, {v(T0_)}, -{v(T1_)}")
I(f"v_fma_f32 {v(T2_)}, {s(S_T1)}, {v(T3_)}, {v(T2_)}")
I(f"v_exp_f32 {v(T1_)}, {v(T1_)}")
I(f"v_mul_f32 {v(T2_)}, {f2u(math.log(2.0)):#x}, {v(T2_)}")
I(f"v_readfirstlane_b32 {s(S_DS2)}, {v(VDS)}")
I(f"v_readfirstlane_b32 {s(S_DS2+1)}, {v(VDS+1)}")
I(f"v_fma_f32 {v(T1_)}, {v(T1_)}, {v(T2_)}, {v(T1_)}")
I(f"v_cvt_pk_bf16_f32 {v(T1_)}, {v(T1_)}, {v(T1_)}")
I(f"v_lshlrev_b32 {v(DT)}, 16, {v(T1_)}")
PW = 48
I("s_waitcnt vmcnt(1)")
stamp()
I("s_waitcnt vmcnt(0)") if False else None
I(f"v_mul_f32 {v(T1_)}, {v(DT)}, {v(PRM+2)}")
I(f"v_mul_f32 {v(T2_)}, {v(DT)}, {v(PRM+3)}")
I(f"v_mul_f32 {v(PW)}, {v(DT)}, {v(PRM+0)}")
I(f"v_mul_f32 {v(PW+1)}, {v(DT)}, {v(PRM+1)}")
I(f"v_mul_f32 {v(PW+2)}, {v(PRM+4)}, {v(T1_)}")
I(f"v_mul_f32 {v(PW+3)}, {v(PRM+4)}, {v(T2_)}")
I(f"v_mul_f32 {v(PW)}, {v(T0_)}, {v(PW)}")
I(f"v_mul_f32 {v(PW+1)}, 0.15915494, {v(PW+1)}")
I(f"s_lshr_b32 {s(S_T0)}, {s(S_C)}, 3")
I(f"s_xor_b32 {s(S_T0)}, {s(S_T0)}, 31")
I(f"s_xor_b32 {s(S_T2)}, {s(S_WAVE)}, 3")
I(f"s_or_b32 {s(S_T0)}, {s(S_T0)}, {s(S_T2)}")
I(f"s_cmp_eq_u32 {s(S_T0)}, 0")
I("s_cbranch_scc1 L_p5b")
I("s_waitcnt vmcnt(0)")
L("L_p5b")
I(f"v_mul_f32 {v(56)}, 0x43000000, {v(PW)}")
I(f"v_mul_f32 {v(57)}, 0x43000000, {v(PW+1)}")
I(f"v_exp_f32 {v(56)}, {v(56)}")
I(f"v_fract_f32 {v(57)}, {v(57)}")
I(f"v_cos_f32 {v(PW+4)}, {v(57)}")
I(f"v_sin_f32 {v(PW+5)}, {v(57)}")
I(f"v_fma_f32 {v(PW+2)}, -{v(PRM+5)}, {v(T2_)}, {v(PW+2)}")
I(f"v_fma_f32 {v(PW+3)}, {v(PRM+5)}, {v(T1_)}, {v(PW+3)}")
I(f"v_max_f32 {v(T3_)}, |{v(PW+2)}|, |{v(PW+3)}|")
I(f"v_mul_f32 {v(PW+4)}, {v(PW+4)}, {v(56)}")
I(f"v_mul_f32 {v(PW+5)}, {v(PW+5)}, {v(56)}")
I(f"ds_write_b64 {v(VPW)}, {v(PW+4,2)} offset:16")
dpp_reduce([T3_], "v_max_f32")
I("s_nop 0")
I(f"v_readlane_b32 {s(S_T0)}, {v(T3_)}, 63")
I("s_nop 3")
I(f"s_bfe_u32 {s(S_T0)}, {s(S_T0)}, 0x80017")
I(f"s_max_u32 {s(S_T0)}, {s(S_T0)}, 1")
I(f"s_min_u32 {s(S_T0)}, {s(S_T0)}, 253")
I(f"s_lshl_b32 {s(S_UNS)}, {s(S_T0)}, 23")
I(f"s_sub_u32 {s(S_T0)}, 254, {s(S_T0)}")
I(f"s_lshl_b32 {s(S_T0)}, {s(S_T0)}, 23")
I(f"v_mul_f32 {v(PW+2)}, {s(S_T0)}, {v(PW+2)}")
I(f"v_mul_f32 {v(PW+3)}, {s(S_T0)}, {v(PW+3)}")
I(f"ds_write_b128 {v(VPW)}, {v(PW,4)}")
nonce_issue(VZ, VNON)
C("---- K-gen main loop: 4 super-groups of 16 n ; one A tile (rows) x four B tiles (columns)")
ACC = 100
PP = 56
OPA = 116
OPB = 120
TM = 136
for k in range(16): I(f"v_mov_b32 {v(ACC+k)}, 0")
I(f"s_mov_b32 {s(S_CNT)}, 0")
I("s_waitcnt lgkmcnt(0)")
stamp()
L("L_kgen")
for q in range(4):
    I(f"ds_read_b128 {v(PP+8*q,4)}, {v(VPAR)} offset:{32*q}")
    I(f"ds_read_b64 {v(PP+8*q+4,2)}, {v(VPAR)} offset:{32*q+16}")
PFIT = int([a for a in sys.argv if a.startswith("--pfit=")][0][7:]) if any(a.startswith("--pfit=") for a in sys.argv) else 1
I(f"v_add_u32 {v(VPAR)}, 512, {v(VPAR)}")
for qp in range(2):
    QS = (2*qp, 2*qp+1)
    I(f"s_waitcnt lgkmcnt({4 - 4*qp})")
    def tm(q, x): return TM + 16*(q & 1) + 4*x
    EV = [(q, x) for q in QS for x in range(2)]
    for q, x in EV: I(f"v_pk_mul_f32 {v(tm(q,x),2)}, {v(PP+8*q,2)}, {v(VBETA if x == 0 else AL,2)} op_sel_hi:[1,0]")
    for q, x in EV: I(f"v_fract_f32 {v(tm(q,x)+1)}, {v(tm(q,x)+1)}")
    for q, x in EV: I(f"v_exp_f32 {v(tm(q,x))}, {v(tm(q,x))}")
    for q, x in EV: I(f"v_cos_f32 {v(tm(q,x)+2)}, {v(tm(q,x)+1)}")
    for q, x in EV: I(f"v_sin_f32 {v(tm(q,x)+3)}, {v(tm(q,x)+1)}")
    def ep(q, x): return TM + 16*(q & 1) + 8 + 2*x
    def bc(q, alt): return TM + 16*(q & 1) + 12 + 2*alt
    for q, x in EV: I(f"v_pk_mul_f32 {v(ep(q,x),2)}, {v(tm(q,x)+2,2)}, {v(tm(q,x),2)} op_sel_hi:[1,0]")
    for q in QS: I(f"v_pk_mul_f32 {v(bc(q,0),2)}, {v(ep(q,0),2)}, {v(PP+8*q+2,2)} op_sel_hi:[0,1] neg_hi:[0,1]")
    for q in QS: I(f"v_cvt_pk_f16_f32 {v(OPA+q)}, {v(ep(q,1))}, {v(ep(q,1)+1)}")
    for q in QS: I(f"v_fma_f32 {v(bc(q,0))}, -{v(ep(q,0)+1)}, {v(PP+8*q+3)}, {v(bc(q,0))}")
    for q in QS: I(f"v_fma_f32 {v(bc(q,0)+1)}, -{v(ep(q,0)+1)}, {v(PP+8*q+2)}, {v(bc(q,0)+1)}")
    for k in range(4):
        cur_, nx = k & 1, 1 - (k & 1)
        if k < 3:
            for q in QS: I(f"v_pk_mul_f32 {v(bc(q,nx),2)}, {v(bc(q,cur_),2)}, {v(PP+8*q+4,2)} op_sel_hi:[1,0]")
        for q in QS: I(f"v_cvt_pk_f16_f32 {v(OPB+4*k+q)}, {v(bc(q,cur_))}, {v(bc(q,cur_)+1)}")
        if k < 3:
            for q in QS: I(f"v_fma_f32 {v(bc(q,nx))}, {v(bc(q,cur_)+1)}, {v(PP+8*q+5)}, {v(bc(q,nx))}")
            for q in QS: I(f"v_fma_f32 {v(bc(q,nx)+1)}, -{v(bc(q,cur_))}, {v(PP+8*q+5)}, {v(bc(q,nx)+1)}")
I(f"s_add_u32 {s(S_CNT)}, {s(S_CNT)}, 1")
I(f"s_cmp_lt_u32 {s(S_CNT)}, 4")
for k in range(4):
    I(f"v_mfma_f32_16x16x32_f16 {v(ACC+4*k,4)}, {v(OPA,4)}, {v(OPB+4*k,4)}, {v(ACC+4*k,4)}")
I("s_cbranch_scc1 L_kgen")
stamp()
GR, GK = 160, 176
nonce_wait(VZ, VNON)
for k in range(16): I(f"v_mul_f32 {v(ACC+k)}, {s(S_UNS)}, {v(ACC+k)}")
for k in range(4):
    for r in range(4):
        I(f"ds_write_b32 {v(SCB+r)}, {v(ACC+4*k+r)}")
        if k < 3: I(f"v_add_u32 {v(SCB+r)}, {v(SCB+r)}, {v(SCS + (r >> 1))}")
I("s_waitcnt lgkmcnt(0)")
I("s_barrier")
C("---- expand K into 4 shifted bf16 copies")
E0 = 40
CP = 96
XX = 144
def xs_issue():
    for k in range(4):
        I(f"global_load_dwordx2 {v(XX+2*k,2)}, {v(VT8 if k < 2 else VFL)}, {s(S_XNG,2)} offset:{2048*(k&1)} sc1")
    sweep_issue(VSW, GR, P_WS)
for d in range(2):
    Eb = E0 + 24*d
    for k in range(11):
        I(f"ds_read_b64 {v(Eb+2*k,2)}, {v(GA+k)} offset:{L_KTAB + d*KTAB_D}")
def expand(d):
    Eb = E0 + 24*d
    I(f"s_waitcnt lgkmcnt({11 if d == 0 else 4})")
    for k in range(11):
        I(f"v_add_f32 {v(Eb+2*k)}, {v(Eb+2*k)}, {v(Eb+2*k+1)}")
    for sg in range(4):
        Cb = CP + 16*d + 4*sg
        for m in range(4):
            I(f"v_cvt_pk_bf16_f32 {v(Cb+m)}, {v(Eb+2*(sg+2*m))}, {v(Eb+2*(sg+2*m+1))}")
        I(f"ds_write_b128 {v(VKCW)}, {v(Cb,4)} offset:{L_KC + d*KC_D + sg*KC_S}")
expand(0)
expand(1)
stamp()
I(f"s_cmp_lg_u32 {s(S_WAVE)}, 0")
I("s_cbranch_scc1 L_k_wait")
if PIPE: keys_poll2(VKEY, GK, 184, 32)
else: keys_poll(VKEY, GK, 32)
L("L_k_wait")
I("s_barrier")
xs_issue()
stamp()
I(f"s_cmp_lg_u32 {s(S_WAVE)}, 0")
I("s_cbranch_scc1 L_k_not0")
if PIPE:
    I("s_waitcnt vmcnt(8)")
    keys_check(GK, 32)
    I("s_cbranch_scc1 L_k_gk")
    for k in range(8): I(f"v_mov_b32 {v(GK+k)}, {v(184+k)}")
    L("L_k_gk")
keys_top2(GK, M1, M2, 44, 45)
I(f"ds_write_b64 {v(VZ)}, {v(M1,2)} offset:{L_MISC + 16}")
L("L_k_not0")
for k in range(4):
    I(f"s_waitcnt vmcnt({7-k})")
    I(f"ds_write_b64 {v(VT8)}, {v(XX+2*k,2)} offset:{L_XL + 2048*k}")
XF = 48
for k in range(8): unpack(XF+6*k+2, XX+k)
sweep(VSW, GR, 40, P_WS, issued=True, first_wait=0)
stamp()
RI = 128
for k in range(8):
    g = GR + 2*k
    I(f"v_and_b32 {v(RI+2*k)}, {s(S_MASK)}, {v(g)}")
    I(f"v_lshlrev_b32 {v(XF+6*k)}, 16, {v(g)}")
    I(f"v_rcp_f32 {v(RI+2*k)}, {v(RI+2*k)}")
for k in range(8):
    b = XF+6*k
    I(f"v_pk_add_f32 {v(b+2,2)}, {v(b+2,2)}, {v(b,2)} op_sel_hi:[1,0] neg_lo:[0,1] neg_hi:[0,1]")
for k in range(8):
    b = XF+6*k
    I(f"v_cvt_pk_bf16_f32 {v(b+4)}, {v(b+2)}, {v(b+3)}")
for k in range(8): unpack(XF+6*k+2, XF+6*k+4)
for k in range(8):
    b = XF+6*k
    I(f"v_pk_mul_f32 {v(b+2,2)}, {v(b+2,2)}, {v(RI+2*k,2)} op_sel_hi:[1,0]")
for k in range(4):
    for d in range(2):
        I(f"v_cvt_pk_bf16_f32 {v(XX+2*k+d)}, {v(XF+12*k+2+d)}, {v(XF+12*k+8+d)}")
        I(f"ds_write_b32 {v(VT4)}, {v(XX+2*k+d)} offset:{L_U + 512 + d*U_D + 1024*k}")
I("s_waitcnt lgkmcnt(0)")
I("s_barrier")
stamp()
S_TK = [52, 53]
S_OW = [54, 55]
I(f"ds_read_b64 {v(24,2)}, {v(VZ)} offset:{L_MISC + 16}")
C("---- convolution: 4 phases of 2 output tiles; K operands stay resident, finished tiles are stored under the next phase")
def AR(rl, k): return 32 + 32*rl + 4*k
def BR(buf, d): return 160 + 32*buf + 4*d
def ACCR(p, tt): return 8 + 8*(p & 1) + 4*tt
RDF, XQ, UQ, TE = 248, 24, 26, 28
def step_loads(p, rls, buf):
    ls = []
    nb = 2*p + 2
    for i, rl in enumerate(rls):
        bl = [f"ds_read_b128 {v(BR(buf, nb*i + d),4)}, {v(VB_)} offset:{512*d + 64*(3 - rl)}" for d in range(nb)]
        al = []
        for k in (2*p, 2*p+1):
            off = 64 * (63 - 8*k - rl)
            al.append(f"ds_read_b64 {v(AR(rl,k),2)}, {v(VA_)} offset:{off}")
            al.append(f"ds_read_b64 {v(AR(rl,k)+2,2)}, {v(VA_)} offset:{off+8}")
        ls += bl[:2] + al + bl[2:]
    return ["    " + x for x in ls]
def fin_reads(p):
    base = L_R1 + 8192*(p & 1)
    for w in range(4):
        I(f"ds_read_b64 {v(RDF+2*w,2)}, {v(VRR)} offset:{base + 2048*w}")
    I(f"ds_read_b64 {v(XQ,2)}, {v(VEX)} offset:{L_XL + 2048*p}")
    for d in range(2):
        I(f"ds_read_b32 {v(UQ+d)}, {v(VEU)} offset:{L_U + 512 + d*U_D + 1024*p}")
def fin_math(p):
    I(f"v_pk_add_f32 {v(RDF,2)}, {v(RDF,2)}, {v(RDF+2,2)}")
    I(f"v_pk_add_f32 {v(RDF+4,2)}, {v(RDF+4,2)}, {v(RDF+6,2)}")
    for e in range(2):
        a = TE if e == 0 else RDF + 2
        c = TE + 2 if e == 0 else RDF + 6
        unpack(a, XQ+e)
        for d in range(2):
            if e: I(f"v_and_b32 {v(c+d)}, {s(S_MASK)}, {v(UQ+d)}")
            else: I(f"v_lshlrev_b32 {v(c+d)}, 16, {v(UQ+d)}")
        I(f"v_add_f32 {v(a)}, {v(a)}, {v(RDF+e)}")
        I(f"v_add_f32 {v(a+1)}, {v(a+1)}, {v(RDF+4+e)}")
        I(f"v_pk_fma_f32 {v(a,2)}, {v(c,2)}, {s(S_DS2,2)}, {v(a,2)}")
        I(f"v_cvt_pk_bf16_f32 {v(XQ+e)}, {v(a)}, {v(a+1)}")
        I(f"s_sub_u32 {s(S_T0)}, {s(S_TK[0])}, {512*p + e}")
        I(f"s_sub_u32 {s(S_T1)}, {s(S_TK[1])}, {512*p + e}")
        I(f"v_cmp_ne_u32 vcc, {s(S_T0)}, {v(VT0)}")
        I(f"v_cmp_ne_u32 {s(S_T2,2)}, {s(S_T1)}, {v(VT0)}")
        I(f"s_and_b64 exec, vcc, {s(S_T2,2)}\n    global_store_dword {v(VOUT)}, {v(XQ+e)}, {s(P_OUT,2)} offset:{e*1024}\n    s_mov_b64 exec, -1")
    I(f"ds_write_b64 {v(VEX)}, {v(XQ,2)} offset:{L_XL + 2048*p}")
    if p < 3: I(f"v_add_u32 {v(VOUT)}, 0x80000, {v(VOUT)}")
steps = [(0, [0, 1, 2, 3]), (1, [0, 1]), (1, [2, 3])] + [(p, [rl]) for p in (2, 3) for rl in range(4)]
first_loads = step_loads(*steps[0], 0)
out.extend(first_loads)
I(f"s_waitcnt lgkmcnt(15)")
I(f"v_readfirstlane_b32 {s(S_K1)}, {v(24)}")
I(f"v_readfirstlane_b32 {s(S_K2)}, {v(25)}")
for k_, SKK in enumerate((S_K1, S_K2)):
    I(f"s_and_b32 {s(S_T0)}, {s(SKK)}, 0xffff")
    I(f"s_sub_u32 {s(S_TK[k_])}, 0xffff, {s(S_T0)}")
    I(f"s_bfe_u32 {s(S_T1)}, {s(S_TK[k_])}, 0x10008")
    I(f"s_lshl_b32 {s(S_T1)}, {s(S_T1)}, 1")
    I(f"s_bfe_u32 {s(S_T2)}, {s(S_TK[k_])}, 0x10001")
    I(f"s_or_b32 {s(S_T1)}, {s(S_T1)}, {s(S_T2)}")
    I(f"s_cmp_eq_u32 {s(S_T1)}, {s(S_WAVE)}")
    I(f"s_cselect_b32 {s(S_OW[k_])}, 1, 0")
    I(f"s_cmp_lt_u32 {s(S_TK[k_])}, 2048")
    I(f"s_cselect_b32 {s(S_OW[k_])}, {s(S_OW[k_])}, 0")
for si, (p, rls) in enumerate(steps):
    buf = si & 1
    nxt = step_loads(*steps[si+1], 1-buf) if si + 1 < len(steps) else []
    fl = []
    early = p > 0 and rls[0] == 0
    if early:
        with capture() as fl: fin_math(p-1)
    if si == len(steps) - 1:
        PB = BR(1-buf, 0)
        PA = BR(1-buf, 4)
        def part_issue(k_):
            I(f"global_load_dwordx4 {v(PB+8*k_,4)}, {v(PA+2*k_)}, {s(S_PART,2)} sc1")
            I(f"s_bfm_b64 exec, {G-64}, 0")
            I(f"global_load_dwordx4 {v(PB+8*k_+4,4)}, {v(PA+2*k_+1)}, {s(S_PART,2)} sc1")
            I("s_mov_b64 exec, -1")
        for k_ in range(2):
            I(f"s_cmp_eq_u32 {s(S_OW[k_])}, 0")
            I(f"s_cbranch_scc1 L_np{k_}")
            I(f"s_lshl_b32 {s(S_T1)}, {s(S_DP)}, 4")
            I(f"s_add_u32 {s(S_T1)}, {s(S_T1)}, {k_ << 19}")
            I(f"v_lshl_add_u32 {v(PA+2*k_)}, {v(VL)}, 12, {s(S_T1)}")
            I(f"v_add_u32 {v(PA+2*k_+1)}, 0x40000, {v(PA+2*k_)}")
            I(f"v_mov_b32 {v(PB+8*k_+4)}, 0")
            I(f"v_mov_b32 {v(PB+8*k_+5)}, {s(S_NONCE)}")
            I(f"v_mov_b32 {v(PB+8*k_+6)}, 0")
            I(f"v_mov_b32 {v(PB+8*k_+7)}, {s(S_NONCE)}")
            part_issue(k_)
            L(f"L_np{k_}")
        I("s_nop 3")
    nb = 2*p + 2
    work = []
    for i, rl in enumerate(rls):
        pairs = [(ch, T-ch) for T in (2*p, 2*p+1) for ch in range(T+1)]
        pairs.sort(key=lambda q: (max(q[0] if q[0] >= 2*p else 0, q[1])))
        work += [(i, rl, ch, dl) for (ch, dl) in pairs]
    if si > 0 and not early: I("s_waitcnt lgkmcnt(0)")
    if early: fin_reads(p-1)
    seen = set()
    skip = 3 if early else 0
    pern = -(-len(nxt) // len(work)) if nxt else 0
    perf = -(-len(fl) // (len(work) - skip)) if fl else 0
    ni = fi = 0
    lasti = -1
    for (i, rl, ch, dl) in work:
        if si == 0 and i != lasti:
            lasti = i
            I(f"s_waitcnt lgkmcnt({min(15, len(first_loads) - 6*(i+1) + ni)})")
        T = ch + dl
        acc = ACCR(p, T & 1)
        first = rl == 0 and T not in seen; seen.add(T)
        I(f"v_mfma_f32_16x16x32_bf16 {v(acc,4)}, {v(AR(rl,ch),4)}, {v(BR(buf,nb*i+dl),4)}, {'0' if first else v(acc,4)}")
        out.extend(nxt[ni:ni+pern]); ni += len(nxt[ni:ni+pern])
        if skip > 0:
            skip -= 1
            if skip == 0: I(f"s_waitcnt lgkmcnt({min(15, ni)})")
            continue
        out.extend(fl[fi:fi+perf]); fi += perf
    out.extend(nxt[ni:]); out.extend(fl[fi:])
    if rls[-1] == 3:
        I("s_nop 7")
        for tt in range(2):
            I(f"ds_write_b128 {v(VRW)}, {v(ACCR(p,tt),4)} offset:{L_R1 + 8192*(p & 1) + 1024*tt}")
        I("s_waitcnt lgkmcnt(0)")
        I("s_barrier")
        if p in (1, 3): stamp()
fin_reads(3)
I("s_waitcnt lgkmcnt(0)")
fin_math(3)
stamp()
C("---- routed rows: out = base row + sigmoid(r) * FFN(row)")
I("s_waitcnt lgkmcnt(0)")
for k_, SKK in enumerate((S_K1, S_K2)):
    B_ = PB + 8*k_
    I(f"s_cmp_eq_u32 {s(S_OW[k_])}, 0")
    I(f"s_cbranch_scc1 L_fix_skip{k_}")
    I(f"s_lshl_b32 {s(S_T2)}, {s(S_TK[k_])}, 2")
    I(f"v_mov_b32 {v(77)}, {s(S_T2)}")
    I(f"ds_read_b32 {v(79)}, {v(77)} offset:{L_XL}")
    I(f"s_lshr_b32 {s(S_T2)}, {s(SKK)}, 16")
    I(f"s_lshr_b32 {s(S_T3)}, {s(S_T2)}, 15")
    I(f"s_cmp_eq_u32 {s(S_T3)}, 1")
    I(f"s_mov_b32 {s(S_T3)}, 0xffff")
    I(f"s_cselect_b32 {s(S_T3)}, 0x8000, {s(S_T3)}")
    I(f"s_xor_b32 {s(S_T2)}, {s(S_T2)}, {s(S_T3)}")
    I(f"s_lshl_b32 {s(S_T2)}, {s(S_T2)}, 16")
    I(f"v_mov_b32 {v(92)}, {f2u(-LOG2E):#x}")
    I(f"v_mul_f32 {v(92)}, {s(S_T2)}, {v(92)}")
    I(f"v_exp_f32 {v(92)}, {v(92)}")
    I("s_nop 0")
    I(f"v_add_f32 {v(92)}, 1.0, {v(92)}")
    I(f"v_rcp_f32 {v(92)}, {v(92)}")
    I("s_nop 0")
    I(f"v_cvt_pk_bf16_f32 {v(92)}, {v(92)}, {v(92)}")
    I(f"v_lshlrev_b32 {v(92)}, 16, {v(92)}")
    I(f"s_mov_b32 {s(S_CNT)}, 0")
    I("s_waitcnt vmcnt(2)")
    I(f"s_branch L_fixchk{k_}")
    L(f"L_fixpoll{k_}")
    I("s_sleep 2")
    part_issue(k_)
    I("s_waitcnt vmcnt(0)")
    L(f"L_fixchk{k_}")
    I(f"v_xor_b32 {v(88)}, {s(S_NONCE)}, {v(B_+1)}")
    I(f"v_xor_b32 {v(89)}, {s(S_NONCE)}, {v(B_+3)}")
    I(f"v_xor_b32 {v(93)}, {s(S_NONCE)}, {v(B_+5)}")
    I(f"v_xor_b32 {v(94)}, {s(S_NONCE)}, {v(B_+7)}")
    I(f"v_or3_b32 {v(88)}, {v(88)}, {v(89)}, {v(93)}")
    I(f"v_or_b32 {v(88)}, {v(88)}, {v(94)}")
    I(f"v_cmp_ne_u32 vcc, 0, {v(88)}")
    I(f"s_add_u32 {s(S_CNT)}, {s(S_CNT)}, 1")
    I(f"s_cmp_eq_u64 vcc, 0")
    I(f"s_cbranch_scc1 L_fixdone{k_}")
    I(f"s_cmp_lt_u32 {s(S_CNT)}, {POLL_LIMIT}")
    I(f"s_cbranch_scc1 L_fixpoll{k_}")
    L(f"L_fixdone{k_}")
    I(f"v_add_f32 {v(80)}, {v(B_)}, {v(B_+4)}")
    I(f"v_add_f32 {v(82)}, {v(B_+2)}, {v(B_+6)}")
    I("s_nop 0")
    dpp_reduce([80, 82])
    I("s_nop 0")
    I(f"v_cvt_pk_bf16_f32 {v(84)}, {v(80)}, {v(82)}")
    unpack(80, 84)
    I("s_waitcnt lgkmcnt(0)")
    unpack(82, 79)
    I(f"v_pk_fma_f32 {v(80,2)}, {v(80,2)}, {v(92,2)}, {v(82,2)} op_sel_hi:[1,0,1]")
    I(f"v_cvt_pk_bf16_f32 {v(84+k_)}, {v(80)}, {v(81)}")
    I(f"s_lshl_b32 {s(S_T1)}, {s(S_TK[k_])}, 10")
    I(f"s_lshl_b32 {s(S_T2)}, {s(S_DP)}, 2")
    I(f"s_add_u32 {s(S_T1)}, {s(S_T1)}, {s(S_T2)}")
    I(f"v_mov_b32 {v(86+k_)}, {s(S_T1)}")
    I("s_lshl_b64 exec, 1, 63")
    I(f"global_store_dword {v(86+k_)}, {v(84+k_)}, {s(P_OUT,2)}")
    I("s_mov_b64 exec, -1")
    L(f"L_fix_skip{k_}")
I("s_branch L_fin")

L("L_ffn")
nstamp[0] = 1
C("==== FFN role")
S_G = 47
I(f"s_sub_u32 {s(S_T0)}, s2, {NLN + NCONV}")
I(f"s_and_b32 {s(S_T1)}, {s(S_T0)}, 7")
I(f"s_mul_i32 {s(S_T1)}, {s(S_T1)}, 14")
I(f"s_lshr_b32 {s(S_T0)}, {s(S_T0)}, 3")
I(f"s_add_u32 {s(S_G)}, {s(S_T0)}, {s(S_T1)}")
WL = 32
t1, t2, t3, t4 = 12, 13, 14, 15
I(f"v_lshlrev_b32 {v(t4)}, 4, v0")
I(f"v_lshrrev_b32 {v(t1)}, 2, v0")
I(f"v_mul_u32_u24 {v(t1)}, 3584, {v(t1)}")
I(f"v_and_b32 {v(t2)}, 1, v0")
I(f"v_lshl_add_u32 {v(t1)}, {v(t2)}, 4, {v(t1)}")
I(f"s_lshl_b32 {s(S_T0)}, {s(S_G)}, 5")
I(f"v_add_u32 {v(t1)}, {s(S_T0)}, {v(t1)}")
I(f"v_and_b32 {v(t2)}, 2, v0")
I(f"v_cmp_eq_u32 vcc, 0, {v(t2)}")
I("s_waitcnt lgkmcnt(0)")
I(f"v_mov_b32 {v(16)}, {s(P_WU)}")
I(f"v_mov_b32 {v(17)}, {s(P_WU+1)}")
I(f"v_mov_b32 {v(18)}, {s(P_WG)}")
I(f"v_mov_b32 {v(19)}, {s(P_WG+1)}")
I(f"v_cndmask_b32 {v(16)}, {v(16)}, {v(18)}, vcc")
I(f"v_cndmask_b32 {v(17)}, {v(17)}, {v(19)}, vcc")
I(f"v_add_co_u32 {v(16)}, vcc, {v(16)}, {v(t1)}")
I("s_nop 1")
I(f"v_addc_co_u32 {v(17)}, vcc, {v(17)}, {v(VZ)}, vcc")
I(f"s_add_u32 {s(S_PART)}, {s(P_WS)}, {WS_PART}")
I(f"s_addc_u32 {s(S_PART+1)}, {s(P_WS+1)}, 0")
stamp()
I(f"s_mov_b32 {s(S_T1)}, {64*3584}")
WD = 96
I(f"s_lshl_b32 {s(S_T0)}, {s(S_G)}, 14")
I(f"v_lshl_add_u32 {v(t3)}, v0, 2, {s(S_T0)}")
for p in range(8):
    I(f"global_load_dwordx4 {v(WL+4*p,4)}, {v(16,2)}, off")
    if p < 7:
        I(f"v_add_co_u32 {v(16)}, vcc, {s(S_T1)}, {v(16)}")
        I("s_nop 1")
        I(f"v_addc_co_u32 {v(17)}, vcc, {v(17)}, {v(VZ)}, vcc")
for f in range(16):
    if f and f % 4 == 0:
        I(f"v_add_u32 {v(t3)}, 4096, {v(t3)}")
    I(f"global_load_dword {v(WD+f)}, {v(t3)}, {s(P_WD,2)} offset:{(f&3)*1024}")
nonce_issue(VZ, 22)
for p in range(8):
    I(f"s_waitcnt vmcnt({17 + 7 - p})")
    I(f"ds_write_b128 {v(t4)}, {v(WL+4*p,4)} offset:{F_W + 4096*p}")
stamp()
I(f"v_lshrrev_b32 {v(t1)}, 2, {v(VJ)}")
I(f"v_lshl_add_u32 {v(t1)}, {v(VKG)}, 3, {v(t1)}")
I(f"v_lshlrev_b32 {v(t1)}, 6, {v(t1)}")
I(f"v_and_b32 {v(t2)}, 1, {v(VL)}")
I(f"v_lshl_add_u32 {v(t1)}, {v(t2)}, 3, {v(t1)}")
I(f"v_and_b32 {v(t2)}, 2, {v(VL)}")
I(f"v_lshl_add_u32 {v(t1)}, {v(t2)}, 4, {v(t1)}")
I(f"s_and_b32 {s(S_T0)}, {s(S_WAVE)}, 1")
I(f"s_lshl_b32 {s(S_T0)}, {s(S_T0)}, 4")
I(f"v_add_u32 {v(t1)}, {s(S_T0)}, {v(t1)}")
I("s_waitcnt lgkmcnt(0)")
I("s_barrier")
for st in range(16):
    I(f"ds_read_b64_tr_b16 {v(WL+4*st,2)}, {v(t1)} offset:{F_W + 2048*st}")
    I(f"ds_read_b64_tr_b16 {v(WL+4*st+2,2)}, {v(t1)} offset:{F_W + 2048*st + 256}")
WF = 128
nonce_wait(VZ, 22)
for f in range(16): unpack(WF+2*f, WD+f)
I(f"v_bfe_u32 {v(t2)}, {v(VJ)}, 2, 1")
I(f"v_lshlrev_b32 {v(t2)}, 10, {v(t2)}")
I(f"v_lshl_add_u32 {v(t2)}, {v(VKG)}, 4, {v(t2)}")
I(f"s_and_b32 {s(S_T1)}, {s(S_WAVE)}, 1")
I(f"s_lshl_b32 {s(S_T1)}, {s(S_T1)}, 9")
I(f"v_lshl_add_u32 {v(24)}, {v(VL)}, 3, {s(S_T1)}")
I(f"s_lshr_b32 {s(S_T0)}, {s(S_WAVE)}, 1")
I(f"s_lshl_b32 {s(S_T1)}, {s(S_T0)}, 10")
I(f"v_add_u32 {v(25)}, {s(S_T1)}, {v(24)}")
I("s_waitcnt lgkmcnt(0)")
stamp()
GK = 192
I(f"s_setprio {FPRIO}")
I(f"s_cmp_lg_u32 {s(S_WAVE)}, 0")
I("s_cbranch_scc1 L_fk_wait")
keys_poll(VKEY, GK, 20)
keys_top2(GK, 224, 225, 21, 22)
I(f"ds_write_b64 {v(VZ)}, {v(224,2)} offset:{L_MISC + 16}")
I("s_waitcnt lgkmcnt(0)")
L("L_fk_wait")
I("s_barrier")
stamp()
I(f"ds_read_b64 {v(224,2)}, {v(VZ)} offset:{L_MISC + 16}")
I("s_waitcnt lgkmcnt(0)")
I(f"v_readfirstlane_b32 {s(S_K1)}, {v(224)}")
I(f"v_readfirstlane_b32 {s(S_K2)}, {v(225)}")
I(f"s_cmp_lt_u32 {s(S_WAVE)}, 2")
I("s_nop 2")
I(f"s_cselect_b32 {s(S_T0)}, {s(S_K1)}, {s(S_K2)}")
I(f"s_and_b32 {s(S_T0)}, {s(S_T0)}, 0xffff")
I(f"s_sub_u32 {s(S_T0)}, 0xffff, {s(S_T0)}")
I(f"s_min_u32 {s(S_T0)}, {s(S_T0)}, 2047")
I(f"s_lshl_b32 {s(S_T1)}, {s(S_T0)}, 10")
I(f"v_add_u32 {v(97)}, {s(S_T1)}, {v(24)}")
I(f"s_lshl_b32 {s(S_T1)}, {s(S_T0)}, 3")
I(f"v_mov_b32 {v(99)}, {s(S_T1)}")
I(f"global_load_dwordx2 {v(100,2)}, {v(97)}, {s(P_U,2)}")
I(f"s_mov_b32 {s(S_CNT)}, 0")
L("L_f_stat")
I(f"global_load_dwordx2 {v(104,2)}, {v(99)}, {s(P_WS,2)} sc1")
I("s_waitcnt vmcnt(0)")
I(f"v_cmp_ne_u32 vcc, {s(S_NONCE)}, {v(105)}")
I(f"s_add_u32 {s(S_CNT)}, {s(S_CNT)}, 1")
I(f"s_cmp_eq_u64 vcc, 0")
I(f"s_cbranch_scc1 L_f_stat_done")
I("s_sleep 1")
I(f"s_cmp_lt_u32 {s(S_CNT)}, {POLL_LIMIT}")
I(f"s_cbranch_scc1 L_f_stat")
L("L_f_stat_done")
stamp()
I(f"v_and_b32 {v(106)}, {s(S_MASK)}, {v(104)}")
I(f"v_lshlrev_b32 {v(104)}, 16, {v(104)}")
I(f"v_rcp_f32 {v(106)}, {v(106)}")
for k in range(2): unpack(108+2*k, 100+k)
for k in range(2): I(f"v_pk_add_f32 {v(108+2*k,2)}, {v(108+2*k,2)}, {v(104,2)} op_sel_hi:[1,0] neg_lo:[0,1] neg_hi:[0,1]")
for k in range(2): I(f"v_cvt_pk_bf16_f32 {v(100+k)}, {v(108+2*k)}, {v(109+2*k)}")
for k in range(2): unpack(108+2*k, 100+k)
for k in range(2): I(f"v_pk_mul_f32 {v(108+2*k,2)}, {v(108+2*k,2)}, {v(106,2)} op_sel_hi:[1,0]")
for k in range(2): I(f"v_cvt_pk_bf16_f32 {v(100+k)}, {v(108+2*k)}, {v(109+2*k)}")
I(f"ds_write_b64 {v(25)}, {v(100,2)} offset:{F_XS}")
I("s_waitcnt lgkmcnt(0)")
I("s_barrier")
I(f"s_cmp_ge_u32 {s(S_WAVE)}, 2")
I("s_cbranch_scc1 L_f_nogu")
AX = 160
for st in range(16):
    I(f"ds_read_b128 {v(AX+4*st,4)}, {v(t2)} offset:{F_XS + 64*st}")
AC = 96
for st in range(16):
    I(f"s_waitcnt lgkmcnt({15-st})")
    a = AC + 4*(st & 1)
    I(f"v_mfma_f32_16x16x32_bf16 {v(a,4)}, {v(AX+4*st,4)}, {v(WL+4*st,4)}, {'0' if st < 2 else v(a,4)}")
I(f"v_lshlrev_b32 {v(107)}, 7, {v(VKG)}")
I(f"v_lshl_add_u32 {v(107)}, {v(VJ)}, 3, {v(107)}")
I(f"s_lshl_b32 {s(S_T0)}, {s(S_WAVE)}, 6")
I(f"v_add_u32 {v(107)}, {s(S_T0)}, {v(107)}")
I("s_nop 4")
I(f"v_add_f32 {v(104)}, {v(AC)}, {v(AC+4)}")
I(f"v_cvt_pk_bf16_f32 {v(104)}, {v(104)}, {v(104)}")
I(f"v_lshlrev_b32 {v(104)}, 16, {v(104)}")
I(f"v_mul_f32 {v(105)}, {f2u(-LOG2E):#x}, {v(104)}")
I(f"v_exp_f32 {v(105)}, {v(105)}")
I(f"v_mov_b32_dpp {v(106)}, {v(104)} row_ror:8 row_mask:0xf bank_mask:0xf")
I(f"v_add_f32 {v(105)}, 1.0, {v(105)}")
I(f"v_rcp_f32 {v(105)}, {v(105)}")
I("s_nop 0")
I(f"v_mul_f32 {v(105)}, {v(104)}, {v(105)}")
I(f"v_cvt_pk_bf16_f32 {v(105)}, {v(105)}, {v(105)}")
I(f"v_lshlrev_b32 {v(105)}, 16, {v(105)}")
I(f"v_mul_f32 {v(105)}, {v(105)}, {v(106)}")
I(f"v_cvt_pk_bf16_f32 {v(105)}, {v(105)}, {v(105)}")
I(f"v_lshlrev_b32 {v(105)}, 16, {v(105)}")
I("s_mov_b64 exec, 0x00ff00ff")
I(f"ds_write2_b32 {v(107)}, {v(105)}, {v(105)} offset0:{F_H//4} offset1:{F_H//4+1}")
I("s_mov_b64 exec, -1")
I("s_waitcnt lgkmcnt(0)")
L("L_f_nogu")
I("s_barrier")
HB = 160
for q in range(16):
    I(f"ds_read_b128 {v(HB+4*q,4)}, {v(VZ)} offset:{F_H + 16*q}")
Y0, Y1 = 96, 100
I(f"s_lshl_b32 {s(S_T0)}, {s(S_G)}, 12")
I(f"v_lshl_add_u32 {v(112)}, v0, 4, {s(S_T0)}")
I(f"v_add_u32 {v(113)}, 0x80000, {v(112)}")
for Y in (Y0, Y1):
    I(f"v_mov_b32 {v(Y+1)}, {s(S_NONCE)}")
    I(f"v_mov_b32 {v(Y+3)}, {s(S_NONCE)}")
for q in range(16):
    tok = q >> 3
    I(f"s_waitcnt lgkmcnt({15-q})")
    for e in range(2):
        f = 2*(q & 7) + e
        acc = 104 + 4*tok + 2*e
        hp = HB + 4*q + 2*e
        if f < 2:
            I(f"v_pk_mul_f32 {v(acc,2)}, {v(WF+2*f,2)}, {v(hp,2)}")
        else:
            I(f"v_pk_fma_f32 {v(acc,2)}, {v(WF+2*f,2)}, {v(hp,2)}, {v(acc,2)}")
    if q == 7 or q == 15:
        Y = Y0 if q == 7 else Y1
        I(f"v_add_f32 {v(Y)}, {v(104+4*tok)}, {v(106+4*tok)}")
        I(f"v_add_f32 {v(Y+2)}, {v(105+4*tok)}, {v(107+4*tok)}")
        I(f"global_store_dwordx4 {v(112+tok)}, {v(Y,4)}, {s(S_PART,2)} sc1")
stamp()
L("L_fin")
if STAMP:
    I("s_waitcnt vmcnt(0) lgkmcnt(0)")
    I(f"s_memtime {s(S_ST + 22, 2)}")
    I(f"s_memrealtime {s(S_T2, 2)}")
    I(f"s_add_u32 {s(S_STB)}, {s(P_WS)}, {WS_STAMP}")
    I(f"s_addc_u32 {s(S_STB+1)}, {s(P_WS+1)}, 0")
    I(f"s_lshl_b32 {s(S_T0)}, s2, 2")
    I(f"s_add_u32 {s(S_T0)}, {s(S_T0)}, {s(S_WAVE)}")
    I(f"s_lshl_b32 {s(S_T0)}, {s(S_T0)}, 7")
    I("s_waitcnt lgkmcnt(0)")
    I(f"v_mov_b32 v10, {s(S_T0)}")
    I("s_mov_b64 exec, 1")
    for k in range(12):
        I(f"v_mov_b32 v12, {s(S_ST+2*k)}")
        I(f"v_mov_b32 v13, {s(S_ST+2*k+1)}")
        I(f"global_store_dwordx2 v10, v[12:13], {s(S_STB,2)} offset:{8*k}")
        I("s_nop 1")
    I(f"v_mov_b32 v12, {s(S_T2)}")
    I(f"v_mov_b32 v13, {s(S_T3)}")
    I(f"global_store_dwordx2 v10, v[12:13], {s(S_STB,2)} offset:96")
L("L_end")
I("s_endpgm")
out.append('.section .rodata,"a"')
out.append(".p2align 6")
out.append(f".amdhsa_kernel {KNAME}")
out.append("  .amdhsa_next_free_vgpr 256")
out.append("  .amdhsa_next_free_sgpr 102")
out.append("  .amdhsa_accum_offset 256")
out.append("  .amdhsa_group_segment_fixed_size 0")
out.append("  .amdhsa_kernarg_size 136")
out.append("  .amdhsa_user_sgpr_count 2")
out.append("  .amdhsa_user_sgpr_kernarg_segment_ptr 1")
out.append("  .amdhsa_system_sgpr_workgroup_id_x 1")
out.append("  .amdhsa_float_denorm_mode_32 3")
out.append(".end_amdhsa_kernel")
dst = [a for a in sys.argv[1:] if not a.startswith("--")]
open(dst[0] if dst else "k.s", "w").write("\n".join(x for x in out if x is not None) + "\n")
```

```python
import sys, struct, math

KNAME = "parallel_sum__ssm_conv_s4__moe_arch_mod__prompt_kernel"
NLN = 128
NCONV = 256
G = 112
NWG = NLN + NCONV + G
STAMP = "--stamp" in sys.argv

WS_STATS = 0
WS_KEYS = 16384
WS_FLAG = 32768
WS_PART = 65536
WS_STAMP = 2 << 20
WS_XNG = 4 << 20
WS_XT = 8 << 20

L_MISC = 0
L_KC = 256
KC_S = 4160
KC_D = 4 * KC_S
L_U = L_KC + 2 * KC_D
U_D = 4608
L_XL = L_U + 2 * U_D
L_R1 = L_XL + 8192
L_KTAB = L_R1
KTAB_D = 7680
L_PAR = L_XL
L_R2 = L_R1
LDS_BYTES = L_R1 + 16384
ZIDX = 840
TRASH = 848
TS = 1040
L_T1 = L_KC
L_T2 = L_T1 + 16 * TS
F_H = 256
F_XS = 512
F_W = F_XS + 2048
assert F_W + 32768 <= LDS_BYTES
assert LDS_BYTES <= 81920
POLL_LIMIT = 40000
def opt(name, dflt):
    m = [a for a in sys.argv if a.startswith(f"--{name}=")]
    return int(m[0].split("=")[1]) if m else dflt
LNPRIO = opt("lnprio", 2)
FPRIO = opt("fprio", 3)
PFPOS = opt("pfpos", 0)
PIPE = opt("pipe", 0)
KSLEEP = int([a for a in sys.argv if a.startswith("--ksleep=")][0][9:]) if any(a.startswith("--ksleep=") for a in sys.argv) else 3

out = []
cur = [out]
def I(s): cur[0].append("    " + s)
def L(s): cur[0].append(s + ":")
def C(s): cur[0].append("    ; " + s)
class capture:
    def __enter__(self):
        self.prev = cur[0]; self.lst = []; cur[0] = self.lst; return self.lst
    def __exit__(self, *a): cur[0] = self.prev
def f2u(x): return struct.unpack("<I", struct.pack("<f", x))[0]
def v(a, n=1): return f"v{a}" if n == 1 else f"v[{a}:{a+n-1}]"
def s(a, n=1): return f"s{a}" if n == 1 else f"s[{a}:{a+n-1}]"
uid = [0]
def lab(p):
    uid[0] += 1
    return f"L_{p}_{uid[0]}"

P_U, P_ARE, P_AIM, P_BRE, P_BIM, P_CRE, P_CIM, P_LDT = 8, 10, 12, 14, 16, 18, 20, 22
P_DSK, P_BX, P_WR, P_WG, P_WU, P_WD, P_OUT, P_DBG = 24, 26, 28, 30, 32, 34, 36, 38
P_WS = 40
S_WAVE, S_DP, S_NONCE, S_LDT, S_DSK, S_ROW0 = 42, 43, 44, 45, 46, 47
S_T0, S_T1, S_T2, S_T3 = 48, 49, 50, 51
S_X0 = 52
S_R = 56
S_DS2 = 60
S_UNS = 62
S_M0 = 63
S_CNT = 64
S_EXEC = 66
S_PART = 70
S_K1, S_K2 = 72, 73
S_XNG = 68
S_XT = 4
S_XNB = 6
S_MASK = 74
S_ST = 76
S_STB = 100
LOG2E = math.log2(math.e)

nstamp = [0]
def stamp():
    if not STAMP: return
    k = nstamp[0]; nstamp[0] += 1
    assert k < 11
    I(f"s_memtime {s(S_ST + 2*k, 2)}")

DPP4 = ("quad_perm:[1,0,3,2] row_mask:0xf bank_mask:0xf",
        "quad_perm:[2,3,0,1] row_mask:0xf bank_mask:0xf",
        "row_half_mirror row_mask:0xf bank_mask:0xf",
        "row_mirror row_mask:0xf bank_mask:0xf")
DPP6 = DPP4 + ("row_bcast:15 row_mask:0xa bank_mask:0xf", "row_bcast:31 row_mask:0xc bank_mask:0xf")
def dpp_reduce(regs, op="v_add_f32"):
    for mode in DPP6:
        pad = max(0, 3 - len(regs))
        if pad: I(f"s_nop {pad-1}")
        for r in regs:
            I(f"{op}_dpp {v(r)}, {v(r)}, {v(r)} {mode}")

def nonce_cas(vz, vt):
    l = lab("nocas")
    I(f"s_cmp_lg_u32 {s(S_T0)}, 0")
    I(f"s_cbranch_scc1 {l}")
    I(f"s_memrealtime {s(S_T2,2)}")
    I("s_waitcnt lgkmcnt(0)")
    I(f"s_or_b32 {s(S_T2)}, {s(S_T2)}, 1")
    I(f"v_mov_b32 {v(vt)}, {s(S_T2)}")
    I(f"v_mov_b32 {v(vt+1)}, 0")
    I("s_mov_b64 exec, 1")
    I(f"global_atomic_cmpswap {v(vz)}, {v(vt,2)}, {s(P_DBG,2)} sc1")
    I("s_mov_b64 exec, -1")
    L(l)

def nonce_issue(vz, vt):
    I(f"global_load_dword {v(vt)}, {v(vz)}, {s(P_DBG,2)} sc1")

def nonce_wait(vz, vt, first=0):
    l = lab("npoll"); done = l + "_done"
    I(f"s_mov_b32 {s(S_CNT)}, 0")
    if first:
        I(f"s_waitcnt vmcnt({first})")
        I(f"s_branch {l}_chk")
    L(l)
    I("s_waitcnt vmcnt(0)")
    L(l + "_chk")
    I(f"v_readfirstlane_b32 {s(S_NONCE)}, {v(vt)}")
    I(f"s_add_u32 {s(S_CNT)}, {s(S_CNT)}, 1")
    I(f"s_cmp_lg_u32 {s(S_NONCE)}, 0")
    I(f"s_cbranch_scc1 {done}")
    I(f"s_cmp_ge_u32 {s(S_CNT)}, {POLL_LIMIT}")
    I(f"s_cbranch_scc1 {done}")
    I("s_sleep 1")
    nonce_issue(vz, vt)
    I(f"s_branch {l}")
    L(done)

def sweep_issue(vaddr, GR, base):
    for k in range(4):
        I(f"global_load_dwordx4 {v(GR+4*k,4)}, {v(vaddr+k)}, {s(base,2)} sc1")

def sweep_check(GR, vtmp):
    I(f"v_xor_b32 {v(vtmp)}, {s(S_NONCE)}, {v(GR+1)}")
    I(f"v_xor_b32 {v(vtmp+1)}, {s(S_NONCE)}, {v(GR+3)}")
    for k in range(1, 4):
        I(f"v_xor_b32 {v(vtmp+2)}, {s(S_NONCE)}, {v(GR+4*k+1)}")
        I(f"v_xor_b32 {v(vtmp+3)}, {s(S_NONCE)}, {v(GR+4*k+3)}")
        I(f"v_or3_b32 {v(vtmp)}, {v(vtmp)}, {v(vtmp+2)}, {v(vtmp+3)}")
    I(f"v_or_b32 {v(vtmp)}, {v(vtmp)}, {v(vtmp+1)}")
    I(f"v_cmp_ne_u32 vcc, 0, {v(vtmp)}")

def sweep(vaddr, GR, vtmp, base, issued=False, first_wait=0):
    l = lab("sweep"); done = l + "_done"; chk = l + "_chk"
    I(f"s_mov_b32 {s(S_CNT)}, 0")
    if issued:
        I(f"s_waitcnt vmcnt({first_wait})")
        I(f"s_branch {chk}")
    L(l)
    sweep_issue(vaddr, GR, base)
    I("s_waitcnt vmcnt(0)")
    L(chk)
    sweep_check(GR, vtmp)
    I(f"s_add_u32 {s(S_CNT)}, {s(S_CNT)}, 1")
    I(f"s_cmp_eq_u64 vcc, 0")
    I(f"s_cbranch_scc1 {done}")
    I("s_sleep 4")
    I(f"s_cmp_lt_u32 {s(S_CNT)}, {POLL_LIMIT}")
    I(f"s_cbranch_scc1 {l}")
    L(done)

def poll4(vaddr, GR, tagpos, vtmp, issued=False, first_wait=0, sleep=2):
    l = lab("poll"); done = l + "_done"; chk = l + "_chk"
    I(f"s_mov_b32 {s(S_CNT)}, 0")
    if issued:
        I(f"s_waitcnt vmcnt({first_wait})")
        I(f"s_branch {chk}")
    L(l)
    I(f"global_load_dwordx4 {v(GR,4)}, {v(vaddr)}, {s(P_WS,2)} sc1")
    I("s_waitcnt vmcnt(0)")
    L(chk)
    for k, tp in enumerate(tagpos): I(f"v_xor_b32 {v(vtmp+k)}, {s(S_NONCE)}, {v(GR+tp)}")
    if len(tagpos) == 4:
        I(f"v_or3_b32 {v(vtmp)}, {v(vtmp)}, {v(vtmp+2)}, {v(vtmp+3)}")
    I(f"v_or_b32 {v(vtmp)}, {v(vtmp)}, {v(vtmp+1)}")
    I(f"v_cmp_ne_u32 vcc, 0, {v(vtmp)}")
    I(f"s_add_u32 {s(S_CNT)}, {s(S_CNT)}, 1")
    I(f"s_cmp_eq_u64 vcc, 0")
    I(f"s_cbranch_scc1 {done}")
    I(f"s_sleep {sleep}")
    I(f"s_cmp_lt_u32 {s(S_CNT)}, {POLL_LIMIT}")
    I(f"s_cbranch_scc1 {l}")
    L(done)

def top2_wave(GR, m1, m2, t1, t2):
    I(f"v_mov_b32 {v(m1)}, {v(GR)}")
    I(f"v_mov_b32 {v(m2)}, {v(GR+2)}")
    for mode in DPP4:
        I("s_nop 1")
        I(f"v_mov_b32_dpp {v(t1)}, {v(m1)} {mode}")
        I(f"v_max_u32_dpp {v(t2)}, {v(m2)}, {v(m2)} {mode}")
        I(f"v_med3_u32 {v(m2)}, {v(m1)}, {v(t1)}, {v(t2)}")
        I(f"v_max_u32 {v(m1)}, {v(m1)}, {v(t1)}")
    for swp in ("v_permlane16_swap_b32", "v_permlane32_swap_b32"):
        I(f"v_mov_b32 {v(t1)}, {v(m1)}")
        I(f"v_mov_b32 {v(t2)}, {v(m2)}")
        I("s_nop 1")
        I(f"{swp} {v(m1)}, {v(t1)}")
        I(f"{swp} {v(m2)}, {v(t2)}")
        I("s_nop 0")
        I(f"v_max_u32 {v(t2)}, {v(m2)}, {v(t2)}")
        I(f"v_med3_u32 {v(m2)}, {v(m1)}, {v(t1)}, {v(t2)}")
        I(f"v_max_u32 {v(m1)}, {v(m1)}, {v(t1)}")

def top2_combine(a, t1):
    for k in (1, 2, 3):
        I(f"v_max_u32 {v(t1)}, {v(a+1)}, {v(a+2*k+1)}")
        I(f"v_med3_u32 {v(a+1)}, {v(a)}, {v(a+2*k)}, {v(t1)}")
        I(f"v_max_u32 {v(a)}, {v(a)}, {v(a+2*k)}")

def unpack(dst, src):
    I(f"v_lshlrev_b32 {v(dst)}, 16, {v(src)}")
    I(f"v_and_b32 {v(dst+1)}, {s(S_MASK)}, {v(src)}")


def keys_poll(vaddr, GK, vtmp):
    l = lab("kpoll"); done = l + "_done"
    I(f"s_mov_b32 {s(S_CNT)}, 0")
    L(l)
    I(f"global_load_dwordx4 {v(GK,4)}, {v(vaddr)}, {s(P_WS,2)} sc1")
    I(f"global_load_dwordx4 {v(GK+4,4)}, {v(vaddr+1)}, {s(P_WS,2)} sc1")
    I("s_waitcnt vmcnt(0)")
    for k in range(4): I(f"v_xor_b32 {v(vtmp+k)}, {s(S_NONCE)}, {v(GK+2*k+1)}")
    I(f"v_or3_b32 {v(vtmp)}, {v(vtmp)}, {v(vtmp+2)}, {v(vtmp+3)}")
    I(f"v_or_b32 {v(vtmp)}, {v(vtmp)}, {v(vtmp+1)}")
    I(f"v_cmp_ne_u32 vcc, 0, {v(vtmp)}")
    I(f"s_add_u32 {s(S_CNT)}, {s(S_CNT)}, 1")
    I(f"s_cmp_eq_u64 vcc, 0")
    I(f"s_cbranch_scc1 {done}")
    I(f"s_sleep {KSLEEP}")
    I(f"s_cmp_lt_u32 {s(S_CNT)}, {POLL_LIMIT}")
    I(f"s_cbranch_scc1 {l}")
    L(done)

def keys_top2(GK, m1, m2, t1, t2):
    I(f"v_max_u32 {v(t2)}, {v(GK+2)}, {v(GK+6)}")
    I(f"v_med3_u32 {v(GK+2)}, {v(GK)}, {v(GK+4)}, {v(t2)}")
    I(f"v_max_u32 {v(GK)}, {v(GK)}, {v(GK+4)}")
    top2_wave(GK, m1, m2, t1, t2)
    I("s_nop 0")
    I(f"v_readfirstlane_b32 {s(S_K1)}, {v(m1)}")
    I(f"v_readfirstlane_b32 {s(S_K2)}, {v(m2)}")


def keys_issue(vaddr, GK):
    I(f"global_load_dwordx4 {v(GK,4)}, {v(vaddr)}, {s(P_WS,2)} sc1")
    I(f"global_load_dwordx4 {v(GK+4,4)}, {v(vaddr+1)}, {s(P_WS,2)} sc1")
def keys_check(GK, vtmp):
    for k in range(4): I(f"v_xor_b32 {v(vtmp+k)}, {s(S_NONCE)}, {v(GK+2*k+1)}")
    I(f"v_or3_b32 {v(vtmp)}, {v(vtmp)}, {v(vtmp+2)}, {v(vtmp+3)}")
    I(f"v_or_b32 {v(vtmp)}, {v(vtmp)}, {v(vtmp+1)}")
    I(f"v_cmp_ne_u32 vcc, 0, {v(vtmp)}")
    I(f"s_cmp_eq_u64 vcc, 0")

def keys_poll2(vaddr, GK, GK2, vtmp):
    l = lab("kp2"); doneA = l + "_a"; doneB = l + "_b"
    I(f"s_mov_b32 {s(S_CNT)}, 0")
    keys_issue(vaddr, GK)
    L(l)
    I(f"s_sleep {PIPE}")
    keys_issue(vaddr, GK2)
    I("s_waitcnt vmcnt(2)")
    keys_check(GK, vtmp)
    I(f"s_cbranch_scc1 {doneA}")
    I(f"s_sleep {PIPE}")
    keys_issue(vaddr, GK)
    I("s_waitcnt vmcnt(2)")
    keys_check(GK2, vtmp)
    I(f"s_cbranch_scc1 {doneB}")
    I(f"s_add_u32 {s(S_CNT)}, {s(S_CNT)}, 1")
    I(f"s_cmp_lt_u32 {s(S_CNT)}, {POLL_LIMIT}")
    I(f"s_cbranch_scc1 {l}")
    L(doneB)
    L(doneA)

hdr = open("parallel_sum__ssm_conv_s4__moe_arch_mod__prompt.s.ref").read().split("; Override")[0]
out.append(hdr.rstrip())
out.append(f"; @launch grid=({NWG},1,1) block=(256,1,1) lds={LDS_BYTES}")
out.append('.amdgcn_target "amdgcn-amd-amdhsa--gfx950"')
out.append(".text")
out.append(f".globl {KNAME}")
out.append(".p2align 8")
out.append(f".type {KNAME},@function")
L(KNAME)
I(f"s_cmp_ge_u32 s2, {NWG}")
I("s_cbranch_scc1 L_end")
I(f"s_load_dwordx16 s[8:23], s[0:1], 0")
I(f"s_load_dwordx16 s[24:39], s[0:1], 64")
I(f"s_load_dwordx2 {s(P_WS,2)}, s[0:1], 128")
stamp()
VL, VZ, VJ, VKG = 1, 2, 5, 6
VO, VO2 = 10, 11
I(f"v_and_b32 {v(VL)}, 63, v0")
I(f"v_lshrrev_b32 v3, 6, v0")
I(f"v_mov_b32 {v(VZ)}, 0")
I(f"v_readfirstlane_b32 {s(S_WAVE)}, v3")
I(f"s_mov_b32 {s(S_MASK)}, 0xffff0000")
I(f"v_lshlrev_b32 {v(VO2)}, 4, {v(VL)}")
I(f"s_cmp_ge_u32 s2, {NLN}")
I("s_cbranch_scc1 L_stub")

C("==== LayerNorm role: 16 rows per workgroup, 4 per wave")
I(f"s_setprio {LNPRIO}")
NR = 4
X = [12 + 4*r for r in range(NR)]
WR = 28
F = [32 + 8*r for r in range(NR)]
D = [64 + 8*r for r in range(NR)]
T = [96 + 8*r for r in range(NR)]
S1 = [128 + r for r in range(NR)]
S2 = [132 + r for r in range(NR)]
S3 = [136 + r for r in range(NR)]
SW = 140
SX0 = [52 + 2*r for r in range(NR)]
VNON = 141
VTW, VTR2, VTS2 = 142, 143, 144
t1, t2 = 145, 146
VC, VONE = 147, 148
TX = 160
R_ = range(NR)
I(f"s_lshl_b32 {s(S_ROW0)}, s2, 4")
I(f"s_lshl_b32 {s(S_T0)}, {s(S_WAVE)}, 2")
I(f"s_add_u32 {s(S_ROW0)}, {s(S_ROW0)}, {s(S_T0)}")
I(f"s_lshl_b32 {s(S_T0)}, {s(S_ROW0)}, 10")
I(f"v_add_u32 {v(VO)}, {s(S_T0)}, {v(VO2)}")
I("s_waitcnt lgkmcnt(0)")
for r in R_:
    I(f"global_load_dwordx4 {v(X[r],4)}, {v(VO)}, {s(P_U,2)} offset:{1024*r}")
I(f"global_load_dwordx4 {v(WR,4)}, {v(VO2)}, {s(P_WR,2)}")
I("s_branch L_ln_main")
L("L_stub")
C("---- conv workgroups: parameter loads first (kept next to the entry so that they issue early from a cold I-cache)")
I(f"s_cmp_ge_u32 s2, {NLN + NCONV}")
I("s_cbranch_scc1 L_notln")
S_C = 47
I(f"s_sub_u32 {s(S_C)}, s2, {NLN}")
PRM = 24
I(f"s_and_b32 {s(S_T0)}, {s(S_C)}, 7")
I(f"s_lshl_b32 {s(S_T0)}, {s(S_T0)}, 5")
I(f"s_lshr_b32 {s(S_T1)}, {s(S_C)}, 3")
I(f"s_add_u32 {s(S_DP)}, {s(S_T0)}, {s(S_T1)}")
I(f"s_lshl_b32 {s(S_T0)}, {s(S_DP)}, 9")
I(f"s_lshl_b32 {s(S_T1)}, {s(S_WAVE)}, 7")
I(f"s_add_u32 {s(S_T0)}, {s(S_T0)}, {s(S_T1)}")
VPO = 30
I(f"v_lshl_add_u32 {v(VPO)}, {v(VL)}, 1, {s(S_T0)}")
for k in range(6): I(f"v_mov_b32 {v(PRM+k)}, 0")
I(f"s_lshl_b32 {s(S_T1)}, {s(S_DP)}, 2")
I("s_waitcnt lgkmcnt(0)")
for k, p in enumerate((P_ARE, P_AIM, P_BRE, P_BIM, P_CRE, P_CIM)):
    I(f"global_load_short_d16_hi {v(PRM+k)}, {v(VPO)}, {s(p,2)}")
I(f"s_load_dword {s(S_LDT)}, {s(P_LDT,2)}, {s(S_T1)}")
I(f"s_load_dword {s(S_DSK)}, {s(P_DSK,2)}, {s(S_T1)}")
I("s_branch L_notln")
L("L_ln_main")
C("---- pull the kernel's own code into this die's L2 (instruction fetch then misses only to L2)")
NCP = int([a for a in sys.argv if a.startswith("--ncp=")][0][6:]) if any(a.startswith("--ncp=") for a in sys.argv) else 32
I(f"s_getpc_b64 {s(S_EXEC,2)}")
L("L_pc")
I(f"s_sub_u32 {s(S_EXEC)}, {s(S_EXEC)}, L_pc-{KNAME}")
I(f"s_subb_u32 {s(S_EXEC+1)}, {s(S_EXEC+1)}, 0")
I(f"v_lshlrev_b32 {v(t1)}, 6, v0")
I(f"v_min_u32 {v(t1)}, L_end-{KNAME}, {v(t1)}")
I(f"s_cmp_ge_u32 s2, {NCP}")
I("s_cbranch_scc1 L_nocp")
I(f"global_load_dword {v(159)}, {v(t1)}, {s(S_EXEC,2)}")
I("s_branch L_cpdone")
L("L_nocp")
I(f"global_load_dword {v(159)}, {v(VZ)}, {s(P_WR,2)}")
L("L_cpdone")
I(f"s_add_u32 {s(S_XT)}, {s(P_WS)}, {WS_XT}")
I(f"s_addc_u32 {s(S_XT+1)}, {s(P_WS+1)}, 0")
I(f"s_mul_i32 {s(S_T2)}, {s(S_WAVE)}, {4*TS}")
I(f"v_add_u32 {v(VTW)}, {s(S_T2)}, {v(VO2)}")
I(f"v_and_b32 {v(t1)}, 3, v0")
I(f"v_lshrrev_b32 {v(t2)}, 2, v0")
I(f"v_mul_u32_u24 {v(VTR2)}, {4*TS}, {v(t1)}")
I(f"v_lshl_add_u32 {v(VTR2)}, {v(t2)}, 2, {v(VTR2)}")
I(f"s_lshl_b32 {s(S_T2)}, s2, 6")
I(f"v_lshl_add_u32 {v(VTS2)}, {v(t1)}, 4, {s(S_T2)}")
I(f"v_lshl_add_u32 {v(VTS2)}, {v(t2)}, 13, {v(VTS2)}")
I(f"s_lshl_b32 {s(S_T2)}, {s(S_ROW0)}, 3")
I(f"v_add_u32 {v(VO)}, {s(S_T2)}, {v(VO2)}")
C("---- warm this die's L2 with FFN weight lines that its FFN workgroups read last (speed only)")
I(f"s_and_b32 {s(S_T0)}, s2, 7")
I(f"s_lshr_b32 {s(S_T1)}, s2, 3")
I(f"s_sub_u32 {s(S_T2)}, {s(S_WAVE)}, 1")
I(f"s_cmp_ge_u32 {s(S_T2)}, 2")
I("s_cbranch_scc1 L_pf_down")
I(f"s_mul_i32 {s(S_T2)}, {s(S_T0)}, 448")
I(f"s_mul_i32 {s(S_T3)}, {s(S_T1)}, {16*3584}")
I(f"s_add_u32 {s(S_T2)}, {s(S_T2)}, {s(S_T3)}")
I(f"s_add_u32 {s(S_T2)}, {s(S_T2)}, {256*3584}")
I(f"v_lshrrev_b32 {v(176)}, 2, {v(VL)}")
I(f"v_mul_u32_u24 {v(176)}, 3584, {v(176)}")
I(f"v_and_b32 {v(177)}, 3, {v(VL)}")
I(f"v_mul_u32_u24 {v(177)}, 148, {v(177)}")
I(f"v_add3_u32 {v(176)}, {v(176)}, {v(177)}, {s(S_T2)}")
I(f"s_cmp_eq_u32 {s(S_WAVE)}, 1")
I(f"s_cselect_b32 {s(S_EXEC)}, {s(P_WG)}, {s(P_WU)}")
I(f"s_cselect_b32 {s(S_EXEC+1)}, {s(P_WG+1)}, {s(P_WU+1)}")
I(f"v_add_u32 {v(177)}, 72, {v(176)}")
I(f"v_min_u32 {v(177)}, {512*3584-4}, {v(177)}")
I("s_branch L_pf_go")
L("L_pf_down")
I(f"s_mul_i32 {s(S_T2)}, {s(S_T0)}, {224*1024}")
I(f"s_mul_i32 {s(S_T3)}, {s(S_T1)}, {14*1024}")
I(f"s_add_u32 {s(S_T2)}, {s(S_T2)}, {s(S_T3)}")
I(f"s_and_b32 {s(S_T3)}, {s(S_WAVE)}, 1")
I(f"s_mul_i32 {s(S_T3)}, {s(S_T3)}, 7168")
I(f"s_add_u32 {s(S_T2)}, {s(S_T2)}, {s(S_T3)}")
I(f"v_min_u32 {v(176)}, 55, {v(VL)}")
I(f"v_lshl_add_u32 {v(176)}, {v(176)}, 6, {s(S_T2)}")
I(f"v_add_u32 {v(177)}, 3584, {v(176)}")
I(f"s_mov_b64 {s(S_EXEC,2)}, {s(P_WD,2)}")
L("L_pf_go")
I(f"v_mov_b32 {v(VC)}, {f2u(1.0/512):#x}")
I(f"v_mov_b32 {v(VONE)}, 0x3f803f80")
for r in R_: I(f"v_mov_b32 {v(S3[r])}, 0")
I(f"v_mov_b32 {v(SW)}, 0")
for r in R_:
    I(f"s_waitcnt vmcnt({NR + 1 - r})")
    if r == 0: stamp()
    I(f"ds_write_b128 {v(VTW)}, {v(X[r],4)} offset:{L_T2 + r*TS}")
    if r < NR - 1:
        for k in range(4): unpack(F[r]+2*k, X[r]+k)
I("s_waitcnt lgkmcnt(0)")
I("s_barrier")
for i in range(4):
    for e in range(4):
        I(f"ds_read_b32 {v(TX+4*i+e)}, {v(VTR2)} offset:{L_T2 + 256*i + e*TS}")
for k in range(4): unpack(F[NR-1]+2*k, X[NR-1]+k)
for r in R_: I(f"v_readfirstlane_b32 {s(SX0[r])}, {v(F[r])}")
for i in range(4):
    I(f"s_waitcnt lgkmcnt({12 - 4*i})")
    I(f"global_store_dwordx4 {v(VTS2)}, {v(TX+4*i,4)}, {s(S_XT,2)} sc1")
    if i < 3: I(f"v_add_u32 {v(VTS2)}, 0x80000, {v(VTS2)}")
nonce_issue(VZ, VNON)
if PFPOS == 0:
    I(f"global_load_dword {v(178)}, {v(176)}, {s(S_EXEC,2)}")
    I(f"global_load_dword {v(179)}, {v(177)}, {s(S_EXEC,2)}")

stamp()
for k in range(4):
    for r in R_:
        I(f"v_pk_add_f32 {v(D[r]+2*k,2)}, {v(F[r]+2*k,2)}, {s(SX0[r],2)} op_sel_hi:[1,0] neg_lo:[0,1] neg_hi:[0,1]")
I(f"s_waitcnt vmcnt({8 if PFPOS == 0 else 6})")
for k in range(4):
    for r in R_: I(f"v_dot2c_f32_bf16 {v(S3[r])}, {v(X[r]+k)}, {v(WR+k)}")
    I(f"v_dot2c_f32_bf16 {v(SW)}, {v(VONE)}, {v(WR+k)}")
for r in R_: I(f"v_pk_add_f32 {v(T[r],2)}, {v(D[r],2)}, {v(D[r]+2,2)}")
for r in R_: I(f"v_pk_mul_f32 {v(T[r]+4,2)}, {v(D[r],2)}, {v(D[r],2)}")
for r in R_: I(f"v_pk_add_f32 {v(T[r]+2,2)}, {v(D[r]+4,2)}, {v(D[r]+6,2)}")
for r in R_: I(f"v_pk_fma_f32 {v(T[r]+4,2)}, {v(D[r]+2,2)}, {v(D[r]+2,2)}, {v(T[r]+4,2)}")
for r in R_: I(f"v_pk_add_f32 {v(T[r],2)}, {v(T[r],2)}, {v(T[r]+2,2)}")
for r in R_: I(f"v_pk_fma_f32 {v(T[r]+4,2)}, {v(D[r]+4,2)}, {v(D[r]+4,2)}, {v(T[r]+4,2)}")
for r in R_: I(f"v_add_f32 {v(S1[r])}, {v(T[r])}, {v(T[r]+1)}")
for r in R_: I(f"v_pk_fma_f32 {v(T[r]+4,2)}, {v(D[r]+6,2)}, {v(D[r]+6,2)}, {v(T[r]+4,2)}")
for r in R_: I(f"v_add_f32 {v(S2[r])}, {v(T[r]+4)}, {v(T[r]+5)}")
dpp_reduce(S1 + S3 + [SW] + S2)
for r in R_: I(f"v_mul_f32 {v(S1[r])}, {v(VC)}, {v(S1[r])}")
for r in R_: I(f"v_mul_f32 {v(S2[r])}, {v(VC)}, {v(S2[r])}")
for r in R_: I(f"v_fma_f32 {v(S2[r])}, -{v(S1[r])}, {v(S1[r])}, {v(S2[r])}")
for r in R_: I(f"v_add_f32 {v(S1[r])}, {s(SX0[r])}, {v(S1[r])}")
for r in R_: I(f"v_max_f32 {v(S2[r])}, 0, {v(S2[r])}")
MP = [T[0], T[0]+1]; VP = [T[0]+2, T[0]+3]
for h in range(2): I(f"v_cvt_pk_bf16_f32 {v(MP[h])}, {v(S1[2*h])}, {v(S1[2*h+1])}")
for h in range(2): I(f"v_cvt_pk_bf16_f32 {v(VP[h])}, {v(S2[2*h])}, {v(S2[2*h+1])}")
for h in range(2): unpack(S1[2*h], MP[h])
for h in range(2): unpack(S2[2*h], VP[h])
eps = f2u(1e-5)
for r in R_: I(f"v_add_f32 {v(S2[r])}, {eps:#x}, {v(S2[r])}")
for r in R_: I(f"v_fma_f32 {v(S3[r])}, -{v(S1[r])}, {v(SW)}, {v(S3[r])}")
for h in range(2): I(f"v_cvt_pk_bf16_f32 {v(VP[h])}, {v(S2[2*h])}, {v(S2[2*h+1])}")
for r in R_: I(f"v_lshrrev_b32 {v(S1[r])}, 16, {v(S1[r])}")
for h in range(2): unpack(S2[2*h], VP[h])
for r in R_: I(f"v_sqrt_f32 {v(S2[r])}, {v(S2[r])}")
I("s_nop 0")
for h in range(2): I(f"v_cvt_pk_bf16_f32 {v(VP[h])}, {v(S2[2*h])}, {v(S2[2*h+1])}")
for h in range(2): unpack(S2[2*h], VP[h])
RC = [T[1]+r for r in R_]
for r in R_: I(f"v_rcp_f32 {v(RC[r])}, {v(S2[r])}")
for r in R_: I(f"v_or_b32 {v(S1[r])}, {v(S1[r])}, {v(S2[r])}")
for r in R_: I(f"v_mul_f32 {v(S3[r])}, {v(S3[r])}, {v(RC[r])}")
SMS = [10, 11, 12, 13]
for r in R_: I(f"v_readlane_b32 {s(SMS[r])}, {v(S1[r])}, 63")
for h in range(2): I(f"v_cvt_pk_bf16_f32 {v(MP[h])}, {v(S3[2*h])}, {v(S3[2*h+1])}")
GP = 152
I(f"v_cmp_eq_u32 vcc, 0, {v(VL)}")
for h in range(2): I(f"v_readlane_b32 {s(S_R+h)}, {v(MP[h])}, 63")
I(f"v_mov_b32 {v(GP)}, {s(SMS[2])}")
I(f"v_mov_b32 {v(GP+2)}, {s(SMS[3])}")
I(f"v_mov_b32 {v(t1)}, {s(SMS[0])}")
I(f"v_mov_b32 {v(t2)}, {s(SMS[1])}")
I(f"v_cndmask_b32 {v(GP)}, {v(GP)}, {v(t1)}, vcc")
I(f"v_cndmask_b32 {v(GP+2)}, {v(GP+2)}, {v(t2)}, vcc")
I(f"s_sub_u32 {s(S_T3)}, 0xffff, {s(S_ROW0)}")
KK = [14, 15, 16, 17]
for h in range(2):
    I(f"s_and_b32 {s(S_T0)}, {s(S_R+h)}, 0x80008000")
    I(f"s_lshr_b32 {s(S_T1)}, {s(S_T0)}, 15")
    I(f"s_mul_i32 {s(S_T1)}, {s(S_T1)}, 0x7fff")
    I(f"s_or_b32 {s(S_T1)}, {s(S_T1)}, 0x80008000")
    I(f"s_xor_b32 {s(S_T2)}, {s(S_R+h)}, {s(S_T1)}")
    I(f"s_lshl_b32 {s(S_T0)}, {s(S_T2)}, 16")
    I(f"s_or_b32 {s(S_T0)}, {s(S_T0)}, {s(S_T3)}")
    I(f"s_sub_u32 {s(S_T3)}, {s(S_T3)}, 1")
    I(f"s_and_b32 {s(S_T1)}, {s(S_T2)}, 0xffff0000")
    I(f"s_or_b32 {s(S_T1)}, {s(S_T1)}, {s(S_T3)}")
    I(f"s_sub_u32 {s(S_T3)}, {s(S_T3)}, 1")
    I(f"s_max_u32 {s(KK[2*h])}, {s(S_T0)}, {s(S_T1)}")
    I(f"s_min_u32 {s(KK[2*h+1])}, {s(S_T0)}, {s(S_T1)}")
I(f"s_max_u32 {s(S_T0)}, {s(KK[0])}, {s(KK[2])}")
I(f"s_min_u32 {s(S_T1)}, {s(KK[0])}, {s(KK[2])}")
I(f"s_max_u32 {s(S_T2)}, {s(KK[1])}, {s(KK[3])}")
I(f"s_max_u32 {s(S_T1)}, {s(S_T1)}, {s(S_T2)}")
I(f"v_mov_b32 {v(156)}, {s(S_T0)}")
I(f"v_mov_b32 {v(157)}, {s(S_T1)}")
I(f"s_lshl_b32 {s(S_T0)}, {s(S_WAVE)}, 3")
I(f"v_mov_b32 {v(158)}, {s(S_T0)}")
I(f"ds_write_b64 {v(158)}, {v(156,2)} offset:{L_MISC + 64}")
stamp()
if PFPOS == 2:
    I(f"global_load_dword {v(178)}, {v(176)}, {s(S_EXEC,2)}")
    I(f"global_load_dword {v(179)}, {v(177)}, {s(S_EXEC,2)}")
nonce_wait(VZ, VNON, first=(2 if PFPOS < 3 else 0))
stamp()
I(f"v_mov_b32 {v(GP+1)}, {v(VNON)}")
I(f"v_mov_b32 {v(GP+3)}, {v(VNON)}")
I("s_mov_b64 exec, 3")
I(f"global_store_dwordx4 {v(VO)}, {v(GP,4)}, {s(P_WS,2)} sc1")
I("s_mov_b64 exec, -1")
I("s_waitcnt lgkmcnt(0)")
I("s_barrier")
I(f"s_cmp_lg_u32 {s(S_WAVE)}, 0")
I("s_cbranch_scc1 L_ln_pf" if "--nopf" not in sys.argv else "s_cbranch_scc1 L_fin")
I(f"ds_read_b128 {v(96,4)}, {v(VZ)} offset:{L_MISC+64}")
I(f"ds_read_b128 {v(100,4)}, {v(VZ)} offset:{L_MISC+80}")
I(f"s_lshl_b32 {s(S_T0)}, s2, 7")
I(f"s_add_u32 {s(S_T0)}, {s(S_T0)}, {WS_KEYS}")
I(f"v_mov_b32 {v(105)}, {s(S_T0)}")
I("s_waitcnt lgkmcnt(0)")
top2_combine(96, 104)
I(f"v_mov_b32 {v(98)}, {v(97)}")
I(f"v_mov_b32 {v(97)}, {v(VNON)}")
I(f"v_mov_b32 {v(99)}, {v(VNON)}")
I("s_mov_b64 exec, 1")
I(f"global_store_dwordx4 {v(105)}, {v(96,4)}, {s(P_WS,2)} sc1")
I("s_mov_b64 exec, -1")
stamp()
if "--nopf" in sys.argv: I("s_branch L_fin")
L("L_ln_pf")
if PFPOS == 3:
    I("s_barrier")
    I(f"global_load_dword {v(178)}, {v(176)}, {s(S_EXEC,2)}")
    I(f"global_load_dword {v(179)}, {v(177)}, {s(S_EXEC,2)}")
    I("s_waitcnt vmcnt(0)")
I("s_branch L_fin")

L("L_notln")
nstamp[0] = 1
I(f"v_and_b32 {v(VJ)}, 15, {v(VL)}")
I(f"v_lshrrev_b32 {v(VKG)}, 4, {v(VL)}")
VKEY = 252
I(f"v_lshlrev_b32 {v(VKEY)}, 7, {v(VL)}")
I(f"v_add_u32 {v(VKEY+1)}, {WS_KEYS + 8192}, {v(VKEY)}")
I(f"v_add_u32 {v(VKEY)}, {WS_KEYS}, {v(VKEY)}")
I(f"s_cmp_ge_u32 s2, {NLN + NCONV}")
I("s_cbranch_scc1 L_ffn")

C("==== conv role")
I(f"s_lshr_b32 {s(S_T0)}, {s(S_C)}, 3")
I(f"s_xor_b32 {s(S_T0)}, {s(S_T0)}, 31")
I(f"s_xor_b32 {s(S_T1)}, {s(S_WAVE)}, 3")
I(f"s_or_b32 {s(S_T0)}, {s(S_T0)}, {s(S_T1)}")
nonce_cas(VZ, 32)
I(f"s_add_u32 {s(S_PART)}, {s(P_WS)}, {WS_PART}")
I(f"s_addc_u32 {s(S_PART+1)}, {s(P_WS+1)}, 0")
I(f"s_lshl_b32 {s(S_T0)}, {s(S_DP)}, 13")
I(f"s_add_u32 {s(S_T0)}, {s(S_T0)}, {WS_XT}")
I(f"s_add_u32 {s(S_XNG)}, {s(P_WS)}, {s(S_T0)}")
I(f"s_addc_u32 {s(S_XNG+1)}, {s(P_WS+1)}, 0")

C("---- constants")
AL = 200
VBETA = 206
SC0, SC1A, SC1B, SC2 = 208, 209, 210, 211
GA = 212
VGX = 224
VA_, VB_ = 226, 227
VRW, VRR = 228, 229
VT0 = 230
VOUT = 232
VPAR = 234
VKCW = 235
VPW = 236
VT8 = 237
VT4 = 238
VFL = 239
M1, M2 = 240, 241
VEX, VEU = 242, 243
VTL = 245
VNON = 246
VSW = 248
t1, t2, t3, t4 = 12, 13, 14, 15
I(f"v_lshlrev_b32 {v(VKCW)}, 4, v0")
I(f"v_lshlrev_b32 {v(VT8)}, 3, v0")
I(f"v_lshlrev_b32 {v(VT4)}, 2, v0")
I(f"s_lshl_b32 {s(S_T2)}, {s(S_WAVE)}, 11")
I(f"s_add_u32 {s(S_T2)}, {s(S_T2)}, {L_PAR}")
I(f"v_lshl_add_u32 {v(VPAR)}, {v(VKG)}, 7, {s(S_T2)}")
I(f"v_lshl_add_u32 {v(VPW)}, {v(VL)}, 5, {s(S_T2)}")
for k in range(4):
    I(f"v_add_u32 {v(VSW+k)}, {4096*k}, {v(VKCW)}")
I(f"v_add_u32 {v(VFL)}, 4096, {v(VT8)}")
I(f"v_mov_b32 {v(t1)}, {v(VJ)}")
for i_, al in ((8, 512), (9, 516), (10, 1024), (11, 1536), (12, 2048), (13, 0), (14, 0), (15, 0)):
    I(f"v_cmp_eq_u32 vcc, {i_}, {v(VJ)}")
    I(f"v_mov_b32 {v(t2)}, {al}")
    I("s_nop 0")
    I(f"v_cndmask_b32 {v(t1)}, {v(t1)}, {v(t2)}, vcc")
I(f"v_cvt_f32_u32 {v(AL)}, {v(t1)}")
I(f"v_lshlrev_b32 {v(t1)}, 3, {v(VJ)}")
I(f"v_cvt_f32_u32 {v(VBETA)}, {v(t1)}")
SCB, SCS = 208, 202
I(f"s_lshr_b32 {s(S_T0)}, {s(S_WAVE)}, 1")
I(f"s_mul_i32 {s(S_T0)}, {s(S_T0)}, {KTAB_D}")
I(f"s_and_b32 {s(S_T1)}, {s(S_WAVE)}, 1")
I(f"s_lshl_b32 {s(S_T1)}, {s(S_T1)}, 2")
I(f"s_add_u32 {s(S_T0)}, {s(S_T0)}, {s(S_T1)}")
I(f"s_add_u32 {s(S_T0)}, {s(S_T0)}, {L_KTAB}")
I(f"v_mul_u32_u24 {v(t1)}, 9, {v(VJ)}")
I(f"v_lshl_add_u32 {v(t1)}, {v(VKG)}, 2, {v(t1)}")
I(f"v_cmp_eq_u32 {s(S_T2,2)}, 2, {v(VKG)}")
I(f"v_cmp_eq_u32 {s(S_X0,2)}, 3, {v(VKG)}")
I(f"v_cmp_eq_u32 {s(S_X0+2,2)}, 48, {v(VL)}")
for r in range(4):
    I(f"v_add_u32 {v(t2)}, {r}, {v(t1)}")
    if r < 2: I(f"v_lshl_add_u32 {v(t3)}, {v(VJ)}, 1, {v(VZ)}"); I(f"v_add_u32 {v(t3)}, {576 + r}, {v(t3)}")
    else:     I(f"v_add_u32 {v(t3)}, {704 + 64*(r-2)}, {v(VJ)}")
    I(f"v_cndmask_b32 {v(t2)}, {v(t2)}, {v(t3)}, {s(S_T2,2)}")
    I(f"v_add_u32 {v(t3)}, {TRASH + 16*r}, {v(VJ)}")
    I(f"v_cndmask_b32 {v(t2)}, {v(t2)}, {v(t3)}, {s(S_X0,2)}")
    if r == 0:
        I(f"v_mov_b32 {v(t3)}, 832")
        I(f"v_cndmask_b32 {v(t2)}, {v(t2)}, {v(t3)}, {s(S_X0+2,2)}")
    I(f"v_lshl_add_u32 {v(SCB+r)}, {v(t2)}, 3, {s(S_T0)}")
for hh, st2 in ((0, 32), (1, 16)):
    I(f"v_mov_b32 {v(t2)}, {144*8}")
    I(f"v_mov_b32 {v(t3)}, {st2*8}")
    I(f"v_cndmask_b32 {v(t2)}, {v(t2)}, {v(t3)}, {s(S_T2,2)}")
    I(f"v_cndmask_b32 {v(t2)}, {v(t2)}, {v(VZ)}, {s(S_X0,2)}")
    if hh == 0:
        I(f"v_mov_b32 {v(t3)}, {16*8}")
        I(f"v_cndmask_b32 {v(t2)}, {v(t2)}, {v(t3)}, {s(S_X0+2,2)}")
    I(f"v_mov_b32 {v(SCS+hh)}, {v(t2)}")
def gather_addrs():
    I(f"v_sub_u32 {v(t1)}, 2047, {v(VT8)}")
    I(f"s_movk_i32 {s(S_T1)}, 0x4400")
    I(f"v_mov_b32 {v(t4)}, {ZIDX}")
    for k in range(11):
        I(f"v_subrev_u32 {v(t2)}, {k}, {v(t1)}")
        I(f"v_cvt_f32_i32 {v(t3)}, {v(t2)}")
        I(f"v_cvt_pk_bf16_f32 {v(t3)}, {v(t3)}, {v(VZ)}")
        I(f"v_lshlrev_b32 {v(16)}, 16, {v(t3)}")
        I(f"v_cmp_gt_u32 vcc, {s(S_T1)}, {v(t3)}")
        I(f"v_cvt_u32_f32 {v(16)}, {v(16)}")
        I(f"v_subrev_u32 {v(t3)}, {0x4400 - 576}, {v(t3)}")
        I(f"v_lshrrev_b32 {v(17)}, 3, {v(16)}")
        I(f"v_add_u32 {v(16)}, {v(16)}, {v(17)}")
        I(f"v_cndmask_b32 {v(t3)}, {v(t3)}, {v(16)}, vcc")
        if k >= 8:
            I(f"v_cmp_gt_i32 vcc, 0, {v(t2)}")
            I("s_nop 1")
            I(f"v_cndmask_b32 {v(t3)}, {v(t3)}, {v(t4)}, vcc")
        I(f"v_lshlrev_b32 {v(GA+k)}, 3, {v(t3)}")
LATEG = opt('lateg', 0)
if LATEG == 0: gather_addrs()
def conv_bases():
    I(f"s_lshr_b32 {s(S_T0)}, {s(S_WAVE)}, 1")
    I(f"s_and_b32 {s(S_T1)}, {s(S_WAVE)}, 1")
    I(f"s_mul_i32 {s(S_T2)}, {s(S_T0)}, {KC_D}")
    I(f"s_lshl_b32 {s(S_T3)}, {s(S_T1)}, 8")
    I(f"s_sub_u32 {s(S_T2)}, {s(S_T2)}, {s(S_T3)}")
    I(f"s_add_u32 {s(S_T2)}, {s(S_T2)}, {L_KC + 3*KC_S + 72}")
    I(f"v_and_b32 {v(t1)}, 3, {v(VJ)}")
    I(f"v_mul_u32_u24 {v(t1)}, {KC_S}, {v(t1)}")
    I(f"v_lshrrev_b32 {v(t2)}, 2, {v(VJ)}")
    I(f"v_lshl_add_u32 {v(t1)}, {v(t2)}, 3, {v(t1)}")
    I(f"v_lshl_add_u32 {v(t1)}, {v(VKG)}, 4, {v(t1)}")
    I(f"v_sub_u32 {v(VA_)}, {s(S_T2)}, {v(t1)}")
    I(f"s_mul_i32 {s(S_T2)}, {s(S_T0)}, {U_D}")
    I(f"s_sub_u32 {s(S_T2)}, {s(S_T2)}, {s(S_T3)}")
    I(f"s_add_u32 {s(S_T2)}, {s(S_T2)}, {L_U + 336}")
    I(f"v_lshlrev_b32 {v(t1)}, 5, {v(VJ)}")
    I(f"v_lshlrev_b32 {v(t2)}, 4, {v(VKG)}")
    I(f"v_sub_u32 {v(t1)}, {v(t1)}, {v(t2)}")
    I(f"v_add_u32 {v(VB_)}, {s(S_T2)}, {v(t1)}")
    I(f"s_lshl_b32 {s(S_T2)}, {s(S_WAVE)}, 11")
    I(f"v_add_u32 {v(VRW)}, {s(S_T2)}, {v(VO2)}")
    I(f"s_lshr_b32 {s(S_T2)}, {s(S_WAVE)}, 1")
    I(f"s_lshl_b32 {s(S_T2)}, {s(S_T2)}, 10")
    I(f"s_and_b32 {s(S_T3)}, {s(S_WAVE)}, 1")
    I(f"s_lshl_b32 {s(S_T3)}, {s(S_T3)}, 3")
    I(f"s_add_u32 {s(S_T2)}, {s(S_T2)}, {s(S_T3)}")
    I(f"v_add_u32 {v(VRR)}, {s(S_T2)}, {v(VO2)}")
    I(f"s_lshr_b32 {s(S_T2)}, {s(S_T2)}, 2")
    I(f"v_lshl_add_u32 {v(VT0)}, {v(VJ)}, 4, {s(S_T2)}")
    I(f"v_lshl_add_u32 {v(VT0)}, {v(VKG)}, 2, {v(VT0)}")
    I(f"v_lshlrev_b32 {v(VEX)}, 2, {v(VT0)}")
    I(f"v_lshlrev_b32 {v(VEU)}, 1, {v(VT0)}")
    I(f"s_lshl_b32 {s(S_T2)}, {s(S_DP)}, 2")
    I(f"v_lshl_add_u32 {v(VOUT)}, {v(VT0)}, 10, {s(S_T2)}")
if LATEG < 2: conv_bases()
I(f"v_mov_b32 {v(38)}, 0")
I(f"v_mov_b32 {v(39)}, 0")
I(f"ds_write_b64 {v(VZ)}, {v(38,2)} offset:{L_KTAB + 8*ZIDX}")
I(f"ds_write_b64 {v(VZ)}, {v(38,2)} offset:{L_KTAB + KTAB_D + 8*ZIDX}")
I(f"v_lshlrev_b32 {v(t2)}, 1, v0")
I(f"ds_write_b16 {v(t2)}, {v(VZ)} offset:{L_U}")
I(f"ds_write_b16 {v(t2)}, {v(VZ)} offset:{L_U + U_D}")
I(f"v_lshrrev_b32 {v(t3)}, 5, v0")
I(f"v_mul_u32_u24 {v(t3)}, {KC_S}, {v(t3)}")
I(f"v_and_b32 {v(t4)}, 31, v0")
I(f"v_lshl_add_u32 {v(t3)}, {v(t4)}, 1, {v(t3)}")
I(f"ds_write_b16 {v(t3)}, {v(VZ)} offset:{L_KC + 4096}")

C("---- K-gen parameters")
I("s_waitcnt lgkmcnt(0)")
I(f"s_lshr_b32 {s(S_T0)}, {s(S_WAVE)}, 1")
I(f"s_lshl_b32 {s(S_T0)}, {s(S_T0)}, 4")
I(f"s_lshr_b32 {s(S_T1)}, {s(S_LDT)}, {s(S_T0)}")
I(f"s_lshl_b32 {s(S_T1)}, {s(S_T1)}, 16")
l2e_hi = struct.unpack("<f", struct.pack("<f", LOG2E))[0]
l2e_lo = LOG2E - l2e_hi
T0_, T1_, T2_, T3_, DT = 40, 41, 42, 43, 44
VDS = 8
I(f"s_lshl_b32 {s(S_DS2)}, {s(S_DSK)}, 16")
I(f"s_and_b32 {s(S_DS2+1)}, {s(S_DSK)}, 0xffff0000")
I(f"v_mov_b32 {v(T0_)}, {f2u(l2e_hi):#x}")
I(f"v_mov_b32 {v(T3_)}, {f2u(l2e_lo):#x}")
I(f"v_add_f32 {v(VDS)}, {s(S_DS2)}, 1.0")
I(f"v_add_f32 {v(VDS+1)}, {s(S_DS2+1)}, 1.0")
I(f"v_mul_f32 {v(T1_)}, {s(S_T1)}, {v(T0_)}")
I(f"v_fma_f32 {v(T2_)}, {s(S_T1)}, {v(T0_)}, -{v(T1_)}")
I(f"v_fma_f32 {v(T2_)}, {s(S_T1)}, {v(T3_)}, {v(T2_)}")
I(f"v_exp_f32 {v(T1_)}, {v(T1_)}")
I(f"v_mul_f32 {v(T2_)}, {f2u(math.log(2.0)):#x}, {v(T2_)}")
I(f"v_readfirstlane_b32 {s(S_DS2)}, {v(VDS)}")
I(f"v_readfirstlane_b32 {s(S_DS2+1)}, {v(VDS+1)}")
I(f"v_fma_f32 {v(T1_)}, {v(T1_)}, {v(T2_)}, {v(T1_)}")
I(f"v_cvt_pk_bf16_f32 {v(T1_)}, {v(T1_)}, {v(T1_)}")
I(f"v_lshlrev_b32 {v(DT)}, 16, {v(T1_)}")
PW = 48
I("s_waitcnt vmcnt(1)")
stamp()
I("s_waitcnt vmcnt(0)") if False else None
I(f"v_mul_f32 {v(T1_)}, {v(DT)}, {v(PRM+2)}")
I(f"v_mul_f32 {v(T2_)}, {v(DT)}, {v(PRM+3)}")
I(f"v_mul_f32 {v(PW)}, {v(DT)}, {v(PRM+0)}")
I(f"v_mul_f32 {v(PW+1)}, {v(DT)}, {v(PRM+1)}")
I(f"v_mul_f32 {v(PW+2)}, {v(PRM+4)}, {v(T1_)}")
I(f"v_mul_f32 {v(PW+3)}, {v(PRM+4)}, {v(T2_)}")
I(f"v_mul_f32 {v(PW)}, {v(T0_)}, {v(PW)}")
I(f"v_mul_f32 {v(PW+1)}, 0.15915494, {v(PW+1)}")
I(f"s_lshr_b32 {s(S_T0)}, {s(S_C)}, 3")
I(f"s_xor_b32 {s(S_T0)}, {s(S_T0)}, 31")
I(f"s_xor_b32 {s(S_T2)}, {s(S_WAVE)}, 3")
I(f"s_or_b32 {s(S_T0)}, {s(S_T0)}, {s(S_T2)}")
I(f"s_cmp_eq_u32 {s(S_T0)}, 0")
I("s_cbranch_scc1 L_p5b")
I("s_waitcnt vmcnt(0)")
L("L_p5b")
I(f"v_mul_f32 {v(56)}, 0x43000000, {v(PW)}")
I(f"v_mul_f32 {v(57)}, 0x43000000, {v(PW+1)}")
I(f"v_exp_f32 {v(56)}, {v(56)}")
I(f"v_fract_f32 {v(57)}, {v(57)}")
I(f"v_cos_f32 {v(PW+4)}, {v(57)}")
I(f"v_sin_f32 {v(PW+5)}, {v(57)}")
I(f"v_fma_f32 {v(PW+2)}, -{v(PRM+5)}, {v(T2_)}, {v(PW+2)}")
I(f"v_fma_f32 {v(PW+3)}, {v(PRM+5)}, {v(T1_)}, {v(PW+3)}")
I(f"v_max_f32 {v(T3_)}, |{v(PW+2)}|, |{v(PW+3)}|")
I(f"v_mul_f32 {v(PW+4)}, {v(PW+4)}, {v(56)}")
I(f"v_mul_f32 {v(PW+5)}, {v(PW+5)}, {v(56)}")
I(f"ds_write_b64 {v(VPW)}, {v(PW+4,2)} offset:16")
dpp_reduce([T3_], "v_max_f32")
I("s_nop 0")
I(f"v_readlane_b32 {s(S_T0)}, {v(T3_)}, 63")
I("s_nop 3")
I(f"s_bfe_u32 {s(S_T0)}, {s(S_T0)}, 0x80017")
I(f"s_max_u32 {s(S_T0)}, {s(S_T0)}, 1")
I(f"s_min_u32 {s(S_T0)}, {s(S_T0)}, 253")
I(f"s_lshl_b32 {s(S_UNS)}, {s(S_T0)}, 23")
I(f"s_sub_u32 {s(S_T0)}, 254, {s(S_T0)}")
I(f"s_lshl_b32 {s(S_T0)}, {s(S_T0)}, 23")
I(f"v_mul_f32 {v(PW+2)}, {s(S_T0)}, {v(PW+2)}")
I(f"v_mul_f32 {v(PW+3)}, {s(S_T0)}, {v(PW+3)}")
I(f"ds_write_b128 {v(VPW)}, {v(PW,4)}")
nonce_issue(VZ, VNON)
C("---- K-gen main loop: 4 super-groups of 16 n ; one A tile (rows) x four B tiles (columns)")
ACC = 100
PP = 56
OPA = 116
OPB = 120
TM = 136
for k in range(16): I(f"v_mov_b32 {v(ACC+k)}, 0")
I(f"s_mov_b32 {s(S_CNT)}, 0")
I("s_waitcnt lgkmcnt(0)")
stamp()
L("L_kgen")
for q in range(4):
    I(f"ds_read_b128 {v(PP+8*q,4)}, {v(VPAR)} offset:{32*q}")
    I(f"ds_read_b64 {v(PP+8*q+4,2)}, {v(VPAR)} offset:{32*q+16}")
PFIT = int([a for a in sys.argv if a.startswith("--pfit=")][0][7:]) if any(a.startswith("--pfit=") for a in sys.argv) else 1
I(f"v_add_u32 {v(VPAR)}, 512, {v(VPAR)}")
for qp in range(2):
    QS = (2*qp, 2*qp+1)
    I(f"s_waitcnt lgkmcnt({4 - 4*qp})")
    def tm(q, x): return TM + 16*(q & 1) + 4*x
    EV = [(q, x) for q in QS for x in range(2)]
    for q, x in EV: I(f"v_pk_mul_f32 {v(tm(q,x),2)}, {v(PP+8*q,2)}, {v(VBETA if x == 0 else AL,2)} op_sel_hi:[1,0]")
    for q, x in EV: I(f"v_fract_f32 {v(tm(q,x)+1)}, {v(tm(q,x)+1)}")
    for q, x in EV: I(f"v_exp_f32 {v(tm(q,x))}, {v(tm(q,x))}")
    for q, x in EV: I(f"v_cos_f32 {v(tm(q,x)+2)}, {v(tm(q,x)+1)}")
    for q, x in EV: I(f"v_sin_f32 {v(tm(q,x)+3)}, {v(tm(q,x)+1)}")
    def ep(q, x): return TM + 16*(q & 1) + 8 + 2*x
    def bc(q, alt): return TM + 16*(q & 1) + 12 + 2*alt
    for q, x in EV: I(f"v_pk_mul_f32 {v(ep(q,x),2)}, {v(tm(q,x)+2,2)}, {v(tm(q,x),2)} op_sel_hi:[1,0]")
    for q in QS: I(f"v_pk_mul_f32 {v(bc(q,0),2)}, {v(ep(q,0),2)}, {v(PP+8*q+2,2)} op_sel_hi:[0,1] neg_hi:[0,1]")
    for q in QS: I(f"v_cvt_pk_f16_f32 {v(OPA+q)}, {v(ep(q,1))}, {v(ep(q,1)+1)}")
    for q in QS: I(f"v_fma_f32 {v(bc(q,0))}, -{v(ep(q,0)+1)}, {v(PP+8*q+3)}, {v(bc(q,0))}")
    for q in QS: I(f"v_fma_f32 {v(bc(q,0)+1)}, -{v(ep(q,0)+1)}, {v(PP+8*q+2)}, {v(bc(q,0)+1)}")
    for k in range(4):
        cur_, nx = k & 1, 1 - (k & 1)
        if k < 3:
            for q in QS: I(f"v_pk_mul_f32 {v(bc(q,nx),2)}, {v(bc(q,cur_),2)}, {v(PP+8*q+4,2)} op_sel_hi:[1,0]")
        for q in QS: I(f"v_cvt_pk_f16_f32 {v(OPB+4*k+q)}, {v(bc(q,cur_))}, {v(bc(q,cur_)+1)}")
        if k < 3:
            for q in QS: I(f"v_fma_f32 {v(bc(q,nx))}, {v(bc(q,cur_)+1)}, {v(PP+8*q+5)}, {v(bc(q,nx))}")
            for q in QS: I(f"v_fma_f32 {v(bc(q,nx)+1)}, -{v(bc(q,cur_))}, {v(PP+8*q+5)}, {v(bc(q,nx)+1)}")
I(f"s_add_u32 {s(S_CNT)}, {s(S_CNT)}, 1")
I(f"s_cmp_lt_u32 {s(S_CNT)}, 4")
for k in range(4):
    I(f"v_mfma_f32_16x16x32_f16 {v(ACC+4*k,4)}, {v(OPA,4)}, {v(OPB+4*k,4)}, {v(ACC+4*k,4)}")
I("s_cbranch_scc1 L_kgen")
stamp()
GR, GK = 160, 176
nonce_wait(VZ, VNON)
for k in range(16): I(f"v_mul_f32 {v(ACC+k)}, {s(S_UNS)}, {v(ACC+k)}")
for k in range(4):
    for r in range(4):
        I(f"ds_write_b32 {v(SCB+r)}, {v(ACC+4*k+r)}")
        if k < 3: I(f"v_add_u32 {v(SCB+r)}, {v(SCB+r)}, {v(SCS + (r >> 1))}")
if LATEG >= 1: gather_addrs()
I("s_waitcnt lgkmcnt(0)")
I("s_barrier")
C("---- expand K into 4 shifted bf16 copies")
E0 = 40
CP = 96
XX = 144
def xs_issue():
    for k in range(4):
        I(f"global_load_dwordx2 {v(XX+2*k,2)}, {v(VT8 if k < 2 else VFL)}, {s(S_XNG,2)} offset:{2048*(k&1)} sc1")
    sweep_issue(VSW, GR, P_WS)
for d in range(2):
    Eb = E0 + 24*d
    for k in range(11):
        I(f"ds_read_b64 {v(Eb+2*k,2)}, {v(GA+k)} offset:{L_KTAB + d*KTAB_D}")
def expand(d):
    Eb = E0 + 24*d
    I(f"s_waitcnt lgkmcnt({11 if d == 0 else 4})")
    for k in range(11):
        I(f"v_add_f32 {v(Eb+2*k)}, {v(Eb+2*k)}, {v(Eb+2*k+1)}")
    for sg in range(4):
        Cb = CP + 16*d + 4*sg
        for m in range(4):
            I(f"v_cvt_pk_bf16_f32 {v(Cb+m)}, {v(Eb+2*(sg+2*m))}, {v(Eb+2*(sg+2*m+1))}")
        I(f"ds_write_b128 {v(VKCW)}, {v(Cb,4)} offset:{L_KC + d*KC_D + sg*KC_S}")
expand(0)
expand(1)
stamp()
if LATEG >= 2: conv_bases()
I(f"s_cmp_lg_u32 {s(S_WAVE)}, 0")
I("s_cbranch_scc1 L_k_wait")
if PIPE: keys_poll2(VKEY, GK, 184, 32)
else: keys_poll(VKEY, GK, 32)
L("L_k_wait")
I("s_barrier")
xs_issue()
stamp()
I(f"s_cmp_lg_u32 {s(S_WAVE)}, 0")
I("s_cbranch_scc1 L_k_not0")
if PIPE:
    I("s_waitcnt vmcnt(8)")
    keys_check(GK, 32)
    I("s_cbranch_scc1 L_k_gk")
    for k in range(8): I(f"v_mov_b32 {v(GK+k)}, {v(184+k)}")
    L("L_k_gk")
keys_top2(GK, M1, M2, 44, 45)
I(f"ds_write_b64 {v(VZ)}, {v(M1,2)} offset:{L_MISC + 16}")
L("L_k_not0")
for k in range(4):
    I(f"s_waitcnt vmcnt({7-k})")
    I(f"ds_write_b64 {v(VT8)}, {v(XX+2*k,2)} offset:{L_XL + 2048*k}")
XF = 48
for k in range(8): unpack(XF+6*k+2, XX+k)
sweep(VSW, GR, 40, P_WS, issued=True, first_wait=0)
stamp()
RI = 128
for k in range(8):
    g = GR + 2*k
    I(f"v_and_b32 {v(RI+2*k)}, {s(S_MASK)}, {v(g)}")
    I(f"v_lshlrev_b32 {v(XF+6*k)}, 16, {v(g)}")
    I(f"v_rcp_f32 {v(RI+2*k)}, {v(RI+2*k)}")
for k in range(8):
    b = XF+6*k
    I(f"v_pk_add_f32 {v(b+2,2)}, {v(b+2,2)}, {v(b,2)} op_sel_hi:[1,0] neg_lo:[0,1] neg_hi:[0,1]")
for k in range(8):
    b = XF+6*k
    I(f"v_cvt_pk_bf16_f32 {v(b+4)}, {v(b+2)}, {v(b+3)}")
for k in range(8): unpack(XF+6*k+2, XF+6*k+4)
for k in range(8):
    b = XF+6*k
    I(f"v_pk_mul_f32 {v(b+2,2)}, {v(b+2,2)}, {v(RI+2*k,2)} op_sel_hi:[1,0]")
for k in range(4):
    for d in range(2):
        I(f"v_cvt_pk_bf16_f32 {v(XX+2*k+d)}, {v(XF+12*k+2+d)}, {v(XF+12*k+8+d)}")
        I(f"ds_write_b32 {v(VT4)}, {v(XX+2*k+d)} offset:{L_U + 512 + d*U_D + 1024*k}")
I("s_waitcnt lgkmcnt(0)")
I("s_barrier")
stamp()
S_TK = [52, 53]
S_OW = [54, 55]
I(f"ds_read_b64 {v(24,2)}, {v(VZ)} offset:{L_MISC + 16}")
C("---- convolution: 4 phases of 2 output tiles; K operands stay resident, finished tiles are stored under the next phase")
def AR(rl, k): return 32 + 32*rl + 4*k
def BR(buf, d): return 160 + 32*buf + 4*d
def ACCR(p, tt): return 8 + 8*(p & 1) + 4*tt
RDF, XQ, UQ, TE = 248, 24, 26, 28
def step_loads(p, rls, buf):
    ls = []
    nb = 2*p + 2
    for i, rl in enumerate(rls):
        bl = [f"ds_read_b128 {v(BR(buf, nb*i + d),4)}, {v(VB_)} offset:{512*d + 64*(3 - rl)}" for d in range(nb)]
        al = []
        for k in (2*p, 2*p+1):
            off = 64 * (63 - 8*k - rl)
            al.append(f"ds_read_b64 {v(AR(rl,k),2)}, {v(VA_)} offset:{off}")
            al.append(f"ds_read_b64 {v(AR(rl,k)+2,2)}, {v(VA_)} offset:{off+8}")
        ls += bl[:2] + al + bl[2:]
    return ["    " + x for x in ls]
def fin_reads(p):
    base = L_R1 + 8192*(p & 1)
    for w in range(4):
        I(f"ds_read_b64 {v(RDF+2*w,2)}, {v(VRR)} offset:{base + 2048*w}")
    I(f"ds_read_b64 {v(XQ,2)}, {v(VEX)} offset:{L_XL + 2048*p}")
    for d in range(2):
        I(f"ds_read_b32 {v(UQ+d)}, {v(VEU)} offset:{L_U + 512 + d*U_D + 1024*p}")
def fin_math(p):
    I(f"v_pk_add_f32 {v(RDF,2)}, {v(RDF,2)}, {v(RDF+2,2)}")
    I(f"v_pk_add_f32 {v(RDF+4,2)}, {v(RDF+4,2)}, {v(RDF+6,2)}")
    for e in range(2):
        a = TE if e == 0 else RDF + 2
        c = TE + 2 if e == 0 else RDF + 6
        unpack(a, XQ+e)
        for d in range(2):
            if e: I(f"v_and_b32 {v(c+d)}, {s(S_MASK)}, {v(UQ+d)}")
            else: I(f"v_lshlrev_b32 {v(c+d)}, 16, {v(UQ+d)}")
        I(f"v_add_f32 {v(a)}, {v(a)}, {v(RDF+e)}")
        I(f"v_add_f32 {v(a+1)}, {v(a+1)}, {v(RDF+4+e)}")
        I(f"v_pk_fma_f32 {v(a,2)}, {v(c,2)}, {s(S_DS2,2)}, {v(a,2)}")
        I(f"v_cvt_pk_bf16_f32 {v(XQ+e)}, {v(a)}, {v(a+1)}")
        I(f"s_sub_u32 {s(S_T0)}, {s(S_TK[0])}, {512*p + e}")
        I(f"s_sub_u32 {s(S_T1)}, {s(S_TK[1])}, {512*p + e}")
        I(f"v_cmp_ne_u32 vcc, {s(S_T0)}, {v(VT0)}")
        I(f"v_cmp_ne_u32 {s(S_T2,2)}, {s(S_T1)}, {v(VT0)}")
        I(f"s_and_b64 exec, vcc, {s(S_T2,2)}\n    global_store_dword {v(VOUT)}, {v(XQ+e)}, {s(P_OUT,2)} offset:{e*1024}\n    s_mov_b64 exec, -1")
    I(f"ds_write_b64 {v(VEX)}, {v(XQ,2)} offset:{L_XL + 2048*p}")
    if p < 3: I(f"v_add_u32 {v(VOUT)}, 0x80000, {v(VOUT)}")
steps = [(0, [0, 1, 2, 3]), (1, [0, 1]), (1, [2, 3])] + [(p, [rl]) for p in (2, 3) for rl in range(4)]
first_loads = step_loads(*steps[0], 0)
out.extend(first_loads)
I(f"s_waitcnt lgkmcnt(15)")
I(f"v_readfirstlane_b32 {s(S_K1)}, {v(24)}")
I(f"v_readfirstlane_b32 {s(S_K2)}, {v(25)}")
for k_, SKK in enumerate((S_K1, S_K2)):
    I(f"s_and_b32 {s(S_T0)}, {s(SKK)}, 0xffff")
    I(f"s_sub_u32 {s(S_TK[k_])}, 0xffff, {s(S_T0)}")
    I(f"s_bfe_u32 {s(S_T1)}, {s(S_TK[k_])}, 0x10008")
    I(f"s_lshl_b32 {s(S_T1)}, {s(S_T1)}, 1")
    I(f"s_bfe_u32 {s(S_T2)}, {s(S_TK[k_])}, 0x10001")
    I(f"s_or_b32 {s(S_T1)}, {s(S_T1)}, {s(S_T2)}")
    I(f"s_cmp_eq_u32 {s(S_T1)}, {s(S_WAVE)}")
    I(f"s_cselect_b32 {s(S_OW[k_])}, 1, 0")
    I(f"s_cmp_lt_u32 {s(S_TK[k_])}, 2048")
    I(f"s_cselect_b32 {s(S_OW[k_])}, {s(S_OW[k_])}, 0")
for si, (p, rls) in enumerate(steps):
    buf = si & 1
    nxt = step_loads(*steps[si+1], 1-buf) if si + 1 < len(steps) else []
    fl = []
    early = p > 0 and rls[0] == 0
    if early:
        with capture() as fl: fin_math(p-1)
    if si == len(steps) - 1:
        PB = BR(1-buf, 0)
        PA = BR(1-buf, 4)
        def part_issue(k_):
            I(f"global_load_dwordx4 {v(PB+8*k_,4)}, {v(PA+2*k_)}, {s(S_PART,2)} sc1")
            I(f"s_bfm_b64 exec, {G-64}, 0")
            I(f"global_load_dwordx4 {v(PB+8*k_+4,4)}, {v(PA+2*k_+1)}, {s(S_PART,2)} sc1")
            I("s_mov_b64 exec, -1")
        for k_ in range(2):
            I(f"s_cmp_eq_u32 {s(S_OW[k_])}, 0")
            I(f"s_cbranch_scc1 L_np{k_}")
            I(f"s_lshl_b32 {s(S_T1)}, {s(S_DP)}, 4")
            I(f"s_add_u32 {s(S_T1)}, {s(S_T1)}, {k_ << 19}")
            I(f"v_lshl_add_u32 {v(PA+2*k_)}, {v(VL)}, 12, {s(S_T1)}")
            I(f"v_add_u32 {v(PA+2*k_+1)}, 0x40000, {v(PA+2*k_)}")
            I(f"v_mov_b32 {v(PB+8*k_+4)}, 0")
            I(f"v_mov_b32 {v(PB+8*k_+5)}, {s(S_NONCE)}")
            I(f"v_mov_b32 {v(PB+8*k_+6)}, 0")
            I(f"v_mov_b32 {v(PB+8*k_+7)}, {s(S_NONCE)}")
            part_issue(k_)
            L(f"L_np{k_}")
        I("s_nop 3")
    nb = 2*p + 2
    work = []
    for i, rl in enumerate(rls):
        pairs = [(ch, T-ch) for T in (2*p, 2*p+1) for ch in range(T+1)]
        pairs.sort(key=lambda q: (max(q[0] if q[0] >= 2*p else 0, q[1])))
        work += [(i, rl, ch, dl) for (ch, dl) in pairs]
    if si > 0 and not early: I("s_waitcnt lgkmcnt(0)")
    if early: fin_reads(p-1)
    seen = set()
    skip = 3 if early else 0
    pern = -(-len(nxt) // len(work)) if nxt else 0
    perf = -(-len(fl) // (len(work) - skip)) if fl else 0
    ni = fi = 0
    lasti = -1
    for (i, rl, ch, dl) in work:
        if si == 0 and i != lasti:
            lasti = i
            I(f"s_waitcnt lgkmcnt({min(15, len(first_loads) - 6*(i+1) + ni)})")
        T = ch + dl
        acc = ACCR(p, T & 1)
        first = rl == 0 and T not in seen; seen.add(T)
        I(f"v_mfma_f32_16x16x32_bf16 {v(acc,4)}, {v(AR(rl,ch),4)}, {v(BR(buf,nb*i+dl),4)}, {'0' if first else v(acc,4)}")
        out.extend(nxt[ni:ni+pern]); ni += len(nxt[ni:ni+pern])
        if skip > 0:
            skip -= 1
            if skip == 0: I(f"s_waitcnt lgkmcnt({min(15, ni)})")
            continue
        out.extend(fl[fi:fi+perf]); fi += perf
    out.extend(nxt[ni:]); out.extend(fl[fi:])
    if rls[-1] == 3:
        I("s_nop 7")
        for tt in range(2):
            I(f"ds_write_b128 {v(VRW)}, {v(ACCR(p,tt),4)} offset:{L_R1 + 8192*(p & 1) + 1024*tt}")
        I("s_waitcnt lgkmcnt(0)")
        I("s_barrier")
        if p in (1, 3): stamp()
fin_reads(3)
I("s_waitcnt lgkmcnt(0)")
fin_math(3)
stamp()
C("---- routed rows: out = base row + sigmoid(r) * FFN(row)")
I("s_waitcnt lgkmcnt(0)")
for k_, SKK in enumerate((S_K1, S_K2)):
    B_ = PB + 8*k_
    I(f"s_cmp_eq_u32 {s(S_OW[k_])}, 0")
    I(f"s_cbranch_scc1 L_fix_skip{k_}")
    I(f"s_lshl_b32 {s(S_T2)}, {s(S_TK[k_])}, 2")
    I(f"v_mov_b32 {v(77)}, {s(S_T2)}")
    I(f"ds_read_b32 {v(79)}, {v(77)} offset:{L_XL}")
    I(f"s_lshr_b32 {s(S_T2)}, {s(SKK)}, 16")
    I(f"s_lshr_b32 {s(S_T3)}, {s(S_T2)}, 15")
    I(f"s_cmp_eq_u32 {s(S_T3)}, 1")
    I(f"s_mov_b32 {s(S_T3)}, 0xffff")
    I(f"s_cselect_b32 {s(S_T3)}, 0x8000, {s(S_T3)}")
    I(f"s_xor_b32 {s(S_T2)}, {s(S_T2)}, {s(S_T3)}")
    I(f"s_lshl_b32 {s(S_T2)}, {s(S_T2)}, 16")
    I(f"v_mov_b32 {v(92)}, {f2u(-LOG2E):#x}")
    I(f"v_mul_f32 {v(92)}, {s(S_T2)}, {v(92)}")
    I(f"v_exp_f32 {v(92)}, {v(92)}")
    I("s_nop 0")
    I(f"v_add_f32 {v(92)}, 1.0, {v(92)}")
    I(f"v_rcp_f32 {v(92)}, {v(92)}")
    I("s_nop 0")
    I(f"v_cvt_pk_bf16_f32 {v(92)}, {v(92)}, {v(92)}")
    I(f"v_lshlrev_b32 {v(92)}, 16, {v(92)}")
    I(f"s_mov_b32 {s(S_CNT)}, 0")
    I("s_waitcnt vmcnt(2)")
    I(f"s_branch L_fixchk{k_}")
    L(f"L_fixpoll{k_}")
    I("s_sleep 2")
    part_issue(k_)
    I("s_waitcnt vmcnt(0)")
    L(f"L_fixchk{k_}")
    I(f"v_xor_b32 {v(88)}, {s(S_NONCE)}, {v(B_+1)}")
    I(f"v_xor_b32 {v(89)}, {s(S_NONCE)}, {v(B_+3)}")
    I(f"v_xor_b32 {v(93)}, {s(S_NONCE)}, {v(B_+5)}")
    I(f"v_xor_b32 {v(94)}, {s(S_NONCE)}, {v(B_+7)}")
    I(f"v_or3_b32 {v(88)}, {v(88)}, {v(89)}, {v(93)}")
    I(f"v_or_b32 {v(88)}, {v(88)}, {v(94)}")
    I(f"v_cmp_ne_u32 vcc, 0, {v(88)}")
    I(f"s_add_u32 {s(S_CNT)}, {s(S_CNT)}, 1")
    I(f"s_cmp_eq_u64 vcc, 0")
    I(f"s_cbranch_scc1 L_fixdone{k_}")
    I(f"s_cmp_lt_u32 {s(S_CNT)}, {POLL_LIMIT}")
    I(f"s_cbranch_scc1 L_fixpoll{k_}")
    L(f"L_fixdone{k_}")
    I(f"v_add_f32 {v(80)}, {v(B_)}, {v(B_+4)}")
    I(f"v_add_f32 {v(82)}, {v(B_+2)}, {v(B_+6)}")
    I("s_nop 0")
    dpp_reduce([80, 82])
    I("s_nop 0")
    I(f"v_cvt_pk_bf16_f32 {v(84)}, {v(80)}, {v(82)}")
    unpack(80, 84)
    I("s_waitcnt lgkmcnt(0)")
    unpack(82, 79)
    I(f"v_pk_fma_f32 {v(80,2)}, {v(80,2)}, {v(92,2)}, {v(82,2)} op_sel_hi:[1,0,1]")
    I(f"v_cvt_pk_bf16_f32 {v(84+k_)}, {v(80)}, {v(81)}")
    I(f"s_lshl_b32 {s(S_T1)}, {s(S_TK[k_])}, 10")
    I(f"s_lshl_b32 {s(S_T2)}, {s(S_DP)}, 2")
    I(f"s_add_u32 {s(S_T1)}, {s(S_T1)}, {s(S_T2)}")
    I(f"v_mov_b32 {v(86+k_)}, {s(S_T1)}")
    I("s_lshl_b64 exec, 1, 63")
    I(f"global_store_dword {v(86+k_)}, {v(84+k_)}, {s(P_OUT,2)}")
    I("s_mov_b64 exec, -1")
    L(f"L_fix_skip{k_}")
I("s_branch L_fin")

L("L_ffn")
nstamp[0] = 1
C("==== FFN role")
S_G = 47
I(f"s_sub_u32 {s(S_T0)}, s2, {NLN + NCONV}")
I(f"s_and_b32 {s(S_T1)}, {s(S_T0)}, 7")
I(f"s_mul_i32 {s(S_T1)}, {s(S_T1)}, 14")
I(f"s_lshr_b32 {s(S_T0)}, {s(S_T0)}, 3")
I(f"s_add_u32 {s(S_G)}, {s(S_T0)}, {s(S_T1)}")
WL = 32
t1, t2, t3, t4 = 12, 13, 14, 15
I(f"v_lshlrev_b32 {v(t4)}, 4, v0")
I(f"v_lshrrev_b32 {v(t1)}, 2, v0")
I(f"v_mul_u32_u24 {v(t1)}, 3584, {v(t1)}")
I(f"v_and_b32 {v(t2)}, 1, v0")
I(f"v_lshl_add_u32 {v(t1)}, {v(t2)}, 4, {v(t1)}")
I(f"s_lshl_b32 {s(S_T0)}, {s(S_G)}, 5")
I(f"v_add_u32 {v(t1)}, {s(S_T0)}, {v(t1)}")
I(f"v_and_b32 {v(t2)}, 2, v0")
I(f"v_cmp_eq_u32 vcc, 0, {v(t2)}")
I("s_waitcnt lgkmcnt(0)")
I(f"v_mov_b32 {v(16)}, {s(P_WU)}")
I(f"v_mov_b32 {v(17)}, {s(P_WU+1)}")
I(f"v_mov_b32 {v(18)}, {s(P_WG)}")
I(f"v_mov_b32 {v(19)}, {s(P_WG+1)}")
I(f"v_cndmask_b32 {v(16)}, {v(16)}, {v(18)}, vcc")
I(f"v_cndmask_b32 {v(17)}, {v(17)}, {v(19)}, vcc")
I(f"v_add_co_u32 {v(16)}, vcc, {v(16)}, {v(t1)}")
I("s_nop 1")
I(f"v_addc_co_u32 {v(17)}, vcc, {v(17)}, {v(VZ)}, vcc")
I(f"s_add_u32 {s(S_PART)}, {s(P_WS)}, {WS_PART}")
I(f"s_addc_u32 {s(S_PART+1)}, {s(P_WS+1)}, 0")
stamp()
I(f"s_mov_b32 {s(S_T1)}, {64*3584}")
WD = 96
I(f"s_lshl_b32 {s(S_T0)}, {s(S_G)}, 14")
I(f"v_lshl_add_u32 {v(t3)}, v0, 2, {s(S_T0)}")
for p in range(8):
    I(f"global_load_dwordx4 {v(WL+4*p,4)}, {v(16,2)}, off")
    if p < 7:
        I(f"v_add_co_u32 {v(16)}, vcc, {s(S_T1)}, {v(16)}")
        I("s_nop 1")
        I(f"v_addc_co_u32 {v(17)}, vcc, {v(17)}, {v(VZ)}, vcc")
for f in range(16):
    if f and f % 4 == 0:
        I(f"v_add_u32 {v(t3)}, 4096, {v(t3)}")
    I(f"global_load_dword {v(WD+f)}, {v(t3)}, {s(P_WD,2)} offset:{(f&3)*1024}")
nonce_issue(VZ, 22)
for p in range(8):
    I(f"s_waitcnt vmcnt({17 + 7 - p})")
    I(f"ds_write_b128 {v(t4)}, {v(WL+4*p,4)} offset:{F_W + 4096*p}")
stamp()
I(f"v_lshrrev_b32 {v(t1)}, 2, {v(VJ)}")
I(f"v_lshl_add_u32 {v(t1)}, {v(VKG)}, 3, {v(t1)}")
I(f"v_lshlrev_b32 {v(t1)}, 6, {v(t1)}")
I(f"v_and_b32 {v(t2)}, 1, {v(VL)}")
I(f"v_lshl_add_u32 {v(t1)}, {v(t2)}, 3, {v(t1)}")
I(f"v_and_b32 {v(t2)}, 2, {v(VL)}")
I(f"v_lshl_add_u32 {v(t1)}, {v(t2)}, 4, {v(t1)}")
I(f"s_and_b32 {s(S_T0)}, {s(S_WAVE)}, 1")
I(f"s_lshl_b32 {s(S_T0)}, {s(S_T0)}, 4")
I(f"v_add_u32 {v(t1)}, {s(S_T0)}, {v(t1)}")
I("s_waitcnt lgkmcnt(0)")
I("s_barrier")
for st in range(16):
    I(f"ds_read_b64_tr_b16 {v(WL+4*st,2)}, {v(t1)} offset:{F_W + 2048*st}")
    I(f"ds_read_b64_tr_b16 {v(WL+4*st+2,2)}, {v(t1)} offset:{F_W + 2048*st + 256}")
WF = 128
nonce_wait(VZ, 22)
for f in range(16): unpack(WF+2*f, WD+f)
I(f"v_bfe_u32 {v(t2)}, {v(VJ)}, 2, 1")
I(f"v_lshlrev_b32 {v(t2)}, 10, {v(t2)}")
I(f"v_lshl_add_u32 {v(t2)}, {v(VKG)}, 4, {v(t2)}")
I(f"s_and_b32 {s(S_T1)}, {s(S_WAVE)}, 1")
I(f"s_lshl_b32 {s(S_T1)}, {s(S_T1)}, 9")
I(f"v_lshl_add_u32 {v(24)}, {v(VL)}, 3, {s(S_T1)}")
I(f"s_lshr_b32 {s(S_T0)}, {s(S_WAVE)}, 1")
I(f"s_lshl_b32 {s(S_T1)}, {s(S_T0)}, 10")
I(f"v_add_u32 {v(25)}, {s(S_T1)}, {v(24)}")
I("s_waitcnt lgkmcnt(0)")
stamp()
GK = 192
I(f"s_setprio {FPRIO}")
I(f"s_cmp_lg_u32 {s(S_WAVE)}, 0")
I("s_cbranch_scc1 L_fk_wait")
keys_poll(VKEY, GK, 20)
keys_top2(GK, 224, 225, 21, 22)
I(f"ds_write_b64 {v(VZ)}, {v(224,2)} offset:{L_MISC + 16}")
I("s_waitcnt lgkmcnt(0)")
L("L_fk_wait")
I("s_barrier")
stamp()
I(f"ds_read_b64 {v(224,2)}, {v(VZ)} offset:{L_MISC + 16}")
I("s_waitcnt lgkmcnt(0)")
I(f"v_readfirstlane_b32 {s(S_K1)}, {v(224)}")
I(f"v_readfirstlane_b32 {s(S_K2)}, {v(225)}")
I(f"s_cmp_lt_u32 {s(S_WAVE)}, 2")
I("s_nop 2")
I(f"s_cselect_b32 {s(S_T0)}, {s(S_K1)}, {s(S_K2)}")
I(f"s_and_b32 {s(S_T0)}, {s(S_T0)}, 0xffff")
I(f"s_sub_u32 {s(S_T0)}, 0xffff, {s(S_T0)}")
I(f"s_min_u32 {s(S_T0)}, {s(S_T0)}, 2047")
I(f"s_lshl_b32 {s(S_T1)}, {s(S_T0)}, 10")
I(f"v_add_u32 {v(97)}, {s(S_T1)}, {v(24)}")
I(f"s_lshl_b32 {s(S_T1)}, {s(S_T0)}, 3")
I(f"v_mov_b32 {v(99)}, {s(S_T1)}")
I(f"global_load_dwordx2 {v(100,2)}, {v(97)}, {s(P_U,2)}")
I(f"s_mov_b32 {s(S_CNT)}, 0")
L("L_f_stat")
I(f"global_load_dwordx2 {v(104,2)}, {v(99)}, {s(P_WS,2)} sc1")
I("s_waitcnt vmcnt(0)")
I(f"v_cmp_ne_u32 vcc, {s(S_NONCE)}, {v(105)}")
I(f"s_add_u32 {s(S_CNT)}, {s(S_CNT)}, 1")
I(f"s_cmp_eq_u64 vcc, 0")
I(f"s_cbranch_scc1 L_f_stat_done")
I("s_sleep 1")
I(f"s_cmp_lt_u32 {s(S_CNT)}, {POLL_LIMIT}")
I(f"s_cbranch_scc1 L_f_stat")
L("L_f_stat_done")
stamp()
I(f"v_and_b32 {v(106)}, {s(S_MASK)}, {v(104)}")
I(f"v_lshlrev_b32 {v(104)}, 16, {v(104)}")
I(f"v_rcp_f32 {v(106)}, {v(106)}")
for k in range(2): unpack(108+2*k, 100+k)
for k in range(2): I(f"v_pk_add_f32 {v(108+2*k,2)}, {v(108+2*k,2)}, {v(104,2)} op_sel_hi:[1,0] neg_lo:[0,1] neg_hi:[0,1]")
for k in range(2): I(f"v_cvt_pk_bf16_f32 {v(100+k)}, {v(108+2*k)}, {v(109+2*k)}")
for k in range(2): unpack(108+2*k, 100+k)
for k in range(2): I(f"v_pk_mul_f32 {v(108+2*k,2)}, {v(108+2*k,2)}, {v(106,2)} op_sel_hi:[1,0]")
for k in range(2): I(f"v_cvt_pk_bf16_f32 {v(100+k)}, {v(108+2*k)}, {v(109+2*k)}")
I(f"ds_write_b64 {v(25)}, {v(100,2)} offset:{F_XS}")
I("s_waitcnt lgkmcnt(0)")
I("s_barrier")
I(f"s_cmp_ge_u32 {s(S_WAVE)}, 2")
I("s_cbranch_scc1 L_f_nogu")
AX = 160
for st in range(16):
    I(f"ds_read_b128 {v(AX+4*st,4)}, {v(t2)} offset:{F_XS + 64*st}")
AC = 96
for st in range(16):
    I(f"s_waitcnt lgkmcnt({15-st})")
    a = AC + 4*(st & 1)
    I(f"v_mfma_f32_16x16x32_bf16 {v(a,4)}, {v(AX+4*st,4)}, {v(WL+4*st,4)}, {'0' if st < 2 else v(a,4)}")
I(f"v_lshlrev_b32 {v(107)}, 7, {v(VKG)}")
I(f"v_lshl_add_u32 {v(107)}, {v(VJ)}, 3, {v(107)}")
I(f"s_lshl_b32 {s(S_T0)}, {s(S_WAVE)}, 6")
I(f"v_add_u32 {v(107)}, {s(S_T0)}, {v(107)}")
I("s_nop 4")
I(f"v_add_f32 {v(104)}, {v(AC)}, {v(AC+4)}")
I(f"v_cvt_pk_bf16_f32 {v(104)}, {v(104)}, {v(104)}")
I(f"v_lshlrev_b32 {v(104)}, 16, {v(104)}")
I(f"v_mul_f32 {v(105)}, {f2u(-LOG2E):#x}, {v(104)}")
I(f"v_exp_f32 {v(105)}, {v(105)}")
I(f"v_mov_b32_dpp {v(106)}, {v(104)} row_ror:8 row_mask:0xf bank_mask:0xf")
I(f"v_add_f32 {v(105)}, 1.0, {v(105)}")
I(f"v_rcp_f32 {v(105)}, {v(105)}")
I("s_nop 0")
I(f"v_mul_f32 {v(105)}, {v(104)}, {v(105)}")
I(f"v_cvt_pk_bf16_f32 {v(105)}, {v(105)}, {v(105)}")
I(f"v_lshlrev_b32 {v(105)}, 16, {v(105)}")
I(f"v_mul_f32 {v(105)}, {v(105)}, {v(106)}")
I(f"v_cvt_pk_bf16_f32 {v(105)}, {v(105)}, {v(105)}")
I(f"v_lshlrev_b32 {v(105)}, 16, {v(105)}")
I("s_mov_b64 exec, 0x00ff00ff")
I(f"ds_write2_b32 {v(107)}, {v(105)}, {v(105)} offset0:{F_H//4} offset1:{F_H//4+1}")
I("s_mov_b64 exec, -1")
I("s_waitcnt lgkmcnt(0)")
L("L_f_nogu")
I("s_barrier")
HB = 160
for q in range(16):
    I(f"ds_read_b128 {v(HB+4*q,4)}, {v(VZ)} offset:{F_H + 16*q}")
Y0, Y1 = 96, 100
I(f"s_lshl_b32 {s(S_T0)}, {s(S_G)}, 12")
I(f"v_lshl_add_u32 {v(112)}, v0, 4, {s(S_T0)}")
I(f"v_add_u32 {v(113)}, 0x80000, {v(112)}")
for Y in (Y0, Y1):
    I(f"v_mov_b32 {v(Y+1)}, {s(S_NONCE)}")
    I(f"v_mov_b32 {v(Y+3)}, {s(S_NONCE)}")
for q in range(16):
    tok = q >> 3
    I(f"s_waitcnt lgkmcnt({15-q})")
    for e in range(2):
        f = 2*(q & 7) + e
        acc = 104 + 4*tok + 2*e
        hp = HB + 4*q + 2*e
        if f < 2:
            I(f"v_pk_mul_f32 {v(acc,2)}, {v(WF+2*f,2)}, {v(hp,2)}")
        else:
            I(f"v_pk_fma_f32 {v(acc,2)}, {v(WF+2*f,2)}, {v(hp,2)}, {v(acc,2)}")
    if q == 7 or q == 15:
        Y = Y0 if q == 7 else Y1
        I(f"v_add_f32 {v(Y)}, {v(104+4*tok)}, {v(106+4*tok)}")
        I(f"v_add_f32 {v(Y+2)}, {v(105+4*tok)}, {v(107+4*tok)}")
        I(f"global_store_dwordx4 {v(112+tok)}, {v(Y,4)}, {s(S_PART,2)} sc1")
stamp()
L("L_fin")
if STAMP:
    I("s_waitcnt vmcnt(0) lgkmcnt(0)")
    I(f"s_memtime {s(S_ST + 22, 2)}")
    I(f"s_memrealtime {s(S_T2, 2)}")
    I(f"s_add_u32 {s(S_STB)}, {s(P_WS)}, {WS_STAMP}")
    I(f"s_addc_u32 {s(S_STB+1)}, {s(P_WS+1)}, 0")
    I(f"s_lshl_b32 {s(S_T0)}, s2, 2")
    I(f"s_add_u32 {s(S_T0)}, {s(S_T0)}, {s(S_WAVE)}")
    I(f"s_lshl_b32 {s(S_T0)}, {s(S_T0)}, 7")
    I("s_waitcnt lgkmcnt(0)")
    I(f"v_mov_b32 v10, {s(S_T0)}")
    I("s_mov_b64 exec, 1")
    for k in range(12):
        I(f"v_mov_b32 v12, {s(S_ST+2*k)}")
        I(f"v_mov_b32 v13, {s(S_ST+2*k+1)}")
        I(f"global_store_dwordx2 v10, v[12:13], {s(S_STB,2)} offset:{8*k}")
        I("s_nop 1")
    I(f"v_mov_b32 v12, {s(S_T2)}")
    I(f"v_mov_b32 v13, {s(S_T3)}")
    I(f"global_store_dwordx2 v10, v[12:13], {s(S_STB,2)} offset:96")
L("L_end")
I("s_endpgm")
out.append('.section .rodata,"a"')
out.append(".p2align 6")
out.append(f".amdhsa_kernel {KNAME}")
out.append("  .amdhsa_next_free_vgpr 256")
out.append("  .amdhsa_next_free_sgpr 102")
out.append("  .amdhsa_accum_offset 256")
out.append("  .amdhsa_group_segment_fixed_size 0")
out.append("  .amdhsa_kernarg_size 136")
out.append("  .amdhsa_user_sgpr_count 2")
out.append("  .amdhsa_user_sgpr_kernarg_segment_ptr 1")
out.append("  .amdhsa_system_sgpr_workgroup_id_x 1")
out.append("  .amdhsa_float_denorm_mode_32 3")
out.append(".end_amdhsa_kernel")
dst = [a for a in sys.argv[1:] if not a.startswith("--")]
open(dst[0] if dst else "k.s", "w").write("\n".join(x for x in out if x is not None) + "\n")
```

```python
import sys, struct, math

KNAME = "parallel_sum__ssm_conv_s4__moe_arch_mod__prompt_kernel"
NLN = 128
NCONV = 256
G = 112
NWG = NLN + NCONV + G
STAMP = "--stamp" in sys.argv

WS_STATS = 0
WS_KEYS = 16384
WS_FLAG = 32768
WS_PART = 65536
WS_STAMP = 2 << 20
WS_XNG = 4 << 20
WS_XT = 8 << 20

L_MISC = 0
L_KC = 256
KC_S = 4160
KC_D = 4 * KC_S
L_U = L_KC + 2 * KC_D
U_D = 4608
L_XL = L_U + 2 * U_D
L_R1 = L_XL + 8192
L_KTAB = L_R1
KTAB_D = 7680
L_PAR = L_XL
L_R2 = L_R1
LDS_BYTES = L_R1 + 16384
ZIDX = 840
TRASH = 848
TS = 1040
L_T1 = L_KC
L_T2 = L_T1 + 16 * TS
F_H = 256
F_XS = 512
F_W = F_XS + 2048
assert F_W + 32768 <= LDS_BYTES
assert LDS_BYTES <= 81920
POLL_LIMIT = 40000
def opt(name, dflt):
    m = [a for a in sys.argv if a.startswith(f"--{name}=")]
    return int(m[0].split("=")[1]) if m else dflt
LNPRIO = opt("lnprio", 2)
FPRIO = opt("fprio", 3)
PFPOS = opt("pfpos", 0)
PIPE = opt("pipe", 0)
KSLEEP = int([a for a in sys.argv if a.startswith("--ksleep=")][0][9:]) if any(a.startswith("--ksleep=") for a in sys.argv) else 3

out = []
cur = [out]
def I(s): cur[0].append("    " + s)
def L(s): cur[0].append(s + ":")
def C(s): cur[0].append("    ; " + s)
class capture:
    def __enter__(self):
        self.prev = cur[0]; self.lst = []; cur[0] = self.lst; return self.lst
    def __exit__(self, *a): cur[0] = self.prev
def f2u(x): return struct.unpack("<I", struct.pack("<f", x))[0]
def v(a, n=1): return f"v{a}" if n == 1 else f"v[{a}:{a+n-1}]"
def s(a, n=1): return f"s{a}" if n == 1 else f"s[{a}:{a+n-1}]"
uid = [0]
def lab(p):
    uid[0] += 1
    return f"L_{p}_{uid[0]}"

P_U, P_ARE, P_AIM, P_BRE, P_BIM, P_CRE, P_CIM, P_LDT = 8, 10, 12, 14, 16, 18, 20, 22
P_DSK, P_BX, P_WR, P_WG, P_WU, P_WD, P_OUT, P_DBG = 24, 26, 28, 30, 32, 34, 36, 38
P_WS = 40
S_WAVE, S_DP, S_NONCE, S_LDT, S_DSK, S_ROW0 = 42, 43, 44, 45, 46, 47
S_T0, S_T1, S_T2, S_T3 = 48, 49, 50, 51
S_X0 = 52
S_R = 56
S_DS2 = 60
S_UNS = 62
S_M0 = 63
S_CNT = 64
S_EXEC = 66
S_PART = 70
S_K1, S_K2 = 72, 73
S_XNG = 68
S_XT = 4
S_XNB = 6
S_MASK = 74
S_ST = 76
S_STB = 100
LOG2E = math.log2(math.e)

nstamp = [0]
def stamp():
    if not STAMP: return
    k = nstamp[0]; nstamp[0] += 1
    assert k < 11
    I(f"s_memtime {s(S_ST + 2*k, 2)}")

DPP4 = ("quad_perm:[1,0,3,2] row_mask:0xf bank_mask:0xf",
        "quad_perm:[2,3,0,1] row_mask:0xf bank_mask:0xf",
        "row_half_mirror row_mask:0xf bank_mask:0xf",
        "row_mirror row_mask:0xf bank_mask:0xf")
DPP6 = DPP4 + ("row_bcast:15 row_mask:0xa bank_mask:0xf", "row_bcast:31 row_mask:0xc bank_mask:0xf")
def dpp_reduce(regs, op="v_add_f32"):
    for mode in DPP6:
        pad = max(0, 3 - len(regs))
        if pad: I(f"s_nop {pad-1}")
        for r in regs:
            I(f"{op}_dpp {v(r)}, {v(r)}, {v(r)} {mode}")

def nonce_cas(vz, vt):
    l = lab("nocas")
    I(f"s_cmp_lg_u32 {s(S_T0)}, 0")
    I(f"s_cbranch_scc1 {l}")
    I(f"s_memrealtime {s(S_T2,2)}")
    I("s_waitcnt lgkmcnt(0)")
    I(f"s_or_b32 {s(S_T2)}, {s(S_T2)}, 1")
    I(f"v_mov_b32 {v(vt)}, {s(S_T2)}")
    I(f"v_mov_b32 {v(vt+1)}, 0")
    I("s_mov_b64 exec, 1")
    I(f"global_atomic_cmpswap {v(vz)}, {v(vt,2)}, {s(P_DBG,2)} sc1")
    I("s_mov_b64 exec, -1")
    L(l)

def nonce_issue(vz, vt):
    I(f"global_load_dword {v(vt)}, {v(vz)}, {s(P_DBG,2)} sc1")

def nonce_wait(vz, vt, first=0):
    l = lab("npoll"); done = l + "_done"
    I(f"s_mov_b32 {s(S_CNT)}, 0")
    if first:
        I(f"s_waitcnt vmcnt({first})")
        I(f"s_branch {l}_chk")
    L(l)
    I("s_waitcnt vmcnt(0)")
    L(l + "_chk")
    I(f"v_readfirstlane_b32 {s(S_NONCE)}, {v(vt)}")
    I(f"s_add_u32 {s(S_CNT)}, {s(S_CNT)}, 1")
    I(f"s_cmp_lg_u32 {s(S_NONCE)}, 0")
    I(f"s_cbranch_scc1 {done}")
    I(f"s_cmp_ge_u32 {s(S_CNT)}, {POLL_LIMIT}")
    I(f"s_cbranch_scc1 {done}")
    I("s_sleep 1")
    nonce_issue(vz, vt)
    I(f"s_branch {l}")
    L(done)

def sweep_issue(vaddr, GR, base):
    for k in range(4):
        I(f"global_load_dwordx4 {v(GR+4*k,4)}, {v(vaddr+k)}, {s(base,2)} sc1")

def sweep_check(GR, vtmp):
    I(f"v_xor_b32 {v(vtmp)}, {s(S_NONCE)}, {v(GR+1)}")
    I(f"v_xor_b32 {v(vtmp+1)}, {s(S_NONCE)}, {v(GR+3)}")
    for k in range(1, 4):
        I(f"v_xor_b32 {v(vtmp+2)}, {s(S_NONCE)}, {v(GR+4*k+1)}")
        I(f"v_xor_b32 {v(vtmp+3)}, {s(S_NONCE)}, {v(GR+4*k+3)}")
        I(f"v_or3_b32 {v(vtmp)}, {v(vtmp)}, {v(vtmp+2)}, {v(vtmp+3)}")
    I(f"v_or_b32 {v(vtmp)}, {v(vtmp)}, {v(vtmp+1)}")
    I(f"v_cmp_ne_u32 vcc, 0, {v(vtmp)}")

def sweep(vaddr, GR, vtmp, base, issued=False, first_wait=0):
    l = lab("sweep"); done = l + "_done"; chk = l + "_chk"
    I(f"s_mov_b32 {s(S_CNT)}, 0")
    if issued:
        I(f"s_waitcnt vmcnt({first_wait})")
        I(f"s_branch {chk}")
    L(l)
    sweep_issue(vaddr, GR, base)
    I("s_waitcnt vmcnt(0)")
    L(chk)
    sweep_check(GR, vtmp)
    I(f"s_add_u32 {s(S_CNT)}, {s(S_CNT)}, 1")
    I(f"s_cmp_eq_u64 vcc, 0")
    I(f"s_cbranch_scc1 {done}")
    I("s_sleep 4")
    I(f"s_cmp_lt_u32 {s(S_CNT)}, {POLL_LIMIT}")
    I(f"s_cbranch_scc1 {l}")
    L(done)

def poll4(vaddr, GR, tagpos, vtmp, issued=False, first_wait=0, sleep=2):
    l = lab("poll"); done = l + "_done"; chk = l + "_chk"
    I(f"s_mov_b32 {s(S_CNT)}, 0")
    if issued:
        I(f"s_waitcnt vmcnt({first_wait})")
        I(f"s_branch {chk}")
    L(l)
    I(f"global_load_dwordx4 {v(GR,4)}, {v(vaddr)}, {s(P_WS,2)} sc1")
    I("s_waitcnt vmcnt(0)")
    L(chk)
    for k, tp in enumerate(tagpos): I(f"v_xor_b32 {v(vtmp+k)}, {s(S_NONCE)}, {v(GR+tp)}")
    if len(tagpos) == 4:
        I(f"v_or3_b32 {v(vtmp)}, {v(vtmp)}, {v(vtmp+2)}, {v(vtmp+3)}")
    I(f"v_or_b32 {v(vtmp)}, {v(vtmp)}, {v(vtmp+1)}")
    I(f"v_cmp_ne_u32 vcc, 0, {v(vtmp)}")
    I(f"s_add_u32 {s(S_CNT)}, {s(S_CNT)}, 1")
    I(f"s_cmp_eq_u64 vcc, 0")
    I(f"s_cbranch_scc1 {done}")
    I(f"s_sleep {sleep}")
    I(f"s_cmp_lt_u32 {s(S_CNT)}, {POLL_LIMIT}")
    I(f"s_cbranch_scc1 {l}")
    L(done)

def top2_wave(GR, m1, m2, t1, t2):
    I(f"v_mov_b32 {v(m1)}, {v(GR)}")
    I(f"v_mov_b32 {v(m2)}, {v(GR+2)}")
    for mode in DPP4:
        I("s_nop 1")
        I(f"v_mov_b32_dpp {v(t1)}, {v(m1)} {mode}")
        I(f"v_max_u32_dpp {v(t2)}, {v(m2)}, {v(m2)} {mode}")
        I(f"v_med3_u32 {v(m2)}, {v(m1)}, {v(t1)}, {v(t2)}")
        I(f"v_max_u32 {v(m1)}, {v(m1)}, {v(t1)}")
    for swp in ("v_permlane16_swap_b32", "v_permlane32_swap_b32"):
        I(f"v_mov_b32 {v(t1)}, {v(m1)}")
        I(f"v_mov_b32 {v(t2)}, {v(m2)}")
        I("s_nop 1")
        I(f"{swp} {v(m1)}, {v(t1)}")
        I(f"{swp} {v(m2)}, {v(t2)}")
        I("s_nop 0")
        I(f"v_max_u32 {v(t2)}, {v(m2)}, {v(t2)}")
        I(f"v_med3_u32 {v(m2)}, {v(m1)}, {v(t1)}, {v(t2)}")
        I(f"v_max_u32 {v(m1)}, {v(m1)}, {v(t1)}")

def top2_combine(a, t1):
    for k in (1, 2, 3):
        I(f"v_max_u32 {v(t1)}, {v(a+1)}, {v(a+2*k+1)}")
        I(f"v_med3_u32 {v(a+1)}, {v(a)}, {v(a+2*k)}, {v(t1)}")
        I(f"v_max_u32 {v(a)}, {v(a)}, {v(a+2*k)}")

def unpack(dst, src):
    I(f"v_lshlrev_b32 {v(dst)}, 16, {v(src)}")
    I(f"v_and_b32 {v(dst+1)}, {s(S_MASK)}, {v(src)}")


def keys_poll(vaddr, GK, vtmp, sl=None):
    l = lab("kpoll"); done = l + "_done"
    I(f"s_mov_b32 {s(S_CNT)}, 0")
    L(l)
    I(f"global_load_dwordx4 {v(GK,4)}, {v(vaddr)}, {s(P_WS,2)} sc1")
    I(f"global_load_dwordx4 {v(GK+4,4)}, {v(vaddr+1)}, {s(P_WS,2)} sc1")
    I("s_waitcnt vmcnt(0)")
    for k in range(4): I(f"v_xor_b32 {v(vtmp+k)}, {s(S_NONCE)}, {v(GK+2*k+1)}")
    I(f"v_or3_b32 {v(vtmp)}, {v(vtmp)}, {v(vtmp+2)}, {v(vtmp+3)}")
    I(f"v_or_b32 {v(vtmp)}, {v(vtmp)}, {v(vtmp+1)}")
    I(f"v_cmp_ne_u32 vcc, 0, {v(vtmp)}")
    I(f"s_add_u32 {s(S_CNT)}, {s(S_CNT)}, 1")
    I(f"s_cmp_eq_u64 vcc, 0")
    I(f"s_cbranch_scc1 {done}")
    I(f"s_sleep {KSLEEP if sl is None else sl}")
    I(f"s_cmp_lt_u32 {s(S_CNT)}, {POLL_LIMIT}")
    I(f"s_cbranch_scc1 {l}")
    L(done)

def keys_top2(GK, m1, m2, t1, t2):
    I(f"v_max_u32 {v(t2)}, {v(GK+2)}, {v(GK+6)}")
    I(f"v_med3_u32 {v(GK+2)}, {v(GK)}, {v(GK+4)}, {v(t2)}")
    I(f"v_max_u32 {v(GK)}, {v(GK)}, {v(GK+4)}")
    top2_wave(GK, m1, m2, t1, t2)
    I("s_nop 0")
    I(f"v_readfirstlane_b32 {s(S_K1)}, {v(m1)}")
    I(f"v_readfirstlane_b32 {s(S_K2)}, {v(m2)}")


def keys_issue(vaddr, GK):
    I(f"global_load_dwordx4 {v(GK,4)}, {v(vaddr)}, {s(P_WS,2)} sc1")
    I(f"global_load_dwordx4 {v(GK+4,4)}, {v(vaddr+1)}, {s(P_WS,2)} sc1")
def keys_check(GK, vtmp):
    for k in range(4): I(f"v_xor_b32 {v(vtmp+k)}, {s(S_NONCE)}, {v(GK+2*k+1)}")
    I(f"v_or3_b32 {v(vtmp)}, {v(vtmp)}, {v(vtmp+2)}, {v(vtmp+3)}")
    I(f"v_or_b32 {v(vtmp)}, {v(vtmp)}, {v(vtmp+1)}")
    I(f"v_cmp_ne_u32 vcc, 0, {v(vtmp)}")
    I(f"s_cmp_eq_u64 vcc, 0")

def keys_poll2(vaddr, GK, GK2, vtmp):
    l = lab("kp2"); doneA = l + "_a"; doneB = l + "_b"
    I(f"s_mov_b32 {s(S_CNT)}, 0")
    keys_issue(vaddr, GK)
    L(l)
    I(f"s_sleep {PIPE}")
    keys_issue(vaddr, GK2)
    I("s_waitcnt vmcnt(2)")
    keys_check(GK, vtmp)
    I(f"s_cbranch_scc1 {doneA}")
    I(f"s_sleep {PIPE}")
    keys_issue(vaddr, GK)
    I("s_waitcnt vmcnt(2)")
    keys_check(GK2, vtmp)
    I(f"s_cbranch_scc1 {doneB}")
    I(f"s_add_u32 {s(S_CNT)}, {s(S_CNT)}, 1")
    I(f"s_cmp_lt_u32 {s(S_CNT)}, {POLL_LIMIT}")
    I(f"s_cbranch_scc1 {l}")
    L(doneB)
    L(doneA)

hdr = open("parallel_sum__ssm_conv_s4__moe_arch_mod__prompt.s.ref").read().split("; Override")[0]
out.append(hdr.rstrip())
out.append(f"; @launch grid=({NWG},1,1) block=(256,1,1) lds={LDS_BYTES}")
out.append('.amdgcn_target "amdgcn-amd-amdhsa--gfx950"')
out.append(".text")
out.append(f".globl {KNAME}")
out.append(".p2align 8")
out.append(f".type {KNAME},@function")
L(KNAME)
I(f"s_cmp_ge_u32 s2, {NWG}")
I("s_cbranch_scc1 L_end")
I(f"s_load_dwordx16 s[8:23], s[0:1], 0")
I(f"s_load_dwordx16 s[24:39], s[0:1], 64")
I(f"s_load_dwordx2 {s(P_WS,2)}, s[0:1], 128")
stamp()
VL, VZ, VJ, VKG = 1, 2, 5, 6
VO, VO2 = 10, 11
I(f"v_and_b32 {v(VL)}, 63, v0")
I(f"v_lshrrev_b32 v3, 6, v0")
I(f"v_mov_b32 {v(VZ)}, 0")
I(f"v_readfirstlane_b32 {s(S_WAVE)}, v3")
I(f"s_mov_b32 {s(S_MASK)}, 0xffff0000")
I(f"v_lshlrev_b32 {v(VO2)}, 4, {v(VL)}")
I(f"s_cmp_ge_u32 s2, {NLN}")
I("s_cbranch_scc1 L_stub")

C("==== LayerNorm role: 16 rows per workgroup, 4 per wave")
I(f"s_setprio {LNPRIO}")
NR = 4
X = [12 + 4*r for r in range(NR)]
WR = 28
F = [32 + 8*r for r in range(NR)]
D = [64 + 8*r for r in range(NR)]
T = [96 + 8*r for r in range(NR)]
S1 = [128 + r for r in range(NR)]
S2 = [132 + r for r in range(NR)]
S3 = [136 + r for r in range(NR)]
SW = 140
SX0 = [52 + 2*r for r in range(NR)]
VNON = 141
VTW, VTR2, VTS2 = 142, 143, 144
t1, t2 = 145, 146
VC, VONE = 147, 148
TX = 160
R_ = range(NR)
I(f"s_lshl_b32 {s(S_ROW0)}, s2, 4")
I(f"s_lshl_b32 {s(S_T0)}, {s(S_WAVE)}, 2")
I(f"s_add_u32 {s(S_ROW0)}, {s(S_ROW0)}, {s(S_T0)}")
I(f"s_lshl_b32 {s(S_T0)}, {s(S_ROW0)}, 10")
I(f"v_add_u32 {v(VO)}, {s(S_T0)}, {v(VO2)}")
I("s_waitcnt lgkmcnt(0)")
for r in R_:
    I(f"global_load_dwordx4 {v(X[r],4)}, {v(VO)}, {s(P_U,2)} offset:{1024*r}")
I(f"global_load_dwordx4 {v(WR,4)}, {v(VO2)}, {s(P_WR,2)}")
I("s_branch L_ln_main")
L("L_stub")
C("---- conv workgroups: parameter loads first (kept next to the entry so that they issue early from a cold I-cache)")
I(f"s_cmp_ge_u32 s2, {NLN + NCONV}")
I("s_cbranch_scc1 L_notln")
S_C = 47
I(f"s_sub_u32 {s(S_C)}, s2, {NLN}")
PRM = 24
I(f"s_and_b32 {s(S_T0)}, {s(S_C)}, 7")
I(f"s_lshl_b32 {s(S_T0)}, {s(S_T0)}, 5")
I(f"s_lshr_b32 {s(S_T1)}, {s(S_C)}, 3")
I(f"s_add_u32 {s(S_DP)}, {s(S_T0)}, {s(S_T1)}")
I(f"s_lshl_b32 {s(S_T0)}, {s(S_DP)}, 9")
I(f"s_lshl_b32 {s(S_T1)}, {s(S_WAVE)}, 7")
I(f"s_add_u32 {s(S_T0)}, {s(S_T0)}, {s(S_T1)}")
VPO = 30
I(f"v_lshl_add_u32 {v(VPO)}, {v(VL)}, 1, {s(S_T0)}")
for k in range(6): I(f"v_mov_b32 {v(PRM+k)}, 0")
I(f"s_lshl_b32 {s(S_T1)}, {s(S_DP)}, 2")
I("s_waitcnt lgkmcnt(0)")
for k, p in enumerate((P_ARE, P_AIM, P_BRE, P_BIM, P_CRE, P_CIM)):
    I(f"global_load_short_d16_hi {v(PRM+k)}, {v(VPO)}, {s(p,2)}")
I(f"s_load_dword {s(S_LDT)}, {s(P_LDT,2)}, {s(S_T1)}")
I(f"s_load_dword {s(S_DSK)}, {s(P_DSK,2)}, {s(S_T1)}")
I("s_branch L_notln")
L("L_ln_main")
C("---- pull the kernel's own code into this die's L2 (instruction fetch then misses only to L2)")
NCP = int([a for a in sys.argv if a.startswith("--ncp=")][0][6:]) if any(a.startswith("--ncp=") for a in sys.argv) else 32
I(f"s_getpc_b64 {s(S_EXEC,2)}")
L("L_pc")
I(f"s_sub_u32 {s(S_EXEC)}, {s(S_EXEC)}, L_pc-{KNAME}")
I(f"s_subb_u32 {s(S_EXEC+1)}, {s(S_EXEC+1)}, 0")
I(f"v_lshlrev_b32 {v(t1)}, 6, v0")
I(f"v_min_u32 {v(t1)}, L_end-{KNAME}, {v(t1)}")
I(f"s_cmp_ge_u32 s2, {NCP}")
I("s_cbranch_scc1 L_nocp")
I(f"global_load_dword {v(159)}, {v(t1)}, {s(S_EXEC,2)}")
I("s_branch L_cpdone")
L("L_nocp")
I(f"global_load_dword {v(159)}, {v(VZ)}, {s(P_WR,2)}")
L("L_cpdone")
I(f"s_add_u32 {s(S_XT)}, {s(P_WS)}, {WS_XT}")
I(f"s_addc_u32 {s(S_XT+1)}, {s(P_WS+1)}, 0")
I(f"s_mul_i32 {s(S_T2)}, {s(S_WAVE)}, {4*TS}")
I(f"v_add_u32 {v(VTW)}, {s(S_T2)}, {v(VO2)}")
I(f"v_and_b32 {v(t1)}, 3, v0")
I(f"v_lshrrev_b32 {v(t2)}, 2, v0")
I(f"v_mul_u32_u24 {v(VTR2)}, {4*TS}, {v(t1)}")
I(f"v_lshl_add_u32 {v(VTR2)}, {v(t2)}, 2, {v(VTR2)}")
I(f"s_lshl_b32 {s(S_T2)}, s2, 6")
I(f"v_lshl_add_u32 {v(VTS2)}, {v(t1)}, 4, {s(S_T2)}")
I(f"v_lshl_add_u32 {v(VTS2)}, {v(t2)}, 13, {v(VTS2)}")
I(f"s_lshl_b32 {s(S_T2)}, {s(S_ROW0)}, 3")
I(f"v_add_u32 {v(VO)}, {s(S_T2)}, {v(VO2)}")
C("---- warm this die's L2 with FFN weight lines that its FFN workgroups read last (speed only)")
I(f"s_and_b32 {s(S_T0)}, s2, 7")
I(f"s_lshr_b32 {s(S_T1)}, s2, 3")
I(f"s_sub_u32 {s(S_T2)}, {s(S_WAVE)}, 1")
I(f"s_cmp_ge_u32 {s(S_T2)}, 2")
I("s_cbranch_scc1 L_pf_down")
I(f"s_mul_i32 {s(S_T2)}, {s(S_T0)}, 448")
I(f"s_mul_i32 {s(S_T3)}, {s(S_T1)}, {16*3584}")
I(f"s_add_u32 {s(S_T2)}, {s(S_T2)}, {s(S_T3)}")
I(f"s_add_u32 {s(S_T2)}, {s(S_T2)}, {256*3584}")
I(f"v_lshrrev_b32 {v(176)}, 2, {v(VL)}")
I(f"v_mul_u32_u24 {v(176)}, 3584, {v(176)}")
I(f"v_and_b32 {v(177)}, 3, {v(VL)}")
I(f"v_mul_u32_u24 {v(177)}, 148, {v(177)}")
I(f"v_add3_u32 {v(176)}, {v(176)}, {v(177)}, {s(S_T2)}")
I(f"s_cmp_eq_u32 {s(S_WAVE)}, 1")
I(f"s_cselect_b32 {s(S_EXEC)}, {s(P_WG)}, {s(P_WU)}")
I(f"s_cselect_b32 {s(S_EXEC+1)}, {s(P_WG+1)}, {s(P_WU+1)}")
I(f"v_add_u32 {v(177)}, 72, {v(176)}")
I(f"v_min_u32 {v(177)}, {512*3584-4}, {v(177)}")
I("s_branch L_pf_go")
L("L_pf_down")
I(f"s_mul_i32 {s(S_T2)}, {s(S_T0)}, {224*1024}")
I(f"s_mul_i32 {s(S_T3)}, {s(S_T1)}, {14*1024}")
I(f"s_add_u32 {s(S_T2)}, {s(S_T2)}, {s(S_T3)}")
I(f"s_and_b32 {s(S_T3)}, {s(S_WAVE)}, 1")
I(f"s_mul_i32 {s(S_T3)}, {s(S_T3)}, 7168")
I(f"s_add_u32 {s(S_T2)}, {s(S_T2)}, {s(S_T3)}")
I(f"v_min_u32 {v(176)}, 55, {v(VL)}")
I(f"v_lshl_add_u32 {v(176)}, {v(176)}, 6, {s(S_T2)}")
I(f"v_add_u32 {v(177)}, 3584, {v(176)}")
I(f"s_mov_b64 {s(S_EXEC,2)}, {s(P_WD,2)}")
L("L_pf_go")
I(f"v_mov_b32 {v(VC)}, {f2u(1.0/512):#x}")
I(f"v_mov_b32 {v(VONE)}, 0x3f803f80")
for r in R_: I(f"v_mov_b32 {v(S3[r])}, 0")
I(f"v_mov_b32 {v(SW)}, 0")
for r in R_:
    I(f"s_waitcnt vmcnt({NR + 1 - r})")
    if r == 0: stamp()
    I(f"ds_write_b128 {v(VTW)}, {v(X[r],4)} offset:{L_T2 + r*TS}")
    if r < NR - 1:
        for k in range(4): unpack(F[r]+2*k, X[r]+k)
I("s_waitcnt lgkmcnt(0)")
I("s_barrier")
for i in range(4):
    for e in range(4):
        I(f"ds_read_b32 {v(TX+4*i+e)}, {v(VTR2)} offset:{L_T2 + 256*i + e*TS}")
for k in range(4): unpack(F[NR-1]+2*k, X[NR-1]+k)
for r in R_: I(f"v_readfirstlane_b32 {s(SX0[r])}, {v(F[r])}")
for i in range(4):
    I(f"s_waitcnt lgkmcnt({12 - 4*i})")
    I(f"global_store_dwordx4 {v(VTS2)}, {v(TX+4*i,4)}, {s(S_XT,2)} sc1")
    if i < 3: I(f"v_add_u32 {v(VTS2)}, 0x80000, {v(VTS2)}")
nonce_issue(VZ, VNON)
if PFPOS == 0:
    I(f"global_load_dword {v(178)}, {v(176)}, {s(S_EXEC,2)}")
    I(f"global_load_dword {v(179)}, {v(177)}, {s(S_EXEC,2)}")

stamp()
for k in range(4):
    for r in R_:
        I(f"v_pk_add_f32 {v(D[r]+2*k,2)}, {v(F[r]+2*k,2)}, {s(SX0[r],2)} op_sel_hi:[1,0] neg_lo:[0,1] neg_hi:[0,1]")
I(f"s_waitcnt vmcnt({8 if PFPOS == 0 else 6})")
for k in range(4):
    for r in R_: I(f"v_dot2c_f32_bf16 {v(S3[r])}, {v(X[r]+k)}, {v(WR+k)}")
    I(f"v_dot2c_f32_bf16 {v(SW)}, {v(VONE)}, {v(WR+k)}")
for r in R_: I(f"v_pk_add_f32 {v(T[r],2)}, {v(D[r],2)}, {v(D[r]+2,2)}")
for r in R_: I(f"v_pk_mul_f32 {v(T[r]+4,2)}, {v(D[r],2)}, {v(D[r],2)}")
for r in R_: I(f"v_pk_add_f32 {v(T[r]+2,2)}, {v(D[r]+4,2)}, {v(D[r]+6,2)}")
for r in R_: I(f"v_pk_fma_f32 {v(T[r]+4,2)}, {v(D[r]+2,2)}, {v(D[r]+2,2)}, {v(T[r]+4,2)}")
for r in R_: I(f"v_pk_add_f32 {v(T[r],2)}, {v(T[r],2)}, {v(T[r]+2,2)}")
for r in R_: I(f"v_pk_fma_f32 {v(T[r]+4,2)}, {v(D[r]+4,2)}, {v(D[r]+4,2)}, {v(T[r]+4,2)}")
for r in R_: I(f"v_add_f32 {v(S1[r])}, {v(T[r])}, {v(T[r]+1)}")
for r in R_: I(f"v_pk_fma_f32 {v(T[r]+4,2)}, {v(D[r]+6,2)}, {v(D[r]+6,2)}, {v(T[r]+4,2)}")
for r in R_: I(f"v_add_f32 {v(S2[r])}, {v(T[r]+4)}, {v(T[r]+5)}")
dpp_reduce(S1 + S3 + [SW] + S2)
for r in R_: I(f"v_mul_f32 {v(S1[r])}, {v(VC)}, {v(S1[r])}")
for r in R_: I(f"v_mul_f32 {v(S2[r])}, {v(VC)}, {v(S2[r])}")
for r in R_: I(f"v_fma_f32 {v(S2[r])}, -{v(S1[r])}, {v(S1[r])}, {v(S2[r])}")
for r in R_: I(f"v_add_f32 {v(S1[r])}, {s(SX0[r])}, {v(S1[r])}")
for r in R_: I(f"v_max_f32 {v(S2[r])}, 0, {v(S2[r])}")
MP = [T[0], T[0]+1]; VP = [T[0]+2, T[0]+3]
for h in range(2): I(f"v_cvt_pk_bf16_f32 {v(MP[h])}, {v(S1[2*h])}, {v(S1[2*h+1])}")
for h in range(2): I(f"v_cvt_pk_bf16_f32 {v(VP[h])}, {v(S2[2*h])}, {v(S2[2*h+1])}")
for h in range(2): unpack(S1[2*h], MP[h])
for h in range(2): unpack(S2[2*h], VP[h])
eps = f2u(1e-5)
for r in R_: I(f"v_add_f32 {v(S2[r])}, {eps:#x}, {v(S2[r])}")
for r in R_: I(f"v_fma_f32 {v(S3[r])}, -{v(S1[r])}, {v(SW)}, {v(S3[r])}")
for h in range(2): I(f"v_cvt_pk_bf16_f32 {v(VP[h])}, {v(S2[2*h])}, {v(S2[2*h+1])}")
for r in R_: I(f"v_lshrrev_b32 {v(S1[r])}, 16, {v(S1[r])}")
for h in range(2): unpack(S2[2*h], VP[h])
for r in R_: I(f"v_sqrt_f32 {v(S2[r])}, {v(S2[r])}")
I("s_nop 0")
for h in range(2): I(f"v_cvt_pk_bf16_f32 {v(VP[h])}, {v(S2[2*h])}, {v(S2[2*h+1])}")
for h in range(2): unpack(S2[2*h], VP[h])
RC = [T[1]+r for r in R_]
for r in R_: I(f"v_rcp_f32 {v(RC[r])}, {v(S2[r])}")
for r in R_: I(f"v_or_b32 {v(S1[r])}, {v(S1[r])}, {v(S2[r])}")
for r in R_: I(f"v_mul_f32 {v(S3[r])}, {v(S3[r])}, {v(RC[r])}")
SMS = [10, 11, 12, 13]
for r in R_: I(f"v_readlane_b32 {s(SMS[r])}, {v(S1[r])}, 63")
for h in range(2): I(f"v_cvt_pk_bf16_f32 {v(MP[h])}, {v(S3[2*h])}, {v(S3[2*h+1])}")
GP = 152
I(f"v_cmp_eq_u32 vcc, 0, {v(VL)}")
for h in range(2): I(f"v_readlane_b32 {s(S_R+h)}, {v(MP[h])}, 63")
I(f"v_mov_b32 {v(GP)}, {s(SMS[2])}")
I(f"v_mov_b32 {v(GP+2)}, {s(SMS[3])}")
I(f"v_mov_b32 {v(t1)}, {s(SMS[0])}")
I(f"v_mov_b32 {v(t2)}, {s(SMS[1])}")
I(f"v_cndmask_b32 {v(GP)}, {v(GP)}, {v(t1)}, vcc")
I(f"v_cndmask_b32 {v(GP+2)}, {v(GP+2)}, {v(t2)}, vcc")
I(f"s_sub_u32 {s(S_T3)}, 0xffff, {s(S_ROW0)}")
KK = [14, 15, 16, 17]
for h in range(2):
    I(f"s_and_b32 {s(S_T0)}, {s(S_R+h)}, 0x80008000")
    I(f"s_lshr_b32 {s(S_T1)}, {s(S_T0)}, 15")
    I(f"s_mul_i32 {s(S_T1)}, {s(S_T1)}, 0x7fff")
    I(f"s_or_b32 {s(S_T1)}, {s(S_T1)}, 0x80008000")
    I(f"s_xor_b32 {s(S_T2)}, {s(S_R+h)}, {s(S_T1)}")
    I(f"s_lshl_b32 {s(S_T0)}, {s(S_T2)}, 16")
    I(f"s_or_b32 {s(S_T0)}, {s(S_T0)}, {s(S_T3)}")
    I(f"s_sub_u32 {s(S_T3)}, {s(S_T3)}, 1")
    I(f"s_and_b32 {s(S_T1)}, {s(S_T2)}, 0xffff0000")
    I(f"s_or_b32 {s(S_T1)}, {s(S_T1)}, {s(S_T3)}")
    I(f"s_sub_u32 {s(S_T3)}, {s(S_T3)}, 1")
    I(f"s_max_u32 {s(KK[2*h])}, {s(S_T0)}, {s(S_T1)}")
    I(f"s_min_u32 {s(KK[2*h+1])}, {s(S_T0)}, {s(S_T1)}")
I(f"s_max_u32 {s(S_T0)}, {s(KK[0])}, {s(KK[2])}")
I(f"s_min_u32 {s(S_T1)}, {s(KK[0])}, {s(KK[2])}")
I(f"s_max_u32 {s(S_T2)}, {s(KK[1])}, {s(KK[3])}")
I(f"s_max_u32 {s(S_T1)}, {s(S_T1)}, {s(S_T2)}")
I(f"v_mov_b32 {v(156)}, {s(S_T0)}")
I(f"v_mov_b32 {v(157)}, {s(S_T1)}")
I(f"s_lshl_b32 {s(S_T0)}, {s(S_WAVE)}, 3")
I(f"v_mov_b32 {v(158)}, {s(S_T0)}")
I(f"ds_write_b64 {v(158)}, {v(156,2)} offset:{L_MISC + 64}")
stamp()
if PFPOS == 2:
    I(f"global_load_dword {v(178)}, {v(176)}, {s(S_EXEC,2)}")
    I(f"global_load_dword {v(179)}, {v(177)}, {s(S_EXEC,2)}")
nonce_wait(VZ, VNON, first=(2 if PFPOS < 3 else 0))
stamp()
I(f"v_mov_b32 {v(GP+1)}, {v(VNON)}")
I(f"v_mov_b32 {v(GP+3)}, {v(VNON)}")
I("s_mov_b64 exec, 3")
I(f"global_store_dwordx4 {v(VO)}, {v(GP,4)}, {s(P_WS,2)} sc1")
I("s_mov_b64 exec, -1")
I("s_waitcnt lgkmcnt(0)")
I("s_barrier")
I(f"s_cmp_lg_u32 {s(S_WAVE)}, 0")
I("s_cbranch_scc1 L_ln_pf" if "--nopf" not in sys.argv else "s_cbranch_scc1 L_fin")
I(f"ds_read_b128 {v(96,4)}, {v(VZ)} offset:{L_MISC+64}")
I(f"ds_read_b128 {v(100,4)}, {v(VZ)} offset:{L_MISC+80}")
I(f"s_lshl_b32 {s(S_T0)}, s2, 7")
I(f"s_add_u32 {s(S_T0)}, {s(S_T0)}, {WS_KEYS}")
I(f"v_mov_b32 {v(105)}, {s(S_T0)}")
I("s_waitcnt lgkmcnt(0)")
top2_combine(96, 104)
I(f"v_mov_b32 {v(98)}, {v(97)}")
I(f"v_mov_b32 {v(97)}, {v(VNON)}")
I(f"v_mov_b32 {v(99)}, {v(VNON)}")
I("s_mov_b64 exec, 1")
I(f"global_store_dwordx4 {v(105)}, {v(96,4)}, {s(P_WS,2)} sc1")
I("s_mov_b64 exec, -1")
stamp()
if "--nopf" in sys.argv: I("s_branch L_fin")
L("L_ln_pf")
if PFPOS == 3:
    I("s_barrier")
    I(f"global_load_dword {v(178)}, {v(176)}, {s(S_EXEC,2)}")
    I(f"global_load_dword {v(179)}, {v(177)}, {s(S_EXEC,2)}")
    I("s_waitcnt vmcnt(0)")
I("s_branch L_fin")

L("L_notln")
nstamp[0] = 1
I(f"v_and_b32 {v(VJ)}, 15, {v(VL)}")
I(f"v_lshrrev_b32 {v(VKG)}, 4, {v(VL)}")
VKEY = 252
I(f"v_lshlrev_b32 {v(VKEY)}, 7, {v(VL)}")
I(f"v_add_u32 {v(VKEY+1)}, {WS_KEYS + 8192}, {v(VKEY)}")
I(f"v_add_u32 {v(VKEY)}, {WS_KEYS}, {v(VKEY)}")
I(f"s_cmp_ge_u32 s2, {NLN + NCONV}")
I("s_cbranch_scc1 L_ffn")

C("==== conv role")
I(f"s_lshr_b32 {s(S_T0)}, {s(S_C)}, 3")
I(f"s_xor_b32 {s(S_T0)}, {s(S_T0)}, 31")
I(f"s_xor_b32 {s(S_T1)}, {s(S_WAVE)}, 3")
I(f"s_or_b32 {s(S_T0)}, {s(S_T0)}, {s(S_T1)}")
nonce_cas(VZ, 32)
I(f"s_add_u32 {s(S_PART)}, {s(P_WS)}, {WS_PART}")
I(f"s_addc_u32 {s(S_PART+1)}, {s(P_WS+1)}, 0")
I(f"s_lshl_b32 {s(S_T0)}, {s(S_DP)}, 13")
I(f"s_add_u32 {s(S_T0)}, {s(S_T0)}, {WS_XT}")
I(f"s_add_u32 {s(S_XNG)}, {s(P_WS)}, {s(S_T0)}")
I(f"s_addc_u32 {s(S_XNG+1)}, {s(P_WS+1)}, 0")

C("---- constants")
AL = 200
VBETA = 206
SC0, SC1A, SC1B, SC2 = 208, 209, 210, 211
GA = 212
VGX = 224
VA_, VB_ = 226, 227
VRW, VRR = 228, 229
VT0 = 230
VOUT = 232
VPAR = 234
VKCW = 235
VPW = 236
VT8 = 237
VT4 = 238
VFL = 239
M1, M2 = 240, 241
VEX, VEU = 242, 243
VTL = 245
VNON = 246
VSW = 248
t1, t2, t3, t4 = 12, 13, 14, 15
I(f"v_lshlrev_b32 {v(VKCW)}, 4, v0")
I(f"v_lshlrev_b32 {v(VT8)}, 3, v0")
I(f"v_lshlrev_b32 {v(VT4)}, 2, v0")
I(f"s_lshl_b32 {s(S_T2)}, {s(S_WAVE)}, 11")
I(f"s_add_u32 {s(S_T2)}, {s(S_T2)}, {L_PAR}")
I(f"v_lshl_add_u32 {v(VPAR)}, {v(VKG)}, 7, {s(S_T2)}")
I(f"v_lshl_add_u32 {v(VPW)}, {v(VL)}, 5, {s(S_T2)}")
for k in range(4):
    I(f"v_add_u32 {v(VSW+k)}, {4096*k}, {v(VKCW)}")
I(f"v_add_u32 {v(VFL)}, 4096, {v(VT8)}")
I(f"v_mov_b32 {v(t1)}, {v(VJ)}")
for i_, al in ((8, 512), (9, 516), (10, 1024), (11, 1536), (12, 2048), (13, 0), (14, 0), (15, 0)):
    I(f"v_cmp_eq_u32 vcc, {i_}, {v(VJ)}")
    I(f"v_mov_b32 {v(t2)}, {al}")
    I("s_nop 0")
    I(f"v_cndmask_b32 {v(t1)}, {v(t1)}, {v(t2)}, vcc")
I(f"v_cvt_f32_u32 {v(AL)}, {v(t1)}")
I(f"v_lshlrev_b32 {v(t1)}, 3, {v(VJ)}")
I(f"v_cvt_f32_u32 {v(VBETA)}, {v(t1)}")
SCB, SCS = 208, 202
I(f"s_lshr_b32 {s(S_T0)}, {s(S_WAVE)}, 1")
I(f"s_mul_i32 {s(S_T0)}, {s(S_T0)}, {KTAB_D}")
I(f"s_and_b32 {s(S_T1)}, {s(S_WAVE)}, 1")
I(f"s_lshl_b32 {s(S_T1)}, {s(S_T1)}, 2")
I(f"s_add_u32 {s(S_T0)}, {s(S_T0)}, {s(S_T1)}")
I(f"s_add_u32 {s(S_T0)}, {s(S_T0)}, {L_KTAB}")
I(f"v_mul_u32_u24 {v(t1)}, 9, {v(VJ)}")
I(f"v_lshl_add_u32 {v(t1)}, {v(VKG)}, 2, {v(t1)}")
I(f"v_cmp_eq_u32 {s(S_T2,2)}, 2, {v(VKG)}")
I(f"v_cmp_eq_u32 {s(S_X0,2)}, 3, {v(VKG)}")
I(f"v_cmp_eq_u32 {s(S_X0+2,2)}, 48, {v(VL)}")
for r in range(4):
    I(f"v_add_u32 {v(t2)}, {r}, {v(t1)}")
    if r < 2: I(f"v_lshl_add_u32 {v(t3)}, {v(VJ)}, 1, {v(VZ)}"); I(f"v_add_u32 {v(t3)}, {576 + r}, {v(t3)}")
    else:     I(f"v_add_u32 {v(t3)}, {704 + 64*(r-2)}, {v(VJ)}")
    I(f"v_cndmask_b32 {v(t2)}, {v(t2)}, {v(t3)}, {s(S_T2,2)}")
    I(f"v_add_u32 {v(t3)}, {TRASH + 16*r}, {v(VJ)}")
    I(f"v_cndmask_b32 {v(t2)}, {v(t2)}, {v(t3)}, {s(S_X0,2)}")
    if r == 0:
        I(f"v_mov_b32 {v(t3)}, 832")
        I(f"v_cndmask_b32 {v(t2)}, {v(t2)}, {v(t3)}, {s(S_X0+2,2)}")
    I(f"v_lshl_add_u32 {v(SCB+r)}, {v(t2)}, 3, {s(S_T0)}")
for hh, st2 in ((0, 32), (1, 16)):
    I(f"v_mov_b32 {v(t2)}, {144*8}")
    I(f"v_mov_b32 {v(t3)}, {st2*8}")
    I(f"v_cndmask_b32 {v(t2)}, {v(t2)}, {v(t3)}, {s(S_T2,2)}")
    I(f"v_cndmask_b32 {v(t2)}, {v(t2)}, {v(VZ)}, {s(S_X0,2)}")
    if hh == 0:
        I(f"v_mov_b32 {v(t3)}, {16*8}")
        I(f"v_cndmask_b32 {v(t2)}, {v(t2)}, {v(t3)}, {s(S_X0+2,2)}")
    I(f"v_mov_b32 {v(SCS+hh)}, {v(t2)}")
I(f"v_sub_u32 {v(t1)}, 2047, {v(VT8)}")
I(f"s_movk_i32 {s(S_T1)}, 0x4400")
I(f"v_mov_b32 {v(t4)}, {ZIDX}")
for k in range(11):
    I(f"v_subrev_u32 {v(t2)}, {k}, {v(t1)}")
    I(f"v_cvt_f32_i32 {v(t3)}, {v(t2)}")
    I(f"v_cvt_pk_bf16_f32 {v(t3)}, {v(t3)}, {v(VZ)}")
    I(f"v_lshlrev_b32 {v(16)}, 16, {v(t3)}")
    I(f"v_cmp_gt_u32 vcc, {s(S_T1)}, {v(t3)}")
    I(f"v_cvt_u32_f32 {v(16)}, {v(16)}")
    I(f"v_subrev_u32 {v(t3)}, {0x4400 - 576}, {v(t3)}")
    I(f"v_lshrrev_b32 {v(17)}, 3, {v(16)}")
    I(f"v_add_u32 {v(16)}, {v(16)}, {v(17)}")
    I(f"v_cndmask_b32 {v(t3)}, {v(t3)}, {v(16)}, vcc")
    if k >= 8:
        I(f"v_cmp_gt_i32 vcc, 0, {v(t2)}")
        I("s_nop 1")
        I(f"v_cndmask_b32 {v(t3)}, {v(t3)}, {v(t4)}, vcc")
    I(f"v_lshlrev_b32 {v(GA+k)}, 3, {v(t3)}")
I(f"s_lshr_b32 {s(S_T0)}, {s(S_WAVE)}, 1")
I(f"s_and_b32 {s(S_T1)}, {s(S_WAVE)}, 1")
I(f"s_mul_i32 {s(S_T2)}, {s(S_T0)}, {KC_D}")
I(f"s_lshl_b32 {s(S_T3)}, {s(S_T1)}, 8")
I(f"s_sub_u32 {s(S_T2)}, {s(S_T2)}, {s(S_T3)}")
I(f"s_add_u32 {s(S_T2)}, {s(S_T2)}, {L_KC + 3*KC_S + 72}")
I(f"v_and_b32 {v(t1)}, 3, {v(VJ)}")
I(f"v_mul_u32_u24 {v(t1)}, {KC_S}, {v(t1)}")
I(f"v_lshrrev_b32 {v(t2)}, 2, {v(VJ)}")
I(f"v_lshl_add_u32 {v(t1)}, {v(t2)}, 3, {v(t1)}")
I(f"v_lshl_add_u32 {v(t1)}, {v(VKG)}, 4, {v(t1)}")
I(f"v_sub_u32 {v(VA_)}, {s(S_T2)}, {v(t1)}")
I(f"s_mul_i32 {s(S_T2)}, {s(S_T0)}, {U_D}")
I(f"s_sub_u32 {s(S_T2)}, {s(S_T2)}, {s(S_T3)}")
I(f"s_add_u32 {s(S_T2)}, {s(S_T2)}, {L_U + 336}")
I(f"v_lshlrev_b32 {v(t1)}, 5, {v(VJ)}")
I(f"v_lshlrev_b32 {v(t2)}, 4, {v(VKG)}")
I(f"v_sub_u32 {v(t1)}, {v(t1)}, {v(t2)}")
I(f"v_add_u32 {v(VB_)}, {s(S_T2)}, {v(t1)}")
I(f"s_lshl_b32 {s(S_T2)}, {s(S_WAVE)}, 11")
I(f"v_add_u32 {v(VRW)}, {s(S_T2)}, {v(VO2)}")
I(f"s_lshr_b32 {s(S_T2)}, {s(S_WAVE)}, 1")
I(f"s_lshl_b32 {s(S_T2)}, {s(S_T2)}, 10")
I(f"s_and_b32 {s(S_T3)}, {s(S_WAVE)}, 1")
I(f"s_lshl_b32 {s(S_T3)}, {s(S_T3)}, 3")
I(f"s_add_u32 {s(S_T2)}, {s(S_T2)}, {s(S_T3)}")
I(f"v_add_u32 {v(VRR)}, {s(S_T2)}, {v(VO2)}")
I(f"s_lshr_b32 {s(S_T2)}, {s(S_T2)}, 2")
I(f"v_lshl_add_u32 {v(VT0)}, {v(VJ)}, 4, {s(S_T2)}")
I(f"v_lshl_add_u32 {v(VT0)}, {v(VKG)}, 2, {v(VT0)}")
I(f"v_lshlrev_b32 {v(VEX)}, 2, {v(VT0)}")
I(f"v_lshlrev_b32 {v(VEU)}, 1, {v(VT0)}")
I(f"s_lshl_b32 {s(S_T2)}, {s(S_DP)}, 2")
I(f"v_lshl_add_u32 {v(VOUT)}, {v(VT0)}, 10, {s(S_T2)}")
I(f"v_mov_b32 {v(38)}, 0")
I(f"v_mov_b32 {v(39)}, 0")
I(f"ds_write_b64 {v(VZ)}, {v(38,2)} offset:{L_KTAB + 8*ZIDX}")
I(f"ds_write_b64 {v(VZ)}, {v(38,2)} offset:{L_KTAB + KTAB_D + 8*ZIDX}")
I(f"v_lshlrev_b32 {v(t2)}, 1, v0")
I(f"ds_write_b16 {v(t2)}, {v(VZ)} offset:{L_U}")
I(f"ds_write_b16 {v(t2)}, {v(VZ)} offset:{L_U + U_D}")
I(f"v_lshrrev_b32 {v(t3)}, 5, v0")
I(f"v_mul_u32_u24 {v(t3)}, {KC_S}, {v(t3)}")
I(f"v_and_b32 {v(t4)}, 31, v0")
I(f"v_lshl_add_u32 {v(t3)}, {v(t4)}, 1, {v(t3)}")
I(f"ds_write_b16 {v(t3)}, {v(VZ)} offset:{L_KC + 4096}")

C("---- K-gen parameters")
I("s_waitcnt lgkmcnt(0)")
I(f"s_lshr_b32 {s(S_T0)}, {s(S_WAVE)}, 1")
I(f"s_lshl_b32 {s(S_T0)}, {s(S_T0)}, 4")
I(f"s_lshr_b32 {s(S_T1)}, {s(S_LDT)}, {s(S_T0)}")
I(f"s_lshl_b32 {s(S_T1)}, {s(S_T1)}, 16")
l2e_hi = struct.unpack("<f", struct.pack("<f", LOG2E))[0]
l2e_lo = LOG2E - l2e_hi
T0_, T1_, T2_, T3_, DT = 40, 41, 42, 43, 44
VDS = 8
I(f"s_lshl_b32 {s(S_DS2)}, {s(S_DSK)}, 16")
I(f"s_and_b32 {s(S_DS2+1)}, {s(S_DSK)}, 0xffff0000")
I(f"v_mov_b32 {v(T0_)}, {f2u(l2e_hi):#x}")
I(f"v_mov_b32 {v(T3_)}, {f2u(l2e_lo):#x}")
I(f"v_add_f32 {v(VDS)}, {s(S_DS2)}, 1.0")
I(f"v_add_f32 {v(VDS+1)}, {s(S_DS2+1)}, 1.0")
I(f"v_mul_f32 {v(T1_)}, {s(S_T1)}, {v(T0_)}")
I(f"v_fma_f32 {v(T2_)}, {s(S_T1)}, {v(T0_)}, -{v(T1_)}")
I(f"v_fma_f32 {v(T2_)}, {s(S_T1)}, {v(T3_)}, {v(T2_)}")
I(f"v_exp_f32 {v(T1_)}, {v(T1_)}")
I(f"v_mul_f32 {v(T2_)}, {f2u(math.log(2.0)):#x}, {v(T2_)}")
I(f"v_readfirstlane_b32 {s(S_DS2)}, {v(VDS)}")
I(f"v_readfirstlane_b32 {s(S_DS2+1)}, {v(VDS+1)}")
I(f"v_fma_f32 {v(T1_)}, {v(T1_)}, {v(T2_)}, {v(T1_)}")
I(f"v_cvt_pk_bf16_f32 {v(T1_)}, {v(T1_)}, {v(T1_)}")
I(f"v_lshlrev_b32 {v(DT)}, 16, {v(T1_)}")
PW = 48
I("s_waitcnt vmcnt(1)")
stamp()
I("s_waitcnt vmcnt(0)") if False else None
I(f"v_mul_f32 {v(T1_)}, {v(DT)}, {v(PRM+2)}")
I(f"v_mul_f32 {v(T2_)}, {v(DT)}, {v(PRM+3)}")
I(f"v_mul_f32 {v(PW)}, {v(DT)}, {v(PRM+0)}")
I(f"v_mul_f32 {v(PW+1)}, {v(DT)}, {v(PRM+1)}")
I(f"v_mul_f32 {v(PW+2)}, {v(PRM+4)}, {v(T1_)}")
I(f"v_mul_f32 {v(PW+3)}, {v(PRM+4)}, {v(T2_)}")
I(f"v_mul_f32 {v(PW)}, {v(T0_)}, {v(PW)}")
I(f"v_mul_f32 {v(PW+1)}, 0.15915494, {v(PW+1)}")
I(f"s_lshr_b32 {s(S_T0)}, {s(S_C)}, 3")
I(f"s_xor_b32 {s(S_T0)}, {s(S_T0)}, 31")
I(f"s_xor_b32 {s(S_T2)}, {s(S_WAVE)}, 3")
I(f"s_or_b32 {s(S_T0)}, {s(S_T0)}, {s(S_T2)}")
I(f"s_cmp_eq_u32 {s(S_T0)}, 0")
I("s_cbranch_scc1 L_p5b")
I("s_waitcnt vmcnt(0)")
L("L_p5b")
I(f"v_mul_f32 {v(56)}, 0x43000000, {v(PW)}")
I(f"v_mul_f32 {v(57)}, 0x43000000, {v(PW+1)}")
I(f"v_exp_f32 {v(56)}, {v(56)}")
I(f"v_fract_f32 {v(57)}, {v(57)}")
I(f"v_cos_f32 {v(PW+4)}, {v(57)}")
I(f"v_sin_f32 {v(PW+5)}, {v(57)}")
I(f"v_fma_f32 {v(PW+2)}, -{v(PRM+5)}, {v(T2_)}, {v(PW+2)}")
I(f"v_fma_f32 {v(PW+3)}, {v(PRM+5)}, {v(T1_)}, {v(PW+3)}")
I(f"v_max_f32 {v(T3_)}, |{v(PW+2)}|, |{v(PW+3)}|")
I(f"v_mul_f32 {v(PW+4)}, {v(PW+4)}, {v(56)}")
I(f"v_mul_f32 {v(PW+5)}, {v(PW+5)}, {v(56)}")
I(f"ds_write_b64 {v(VPW)}, {v(PW+4,2)} offset:16")
dpp_reduce([T3_], "v_max_f32")
I("s_nop 0")
I(f"v_readlane_b32 {s(S_T0)}, {v(T3_)}, 63")
I("s_nop 3")
I(f"s_bfe_u32 {s(S_T0)}, {s(S_T0)}, 0x80017")
I(f"s_max_u32 {s(S_T0)}, {s(S_T0)}, 1")
I(f"s_min_u32 {s(S_T0)}, {s(S_T0)}, 253")
I(f"s_lshl_b32 {s(S_UNS)}, {s(S_T0)}, 23")
I(f"s_sub_u32 {s(S_T0)}, 254, {s(S_T0)}")
I(f"s_lshl_b32 {s(S_T0)}, {s(S_T0)}, 23")
I(f"v_mul_f32 {v(PW+2)}, {s(S_T0)}, {v(PW+2)}")
I(f"v_mul_f32 {v(PW+3)}, {s(S_T0)}, {v(PW+3)}")
I(f"ds_write_b128 {v(VPW)}, {v(PW,4)}")
nonce_issue(VZ, VNON)
C("---- K-gen main loop: 4 super-groups of 16 n ; one A tile (rows) x four B tiles (columns)")
ACC = 100
PP = 56
OPA = 116
OPB = 120
TM = 136
for k in range(16): I(f"v_mov_b32 {v(ACC+k)}, 0")
I(f"s_mov_b32 {s(S_CNT)}, 0")
I("s_waitcnt lgkmcnt(0)")
stamp()
L("L_kgen")
for q in range(4):
    I(f"ds_read_b128 {v(PP+8*q,4)}, {v(VPAR)} offset:{32*q}")
    I(f"ds_read_b64 {v(PP+8*q+4,2)}, {v(VPAR)} offset:{32*q+16}")
PFIT = int([a for a in sys.argv if a.startswith("--pfit=")][0][7:]) if any(a.startswith("--pfit=") for a in sys.argv) else 1
I(f"v_add_u32 {v(VPAR)}, 512, {v(VPAR)}")
for qp in range(2):
    QS = (2*qp, 2*qp+1)
    I(f"s_waitcnt lgkmcnt({4 - 4*qp})")
    def tm(q, x): return TM + 16*(q & 1) + 4*x
    EV = [(q, x) for q in QS for x in range(2)]
    for q, x in EV: I(f"v_pk_mul_f32 {v(tm(q,x),2)}, {v(PP+8*q,2)}, {v(VBETA if x == 0 else AL,2)} op_sel_hi:[1,0]")
    for q, x in EV: I(f"v_fract_f32 {v(tm(q,x)+1)}, {v(tm(q,x)+1)}")
    for q, x in EV: I(f"v_exp_f32 {v(tm(q,x))}, {v(tm(q,x))}")
    for q, x in EV: I(f"v_cos_f32 {v(tm(q,x)+2)}, {v(tm(q,x)+1)}")
    for q, x in EV: I(f"v_sin_f32 {v(tm(q,x)+3)}, {v(tm(q,x)+1)}")
    def ep(q, x): return TM + 16*(q & 1) + 8 + 2*x
    def bc(q, alt): return TM + 16*(q & 1) + 12 + 2*alt
    for q, x in EV: I(f"v_pk_mul_f32 {v(ep(q,x),2)}, {v(tm(q,x)+2,2)}, {v(tm(q,x),2)} op_sel_hi:[1,0]")
    for q in QS: I(f"v_pk_mul_f32 {v(bc(q,0),2)}, {v(ep(q,0),2)}, {v(PP+8*q+2,2)} op_sel_hi:[0,1] neg_hi:[0,1]")
    for q in QS: I(f"v_cvt_pk_f16_f32 {v(OPA+q)}, {v(ep(q,1))}, {v(ep(q,1)+1)}")
    for q in QS: I(f"v_fma_f32 {v(bc(q,0))}, -{v(ep(q,0)+1)}, {v(PP+8*q+3)}, {v(bc(q,0))}")
    for q in QS: I(f"v_fma_f32 {v(bc(q,0)+1)}, -{v(ep(q,0)+1)}, {v(PP+8*q+2)}, {v(bc(q,0)+1)}")
    for k in range(4):
        cur_, nx = k & 1, 1 - (k & 1)
        if k < 3:
            for q in QS: I(f"v_pk_mul_f32 {v(bc(q,nx),2)}, {v(bc(q,cur_),2)}, {v(PP+8*q+4,2)} op_sel_hi:[1,0]")
        for q in QS: I(f"v_cvt_pk_f16_f32 {v(OPB+4*k+q)}, {v(bc(q,cur_))}, {v(bc(q,cur_)+1)}")
        if k < 3:
            for q in QS: I(f"v_fma_f32 {v(bc(q,nx))}, {v(bc(q,cur_)+1)}, {v(PP+8*q+5)}, {v(bc(q,nx))}")
            for q in QS: I(f"v_fma_f32 {v(bc(q,nx)+1)}, -{v(bc(q,cur_))}, {v(PP+8*q+5)}, {v(bc(q,nx)+1)}")
I(f"s_add_u32 {s(S_CNT)}, {s(S_CNT)}, 1")
I(f"s_cmp_lt_u32 {s(S_CNT)}, 4")
for k in range(4):
    I(f"v_mfma_f32_16x16x32_f16 {v(ACC+4*k,4)}, {v(OPA,4)}, {v(OPB+4*k,4)}, {v(ACC+4*k,4)}")
I("s_cbranch_scc1 L_kgen")
stamp()
GR, GK = 160, 176
nonce_wait(VZ, VNON)
for k in range(16): I(f"v_mul_f32 {v(ACC+k)}, {s(S_UNS)}, {v(ACC+k)}")
for k in range(4):
    for r in range(4):
        I(f"ds_write_b32 {v(SCB+r)}, {v(ACC+4*k+r)}")
        if k < 3: I(f"v_add_u32 {v(SCB+r)}, {v(SCB+r)}, {v(SCS + (r >> 1))}")
I("s_waitcnt lgkmcnt(0)")
I("s_barrier")
C("---- expand K into 4 shifted bf16 copies")
E0 = 40
CP = 96
XX = 144
def xs_issue():
    for k in range(4):
        I(f"global_load_dwordx2 {v(XX+2*k,2)}, {v(VT8 if k < 2 else VFL)}, {s(S_XNG,2)} offset:{2048*(k&1)} sc1")
    sweep_issue(VSW, GR, P_WS)
for d in range(2):
    Eb = E0 + 24*d
    for k in range(11):
        I(f"ds_read_b64 {v(Eb+2*k,2)}, {v(GA+k)} offset:{L_KTAB + d*KTAB_D}")
def expand(d):
    Eb = E0 + 24*d
    I(f"s_waitcnt lgkmcnt({11 if d == 0 else 4})")
    for k in range(11):
        I(f"v_add_f32 {v(Eb+2*k)}, {v(Eb+2*k)}, {v(Eb+2*k+1)}")
    for sg in range(4):
        Cb = CP + 16*d + 4*sg
        for m in range(4):
            I(f"v_cvt_pk_bf16_f32 {v(Cb+m)}, {v(Eb+2*(sg+2*m))}, {v(Eb+2*(sg+2*m+1))}")
        I(f"ds_write_b128 {v(VKCW)}, {v(Cb,4)} offset:{L_KC + d*KC_D + sg*KC_S}")
expand(0)
expand(1)
stamp()
I(f"s_cmp_lg_u32 {s(S_WAVE)}, 0")
I("s_cbranch_scc1 L_k_wait")
if PIPE: keys_poll2(VKEY, GK, 184, 32)
else: keys_poll(VKEY, GK, 32)
L("L_k_wait")
I("s_barrier")
xs_issue()
stamp()
I(f"s_cmp_lg_u32 {s(S_WAVE)}, 0")
I("s_cbranch_scc1 L_k_not0")
if PIPE:
    I("s_waitcnt vmcnt(8)")
    keys_check(GK, 32)
    I("s_cbranch_scc1 L_k_gk")
    for k in range(8): I(f"v_mov_b32 {v(GK+k)}, {v(184+k)}")
    L("L_k_gk")
keys_top2(GK, M1, M2, 44, 45)
I(f"ds_write_b64 {v(VZ)}, {v(M1,2)} offset:{L_MISC + 16}")
L("L_k_not0")
for k in range(4):
    I(f"s_waitcnt vmcnt({7-k})")
    I(f"ds_write_b64 {v(VT8)}, {v(XX+2*k,2)} offset:{L_XL + 2048*k}")
XF = 48
for k in range(8): unpack(XF+6*k+2, XX+k)
sweep(VSW, GR, 40, P_WS, issued=True, first_wait=0)
stamp()
RI = 128
for k in range(8):
    g = GR + 2*k
    I(f"v_and_b32 {v(RI+2*k)}, {s(S_MASK)}, {v(g)}")
    I(f"v_lshlrev_b32 {v(XF+6*k)}, 16, {v(g)}")
    I(f"v_rcp_f32 {v(RI+2*k)}, {v(RI+2*k)}")
for k in range(8):
    b = XF+6*k
    I(f"v_pk_add_f32 {v(b+2,2)}, {v(b+2,2)}, {v(b,2)} op_sel_hi:[1,0] neg_lo:[0,1] neg_hi:[0,1]")
for k in range(8):
    b = XF+6*k
    I(f"v_cvt_pk_bf16_f32 {v(b+4)}, {v(b+2)}, {v(b+3)}")
for k in range(8): unpack(XF+6*k+2, XF+6*k+4)
for k in range(8):
    b = XF+6*k
    I(f"v_pk_mul_f32 {v(b+2,2)}, {v(b+2,2)}, {v(RI+2*k,2)} op_sel_hi:[1,0]")
for k in range(4):
    for d in range(2):
        I(f"v_cvt_pk_bf16_f32 {v(XX+2*k+d)}, {v(XF+12*k+2+d)}, {v(XF+12*k+8+d)}")
        I(f"ds_write_b32 {v(VT4)}, {v(XX+2*k+d)} offset:{L_U + 512 + d*U_D + 1024*k}")
I("s_waitcnt lgkmcnt(0)")
I("s_barrier")
stamp()
S_TK = [52, 53]
S_OW = [54, 55]
I(f"ds_read_b64 {v(24,2)}, {v(VZ)} offset:{L_MISC + 16}")
C("---- convolution: 4 phases of 2 output tiles; K operands stay resident, finished tiles are stored under the next phase")
def AR(rl, k): return 32 + 32*rl + 4*k
def BR(buf, d): return 160 + 32*buf + 4*d
def ACCR(p, tt): return 8 + 8*(p & 1) + 4*tt
RDF, XQ, UQ, TE = 248, 24, 26, 28
def step_loads(p, rls, buf):
    ls = []
    nb = 2*p + 2
    for i, rl in enumerate(rls):
        bl = [f"ds_read_b128 {v(BR(buf, nb*i + d),4)}, {v(VB_)} offset:{512*d + 64*(3 - rl)}" for d in range(nb)]
        al = []
        for k in (2*p, 2*p+1):
            off = 64 * (63 - 8*k - rl)
            al.append(f"ds_read_b64 {v(AR(rl,k),2)}, {v(VA_)} offset:{off}")
            al.append(f"ds_read_b64 {v(AR(rl,k)+2,2)}, {v(VA_)} offset:{off+8}")
        ls += bl[:2] + al + bl[2:]
    return ["    " + x for x in ls]
def fin_reads(p):
    base = L_R1 + 8192*(p & 1)
    for w in range(4):
        I(f"ds_read_b64 {v(RDF+2*w,2)}, {v(VRR)} offset:{base + 2048*w}")
    I(f"ds_read_b64 {v(XQ,2)}, {v(VEX)} offset:{L_XL + 2048*p}")
    for d in range(2):
        I(f"ds_read_b32 {v(UQ+d)}, {v(VEU)} offset:{L_U + 512 + d*U_D + 1024*p}")
def fin_math(p):
    I(f"v_pk_add_f32 {v(RDF,2)}, {v(RDF,2)}, {v(RDF+2,2)}")
    I(f"v_pk_add_f32 {v(RDF+4,2)}, {v(RDF+4,2)}, {v(RDF+6,2)}")
    for e in range(2):
        a = TE if e == 0 else RDF + 2
        c = TE + 2 if e == 0 else RDF + 6
        unpack(a, XQ+e)
        for d in range(2):
            if e: I(f"v_and_b32 {v(c+d)}, {s(S_MASK)}, {v(UQ+d)}")
            else: I(f"v_lshlrev_b32 {v(c+d)}, 16, {v(UQ+d)}")
        I(f"v_add_f32 {v(a)}, {v(a)}, {v(RDF+e)}")
        I(f"v_add_f32 {v(a+1)}, {v(a+1)}, {v(RDF+4+e)}")
        I(f"v_pk_fma_f32 {v(a,2)}, {v(c,2)}, {s(S_DS2,2)}, {v(a,2)}")
        I(f"v_cvt_pk_bf16_f32 {v(XQ+e)}, {v(a)}, {v(a+1)}")
        I(f"s_sub_u32 {s(S_T0)}, {s(S_TK[0])}, {512*p + e}")
        I(f"s_sub_u32 {s(S_T1)}, {s(S_TK[1])}, {512*p + e}")
        I(f"v_cmp_ne_u32 vcc, {s(S_T0)}, {v(VT0)}")
        I(f"v_cmp_ne_u32 {s(S_T2,2)}, {s(S_T1)}, {v(VT0)}")
        I(f"s_and_b64 exec, vcc, {s(S_T2,2)}\n    global_store_dword {v(VOUT)}, {v(XQ+e)}, {s(P_OUT,2)} offset:{e*1024}\n    s_mov_b64 exec, -1")
    I(f"ds_write_b64 {v(VEX)}, {v(XQ,2)} offset:{L_XL + 2048*p}")
    if p < 3: I(f"v_add_u32 {v(VOUT)}, 0x80000, {v(VOUT)}")
steps = [(0, [0, 1, 2, 3]), (1, [0, 1]), (1, [2, 3])] + [(p, [rl]) for p in (2, 3) for rl in range(4)]
first_loads = step_loads(*steps[0], 0)
out.extend(first_loads)
I(f"s_waitcnt lgkmcnt(15)")
I(f"v_readfirstlane_b32 {s(S_K1)}, {v(24)}")
I(f"v_readfirstlane_b32 {s(S_K2)}, {v(25)}")
for k_, SKK in enumerate((S_K1, S_K2)):
    I(f"s_and_b32 {s(S_T0)}, {s(SKK)}, 0xffff")
    I(f"s_sub_u32 {s(S_TK[k_])}, 0xffff, {s(S_T0)}")
    I(f"s_bfe_u32 {s(S_T1)}, {s(S_TK[k_])}, 0x10008")
    I(f"s_lshl_b32 {s(S_T1)}, {s(S_T1)}, 1")
    I(f"s_bfe_u32 {s(S_T2)}, {s(S_TK[k_])}, 0x10001")
    I(f"s_or_b32 {s(S_T1)}, {s(S_T1)}, {s(S_T2)}")
    I(f"s_cmp_eq_u32 {s(S_T1)}, {s(S_WAVE)}")
    I(f"s_cselect_b32 {s(S_OW[k_])}, 1, 0")
    I(f"s_cmp_lt_u32 {s(S_TK[k_])}, 2048")
    I(f"s_cselect_b32 {s(S_OW[k_])}, {s(S_OW[k_])}, 0")
for si, (p, rls) in enumerate(steps):
    buf = si & 1
    nxt = step_loads(*steps[si+1], 1-buf) if si + 1 < len(steps) else []
    fl = []
    early = p > 0 and rls[0] == 0
    if early:
        with capture() as fl: fin_math(p-1)
    if si == len(steps) - 1:
        PB = BR(1-buf, 0)
        PA = BR(1-buf, 4)
        def part_issue(k_):
            I(f"global_load_dwordx4 {v(PB+8*k_,4)}, {v(PA+2*k_)}, {s(S_PART,2)} sc1")
            I(f"s_bfm_b64 exec, {G-64}, 0")
            I(f"global_load_dwordx4 {v(PB+8*k_+4,4)}, {v(PA+2*k_+1)}, {s(S_PART,2)} sc1")
            I("s_mov_b64 exec, -1")
        for k_ in range(2):
            I(f"s_cmp_eq_u32 {s(S_OW[k_])}, 0")
            I(f"s_cbranch_scc1 L_np{k_}")
            I(f"s_lshl_b32 {s(S_T1)}, {s(S_DP)}, 4")
            I(f"s_add_u32 {s(S_T1)}, {s(S_T1)}, {k_ << 19}")
            I(f"v_lshl_add_u32 {v(PA+2*k_)}, {v(VL)}, 12, {s(S_T1)}")
            I(f"v_add_u32 {v(PA+2*k_+1)}, 0x40000, {v(PA+2*k_)}")
            I(f"v_mov_b32 {v(PB+8*k_+4)}, 0")
            I(f"v_mov_b32 {v(PB+8*k_+5)}, {s(S_NONCE)}")
            I(f"v_mov_b32 {v(PB+8*k_+6)}, 0")
            I(f"v_mov_b32 {v(PB+8*k_+7)}, {s(S_NONCE)}")
            part_issue(k_)
            L(f"L_np{k_}")
        I("s_nop 3")
    nb = 2*p + 2
    work = []
    for i, rl in enumerate(rls):
        pairs = [(ch, T-ch) for T in (2*p, 2*p+1) for ch in range(T+1)]
        pairs.sort(key=lambda q: (max(q[0] if q[0] >= 2*p else 0, q[1])))
        work += [(i, rl, ch, dl) for (ch, dl) in pairs]
    if si > 0 and not early: I("s_waitcnt lgkmcnt(0)")
    if early: fin_reads(p-1)
    seen = set()
    skip = 3 if early else 0
    pern = -(-len(nxt) // len(work)) if nxt else 0
    perf = -(-len(fl) // (len(work) - skip)) if fl else 0
    ni = fi = 0
    lasti = -1
    for (i, rl, ch, dl) in work:
        if si == 0 and i != lasti:
            lasti = i
            I(f"s_waitcnt lgkmcnt({min(15, len(first_loads) - 6*(i+1) + ni)})")
        T = ch + dl
        acc = ACCR(p, T & 1)
        first = rl == 0 and T not in seen; seen.add(T)
        I(f"v_mfma_f32_16x16x32_bf16 {v(acc,4)}, {v(AR(rl,ch),4)}, {v(BR(buf,nb*i+dl),4)}, {'0' if first else v(acc,4)}")
        out.extend(nxt[ni:ni+pern]); ni += len(nxt[ni:ni+pern])
        if skip > 0:
            skip -= 1
            if skip == 0: I(f"s_waitcnt lgkmcnt({min(15, ni)})")
            continue
        out.extend(fl[fi:fi+perf]); fi += perf
    out.extend(nxt[ni:]); out.extend(fl[fi:])
    if rls[-1] == 3:
        I("s_nop 7")
        for tt in range(2):
            I(f"ds_write_b128 {v(VRW)}, {v(ACCR(p,tt),4)} offset:{L_R1 + 8192*(p & 1) + 1024*tt}")
        I("s_waitcnt lgkmcnt(0)")
        I("s_barrier")
        if p in (1, 3): stamp()
fin_reads(3)
I("s_waitcnt lgkmcnt(0)")
fin_math(3)
stamp()
C("---- routed rows: out = base row + sigmoid(r) * FFN(row)")
I("s_waitcnt lgkmcnt(0)")
for k_, SKK in enumerate((S_K1, S_K2)):
    B_ = PB + 8*k_
    I(f"s_cmp_eq_u32 {s(S_OW[k_])}, 0")
    I(f"s_cbranch_scc1 L_fix_skip{k_}")
    I(f"s_lshl_b32 {s(S_T2)}, {s(S_TK[k_])}, 2")
    I(f"v_mov_b32 {v(77)}, {s(S_T2)}")
    I(f"ds_read_b32 {v(79)}, {v(77)} offset:{L_XL}")
    I(f"s_lshr_b32 {s(S_T2)}, {s(SKK)}, 16")
    I(f"s_lshr_b32 {s(S_T3)}, {s(S_T2)}, 15")
    I(f"s_cmp_eq_u32 {s(S_T3)}, 1")
    I(f"s_mov_b32 {s(S_T3)}, 0xffff")
    I(f"s_cselect_b32 {s(S_T3)}, 0x8000, {s(S_T3)}")
    I(f"s_xor_b32 {s(S_T2)}, {s(S_T2)}, {s(S_T3)}")
    I(f"s_lshl_b32 {s(S_T2)}, {s(S_T2)}, 16")
    I(f"v_mov_b32 {v(92)}, {f2u(-LOG2E):#x}")
    I(f"v_mul_f32 {v(92)}, {s(S_T2)}, {v(92)}")
    I(f"v_exp_f32 {v(92)}, {v(92)}")
    I("s_nop 0")
    I(f"v_add_f32 {v(92)}, 1.0, {v(92)}")
    I(f"v_rcp_f32 {v(92)}, {v(92)}")
    I("s_nop 0")
    I(f"v_cvt_pk_bf16_f32 {v(92)}, {v(92)}, {v(92)}")
    I(f"v_lshlrev_b32 {v(92)}, 16, {v(92)}")
    I(f"s_mov_b32 {s(S_CNT)}, 0")
    I("s_waitcnt vmcnt(2)")
    I(f"s_branch L_fixchk{k_}")
    L(f"L_fixpoll{k_}")
    I("s_sleep 2")
    part_issue(k_)
    I("s_waitcnt vmcnt(0)")
    L(f"L_fixchk{k_}")
    I(f"v_xor_b32 {v(88)}, {s(S_NONCE)}, {v(B_+1)}")
    I(f"v_xor_b32 {v(89)}, {s(S_NONCE)}, {v(B_+3)}")
    I(f"v_xor_b32 {v(93)}, {s(S_NONCE)}, {v(B_+5)}")
    I(f"v_xor_b32 {v(94)}, {s(S_NONCE)}, {v(B_+7)}")
    I(f"v_or3_b32 {v(88)}, {v(88)}, {v(89)}, {v(93)}")
    I(f"v_or_b32 {v(88)}, {v(88)}, {v(94)}")
    I(f"v_cmp_ne_u32 vcc, 0, {v(88)}")
    I(f"s_add_u32 {s(S_CNT)}, {s(S_CNT)}, 1")
    I(f"s_cmp_eq_u64 vcc, 0")
    I(f"s_cbranch_scc1 L_fixdone{k_}")
    I(f"s_cmp_lt_u32 {s(S_CNT)}, {POLL_LIMIT}")
    I(f"s_cbranch_scc1 L_fixpoll{k_}")
    L(f"L_fixdone{k_}")
    I(f"v_add_f32 {v(80)}, {v(B_)}, {v(B_+4)}")
    I(f"v_add_f32 {v(82)}, {v(B_+2)}, {v(B_+6)}")
    I("s_nop 0")
    dpp_reduce([80, 82])
    I("s_nop 0")
    I(f"v_cvt_pk_bf16_f32 {v(84)}, {v(80)}, {v(82)}")
    unpack(80, 84)
    I("s_waitcnt lgkmcnt(0)")
    unpack(82, 79)
    I(f"v_pk_fma_f32 {v(80,2)}, {v(80,2)}, {v(92,2)}, {v(82,2)} op_sel_hi:[1,0,1]")
    I(f"v_cvt_pk_bf16_f32 {v(84+k_)}, {v(80)}, {v(81)}")
    I(f"s_lshl_b32 {s(S_T1)}, {s(S_TK[k_])}, 10")
    I(f"s_lshl_b32 {s(S_T2)}, {s(S_DP)}, 2")
    I(f"s_add_u32 {s(S_T1)}, {s(S_T1)}, {s(S_T2)}")
    I(f"v_mov_b32 {v(86+k_)}, {s(S_T1)}")
    I("s_lshl_b64 exec, 1, 63")
    I(f"global_store_dword {v(86+k_)}, {v(84+k_)}, {s(P_OUT,2)}")
    I("s_mov_b64 exec, -1")
    L(f"L_fix_skip{k_}")
I("s_branch L_fin")

L("L_ffn")
nstamp[0] = 1
C("==== FFN role")
S_G = 47
I(f"s_sub_u32 {s(S_T0)}, s2, {NLN + NCONV}")
I(f"s_and_b32 {s(S_T1)}, {s(S_T0)}, 7")
I(f"s_mul_i32 {s(S_T1)}, {s(S_T1)}, 14")
I(f"s_lshr_b32 {s(S_T0)}, {s(S_T0)}, 3")
I(f"s_add_u32 {s(S_G)}, {s(S_T0)}, {s(S_T1)}")
WL = 32
t1, t2, t3, t4 = 12, 13, 14, 15
I(f"v_lshlrev_b32 {v(t4)}, 4, v0")
I(f"v_lshrrev_b32 {v(t1)}, 2, v0")
I(f"v_mul_u32_u24 {v(t1)}, 3584, {v(t1)}")
I(f"v_and_b32 {v(t2)}, 1, v0")
I(f"v_lshl_add_u32 {v(t1)}, {v(t2)}, 4, {v(t1)}")
I(f"s_lshl_b32 {s(S_T0)}, {s(S_G)}, 5")
I(f"v_add_u32 {v(t1)}, {s(S_T0)}, {v(t1)}")
I(f"v_and_b32 {v(t2)}, 2, v0")
I(f"v_cmp_eq_u32 vcc, 0, {v(t2)}")
I("s_waitcnt lgkmcnt(0)")
I(f"v_mov_b32 {v(16)}, {s(P_WU)}")
I(f"v_mov_b32 {v(17)}, {s(P_WU+1)}")
I(f"v_mov_b32 {v(18)}, {s(P_WG)}")
I(f"v_mov_b32 {v(19)}, {s(P_WG+1)}")
I(f"v_cndmask_b32 {v(16)}, {v(16)}, {v(18)}, vcc")
I(f"v_cndmask_b32 {v(17)}, {v(17)}, {v(19)}, vcc")
I(f"v_add_co_u32 {v(16)}, vcc, {v(16)}, {v(t1)}")
I("s_nop 1")
I(f"v_addc_co_u32 {v(17)}, vcc, {v(17)}, {v(VZ)}, vcc")
I(f"s_add_u32 {s(S_PART)}, {s(P_WS)}, {WS_PART}")
I(f"s_addc_u32 {s(S_PART+1)}, {s(P_WS+1)}, 0")
stamp()
I(f"s_mov_b32 {s(S_T1)}, {64*3584}")
WD = 96
I(f"s_lshl_b32 {s(S_T0)}, {s(S_G)}, 14")
I(f"v_lshl_add_u32 {v(t3)}, v0, 2, {s(S_T0)}")
for p in range(8):
    I(f"global_load_dwordx4 {v(WL+4*p,4)}, {v(16,2)}, off")
    if p < 7:
        I(f"v_add_co_u32 {v(16)}, vcc, {s(S_T1)}, {v(16)}")
        I("s_nop 1")
        I(f"v_addc_co_u32 {v(17)}, vcc, {v(17)}, {v(VZ)}, vcc")
for f in range(16):
    if f and f % 4 == 0:
        I(f"v_add_u32 {v(t3)}, 4096, {v(t3)}")
    I(f"global_load_dword {v(WD+f)}, {v(t3)}, {s(P_WD,2)} offset:{(f&3)*1024}")
nonce_issue(VZ, 22)
for p in range(8):
    I(f"s_waitcnt vmcnt({17 + 7 - p})")
    I(f"ds_write_b128 {v(t4)}, {v(WL+4*p,4)} offset:{F_W + 4096*p}")
stamp()
I(f"v_lshrrev_b32 {v(t1)}, 2, {v(VJ)}")
I(f"v_lshl_add_u32 {v(t1)}, {v(VKG)}, 3, {v(t1)}")
I(f"v_lshlrev_b32 {v(t1)}, 6, {v(t1)}")
I(f"v_and_b32 {v(t2)}, 1, {v(VL)}")
I(f"v_lshl_add_u32 {v(t1)}, {v(t2)}, 3, {v(t1)}")
I(f"v_and_b32 {v(t2)}, 2, {v(VL)}")
I(f"v_lshl_add_u32 {v(t1)}, {v(t2)}, 4, {v(t1)}")
I(f"s_and_b32 {s(S_T0)}, {s(S_WAVE)}, 1")
I(f"s_lshl_b32 {s(S_T0)}, {s(S_T0)}, 4")
I(f"v_add_u32 {v(t1)}, {s(S_T0)}, {v(t1)}")
I("s_waitcnt lgkmcnt(0)")
I("s_barrier")
for st in range(16):
    I(f"ds_read_b64_tr_b16 {v(WL+4*st,2)}, {v(t1)} offset:{F_W + 2048*st}")
    I(f"ds_read_b64_tr_b16 {v(WL+4*st+2,2)}, {v(t1)} offset:{F_W + 2048*st + 256}")
WF = 128
nonce_wait(VZ, 22)
for f in range(16): unpack(WF+2*f, WD+f)
I(f"v_bfe_u32 {v(t2)}, {v(VJ)}, 2, 1")
I(f"v_lshlrev_b32 {v(t2)}, 10, {v(t2)}")
I(f"v_lshl_add_u32 {v(t2)}, {v(VKG)}, 4, {v(t2)}")
I(f"s_and_b32 {s(S_T1)}, {s(S_WAVE)}, 1")
I(f"s_lshl_b32 {s(S_T1)}, {s(S_T1)}, 9")
I(f"v_lshl_add_u32 {v(24)}, {v(VL)}, 3, {s(S_T1)}")
I(f"s_lshr_b32 {s(S_T0)}, {s(S_WAVE)}, 1")
I(f"s_lshl_b32 {s(S_T1)}, {s(S_T0)}, 10")
I(f"v_add_u32 {v(25)}, {s(S_T1)}, {v(24)}")
I("s_waitcnt lgkmcnt(0)")
stamp()
GK = 192
I(f"s_setprio {FPRIO}")
I(f"s_cmp_lg_u32 {s(S_WAVE)}, 0")
I("s_cbranch_scc1 L_fk_wait")
keys_poll(VKEY, GK, 20, sl=opt('fsleep', 6))
keys_top2(GK, 224, 225, 21, 22)
I(f"ds_write_b64 {v(VZ)}, {v(224,2)} offset:{L_MISC + 16}")
I("s_waitcnt lgkmcnt(0)")
L("L_fk_wait")
I("s_barrier")
stamp()
I(f"ds_read_b64 {v(224,2)}, {v(VZ)} offset:{L_MISC + 16}")
I("s_waitcnt lgkmcnt(0)")
I(f"v_readfirstlane_b32 {s(S_K1)}, {v(224)}")
I(f"v_readfirstlane_b32 {s(S_K2)}, {v(225)}")
I(f"s_cmp_lt_u32 {s(S_WAVE)}, 2")
I("s_nop 2")
I(f"s_cselect_b32 {s(S_T0)}, {s(S_K1)}, {s(S_K2)}")
I(f"s_and_b32 {s(S_T0)}, {s(S_T0)}, 0xffff")
I(f"s_sub_u32 {s(S_T0)}, 0xffff, {s(S_T0)}")
I(f"s_min_u32 {s(S_T0)}, {s(S_T0)}, 2047")
I(f"s_lshl_b32 {s(S_T1)}, {s(S_T0)}, 10")
I(f"v_add_u32 {v(97)}, {s(S_T1)}, {v(24)}")
I(f"s_lshl_b32 {s(S_T1)}, {s(S_T0)}, 3")
I(f"v_mov_b32 {v(99)}, {s(S_T1)}")
I(f"global_load_dwordx2 {v(100,2)}, {v(97)}, {s(P_U,2)}")
I(f"s_mov_b32 {s(S_CNT)}, 0")
L("L_f_stat")
I(f"global_load_dwordx2 {v(104,2)}, {v(99)}, {s(P_WS,2)} sc1")
I("s_waitcnt vmcnt(0)")
I(f"v_cmp_ne_u32 vcc, {s(S_NONCE)}, {v(105)}")
I(f"s_add_u32 {s(S_CNT)}, {s(S_CNT)}, 1")
I(f"s_cmp_eq_u64 vcc, 0")
I(f"s_cbranch_scc1 L_f_stat_done")
I("s_sleep 1")
I(f"s_cmp_lt_u32 {s(S_CNT)}, {POLL_LIMIT}")
I(f"s_cbranch_scc1 L_f_stat")
L("L_f_stat_done")
stamp()
I(f"v_and_b32 {v(106)}, {s(S_MASK)}, {v(104)}")
I(f"v_lshlrev_b32 {v(104)}, 16, {v(104)}")
I(f"v_rcp_f32 {v(106)}, {v(106)}")
for k in range(2): unpack(108+2*k, 100+k)
for k in range(2): I(f"v_pk_add_f32 {v(108+2*k,2)}, {v(108+2*k,2)}, {v(104,2)} op_sel_hi:[1,0] neg_lo:[0,1] neg_hi:[0,1]")
for k in range(2): I(f"v_cvt_pk_bf16_f32 {v(100+k)}, {v(108+2*k)}, {v(109+2*k)}")
for k in range(2): unpack(108+2*k, 100+k)
for k in range(2): I(f"v_pk_mul_f32 {v(108+2*k,2)}, {v(108+2*k,2)}, {v(106,2)} op_sel_hi:[1,0]")
for k in range(2): I(f"v_cvt_pk_bf16_f32 {v(100+k)}, {v(108+2*k)}, {v(109+2*k)}")
I(f"ds_write_b64 {v(25)}, {v(100,2)} offset:{F_XS}")
I("s_waitcnt lgkmcnt(0)")
I("s_barrier")
I(f"s_cmp_ge_u32 {s(S_WAVE)}, 2")
I("s_cbranch_scc1 L_f_nogu")
AX = 160
for st in range(16):
    I(f"ds_read_b128 {v(AX+4*st,4)}, {v(t2)} offset:{F_XS + 64*st}")
AC = 96
for st in range(16):
    I(f"s_waitcnt lgkmcnt({15-st})")
    a = AC + 4*(st & 1)
    I(f"v_mfma_f32_16x16x32_bf16 {v(a,4)}, {v(AX+4*st,4)}, {v(WL+4*st,4)}, {'0' if st < 2 else v(a,4)}")
I(f"v_lshlrev_b32 {v(107)}, 7, {v(VKG)}")
I(f"v_lshl_add_u32 {v(107)}, {v(VJ)}, 3, {v(107)}")
I(f"s_lshl_b32 {s(S_T0)}, {s(S_WAVE)}, 6")
I(f"v_add_u32 {v(107)}, {s(S_T0)}, {v(107)}")
I("s_nop 4")
I(f"v_add_f32 {v(104)}, {v(AC)}, {v(AC+4)}")
I(f"v_cvt_pk_bf16_f32 {v(104)}, {v(104)}, {v(104)}")
I(f"v_lshlrev_b32 {v(104)}, 16, {v(104)}")
I(f"v_mul_f32 {v(105)}, {f2u(-LOG2E):#x}, {v(104)}")
I(f"v_exp_f32 {v(105)}, {v(105)}")
I(f"v_mov_b32_dpp {v(106)}, {v(104)} row_ror:8 row_mask:0xf bank_mask:0xf")
I(f"v_add_f32 {v(105)}, 1.0, {v(105)}")
I(f"v_rcp_f32 {v(105)}, {v(105)}")
I("s_nop 0")
I(f"v_mul_f32 {v(105)}, {v(104)}, {v(105)}")
I(f"v_cvt_pk_bf16_f32 {v(105)}, {v(105)}, {v(105)}")
I(f"v_lshlrev_b32 {v(105)}, 16, {v(105)}")
I(f"v_mul_f32 {v(105)}, {v(105)}, {v(106)}")
I(f"v_cvt_pk_bf16_f32 {v(105)}, {v(105)}, {v(105)}")
I(f"v_lshlrev_b32 {v(105)}, 16, {v(105)}")
I("s_mov_b64 exec, 0x00ff00ff")
I(f"ds_write2_b32 {v(107)}, {v(105)}, {v(105)} offset0:{F_H//4} offset1:{F_H//4+1}")
I("s_mov_b64 exec, -1")
I("s_waitcnt lgkmcnt(0)")
L("L_f_nogu")
I("s_barrier")
HB = 160
for q in range(16):
    I(f"ds_read_b128 {v(HB+4*q,4)}, {v(VZ)} offset:{F_H + 16*q}")
Y0, Y1 = 96, 100
I(f"s_lshl_b32 {s(S_T0)}, {s(S_G)}, 12")
I(f"v_lshl_add_u32 {v(112)}, v0, 4, {s(S_T0)}")
I(f"v_add_u32 {v(113)}, 0x80000, {v(112)}")
for Y in (Y0, Y1):
    I(f"v_mov_b32 {v(Y+1)}, {s(S_NONCE)}")
    I(f"v_mov_b32 {v(Y+3)}, {s(S_NONCE)}")
for q in range(16):
    tok = q >> 3
    I(f"s_waitcnt lgkmcnt({15-q})")
    for e in range(2):
        f = 2*(q & 7) + e
        acc = 104 + 4*tok + 2*e
        hp = HB + 4*q + 2*e
        if f < 2:
            I(f"v_pk_mul_f32 {v(acc,2)}, {v(WF+2*f,2)}, {v(hp,2)}")
        else:
            I(f"v_pk_fma_f32 {v(acc,2)}, {v(WF+2*f,2)}, {v(hp,2)}, {v(acc,2)}")
    if q == 7 or q == 15:
        Y = Y0 if q == 7 else Y1
        I(f"v_add_f32 {v(Y)}, {v(104+4*tok)}, {v(106+4*tok)}")
        I(f"v_add_f32 {v(Y+2)}, {v(105+4*tok)}, {v(107+4*tok)}")
        I(f"global_store_dwordx4 {v(112+tok)}, {v(Y,4)}, {s(S_PART,2)} sc1")
stamp()
L("L_fin")
if STAMP:
    I("s_waitcnt vmcnt(0) lgkmcnt(0)")
    I(f"s_memtime {s(S_ST + 22, 2)}")
    I(f"s_memrealtime {s(S_T2, 2)}")
    I(f"s_add_u32 {s(S_STB)}, {s(P_WS)}, {WS_STAMP}")
    I(f"s_addc_u32 {s(S_STB+1)}, {s(P_WS+1)}, 0")
    I(f"s_lshl_b32 {s(S_T0)}, s2, 2")
    I(f"s_add_u32 {s(S_T0)}, {s(S_T0)}, {s(S_WAVE)}")
    I(f"s_lshl_b32 {s(S_T0)}, {s(S_T0)}, 7")
    I("s_waitcnt lgkmcnt(0)")
    I(f"v_mov_b32 v10, {s(S_T0)}")
    I("s_mov_b64 exec, 1")
    for k in range(12):
        I(f"v_mov_b32 v12, {s(S_ST+2*k)}")
        I(f"v_mov_b32 v13, {s(S_ST+2*k+1)}")
        I(f"global_store_dwordx2 v10, v[12:13], {s(S_STB,2)} offset:{8*k}")
        I("s_nop 1")
    I(f"v_mov_b32 v12, {s(S_T2)}")
    I(f"v_mov_b32 v13, {s(S_T3)}")
    I(f"global_store_dwordx2 v10, v[12:13], {s(S_STB,2)} offset:96")
L("L_end")
I("s_endpgm")
out.append('.section .rodata,"a"')
out.append(".p2align 6")
out.append(f".amdhsa_kernel {KNAME}")
out.append("  .amdhsa_next_free_vgpr 256")
out.append("  .amdhsa_next_free_sgpr 102")
out.append("  .amdhsa_accum_offset 256")
out.append("  .amdhsa_group_segment_fixed_size 0")
out.append("  .amdhsa_kernarg_size 136")
out.append("  .amdhsa_user_sgpr_count 2")
out.append("  .amdhsa_user_sgpr_kernarg_segment_ptr 1")
out.append("  .amdhsa_system_sgpr_workgroup_id_x 1")
out.append("  .amdhsa_float_denorm_mode_32 3")
out.append(".end_amdhsa_kernel")
dst = [a for a in sys.argv[1:] if not a.startswith("--")]
open(dst[0] if dst else "k.s", "w").write("\n".join(x for x in out if x is not None) + "\n")
```
